```python
import torch

def _softmax(x, axis=-1):
    return torch.softmax(x, dim=axis)
def _gelu(x):
    return torch.nn.functional.gelu(x, approximate="tanh")
def _silu(x):
    return torch.nn.functional.silu(x)
def _sigmoid(x):
    return torch.sigmoid(x)
def _layernorm(x, axis=-1, eps=1e-5):
    m = x.mean(dim=axis, keepdim=True)
    v = x.var(dim=axis, keepdim=True, unbiased=False)
    return (x - m) / torch.sqrt(v + eps)
def _scatter_add(tgt, idx, src, axis=0):
    return tgt.clone().index_add_(axis, idx, src)
def _segment_sum(src, seg, n):
    out = torch.zeros((n,) + src.shape[1:], dtype=src.dtype)
    return out.index_add_(0, seg, src)
def _pad(x, pw):
    flat = tuple(v for pair in reversed(pw) for v in pair)
    return torch.nn.functional.pad(x, flat)

kernel_name = 'parallel_sum__mha_block__geglu_ffn__prompt'

def setup_inputs():

    _w = (lambda a: (lambda t: t.to(torch.bfloat16) if t.is_floating_point() else t)(torch.as_tensor(a)))
    def _A_setup():
        B, S, D, H = 1, 2048, 512, 32
        return {
            "x": _w((lambda *s: torch.randn(*s, dtype=torch.bfloat16) * 0.05)(B, S, D)),
            "wqkv": _w((lambda *s: torch.randn(*s, dtype=torch.bfloat16) * 0.2)(D, 3 * D)),
            "wo": _w((lambda *s: torch.randn(*s, dtype=torch.bfloat16) * 0.1)(D, D)),
        }
    _A_in = _A_setup()

    def _B_setup():
        B, S, D, F = 1, 2048, 512, 1792
        return {
            "x": _w((lambda *s: torch.randn(*s, dtype=torch.bfloat16) * 0.05)(B, S, D)),
            "w_gate": _w((lambda *s: torch.randn(*s, dtype=torch.bfloat16) * 0.1)(D, F)),
            "w_up": _w((lambda *s: torch.randn(*s, dtype=torch.bfloat16) * 0.1)(D, F)),
            "w_down": _w((lambda *s: torch.randn(*s, dtype=torch.bfloat16) * 0.1)(F, D)),
        }
    _B_in = _B_setup()

    return {
        "A_x": _A_in["x"],
        "A_wqkv": _A_in["wqkv"],
        "A_wo": _A_in["wo"],
        "B_x": _B_in["x"],
        "B_w_gate": _B_in["w_gate"],
        "B_w_up": _B_in["w_up"],
        "B_w_down": _B_in["w_down"],
    }

def reference(A_x, A_wqkv, A_wo, B_x, B_w_gate, B_w_up, B_w_down):
    def _A_ref(x, wqkv, wo):
        B, S, D = x.shape
        H = 32
        Dh = D // H
        qkv = (lambda x, *d: x.permute(*d))((x @ wqkv).reshape(B, S, 3, H, Dh), 2, 0, 3, 1, 4)
        q, k, v = qkv[0], qkv[1], qkv[2]
        scores = torch.einsum("bhqd,bhkd->bhqk", q, k) * (Dh ** -0.5)
        p = _softmax(scores, axis=-1)
        o = torch.einsum("bhqk,bhkd->bhqd", p, v)
        return (lambda x, *d: x.permute(*d))(o, 0, 2, 1, 3).reshape(B, S, D) @ wo

    def _B_ref(x, w_gate, w_up, w_down):
        return (_gelu(x @ w_gate) * (x @ w_up)) @ w_down

    x = A_x
    xn = _layernorm(x, axis=-1)
    return x + _A_ref(xn, A_wqkv, A_wo) + _B_ref(xn, B_w_gate, B_w_up, B_w_down)
```

```python
import re

REG_RE = re.compile(r'^(-|\|)?(abs\()?([vas])(\d+|\[(\d+):(\d+)\])\)?\|?$')

def regs_of(tok):
    tok = tok.strip()
    if tok.startswith('-'): tok = tok[1:]
    if tok.startswith('abs(') and tok.endswith(')'): tok = tok[4:-1]
    if tok.startswith('|') and tok.endswith('|'): tok = tok[1:-1]
    if tok == 'vcc': return [('s', 'vcc')]
    if tok == 'exec': return [('s', 'exec')]
    if tok == 'm0': return [('s', 'm0')]
    m = re.match(r'^([vas])(\d+)$', tok)
    if m: return [(m.group(1), int(m.group(2)))]
    m = re.match(r'^([vas])\[(\d+):(\d+)\]$', tok)
    if m: return [(m.group(1), i) for i in range(int(m.group(2)), int(m.group(3)) + 1)]
    return []

TRANS = ('v_exp_f32', 'v_log_f32', 'v_rcp_f32', 'v_rsq_f32', 'v_sqrt_f32', 'v_sin_f32', 'v_cos_f32', 'v_exp_f16', 'v_rcp_iflag_f32')
NO_DST_S = ('s_cmp', 's_waitcnt', 's_barrier', 's_nop', 's_branch', 's_cbranch', 's_setprio', 's_sleep', 's_endpgm', 's_bitcmp')

class Ins:
    __slots__ = ('text', 'op', 'kind', 'w', 'r', 'tag', 'passes', 'srcC', 'wide_store', 'is_label')
    def __init__(self, text, tag=None):
        self.text = text; self.tag = tag; self.is_label = False
        t = text.split(';')[0].strip()
        self.w = []; self.r = []; self.kind = 'other'; self.passes = 0; self.srcC = []; self.wide_store = False
        if not t: self.op = ''; self.kind = 'none'; return
        if t.endswith(':'): self.op = ''; self.kind = 'label'; self.is_label = True; return
        if t.startswith('.'): self.op = ''; self.kind = 'directive'; return
        parts = t.split(None, 1)
        op = parts[0]; self.op = op
        rest = parts[1] if len(parts) > 1 else ''
        ops = []; cur = ''; depth = 0
        for ch in rest:
            if ch == '[': depth += 1
            if ch == ']': depth -= 1
            if ch == ',' and depth == 0: ops.append(cur.strip()); cur = ''
            else: cur += ch
        if cur.strip(): ops.append(cur.strip())
        mods = ''
        if ops:
            sp = ops[-1].split(None, 1)
            if len(sp) > 1: ops[-1] = sp[0]; mods = sp[1]
        R = lambda i: regs_of(ops[i]) if i < len(ops) else []
        allr = lambda a: [x for i in range(a, len(ops)) for x in regs_of(ops[i])]
        base = op.replace('_e32', '').replace('_e64', '').replace('_dpp', '').replace('_sdwa', '')
        if op.startswith('v_mfma'):
            self.kind = 'mfma'; self.w = R(0); self.r = allr(1); self.srcC = R(3)
            self.passes = 8 if '32x32' in op else 4
        elif op.startswith('ds_read') or op.startswith('ds_bpermute') or op.startswith('ds_swizzle'):
            self.kind = 'ds'; self.w = R(0); self.r = allr(1)
        elif op.startswith('ds_'):
            self.kind = 'ds'; self.r = allr(0)
        elif op.startswith('buffer_') or op.startswith('global_'):
            self.kind = 'vmem'
            toks = (mods or '').split()
            if op in ('buffer_inv', 'buffer_wbl2'):
                pass
            elif 'lds' in toks or '_lds_' in op:
                self.r = allr(0) + [('s', 'm0')]
            elif 'load' in op:
                self.w = R(0); self.r = allr(1)
            elif 'atomic' in op:
                self.r = allr(0)
                if 'sc0' in toks: self.w = R(0)
            else:
                self.r = allr(0)
                if 'x4' in op or 'x3' in op: self.wide_store = True
        elif op.startswith('s_load') or op.startswith('s_memtime') or op.startswith('s_memrealtime') or op.startswith('s_buffer_load'):
            self.kind = 'smem'; self.w = R(0); self.r = allr(1)
        elif op.startswith('s_'):
            self.kind = 'salu'
            if any(op.startswith(p) for p in NO_DST_S):
                self.r = allr(0)
                if op == 's_waitcnt': self.kind = 'waitcnt'
                if op == 's_nop': self.kind = 'nop'
                if op == 's_barrier': self.kind = 'barrier'
                if op.startswith('s_branch') or op.startswith('s_cbranch') or op == 's_endpgm': self.kind = 'branch'
            else:
                self.w = R(0); self.r = allr(1)
                if 'saveexec' in op: self.w = self.w + [('s', 'exec')]; self.r = self.r + [('s', 'exec')]
        elif op.startswith('v_'):
            self.kind = 'trans' if base in TRANS else 'valu'
            if base.startswith('v_cmp'):
                self.w = R(0); self.r = allr(1)
                if base.startswith('v_cmpx'): self.w = self.w + [('s', 'exec')]
            elif base in ('v_permlane32_swap_b32', 'v_permlane16_swap_b32', 'v_swap_b32'):
                self.w = R(0) + R(1); self.r = R(0) + R(1); self.kind = 'permlane'
            elif base in ('v_add_co_u32', 'v_sub_co_u32', 'v_addc_co_u32', 'v_subb_co_u32'):
                self.w = R(0) + R(1); self.r = allr(2)
            elif base.startswith('v_fmac') or base.startswith('v_dot2c') or base.startswith('v_pk_fmac'):
                self.w = R(0); self.r = allr(0)
            else:
                self.w = R(0); self.r = allr(1)
            if '_dpp' in op or 'row_' in mods or 'quad_perm' in mods: self.kind = 'dpp'
        else:
            raise ValueError('unknown instr: ' + text)

VALU_KINDS = ('valu', 'trans', 'permlane', 'dpp')

def isv(r): return r[0] in 'va'

class Stream:
    def __init__(self):
        self.ins = []
    def __call__(self, text, tag=None):
        for line in text.split('\n'):
            line = line.strip()
            if line == '' : continue
            self.ins.append(Ins(line, tag))
    def label(self, name): self.ins.append(Ins(name + ':'))
    def raw(self, ins): self.ins.append(ins)
    def wait_vm(self, tag):
        i = Ins('; wait_vm ' + str(tag)); i.kind = 'wait_vm'; i.tag = tag; self.ins.append(i)
    def wait_all(self):
        self('s_waitcnt vmcnt(0) lgkmcnt(0)')
    def reset_state(self):
        i = Ins('; reset_state'); i.kind = 'reset'; self.ins.append(i)

class Processor:
    def __init__(self, auto_nop=True, verbose=False):
        self.out = []
        self.lg = []
        self.vm = []
        self.slot = 0
        self.lastw = {}
        self.lastC = {}
        self.lastst = {}
        self.exec_valu = -100
        self.auto_nop = auto_nop
        self.nops_inserted = 0
        self.waits_inserted = 0
        self.nop_log = []
    def emit(self, text, slots=1):
        self.out.append(text); self.slot += slots
    def state_sig(self):
        return (tuple((tuple(sorted(map(str, s))), sm) for s, sm in self.lg), tuple((tuple(sorted(map(str, s))), t) for s, t in self.vm))
    def do_wait(self, vm=None, lg=None):
        parts = []
        if vm is not None:
            vm = min(vm, 63); parts.append(f'vmcnt({vm})');
            while len(self.vm) > vm: self.vm.pop(0)
        if lg is not None:
            lg = min(lg, 15); parts.append(f'lgkmcnt({lg})')
            while len(self.lg) > lg: self.lg.pop(0)
        self.emit('s_waitcnt ' + ' '.join(parts)); self.waits_inserted += 1
    def need(self, ins):
        worst = 0; why = ''
        def req(slot0, n, w):
            nonlocal worst, why
            have = self.slot - slot0 - 1
            if n - have > worst: worst = n - have; why = w
        rd = ins.r; wr = ins.w
        for r in rd:
            lw = self.lastw.get(r)
            if lw is None: continue
            s0, k, p = lw
            if isv(r):
                if k == 'mfma':
                    n_valu = {4: 8, 8: 12}[p]
                    if ins.kind == 'mfma':
                        if r in ins.srcC and set(ins.srcC) == set(ins.w) and self.mfma_same_chain(r, ins): pass
                        elif r in ins.srcC: req(s0, {4: 6, 8: 10}[p], f'mfma D->srcC overlap {r}')
                        else: req(s0, n_valu, f'mfma D->A/B {r}')
                    else: req(s0, n_valu, f'mfma D->read {r}')
                elif k in VALU_KINDS:
                    if ins.kind == 'mfma': req(s0, 2, f'valu->mfma {r}')
                    if ins.kind == 'permlane': req(s0, 2, f'valu->permlane {r}')
                    if ins.kind == 'dpp': req(s0, 2, f'valu->dpp {r}')
                    if ins.op.startswith('v_readfirstlane') or ins.op.startswith('v_readlane'): req(s0, 1, f'valu->readlane {r}')
                    if k == 'trans' and ins.kind in VALU_KINDS and ins.kind != 'trans': req(s0, 1, f'trans->valu {r}')
                    if k == 'trans' and ins.kind == 'trans': req(s0, 1, f'trans->trans {r}')
            else:
                if k in VALU_KINDS:
                    if ins.kind == 'vmem': req(s0, 5, f'valu sgpr->vmem {r}')
                    elif ins.kind in VALU_KINDS: req(s0, 2, f'valu sgpr->valu {r}')
                    elif ins.kind in ('salu', 'branch', 'smem'): req(s0, 4, f'valu sgpr->salu {r} (padded)')
                if k == 'salu' and r == ('s', 'm0') and ins.kind in ('vmem', 'ds'): req(s0, 1, 'm0->dma')
        for r in wr:
            if isv(r):
                lw = self.lastw.get(r)
                if lw and lw[1] == 'mfma':
                    s0, k, p = lw
                    if ins.kind == 'mfma':
                        if not (r in ins.srcC and set(ins.srcC) == set(ins.w)):
                            req(s0, {4: 8, 8: 12}[p], f'mfma WAW {r}')
                    else: req(s0, {4: 8, 8: 12}[p], f'mfma D->write {r}')
                lc = self.lastC.get(r)
                if lc and ins.kind in VALU_KINDS: req(lc[0], {4: 3, 8: 7}[lc[1]], f'mfma srcC WAR {r}')
                ls = self.lastst.get(r)
                if ls is not None and ins.kind != 'vmem': req(ls, 2, f'wide store WAR {r}')
        if ins.kind == 'mfma': req(self.exec_valu, 4, 'valu exec->mfma')
        return worst, why
    def mfma_same_chain(self, r, ins):
        lw = self.lastw.get(r)
        return lw is not None and getattr(self, '_lastD', {}).get(r) == tuple(ins.w)
    def step(self, ins):
        k = ins.kind
        if k in ('none', 'directive'):
            self.out.append(ins.text); return
        if k == 'label':
            self.out.append(ins.text); return
        if k == 'reset':
            assert not self.lg and not self.vm, f'reset with outstanding ops lg={self.lg} vm={self.vm}'
            return
        if k == 'wait_vm':
            idx = -1
            for i, (s, t) in enumerate(self.vm):
                if t == ins.tag or (isinstance(t, tuple) and ins.tag in t): idx = i
            if idx >= 0: self.do_wait(vm=len(self.vm) - 1 - idx)
            else: self.out.append(f'; (wait_vm {ins.tag}: nothing outstanding)')
            return
        if k == 'waitcnt':
            m = re.search(r'vmcnt\((\d+)\)', ins.text)
            if m:
                n = int(m.group(1))
                while len(self.vm) > n: self.vm.pop(0)
            m = re.search(r'lgkmcnt\((\d+)\)', ins.text)
            if m:
                n = int(m.group(1))
                if n == 0: self.lg = []
                elif not any(sm for _, sm in self.lg):
                    while len(self.lg) > n: self.lg.pop(0)
            self.emit(ins.text); return
        if k == 'nop':
            n = int(ins.text.split(';')[0].split()[1]); self.emit(ins.text, n + 1); return
        touched = set(ins.r) | set(ins.w)
        lgi = -1
        for i, (s, sm) in enumerate(self.lg):
            if s & touched: lgi = i
        vmi = -1
        for i, (s, t) in enumerate(self.vm):
            if s & touched: vmi = i
        nlg = nvm = None
        if lgi >= 0:
            nlg = 0 if any(sm for _, sm in self.lg) else len(self.lg) - 1 - lgi
        if vmi >= 0: nvm = len(self.vm) - 1 - vmi
        if nlg is not None or nvm is not None: self.do_wait(vm=nvm, lg=nlg)
        n, why = self.need(ins)
        if n > 0:
            if not self.auto_nop: raise RuntimeError(f'hazard: {why} needs {n} more before: {ins.text}')
            self.nop_log.append((why, n, ins.text))
            self.nops_inserted += n
            while n > 0:
                c = min(n, 16); self.emit(f's_nop {c-1}', c); n -= c
        s0 = self.slot
        self.emit(ins.text)
        if k == 'ds':
            if len(self.lg) >= 15: pass
            self.lg.append((set(ins.w), False))
        elif k == 'smem':
            self.lg.append((set(ins.w), True))
        elif k == 'vmem':
            if ins.tag != 'nocount': self.vm.append((set(ins.w), ins.tag))
            if ins.wide_store:
                for r in ins.r:
                    if isv(r): self.lastst[r] = s0
        for r in ins.w:
            if k in ('ds', 'smem', 'vmem'):
                self.lastw.pop(r, None); continue
            self.lastw[r] = (s0, k, ins.passes)
            if k == 'mfma':
                if not hasattr(self, '_lastD'): self._lastD = {}
                self._lastD[r] = tuple(ins.w)
            if r == ('s', 'exec') and k in VALU_KINDS: self.exec_valu = s0
        if k == 'mfma':
            for r in ins.srcC: self.lastC[r] = (s0, ins.passes)
    def run(self, stream):
        for ins in stream.ins: self.step(ins)
        return self
    def text(self): return '\n'.join(self.out)

class VAlloc:
    def __init__(self, n, prefix='v', start=0):
        self.n = n; self.p = prefix; self.next = start; self.names = {}; self.hi = start
    def alloc(self, cnt=1, align=1, name=None):
        a = (self.next + align - 1) // align * align
        assert a + cnt <= self.n, f'out of {self.p} regs ({name})'
        self.next = a + cnt; self.hi = max(self.hi, self.next)
        if name: self.names[name] = (a, cnt)
        return a
    def mark(self): return self.next
    def release(self, m): self.next = m

def vr(a, n=1, p='v'):
    return f'{p}{a}' if n == 1 else f'{p}[{a}:{a+n-1}]'
def sr(a, n=1): return vr(a, n, 's')
```

```python
import sys, os
sys.path.insert(0, 'gen')
from common import *
from k_gemm1 import gen_gemm1, LDS1
from k_attn import gen_attn
from k_out import gen_out
NAME = 'parallel_sum__mha_block__geglu_ffn__prompt'
HEADER = open(f'cdna_kernels/{NAME}.s.ref').read().split('; Override launch geometry')[0]
def build(opts=None, path=None):
    opts = opts or {}
    k1, p1, v1 = gen_gemm1('gemm1_kernel', **opts.get('g1', {}))
    k2, p2, v2 = gen_attn('attn_kernel', **opts.get('attn', {}))
    k3, p3, v3, lds3 = gen_out('outproj_kernel', **opts.get('out', {}))
    launches = [('gemm1_kernel', 256, 512, LDS1), ('attn_kernel', 256, 512, 131072), ('outproj_kernel', 256, 256, lds3)]
    launches += opts.get('extra_launch', [])
    txt = HEADER
    for k, g, b, l in launches: txt += f'; @launch kernel={k} grid=({g},1,1) block=({b},1,1) lds={l}\n'
    txt += '.amdgcn_target "amdgcn-amd-amdhsa--gfx950"\n' + k1 + '\n' + k2 + '\n' + k3
    txt += opts.get('extra_text', '')
    if path: open(path, 'w').write(txt)
    return txt, launches, [('gemm1_kernel', k1, v1), ('attn_kernel', k2, v2), ('outproj_kernel', k3, v3)]
if __name__ == '__main__':
    build(path=f'cdna_kernels/{NAME}.s')
```

```python
from asmlib import *
Q_OFF   = 0
K_OFF   = 2 << 20
V_OFF   = 4 << 20
ACT_OFF = 6 << 20
ACT_KS  = 144
PART_OFF = 16 << 20
STAMP_OFF = 24 << 20
WS_SIZE = 0x2000000
KA_X, KA_WQKV, KA_WO, KA_BX, KA_WG, KA_WU, KA_WD, KA_OUT, KA_DBG, KA_WS = [8*i for i in range(10)]
LOG2E = 1.4426950408889634

def f2u(x):
    import struct
    return struct.unpack('<I', struct.pack('<f', x))[0]
def fhex(x): return '0x%08x' % f2u(x)

def srd(S, d, base_pair, nbytes):
    S(f's_mov_b32 s{d}, s{base_pair}')
    S(f's_and_b32 s{d+1}, s{base_pair+1}, 0xffff')
    S(f's_mov_b32 s{d+2}, {hex(nbytes)}')
    S(f's_mov_b32 s{d+3}, 0x20000')

def kernel_text(name, body, vgpr, sgpr=102, accum=None):
    accum = accum if accum is not None else min(256, (vgpr + 3) // 4 * 4)
    head = f""".text
.globl {name}
.p2align 8
.type {name},@function
{name}:
"""
    kd = f"""
.section .rodata,"a"
.p2align 6
.amdhsa_kernel {name}
  .amdhsa_next_free_vgpr {vgpr}
  .amdhsa_next_free_sgpr {sgpr}
  .amdhsa_accum_offset {accum}
  .amdhsa_group_segment_fixed_size 0
  .amdhsa_kernarg_size 80
  .amdhsa_user_sgpr_count 2
  .amdhsa_user_sgpr_kernarg_segment_ptr 1
  .amdhsa_system_sgpr_workgroup_id_x 1
  .amdhsa_float_denorm_mode_32 3
.end_amdhsa_kernel
"""
    return head + body + "\n" + kd

def stamp(S, slot, sreg_pair, dbg=False):
    S(f's_memtime s[{sreg_pair}:{sreg_pair+1}]')
```

```python
from common import *

def gen_attn(name='attn_kernel', stamps=False, unroll=8, prio=0, xp=''):
    S = Stream()
    v = VAlloc(256, 'v', 1)
    sWS = 8
    sW = 20; sHead = 21; sQt = 22; sT = 23; sT2 = 24; sCnt = 25
    sMask = 26
    sSt = 30
    vLane = v.alloc(1, name='lane'); vOff = v.alloc(1); vKa = v.alloc(1); vVa = v.alloc(1)
    vT0 = v.alloc(1); vT1 = v.alloc(1); vM = v.alloc(1); vT2 = v.alloc(1)
    vQ = v.alloc(4, 4); Kf = [v.alloc(4, 4) for _ in range(2)]
    Vf = [[v.alloc(4, 4) for _ in range(2)] for _ in range(2)]
    P = v.alloc(8, 4)
    Sx = [v.alloc(16, 4) for _ in range(2)]
    O = v.alloc(16, 4); Cm = v.alloc(16, 4)
    L = name

    S(f's_cmp_ge_u32 s2, 256')
    S(f's_cbranch_scc1 {L}_end')
    if stamps: S(f's_memtime s[{sSt}:{sSt+1}]\ns_memrealtime s[40:41]')
    S(f's_load_dwordx2 s[4:5], s[0:1], {KA_WS}')
    S(f'v_and_b32 v{vLane}, 63, v0')
    S(f'v_lshrrev_b32 v{vT0}, 6, v0')
    S(f'v_lshlrev_b32 v{vOff}, 4, v{vLane}')
    S(f'v_readfirstlane_b32 s{sW}, v{vT0}')
    S(f's_and_b32 s{sHead}, s2, 7')
    S(f's_lshl_b32 s{sHead}, s{sHead}, 2')
    S(f's_lshr_b32 s{sT}, s2, 6')
    S(f's_add_u32 s{sHead}, s{sHead}, s{sT}')
    S(f's_lshr_b32 s{sQt}, s2, 3')
    S(f's_and_b32 s{sQt}, s{sQt}, 7')
    S(f's_lshl_b32 s{sQt}, s{sQt}, 3')
    S(f's_add_u32 s{sQt}, s{sQt}, s{sW}')
    S(f's_waitcnt lgkmcnt(0)')
    srd(S, sWS, 4, WS_SIZE)
    sKoff = 28; sLds = 29
    S(f's_lshl_b32 s{sKoff}, s{sHead}, 16')
    S(f's_lshl_b32 s{sT}, s{sW}, 10')
    S(f's_add_u32 s{sKoff}, s{sKoff}, s{sT}')
    def dma(i, tag):
        S(f's_add_u32 m0, s{sT}, {i*8192}')
        S(f's_add_u32 s{sT2}, s{sKoff}, {K_OFF + i*8192}')
        S(f'buffer_load_dwordx4 v{vOff}, s[{sWS}:{sWS+3}], s{sT2} offen lds', tag=tag)
        S(f's_add_u32 m0, s{sT}, {65536 + i*8192}')
        S(f's_add_u32 s{sT2}, s{sKoff}, {V_OFF + i*8192}')
        S(f'buffer_load_dwordx4 v{vOff}, s[{sWS}:{sWS+3}], s{sT2} offen lds', tag=tag)
    dma(0, 'kv0')
    S(f's_lshl_b32 s{sLds}, s{sHead}, 16')
    S(f's_lshl_b32 s{sT2}, s{sQt}, 10')
    S(f's_add_u32 s{sLds}, s{sLds}, s{sT2}')
    S(f's_add_u32 s{sLds}, s{sLds}, {Q_OFF}')
    S(f'buffer_load_dwordx4 {vr(vQ,4)}, v{vOff}, s[{sWS}:{sWS+3}], s{sLds} offen', tag='q')
    for i in range(1, 8): dma(i, 'kvrest')
    S(f'v_mov_b32 v{vKa}, v{vOff}')
    S(f'v_lshrrev_b32 v{vT0}, 5, v{vLane}')
    S(f'v_lshlrev_b32 v{vT0}, 8, v{vT0}')
    S(f'v_and_b32 v{vT1}, 15, v{vLane}')
    S(f'v_lshlrev_b32 v{vT1}, 4, v{vT1}')
    S(f'v_add_u32 v{vVa}, v{vT0}, v{vT1}')
    S(f'v_add_u32 v{vVa}, 0x10000, v{vVa}')
    S(f's_mov_b32 s{sMask}, 0x0000ffff')
    S(f's_mov_b32 s{sMask+1}, 0x0000ffff')
    S(f'v_and_b32 v{vT0}, 27, v{vLane}')
    S(f'v_cmp_eq_u32 vcc, 16, v{vT0}')
    S(f'v_mov_b32 v{vT1}, 0x3f803f80')
    S(f'v_cndmask_b32 v{vT1}, 0, v{vT1}, vcc')
    for a in Vf:
        for b in a:
            for i in range(4): S(f'v_mov_b32 v{b+i}, v{vT1}')
    S.wait_vm('kv0')
    S('s_barrier')
    if stamps: S(f's_memtime s[{sSt+2}:{sSt+3}]\ns_waitcnt lgkmcnt(0)')
    S(f'ds_read_b128 {vr(Kf[0],4)}, v{vKa}')
    S(f'ds_read_b128 {vr(Kf[1],4)}, v{vKa} offset:1024')
    S(f'v_mfma_f32_32x32x16_bf16 {vr(Sx[0],16)}, {vr(Kf[0],4)}, {vr(vQ,4)}, 0')
    S(f'v_mfma_f32_32x32x16_bf16 {vr(Sx[1],16)}, {vr(Kf[1],4)}, {vr(vQ,4)}, 0')
    S(f'v_max3_f32 v{vM}, v{Sx[0]}, v{Sx[0]+1}, v{Sx[0]+2}')
    for i in range(3, 15, 2): S(f'v_max3_f32 v{vM}, v{vM}, v{Sx[0]+i}, v{Sx[0]+i+1}')
    S(f'v_max3_f32 v{vM}, v{vM}, v{Sx[0]+15}, v{Sx[1]}')
    for i in range(1, 15, 2): S(f'v_max3_f32 v{vM}, v{vM}, v{Sx[1]+i}, v{Sx[1]+i+1}')
    S(f'v_max_f32 v{vM}, v{vM}, v{Sx[1]+15}')
    S(f'v_mov_b32 v{vT0}, v{vM}')
    S(f'v_permlane32_swap_b32 v{vM}, v{vT0}')
    S(f'v_max_f32 v{vM}, v{vM}, v{vT0}')
    DELTA = 64.0
    S(f'v_add_f32 v{vM}, {fhex(DELTA)}, v{vM}')
    for i in range(16): S(f'v_sub_f32 v{Cm+i}, 0, v{vM}')
    def rdK(t_off, buf):
        if 'K' in xp: return
        S(f'ds_read_b128 {vr(Kf[buf],4)}, v{vKa} offset:{t_off*1024}')
    def rdV(t_off, buf):
        if 'V' in xp: return
        if 'E' not in xp: S(f's_mov_b64 exec, s[{sMask}:{sMask+1}]')
        S(f'ds_read_b128 {vr(Vf[buf][0],4)}, v{vVa} offset:{t_off*1024}')
        if '1' not in xp: S(f'ds_read_b128 {vr(Vf[buf][1],4)}, v{vVa} offset:{t_off*1024+512}')
        if 'E' not in xp: S(f's_mov_b64 exec, -1')
    def qk(buf_s, buf_k): S(f'v_mfma_f32_32x32x16_bf16 {vr(Sx[buf_s],16)}, {vr(Kf[buf_k],4)}, {vr(vQ,4)}, {vr(Cm,16)}')
    def pv(u, buf, first=False):
        S(f'v_mfma_f32_32x32x16_bf16 {vr(O,16)}, {vr(Vf[buf][u],4)}, {vr(P+4*u,4)}, ' + ('0' if first else vr(O,16)))
    rdV(0, 0)
    qk(0, 0)
    for i in range(16): S(f'v_mov_b32 v{O+i}, 0')
    def tile(t, off, first=False, last_in_block=False):
        cur = Sx[t & 1]
        if 'W' not in xp: S('s_waitcnt lgkmcnt(0)')
        if 'Q' not in xp: qk((t+1) & 1, (t+1) & 1)
        rdK(off + 2, t & 1)
        e = lambda i: S(f'v_exp_f32 v{cur+i}, v{cur+i}')
        c = lambda i: S(f'v_cvt_pk_bf16_f32 v{P+i}, v{cur+2*i}, v{cur+2*i+1}')
        if prio == 1: S('s_setprio 1')
        e(0); e(1); e(2); c(0); e(3); e(4); c(1); e(5)
        if not first and 'P' not in xp: pv(1, (t+1) & 1)
        rdV(off + 1, (t+1) & 1)
        e(6); c(2); e(7); e(8); c(3); e(9); e(10)
        if prio == 1: S('s_setprio 0')
        if prio == 2: S('s_setprio %d' % (t & 1))
        if 'P' not in xp: pv(0, t & 1)
        c(4); e(11); e(12); c(5); e(13); e(14); e(15); c(6)
        if last_in_block:
            S(f'v_add_u32 v{vKa}, {unroll*1024}, v{vKa}')
        c(7)
        if last_in_block:
            S(f'v_add_u32 v{vVa}, {unroll*1024}, v{vVa}')
            S(f's_sub_u32 s{sCnt}, s{sCnt}, 1')
    def block(first):
        for t in range(unroll):
            if first and t == unroll - 2:
                S.wait_vm('kvrest'); S('s_barrier')
                if stamps: S(f's_memtime s[{sSt+4}:{sSt+5}]')
            tile(t, t, first=(first and t == 0), last_in_block=(t == unroll - 1))
    S(f's_mov_b32 s{sCnt}, {64//unroll}')
    block(True)
    S.label(f'{L}_loop')
    block(False)
    S(f's_cmp_lg_u32 s{sCnt}, 0')
    S(f's_cbranch_scc1 {L}_loop')
    pv(1, 1)
    S('s_waitcnt lgkmcnt(0)')
    if stamps: S(f's_memtime s[{sSt+6}:{sSt+7}]\ns_waitcnt lgkmcnt(0)')
    S('s_nop 7\ns_nop 3')
    S(f'v_add_f32 v{vT0}, |v{O}|, |v{O+1}|')
    for i in range(2, 8): S(f'v_add_f32 v{vT0}, v{vT0}, |v{O+i}|')
    S(f'v_mov_b32 v{vT1}, 0x7f800000')
    S(f'v_cmp_lt_f32 vcc, v{vT0}, v{vT1}')
    S(f'v_mov_b32 v{vT2}, {fhex(2.0**110)}')
    S(f'v_cmp_lt_f32 s[4:5], v{O+8}, v{vT2}')
    S(f's_and_b64 vcc, vcc, s[4:5]')
    S(f's_cmp_eq_u64 vcc, -1')
    S(f's_cbranch_scc1 {L}_fin')
    S(f'v_mov_b32 v{vKa}, v{vOff}')
    S(f'v_subrev_u32 v{vVa}, 0x10000, v{vVa}')
    S(f'v_mov_b32 v{vM}, 0xff800000')
    for i in range(16): S(f'v_mov_b32 v{O+i}, 0')
    S(f's_mov_b32 s{sCnt}, 64')
    S.label(f'{L}_slow')
    S(f'ds_read_b128 {vr(Kf[0],4)}, v{vKa}')
    rdV(0, 0)
    S('s_waitcnt lgkmcnt(0)')
    S(f'v_mfma_f32_32x32x16_bf16 {vr(Sx[0],16)}, {vr(Kf[0],4)}, {vr(vQ,4)}, 0')
    S(f'v_max3_f32 v{vT0}, v{Sx[0]}, v{Sx[0]+1}, v{Sx[0]+2}')
    for i in range(3, 15, 2): S(f'v_max3_f32 v{vT0}, v{vT0}, v{Sx[0]+i}, v{Sx[0]+i+1}')
    S(f'v_max3_f32 v{vT0}, v{vT0}, v{Sx[0]+15}, v{vM}')
    S(f'v_mov_b32 v{vT1}, v{vT0}')
    S(f'v_permlane32_swap_b32 v{vT0}, v{vT1}')
    S(f'v_max_f32 v{vT0}, v{vT0}, v{vT1}')
    S(f'v_sub_f32 v{vT1}, v{vM}, v{vT0}')
    S(f'v_exp_f32 v{vT1}, v{vT1}')
    S(f'v_mov_b32 v{vM}, v{vT0}')
    for i in range(16): S(f'v_mul_f32 v{O+i}, v{O+i}, v{vT1}')
    for i in range(16): S(f'v_sub_f32 v{Sx[0]+i}, v{Sx[0]+i}, v{vM}')
    for i in range(16): S(f'v_exp_f32 v{Sx[0]+i}, v{Sx[0]+i}')
    for i in range(8): S(f'v_cvt_pk_bf16_f32 v{P+i}, v{Sx[0]+2*i}, v{Sx[0]+2*i+1}')
    pv(0, 0); pv(1, 0)
    S(f'v_add_u32 v{vKa}, 1024, v{vKa}')
    S(f'v_add_u32 v{vVa}, 1024, v{vVa}')
    S(f's_sub_u32 s{sCnt}, s{sCnt}, 1')
    S(f's_cmp_lg_u32 s{sCnt}, 0')
    S('s_nop 7\ns_nop 7')
    S(f's_cbranch_scc1 {L}_slow')
    S.label(f'{L}_fin')
    S('s_nop 7\ns_nop 3')
    S(f'v_rcp_f32 v{vT0}, v{O+8}')
    for i in range(8): S(f'v_mul_f32 v{O+i}, v{O+i}, v{vT0}')
    for i in range(4): S(f'v_cvt_pk_bf16_f32 v{P+i}, v{O+2*i}, v{O+2*i+1}')
    S(f's_mul_i32 s{sT}, s{sQt}, {2*72*1024}')
    S(f's_lshr_b32 s{sT2}, s{sHead}, 1\ns_lshl_b32 s{sT2}, s{sT2}, 10')
    S(f's_add_u32 s{sT}, s{sT}, s{sT2}')
    S(f's_and_b32 s{sT2}, s{sHead}, 1\ns_lshl_b32 s{sT2}, s{sT2}, 9')
    S(f's_add_u32 s{sT}, s{sT}, s{sT2}')
    S(f's_add_u32 s{sT}, s{sT}, {ACT_OFF + 56*1024}')
    S(f'v_bfe_u32 v{vT0}, v{vLane}, 4, 1')
    S(f'v_mul_u32_u24 v{vT0}, {72*1024}, v{vT0}')
    S(f'v_lshrrev_b32 v{vT1}, 5, v{vLane}')
    S(f'v_lshl_add_u32 v{vT0}, v{vT1}, 8, v{vT0}')
    S(f'v_and_b32 v{vT1}, 15, v{vLane}')
    S(f'v_lshl_add_u32 v{vT0}, v{vT1}, 4, v{vT0}')
    S(f'buffer_store_dwordx4 {vr(P,4)}, v{vT0}, s[{sWS}:{sWS+3}], s{sT} offen')
    if stamps:
        S('s_waitcnt vmcnt(0)')
        S(f's_memtime s[4:5]\ns_memrealtime s[42:43]\ns_waitcnt lgkmcnt(0)')
        S(f's_sub_u32 s{sSt+4}, s42, s40')
        S(f's_add_u32 s{sSt+4}, s{sSt+4}, s{sSt}')
        for i, a in enumerate((sSt+2, sSt+4, sSt+6, 4)):
            S(f's_sub_u32 s{a}, s{a}, s{sSt}')
            S(f'v_mov_b32 v{P+i}, s{a}')
        S(f's_lshl_b32 s{sT}, s2, 3\ns_add_u32 s{sT}, s{sT}, s{sW}\ns_lshl_b32 s{sT}, s{sT}, 4')
        S(f's_add_u32 s{sT}, s{sT}, {STAMP_OFF}')
        S(f'v_mov_b32 v{vT0}, 0')
        S(f'buffer_store_dwordx4 {vr(P,4)}, v{vT0}, s[{sWS}:{sWS+3}], s{sT} offen')
    S.label(f'{L}_end')
    S('s_endpgm')
    p = Processor().run(S)
    return kernel_text(name, p.text(), v.hi), p, v.hi
if __name__ == '__main__':
    t, p, hi = gen_attn()
    print(t)
    import sys
    print('vgprs', hi, 'nops', p.nops_inserted, p.nop_log, file=sys.stderr)
```

```python
from common import *

BIG = 0; BIGSZ = 24576; NBIG = 3
MB = BIG + NBIG * BIGSZ; MSZ = 16384; NM = 4
STAT = MB + NM * MSZ
ST_SUM = STAT; ST_SQ = STAT + 512; ST_CS = STAT + 1024
LDS1 = STAT + 1024 + 2 * 320 * 4
QSCALE = 0.25 * LOG2E

def gen_gemm1(name='gemm1_kernel', stamps=False, xp=''):
    S = Stream(); L = name
    v = VAlloc(256, 'v', 1)
    sX, sQK, sM0, sM1, sWS = 8, 12, 16, 20, 24
    sW, sTb, sC, sTh, sFq, sT, sT2, sRS = 28, 29, 30, 31, 32, 33, 34, 35
    sXo, sQo, sM0o, sM1o, sLx, sLq, sLm = 36, 37, 38, 39, 40, 41, 42
    sIsB, sScale, sT3, sStepM, sDuty, sMaskHi = 43, 44, 45, 46, 58, 59
    sSt = 60
    vLane = v.alloc(); vN = v.alloc(); vG = v.alloc()
    vT = [v.alloc() for _ in range(6)]
    vDx = [v.alloc() for _ in range(2)]; vDq = v.alloc(); vDm = v.alloc()
    vXa = [v.alloc() for _ in range(2)]; vQa = v.alloc(); vMa = [v.alloc() for _ in range(4)]
    vSum = [v.alloc() for _ in range(2)]; vSq = [v.alloc() for _ in range(2)]; vLo = v.alloc(); vHi = v.alloc()
    vXs = [v.alloc() for _ in range(2)]
    vOnes = v.alloc(4, 4)
    A = [[v.alloc(4, 4) for _ in range(5)] for _ in range(2)]
    B = [[v.alloc(4, 4) for _ in range(4)] for _ in range(2)]
    Bs = [v.alloc(4, 4) for _ in range(2)]
    acc = [[v.alloc(4, 4) for _ in range(4)] for _ in range(5)]
    vCs = [v.alloc(4, 4) for _ in range(5)]
    vEp = v.alloc(16, 4)

    S(f's_cmp_ge_u32 s2, 256'); S(f's_cbranch_scc1 {L}_end')
    if stamps: S(f's_memtime s[{sSt}:{sSt+1}]\ns_memrealtime s[{sSt+10}:{sSt+11}]')
    S(f's_load_dwordx4 s[48:51], s[0:1], {KA_X}')
    S(f's_load_dwordx4 s[52:55], s[0:1], {KA_WG}')
    S(f's_load_dwordx2 s[56:57], s[0:1], {KA_WS}')
    S(f'v_and_b32 v{vLane}, 63, v0')
    S(f'v_lshrrev_b32 v{vT[0]}, 6, v0')
    S(f'v_and_b32 v{vN}, 15, v0')
    S(f'v_readfirstlane_b32 s{sW}, v{vT[0]}')
    S(f'v_bfe_u32 v{vG}, v0, 4, 2')
    S(f's_and_b32 s{sT}, s2, 1\ns_lshl_b32 s{sT}, s{sT}, 3')
    S(f's_lshr_b32 s{sT2}, s2, 3\ns_and_b32 s{sT2}, s{sT2}, 7\ns_add_u32 s{sTb}, s{sT}, s{sT2}')
    S(f's_lshr_b32 s{sT}, s2, 1\ns_and_b32 s{sT}, s{sT}, 3\ns_lshl_b32 s{sT}, s{sT}, 2')
    S(f's_lshr_b32 s{sT2}, s2, 6\ns_add_u32 s{sC}, s{sT}, s{sT2}')
    S(f's_and_b32 s{sTh}, s{sW}, 1\ns_lshr_b32 s{sFq}, s{sW}, 1')
    S(f's_cmp_ge_u32 s{sC}, 14\ns_cselect_b32 s{sIsB}, 1, 0')
    S(f's_lshr_b32 s{sDuty}, s{sFq}, 1\ns_xor_b32 s{sDuty}, s{sDuty}, s{sTh}')
    S('s_waitcnt lgkmcnt(0)')
    srd(S, sX, 48, 2048 * 512 * 2)
    srd(S, sQK, 50, 512 * 1536 * 2)
    srd(S, sWS, 56, WS_SIZE)
    S(f's_cmp_eq_u32 s{sIsB}, 1')
    for d, p in ((sM0, 52), (sM1, 54)):
        S(f's_cselect_b32 s{d}, s50, s{p}')
        S(f's_cselect_b32 s{d+1}, s51, s{p+1}')
        S(f's_and_b32 s{d+1}, s{d+1}, 0xffff')
        S(f's_cmp_eq_u32 s{sIsB}, 1')
        S(f's_mov_b32 s{d+2}, {512*1792*2}\ns_cmov_b32 s{d+2}, {512*1536*2}')
        S(f's_mov_b32 s{d+3}, 0x20000')
    S(f's_mov_b32 s{sRS}, 3584\ns_cmov_b32 s{sRS}, 3072')
    S(f's_lshl_b32 s{sXo}, s{sTb}, 17')
    S(f's_lshl_b32 s{sQo}, s{sC}, 7')
    S(f's_lshl_b32 s{sM0o}, s{sC}, 8')
    S(f's_sub_u32 s{sT}, s{sC}, 14\ns_lshl_b32 s{sT}, s{sT}, 9\ns_add_u32 s{sT}, s{sT}, 2048')
    S(f's_cmp_eq_u32 s{sIsB}, 1')
    S(f's_cselect_b32 s{sM0o}, s{sT}, s{sM0o}')
    S(f's_cselect_b32 s{sT}, 256, 0')
    S(f's_add_u32 s{sM1o}, s{sM0o}, s{sT}')
    S(f's_lshl_b32 s{sStepM}, s{sRS}, 5')
    t0, t1, t2, t3, t4, t5 = vT
    for i in range(2):
        S(f'v_lshrrev_b32 v{t0}, 3, v{vLane}')
        S(f's_lshl_b32 s{sT}, s{sW}, 4\ns_add_u32 s{sT}, s{sT}, {8*i}')
        S(f'v_add_u32 v{t0}, s{sT}, v{t0}')
        S(f'v_lshlrev_b32 v{t0}, 10, v{t0}')
        S(f'v_and_b32 v{t1}, 7, v{vLane}')
        S(f'v_xor_b32 v{t1}, v{t1}, v{vG}')
        if i: S(f'v_xor_b32 v{t1}, 4, v{t1}')
        S(f'v_lshl_add_u32 v{vDx[i]}, v{t1}, 4, v{t0}')
    S(f'v_lshrrev_b32 v{t0}, 3, v{vLane}')
    S(f'v_bfe_u32 v{t2}, v{vLane}, 4, 1')
    S(f's_and_b32 s{sT}, s{sW}, 1\ns_lshl_b32 s{sT}, s{sT}, 1')
    S(f'v_or_b32 v{t2}, s{sT}, v{t2}')
    S(f'v_lshlrev_b32 v{t2}, 1, v{t2}')
    S(f'v_and_b32 v{t1}, 7, v{vLane}')
    S(f'v_xor_b32 v{t1}, v{t1}, v{t2}')
    S(f's_lshl_b32 s{sT}, s{sW}, 3')
    S(f'v_add_u32 v{t0}, s{sT}, v{t0}')
    S(f'v_mul_u32_u24 v{t0}, 3072, v{t0}')
    S(f'v_lshl_add_u32 v{vDq}, v{t1}, 4, v{t0}')
    S(f's_lshr_b32 s{sT}, s{sW}, 1\ns_and_b32 s{sT}, s{sT}, 1\ns_lshl_b32 s{sT}, s{sT}, 2')
    S(f'v_or_b32 v{t2}, s{sT}, v{vG}')
    S(f'v_lshlrev_b32 v{t2}, 1, v{t2}')
    S(f'v_xor_b32 v{t1}, v{vN}, v{t2}')
    S(f's_lshl_b32 s{sT}, s{sW}, 2')
    S(f'v_add_u32 v{t0}, s{sT}, v{vG}')
    S(f'v_mul_lo_u32 v{t0}, v{t0}, s{sRS}')
    S(f'v_lshl_add_u32 v{vDm}, v{t1}, 4, v{t0}')
    S(f's_lshl_b32 s{sLx}, s{sW}, 11')
    S(f's_lshl_b32 s{sLq}, s{sW}, 10\ns_add_u32 s{sLq}, s{sLq}, 16384')
    S(f's_lshl_b32 s{sLm}, s{sW}, 10\ns_add_u32 s{sLm}, s{sLm}, {MB}')
    def dma_big(j):
        slot = (j % NBIG) * BIGSZ + BIG
        for i in range(2):
            S(f's_add_u32 m0, s{sLx}, {slot + i*1024}')
            S(f's_add_u32 s{sT}, s{sXo}, {j*128}')
            S(f'buffer_load_dwordx4 v{vDx[i]}, s[{sX}:{sX+3}], s{sT} offen lds', tag=('big', j))
        S(f's_add_u32 m0, s{sLq}, {slot}')
        S(f's_add_u32 s{sT}, s{sQo}, {j*64*3072}')
        S(f'buffer_load_dwordx4 v{vDq}, s[{sQK}:{sQK+3}], s{sT} offen lds', tag=('big', j))
    def dma_m(s):
        slot = (s % NM) * MSZ
        S(f's_add_u32 m0, s{sLm}, {slot}')
        S(f's_nop 0')
        S(f'buffer_load_dwordx4 v{vDm}, s[{sM0}:{sM0+3}], s{sM0o} offen lds', tag=('m', s))
        S(f's_add_u32 m0, s{sLm}, {slot + 8192}')
        S(f's_add_u32 s{sM0o}, s{sM0o}, s{sStepM}')
        S(f'buffer_load_dwordx4 v{vDm}, s[{sM1}:{sM1+3}], s{sM1o} offen lds', tag=('m', s))
        S(f's_add_u32 s{sM1o}, s{sM1o}, s{sStepM}')
    dma_big(0); dma_m(0); dma_m(1); dma_big(1); dma_m(2); dma_m(3); dma_big(2)
    S(f's_lshl_b32 s{sT}, s{sTh}, 6')
    S(f'v_add_u32 v{t0}, s{sT}, v{vN}')
    S(f'v_lshlrev_b32 v{t0}, 7, v{t0}')
    S(f'v_lshrrev_b32 v{t1}, 1, v{vN}')
    S(f'v_xor_b32 v{t1}, v{t1}, v{vG}')
    S(f'v_lshl_add_u32 v{vXa[0]}, v{t1}, 4, v{t0}')
    S(f'v_xor_b32 v{vXa[1]}, 64, v{vXa[0]}')
    S(f's_lshl_b32 s{sT}, s{sFq}, 11')
    S(f'v_add_u32 v{vXs[0]}, s{sT}, v{vXa[0]}')
    S(f'v_add_u32 v{vXs[1]}, s{sT}, v{vXa[1]}')
    vR, vCq = t4, t5
    S(f'v_lshrrev_b32 v{vR}, 2, v{vN}')
    S(f'v_and_b32 v{vCq}, 3, v{vN}')
    S(f'v_lshl_add_u32 v{t0}, v{vG}, 3, v{vR}')
    S(f'v_lshrrev_b32 v{t1}, 1, v{vR}')
    S(f'v_and_b32 v{t2}, 1, v{vG}')
    S(f'v_lshl_or_b32 v{t1}, v{t2}, 1, v{t1}')
    S(f'v_xor_b32 v{t1}, s{sFq}, v{t1}')
    S(f'v_lshlrev_b32 v{t1}, 1, v{t1}')
    S(f'v_lshrrev_b32 v{t2}, 1, v{vCq}')
    S(f'v_add_u32 v{t1}, v{t1}, v{t2}')
    S(f'v_lshlrev_b32 v{t1}, 4, v{t1}')
    S(f'v_and_b32 v{t2}, 1, v{vCq}')
    S(f'v_lshl_add_u32 v{t1}, v{t2}, 3, v{t1}')
    S(f'v_lshl_add_u32 v{vQa}, v{t0}, 7, v{t1}')
    S(f'v_add_u32 v{vQa}, 16384, v{vQa}')
    S(f'v_and_b32 v{t2}, 1, v{vG}')
    S(f'v_lshl_or_b32 v{t1}, v{t2}, 2, v{vR}')
    S(f'v_lshlrev_b32 v{t1}, 1, v{t1}')
    S(f'v_lshrrev_b32 v{t2}, 1, v{vCq}')
    S(f'v_xor_b32 v{t1}, v{t1}, v{t2}')
    S(f'v_lshlrev_b32 v{t1}, 4, v{t1}')
    S(f'v_and_b32 v{t2}, 1, v{vCq}')
    S(f'v_lshl_add_u32 v{t1}, v{t2}, 3, v{t1}')
    S(f'v_lshl_add_u32 v{t1}, v{t0}, 8, v{t1}')
    for i in range(4):
        S(f's_lshl_b32 s{sT}, s{sFq}, 1\ns_add_u32 s{sT}, s{sT}, {i & 1}\ns_lshl_b32 s{sT}, s{sT}, 5')
        S(f's_add_u32 s{sT}, s{sT}, {(i >> 1) * 8192}')
        S(f's_and_b32 s{sT2}, s{sFq}, 1\ns_lshl_b32 s{sT2}, s{sT2}, 2\ns_add_u32 s{sT2}, s{sT2}, {i}\ns_lshl_b32 s{sT2}, s{sT2}, 5')
        S(f's_lshr_b32 s{sT3}, s{sFq}, 1\ns_lshl_b32 s{sT3}, s{sT3}, 13\ns_add_u32 s{sT2}, s{sT2}, s{sT3}')
        S(f's_cmp_eq_u32 s{sIsB}, 1\ns_cselect_b32 s{sT}, s{sT2}, s{sT}')
        S(f'v_xor_b32 v{vMa[i]}, s{sT}, v{t1}')
        S(f'v_add_u32 v{vMa[i]}, {MB}, v{vMa[i]}')
    for r in vSum + vSq: S(f'v_mov_b32 v{r}, 0')
    for i in range(4): S(f'v_mov_b32 v{vOnes+i}, 0x3f803f80')
    S(f's_mov_b32 s{sMaskHi}, 0xffff0000')

    def reads(s):
        b = s & 1; sp = s & 1; j = s // 2
        bs = (j % NBIG) * BIGSZ + BIG; ms = (s % NM) * MSZ
        out = []
        for tt in range(4):
            out.append(f'ds_read_b128 {vr(B[b][tt],4)}, v{vXa[sp]} offset:{bs + tt*2048}')
        for rd in range(2):
            out.append(f'ds_read_b64_tr_b16 {vr(A[b][0]+2*rd,2)}, v{vQa} offset:{bs + (32*sp + 4*rd)*128}')
        if 'S' not in xp: out.append(f'ds_read_b128 {vr(Bs[b],4)}, v{vXs[sp]} offset:{bs}')
        for i in range(4):
            for rd in range(2):
                out.append(f'ds_read_b64_tr_b16 {vr(A[b][1+i]+2*rd,2)}, v{vMa[i]} offset:{ms + rd*1024}')
        return out
    def mfmas(s, typeB):
        b = s & 1; out = []
        for f in range(5):
            for tt in range(4):
                c = '0' if s == 0 else vr(acc[f][tt], 4)
                a_, b_ = vr(A[b][f], 4), vr(B[b][tt], 4)
                if typeB and f > 0: a_, b_ = b_, a_
                out.append(f'v_mfma_f32_16x16x32_bf16 {vr(acc[f][tt],4)}, {a_}, {b_}, {c}')
        return out
    def stats(s):
        b = s & 1; out = []
        for r in range(4):
            p = Bs[b] + r
            out.append(f'v_lshlrev_b32 v{vLo}, 16, v{p}')
            out.append(f'v_and_b32 v{vHi}, s{sMaskHi}, v{p}')
            out.append(f'v_add_f32 v{vSum[0]}, v{vSum[0]}, v{vLo}')
            out.append(f'v_add_f32 v{vSum[1]}, v{vSum[1]}, v{vHi}')
            out.append(f'v_fma_f32 v{vSq[0]}, v{vLo}, v{vLo}, v{vSq[0]}')
            out.append(f'v_fma_f32 v{vSq[1]}, v{vHi}, v{vHi}, v{vSq[1]}')
        return out
    def csmfmas(s, typeB, first):
        b = s & 1; out = []
        for f in range(5):
            c = '0' if first else vr(vCs[f], 4)
            a_, b_ = vr(A[b][f], 4), vr(vOnes, 4)
            if typeB and f > 0: a_, b_ = b_, a_
            out.append(f'v_mfma_f32_16x16x32_bf16 {vr(vCs[f],4)}, {a_}, {b_}, {c}')
        return out

    def mainloop(typeB, duty):
        tag = ('B' if typeB else 'A') + str(duty)
        S.wait_vm(('big', 0)); S.wait_vm(('m', 0))
        S('s_waitcnt lgkmcnt(0)')
        S('s_barrier')
        if stamps: S(f's_memtime s[{sSt+2}:{sSt+3}]')
        for r in reads(0): S(r)
        for s in range(16):
            S('s_waitcnt lgkmcnt(0)')
            if s + 1 < 16:
                S.wait_vm(('m', s + 1)); S.wait_vm(('big', (s + 1) // 2))
            S('s_barrier')
            if s + 4 < 16 and 'D' not in xp: dma_m(s + 4)
            if s % 2 == 1 and (s - 1) // 2 + 3 < 8 and 'D' not in xp: dma_big((s - 1) // 2 + 3)
            mm = mfmas(s, typeB)
            if s % 2 == duty and 'S' not in xp:
                cm = csmfmas(s, typeB, s < 2)
                mm = [x for f in range(5) for x in mm[4*f:4*f+4] + [cm[f]]]
            rr = reads(s + 1) if s + 1 < 16 else []
            if 'R' in xp: rr = []
            st = stats(s) if 'S' not in xp else []
            k = 0; q = 0
            for i, m in enumerate(mm):
                S(m)
                if k < len(rr): S(rr[k]); k += 1
                nq = (len(st) * (i + 1) + len(mm) - 1) // len(mm)
                while q < nq: S(st[q]); q += 1
        if stamps: S(f's_memtime s[{sSt+4}:{sSt+5}]')

    def greduce(r):
        S(f'v_mov_b32 v{t0}, v{r}')
        S(f'v_permlane32_swap_b32 v{r}, v{t0}')
        S(f'v_add_f32 v{r}, v{r}, v{t0}')
        S(f'v_mov_b32 v{t0}, v{r}')
        S(f'v_permlane16_swap_b32 v{r}, v{t0}')
        S(f'v_add_f32 v{r}, v{r}, v{t0}')
    def reduce_stats(typeB):
        S(f'v_add_f32 v{vSum[0]}, v{vSum[0]}, v{vSum[1]}')
        S(f'v_add_f32 v{vSq[0]}, v{vSq[0]}, v{vSq[1]}')
        for r in [vSum[0], vSq[0]]: greduce(r)
        ab_from(vSum[0], vSq[0], vSum[1], vSq[1])
        S(f's_lshl_b32 s{sT}, s{sTh}, 6\ns_lshl_b32 s{sT2}, s{sFq}, 4\ns_add_u32 s{sT}, s{sT}, s{sT2}')
        S(f'v_add_u32 v{t0}, s{sT}, v{vN}')
        S(f'v_lshlrev_b32 v{t0}, 2, v{t0}')
        S(f'v_add_u32 v{t0}, {ST_SUM}, v{t0}')
        S(f'ds_write_b32 v{t0}, v{vSum[1]}')
        S(f'ds_write_b32 v{t0}, v{vSq[1]} offset:512')
        S(f's_mul_i32 s{sT}, s{sFq}, 320\ns_mul_i32 s{sT2}, s{sDuty}, 1280\ns_add_u32 s{sT}, s{sT}, s{sT2}\ns_add_u32 s{sT}, s{sT}, {ST_CS}')
        S(f'v_lshlrev_b32 v{t1}, 4, v{vG}')
        S(f'v_add_u32 v{t1}, s{sT}, v{t1}')
        S(f'v_lshlrev_b32 v{t2}, 2, v{vN}')
        S(f'v_add_u32 v{t2}, s{sT}, v{t2}')
        S('s_nop 7')
        for f in range(5):
            if typeB and f > 0: S(f'ds_write_b32 v{t2}, v{vCs[f]} offset:{f*64}')
            else: S(f'ds_write_b128 v{t1}, {vr(vCs[f],4)} offset:{f*64}')
        S('s_waitcnt lgkmcnt(0)')
        S('s_barrier')

    def ab_from(vs, vq, va, vb, scale_lit=None):
        S(f'v_mul_f32 v{vs}, {fhex(1/512)}, v{vs}')
        S(f'v_mul_f32 v{vq}, {fhex(1/512)}, v{vq}')
        S(f'v_fma_f32 v{vq}, -v{vs}, v{vs}, v{vq}')
        S(f'v_max_f32 v{vq}, 0, v{vq}')
        S(f'v_add_f32 v{vq}, {fhex(1e-5)}, v{vq}')
        S(f'v_rsq_f32 v{va}, v{vq}')
        S(f'v_mul_f32 v{vb}, v{vs}, v{va}')
        S(f'v_sub_f32 v{vb}, 0, v{vb}')

    def epilogue(typeB):
        v = VAlloc(Bs[1] + 4, 'v', A[0][0])
        vP = v.alloc(8, 4); vcsr = v.alloc(4, 4)
        va = [vEp + i for i in range(4)]; vb = [vEp + 4 + i for i in range(4)]
        tq = [vEp + 8 + i for i in range(4)]
        vOff = vEp + 12; vAq = vEp + 13; vBq = vEp + 14
        S(f'v_lshlrev_b32 v{vOff}, 4, v{vLane}')
        S(f's_lshl_b32 s{sT}, s{sTh}, 6')
        S(f'v_add_u32 v{t0}, s{sT}, v{vN}')
        S(f'v_lshlrev_b32 v{t0}, 2, v{t0}')
        S(f'v_add_u32 v{t0}, {ST_SUM}, v{t0}')
        for tt in range(4):
            S(f'ds_read_b32 v{va[tt]}, v{t0} offset:{tt*64}')
            S(f'ds_read_b32 v{vb[tt]}, v{t0} offset:{512 + tt*64}')
        S(f's_mul_i32 s{sT}, s{sFq}, 320')
        S(f'v_lshlrev_b32 v{t1}, 4, v{vG}')
        S(f'v_add_u32 v{t1}, s{sT}, v{t1}')
        S(f'v_add_u32 v{t1}, {ST_CS}, v{t1}')
        def rd_cs_row(dst, f):
            tmp = vCs[f]
            S(f'ds_read_b128 {vr(dst,4)}, v{t1} offset:{f*64}')
            S(f'ds_read_b128 {vr(tmp,4)}, v{t1} offset:{f*64 + 1280}')
            return [f'v_add_f32 v{dst+r}, v{dst+r}, v{tmp+r}' for r in range(4)]
        for x in rd_cs_row(vcsr, 0): S(x)
        S(f's_cmp_lt_u32 s{sC}, 8\ns_cselect_b32 s{sScale}, {fhex(QSCALE)}, 1.0')
        for tt in range(4):
            S(f'v_mul_f32 v{vAq}, s{sScale}, v{va[tt]}')
            S(f'v_mul_f32 v{vBq}, s{sScale}, v{vb[tt]}')
            for r in range(4):
                S(f'v_mul_f32 v{tq[r]}, v{vBq}, v{vcsr+r}')
            for r in range(4):
                S(f'v_fma_f32 v{acc[0][tt]+r}, v{acc[0][tt]+r}, v{vAq}, v{tq[r]}')
            S(f'v_cvt_pk_bf16_f32 v{vP+2*tt}, v{acc[0][tt]}, v{acc[0][tt]+1}')
            S(f'v_cvt_pk_bf16_f32 v{vP+2*tt+1}, v{acc[0][tt]+2}, v{acc[0][tt]+3}')
        S(f's_and_b32 s{sT}, s{sC}, 7\ns_lshl_b32 s{sT}, s{sT}, 2\ns_add_u32 s{sT}, s{sT}, s{sFq}\ns_lshl_b32 s{sT}, s{sT}, 16')
        S(f's_cmp_lt_u32 s{sC}, 8\ns_cselect_b32 s{sT2}, 0, {K_OFF - Q_OFF}\ns_add_u32 s{sT}, s{sT}, s{sT2}')
        S(f's_lshl_b32 s{sT2}, s{sTb}, 2\ns_lshl_b32 s{sT3}, s{sTh}, 1\ns_add_u32 s{sT2}, s{sT2}, s{sT3}\ns_lshl_b32 s{sT2}, s{sT2}, 10')
        S(f's_add_u32 s{sT}, s{sT}, s{sT2}')
        for p in range(2):
            x, y = vP + 4*p, vP + 4*p + 2
            S(f'v_permlane16_swap_b32 v{x}, v{y}')
            S(f'v_permlane16_swap_b32 v{x+1}, v{y+1}')
            S(f'buffer_store_dwordx4 {vr(x,4)}, v{vOff}, s[{sWS}:{sWS+3}], s{sT} offen offset:{p*1024}')
        if stamps: S(f's_memtime s[{sSt+14}:{sSt+15}]')
        if not typeB:
            cg = [v.alloc(4, 4) for _ in range(2)]; cu = [v.alloc(4, 4) for _ in range(2)]
            adds = []
            for i in range(2):
                adds += rd_cs_row(cg[i], 1+i); adds += rd_cs_row(cu[i], 3+i)
            for x in adds: S(x)
            K1 = -2 * LOG2E * 0.7978845608028654; K2 = K1 * 0.044715
            sK1, sK2 = 46, 47
            S(f's_mov_b32 s{sK1}, {fhex(K1)}\ns_mov_b32 s{sK2}, {fhex(K2)}')
            vk1 = v.alloc(); S(f'v_mov_b32 v{vk1}, s{sK1}')
            tg = v.alloc(4, 4); tu = v.alloc(4, 4); tz = v.alloc(4, 4)
            S(f's_lshl_b32 s{sT}, s{sTb}, 3\ns_lshl_b32 s{sT2}, s{sTh}, 2\ns_add_u32 s{sT}, s{sT}, s{sT2}\ns_mul_i32 s{sT}, s{sT}, {72*1024}')
            S(f's_lshl_b32 s{sT2}, s{sC}, 2\ns_add_u32 s{sT2}, s{sT2}, s{sFq}\ns_lshl_b32 s{sT2}, s{sT2}, 10\ns_add_u32 s{sT}, s{sT}, s{sT2}')
            S(f's_add_u32 s{sT}, s{sT}, {ACT_OFF}')
            vH = [v.alloc(4, 4) for _ in range(2)]
            for tt in range(4):
                H = vH[tt & 1]
                for i in range(2):
                    G, U = acc[1+i][tt], acc[3+i][tt]
                    for r in range(4): S(f'v_mul_f32 v{tg+r}, v{vb[tt]}, v{cg[i]+r}')
                    for r in range(4): S(f'v_mul_f32 v{tu+r}, v{vb[tt]}, v{cu[i]+r}')
                    for r in range(4): S(f'v_fma_f32 v{G+r}, v{G+r}, v{va[tt]}, v{tg+r}')
                    for r in range(4): S(f'v_fma_f32 v{U+r}, v{U+r}, v{va[tt]}, v{tu+r}')
                    for r in range(4): S(f'v_mul_f32 v{tz+r}, v{G+r}, v{G+r}')
                    for r in range(4): S(f'v_fma_f32 v{tz+r}, v{tz+r}, s{sK2}, v{vk1}')
                    for r in range(4): S(f'v_mul_f32 v{tz+r}, v{tz+r}, v{G+r}')
                    for r in range(4): S(f'v_exp_f32 v{tz+r}, v{tz+r}')
                    for r in range(4): S(f'v_mul_f32 v{U+r}, v{U+r}, v{G+r}')
                    for r in range(4): S(f'v_add_f32 v{tz+r}, 1.0, v{tz+r}')
                    for r in range(4): S(f'v_rcp_f32 v{tz+r}, v{tz+r}')
                    S('s_nop 0')
                    for r in range(4): S(f'v_mul_f32 v{U+r}, v{U+r}, v{tz+r}')
                    S(f'v_cvt_pk_bf16_f32 v{H+2*i}, v{U}, v{U+1}')
                    S(f'v_cvt_pk_bf16_f32 v{H+2*i+1}, v{U+2}, v{U+3}')
                S(f'buffer_store_dwordx4 {vr(H,4)}, v{vOff}, s[{sWS}:{sWS+3}], s{sT} offen')
                if tt < 3: S(f's_add_u32 s{sT}, s{sT}, {72*1024}')
        else:
            ra = [v.alloc(4, 4) for _ in range(4)]; rb = [v.alloc(4, 4) for _ in range(4)]
            S(f's_lshl_b32 s{sT}, s{sTh}, 8')
            S(f'v_lshlrev_b32 v{t2}, 4, v{vG}')
            S(f'v_add_u32 v{t2}, s{sT}, v{t2}')
            S(f'v_add_u32 v{t2}, {ST_SUM}, v{t2}')
            for tt in range(4):
                S(f'ds_read_b128 {vr(ra[tt],4)}, v{t2} offset:{tt*64}')
                S(f'ds_read_b128 {vr(rb[tt],4)}, v{t2} offset:{512 + tt*64}')
            cv = [v.alloc() for _ in range(4)]
            S(f's_mul_i32 s{sT}, s{sFq}, 320')
            S(f'v_lshlrev_b32 v{t3}, 2, v{vN}')
            S(f'v_add_u32 v{t3}, s{sT}, v{t3}')
            S(f'v_add_u32 v{t3}, {ST_CS}, v{t3}')
            for i in range(4):
                S(f'ds_read_b32 v{cv[i]}, v{t3} offset:{(1+i)*64}')
                S(f'ds_read_b32 v{vCs[1+i]}, v{t3} offset:{(1+i)*64 + 1280}')
            for i in range(4): S(f'v_add_f32 v{cv[i]}, v{cv[i]}, v{vCs[1+i]}')
            S(f's_sub_u32 s{sT}, s{sC}, 14\ns_lshl_b32 s{sT}, s{sT}, 4\ns_lshl_b32 s{sT2}, s{sFq}, 2\ns_add_u32 s{sT}, s{sT}, s{sT2}\ns_lshl_b32 s{sT}, s{sT}, 16')
            S(f's_lshl_b32 s{sT2}, s{sTb}, 2\ns_lshl_b32 s{sT3}, s{sTh}, 1\ns_add_u32 s{sT2}, s{sT2}, s{sT3}\ns_lshl_b32 s{sT2}, s{sT2}, 10')
            S(f's_add_u32 s{sT}, s{sT}, s{sT2}\ns_add_u32 s{sT}, s{sT}, {V_OFF}')
            vH = [v.alloc(4, 4) for _ in range(2)]
            n = 0
            for i in range(4):
                for p in range(2):
                    H = vH[n & 1]; n += 1
                    for u in range(2):
                        tt = 2*p + u; D = acc[1+i][tt]
                        for r in range(4): S(f'v_mul_f32 v{tq[r]}, v{rb[tt]+r}, v{cv[i]}')
                        for r in range(4): S(f'v_fma_f32 v{D+r}, v{D+r}, v{ra[tt]+r}, v{tq[r]}')
                        S(f'v_cvt_pk_bf16_f32 v{H+2*u}, v{D}, v{D+1}')
                        S(f'v_cvt_pk_bf16_f32 v{H+2*u+1}, v{D+2}, v{D+3}')
                    S(f'v_permlane32_swap_b32 v{H}, v{H+2}')
                    S(f'v_permlane32_swap_b32 v{H+1}, v{H+3}')
                    S(f'buffer_store_dwordx4 {vr(H,4)}, v{vOff}, s[{sWS}:{sWS+3}], s{sT} offen offset:{p*1024}')
                if i < 3: S(f's_add_u32 s{sT}, s{sT}, 65536')

    S(f's_cmp_eq_u32 s{sIsB}, 1\ns_cbranch_scc1 {L}_typeB')
    S(f's_cmp_eq_u32 s{sDuty}, 1\ns_cbranch_scc1 {L}_A1')
    procs = Processor().run(S)
    import copy
    outs = []
    def tail(typeB):
        reduce_stats(typeB)
        if stamps: S(f's_memtime s[{sSt+12}:{sSt+13}]')
        epilogue(typeB)
        if stamps:
            S(f's_memtime s[{sSt+16}:{sSt+17}]')
            S('s_waitcnt vmcnt(0)')
            S(f's_memtime s[{sSt+6}:{sSt+7}]\ns_memrealtime s[{sSt+8}:{sSt+9}]\ns_waitcnt lgkmcnt(0)')
            S(f's_sub_u32 s{sSt+2}, s{sSt+2}, s{sSt}\ns_sub_u32 s{sSt+4}, s{sSt+4}, s{sSt}\ns_sub_u32 s{sSt+6}, s{sSt+6}, s{sSt}\ns_sub_u32 s{sSt+8}, s{sSt+8}, s{sSt+10}')
            P = A[0][0]
            S(f'v_mov_b32 v{P}, s{sSt+2}\nv_mov_b32 v{P+1}, s{sSt+4}\nv_mov_b32 v{P+2}, s{sSt+6}\nv_mov_b32 v{P+3}, s{sSt+8}')
            S(f's_lshl_b32 s{sT}, s2, 3\ns_add_u32 s{sT}, s{sT}, s{sW}\ns_lshl_b32 s{sT}, s{sT}, 4\ns_add_u32 s{sT}, s{sT}, {STAMP_OFF}')
            S(f'v_mov_b32 v{t0}, 0')
            S(f'buffer_store_dwordx4 {vr(P,4)}, v{t0}, s[{sWS}:{sWS+3}], s{sT} offen')
            for a in (12, 14, 16): S(f's_sub_u32 s{sSt+a}, s{sSt+a}, s{sSt}')
            P = A[0][1]
            S(f'v_mov_b32 v{P}, s{sSt+12}\nv_mov_b32 v{P+1}, s{sSt+14}\nv_mov_b32 v{P+2}, s{sSt+16}\nv_mov_b32 v{P+3}, 0')
            S(f's_add_u32 s{sT}, s{sT}, {1 << 20}')
            S(f'buffer_store_dwordx4 {vr(P,4)}, v{t0}, s[{sWS}:{sWS+3}], s{sT} offen')
        S('s_endpgm')
    for typeB in (False, True):
        tn = 'B' if typeB else 'A'
        S.ins = []
        if typeB:
            S.label(f'{L}_typeB')
            S(f's_cmp_eq_u32 s{sDuty}, 1\ns_cbranch_scc1 {L}_B1')
        mainloop(typeB, 0)
        S(f's_branch {L}_{tn}tail')
        p0 = copy.deepcopy(procs); n0 = len(p0.out); p0.run(S); outs.append('\n'.join(p0.out[n0:]))
        S.ins = []
        S.label(f'{L}_{tn}1')
        mainloop(typeB, 1)
        S.label(f'{L}_{tn}tail')
        S('s_nop 7')
        tail(typeB)
        p = copy.deepcopy(procs); n0 = len(p.out); p.run(S); outs.append('\n'.join(p.out[n0:])); last = p
    text = procs.text() + '\n' + '\n'.join(outs) + f'\n{L}_end:\ns_endpgm\n'
    return kernel_text(name, text, v.hi), last, v.hi

if __name__ == '__main__':
    import sys
    t, p, hi = gen_gemm1()
    print(t)
    from collections import Counter
    print('vgprs', hi, 'nops', p.nops_inserted, Counter(w.split(' (')[0] for w, n, _ in p.nop_log), file=sys.stderr)
```

```python
from common import *

def gen_out(name='out_kernel', stamps=False, DW=5, R=6, NH=14, NO=4):
    S = Stream(); L = name
    v = VAlloc(256, 'v', 1)
    DB = DW
    sWD, sWO, sWS, sX, sOut = 8, 12, 16, 20, 24
    sW, sTb, sFb, sT, sT2, sT3, sWo, sAo, sLds = 28, 29, 30, 31, 32, 33, 34, 35, 36
    sSt = 60
    vLane = v.alloc(); vN = v.alloc(); vG = v.alloc(); vOff = v.alloc(); vDw = v.alloc()
    t0, t1, t2, t3 = [v.alloc() for _ in range(4)]
    vAh = [v.alloc() for _ in range(4)]; vAo = [v.alloc() for _ in range(4)]
    vXo = v.alloc(); vXr = [v.alloc(2, 2) for _ in range(4)]
    A = [[v.alloc(4, 4) for _ in range(4)] for _ in range(2)]
    B = [[v.alloc(4, 4) for _ in range(4)] for _ in range(DB + 1)]
    acc = [[v.alloc(4, 4) for _ in range(4)] for _ in range(4)]
    NS = NH + NO
    SLOT = 4096; RING = R * SLOT
    S(f's_cmp_ge_u32 s2, 256'); S(f's_cbranch_scc1 {L}_end')
    if stamps: S(f's_memtime s[{sSt}:{sSt+1}]\ns_memrealtime s[{sSt+10}:{sSt+11}]')
    S(f's_load_dwordx2 s[40:41], s[0:1], {KA_WD}')
    S(f's_load_dwordx2 s[42:43], s[0:1], {KA_WO}')
    S(f's_load_dwordx2 s[44:45], s[0:1], {KA_WS}')
    S(f's_load_dwordx2 s[46:47], s[0:1], {KA_X}')
    S(f's_load_dwordx2 s[48:49], s[0:1], {KA_OUT}')
    S(f'v_and_b32 v{vLane}, 63, v0')
    S(f'v_lshrrev_b32 v{t0}, 6, v0')
    S(f'v_and_b32 v{vN}, 15, v0')
    S(f'v_readfirstlane_b32 s{sW}, v{t0}')
    S(f'v_bfe_u32 v{vG}, v0, 4, 2')
    S(f'v_lshlrev_b32 v{vOff}, 4, v{vLane}')
    S(f's_and_b32 s{sT}, s2, 7\ns_lshl_b32 s{sT}, s{sT}, 2\ns_lshr_b32 s{sT2}, s2, 3\ns_and_b32 s{sT2}, s{sT2}, 3\ns_add_u32 s{sTb}, s{sT}, s{sT2}')
    S(f's_lshr_b32 s{sFb}, s2, 5')
    S(f'v_lshrrev_b32 v{t0}, 3, v{vLane}')
    S(f'v_lshlrev_b32 v{t0}, 10, v{t0}')
    S(f'v_and_b32 v{t1}, 7, v{vLane}')
    S(f'v_lshlrev_b32 v{t2}, 1, v{vG}')
    S(f'v_xor_b32 v{t1}, v{t1}, v{t2}')
    S(f'v_lshl_add_u32 v{vDw}, v{t1}, 4, v{t0}')
    S('s_waitcnt lgkmcnt(0)')
    srd(S, sWD, 40, 1792 * 512 * 2); srd(S, sWO, 42, 512 * 512 * 2); srd(S, sWS, 44, WS_SIZE)
    srd(S, sX, 46, 2048 * 512 * 2); srd(S, sOut, 48, 2048 * 512 * 2)
    S(f's_mul_i32 s{sLds}, s{sW}, {RING}')
    S(f's_mul_i32 s{sWo}, s{sW}, {32*NH*1024}\ns_lshl_b32 s{sT}, s{sFb}, 7\ns_add_u32 s{sWo}, s{sWo}, s{sT}')
    S(f's_mul_i32 s{sAo}, s{sTb}, {4*72*1024}\ns_mul_i32 s{sT}, s{sW}, {NH*1024}\ns_add_u32 s{sAo}, s{sAo}, s{sT}\ns_add_u32 s{sAo}, s{sAo}, {ACT_OFF}')
    sWo2, sAo2 = 37, 38
    S(f's_mul_i32 s{sWo2}, s{sW}, {32*NO*1024}\ns_lshl_b32 s{sT}, s{sFb}, 7\ns_add_u32 s{sWo2}, s{sWo2}, s{sT}')
    S(f's_mul_i32 s{sAo2}, s{sTb}, {4*72*1024}\ns_mul_i32 s{sT}, s{sW}, {NO*1024}\ns_add_u32 s{sAo2}, s{sAo2}, s{sT}\ns_add_u32 s{sAo2}, s{sAo2}, {ACT_OFF + 56*1024}')
    def issue(s):
        if s >= NS: return
        slot = (s % R) * SLOT
        h = s < NH
        srdw = sWD if h else sWO
        wo, ao, i0 = (sWo, sAo, s) if h else (sWo2, sAo2, s - NH)
        for i in range(4):
            S(f's_add_u32 m0, s{sLds}, {slot + i*1024}')
            S(f's_add_u32 s{sT}, s{wo}, {(32*i0 + 8*i)*1024}')
            S(f'buffer_load_dwordx4 v{vDw}, s[{srdw}:{srdw+3}], s{sT} offen lds', tag=('w', s))
        for tt in range(4):
            S(f's_add_u32 s{sT}, s{ao}, {(tt*72 + i0)*1024}')
            S(f'buffer_load_dwordx4 {vr(B[s % (DB+1)][tt],4)}, v{vOff}, s[{sWS}:{sWS+3}], s{sT} offen', tag=('b', s))
    for s in range(DW): issue(s)
    vR, vCq = t2, t3
    S(f'v_lshrrev_b32 v{vR}, 2, v{vN}')
    S(f'v_and_b32 v{vCq}, 3, v{vN}')
    S(f'v_and_b32 v{t0}, 1, v{vG}')
    S(f'v_lshlrev_b32 v{t0}, 1, v{t0}')
    S(f'v_lshrrev_b32 v{t1}, 1, v{vR}')
    S(f'v_add_u32 v{t0}, v{t0}, v{t1}')
    S(f'v_lshlrev_b32 v{t0}, 1, v{t0}')
    S(f'v_lshrrev_b32 v{t1}, 1, v{vCq}')
    S(f'v_xor_b32 v{t0}, v{t0}, v{t1}')
    S(f'v_lshlrev_b32 v{t0}, 4, v{t0}')
    S(f'v_and_b32 v{t1}, 1, v{vCq}')
    S(f'v_lshl_add_u32 v{t0}, v{t1}, 3, v{t0}')
    S(f'v_lshl_add_u32 v{t1}, v{vG}, 2, v{vR}')
    S(f'v_lshl_add_u32 v{vAh[0]}, v{t1}, 7, v{t0}')
    S(f'v_lshrrev_b32 v{t1}, 1, v{vG}')
    S(f'v_lshlrev_b32 v{t1}, 4, v{t1}')
    S(f'v_add_u32 v{t1}, v{t1}, v{vR}')
    S(f'v_and_b32 v{vCq}, 1, v{vG}')
    S(f'v_lshl_add_u32 v{t1}, v{vCq}, 2, v{t1}')
    S(f'v_lshl_add_u32 v{vAo[0]}, v{t1}, 7, v{t0}')
    for tau in range(1, 4):
        S(f'v_xor_b32 v{vAh[tau]}, {32*tau}, v{vAh[0]}')
        S(f'v_xor_b32 v{vAo[tau]}, {32*tau}, v{vAo[0]}')
    for tau in range(4):
        S(f'v_add_u32 v{vAh[tau]}, s{sLds}, v{vAh[tau]}')
        S(f'v_add_u32 v{vAo[tau]}, s{sLds}, v{vAo[tau]}')
    S(f's_lshl_b32 s{sT}, s{sTb}, 6\ns_lshl_b32 s{sT2}, s{sW}, 4\ns_add_u32 s{sT}, s{sT}, s{sT2}')
    S(f'v_add_u32 v{t0}, s{sT}, v{vN}')
    S(f'v_lshlrev_b32 v{t0}, 10, v{t0}')
    S(f's_lshl_b32 s{sT}, s{sFb}, 7')
    S(f'v_add_u32 v{t0}, s{sT}, v{t0}')
    S(f'v_lshl_add_u32 v{vXo}, v{vG}, 3, v{t0}')
    for tau in range(4):
        S(f'buffer_load_dwordx2 {vr(vXr[tau],2)}, v{vXo}, s[{sX}:{sX+3}], 0 offen offset:{32*tau}', tag='x')
    S(f'v_and_b32 v{t1}, 1, v{vG}')
    S(f'v_lshl_add_u32 v{t0}, v{t1}, 5, v{t0}')
    S(f'v_lshrrev_b32 v{t1}, 1, v{vG}')
    S(f'v_lshl_add_u32 v{vXo}, v{t1}, 4, v{t0}')
    def reads(s):
        h = s < NH; slot = (s % R) * SLOT; out = []
        for tau in range(4):
            for rd in range(2):
                a = vAh[tau] if h else vAo[tau]
                out.append(f'ds_read_b64_tr_b16 {vr(A[s&1][tau]+2*rd,2)}, v{a} offset:{slot + rd*(2048 if h else 1024)}')
        return out
    S.wait_vm(('w', 0))
    if stamps: S(f's_memtime s[{sSt+2}:{sSt+3}]')
    for r in reads(0): S(r)
    for s in range(NS):
        if s + 1 < NS: S.wait_vm(('w', s + 1))
        S('s_waitcnt lgkmcnt(0)')
        issue(s + DW)
        rr = reads(s + 1) if s + 1 < NS else []
        k = 0
        for tt in range(4):
            for tau in range(4):
                c = '0' if s == 0 else vr(acc[tau][tt], 4)
                S(f'v_mfma_f32_16x16x32_bf16 {vr(acc[tau][tt],4)}, {vr(A[s&1][tau],4)}, {vr(B[s % (DB+1)][tt],4)}, {c}')
                if k < len(rr): S(rr[k]); k += 1
    if stamps: S(f's_memtime s[{sSt+4}:{sSt+5}]')
    S('s_waitcnt lgkmcnt(0)')
    S('s_barrier')
    S(f's_lshl_b32 s{sT}, s{sW}, 14')
    S(f'v_add_u32 v{t0}, s{sT}, v{vOff}')
    S('s_nop 2')
    for tt in range(4):
        for tau in range(4):
            S(f'ds_write_b128 v{t0}, {vr(acc[tau][tt],4)} offset:{(tau*4 + tt)*1024}')
    S('s_waitcnt lgkmcnt(0)')
    S('s_barrier')
    S(f's_lshl_b32 s{sT}, s{sW}, 10')
    S(f'v_add_u32 v{t0}, s{sT}, v{vOff}')
    red = [[B[g][tau] for tau in range(4)] for g in range(4)]
    for tau in range(4):
        for g in range(4):
            S(f'ds_read_b128 {vr(red[g][tau],4)}, v{t0} offset:{g*16384 + tau*4096}')
    P = A[0][0]
    for tau in range(4):
        d = red[0][tau]
        for r in range(4): S(f'v_add_f32 v{d+r}, v{d+r}, v{red[1][tau]+r}')
        for r in range(4): S(f'v_add_f32 v{red[2][tau]+r}, v{red[2][tau]+r}, v{red[3][tau]+r}')
        S(f'v_lshlrev_b32 v{t1}, 16, v{vXr[tau]}')
        S(f'v_and_b32 v{t2}, 0xffff0000, v{vXr[tau]}')
        S(f'v_add_f32 v{d}, v{d}, v{t1}')
        S(f'v_add_f32 v{d+1}, v{d+1}, v{t2}')
        S(f'v_lshlrev_b32 v{t1}, 16, v{vXr[tau]+1}')
        S(f'v_and_b32 v{t2}, 0xffff0000, v{vXr[tau]+1}')
        S(f'v_add_f32 v{d+2}, v{d+2}, v{t1}')
        S(f'v_add_f32 v{d+3}, v{d+3}, v{t2}')
        for r in range(4): S(f'v_add_f32 v{d+r}, v{d+r}, v{red[2][tau]+r}')
        S(f'v_cvt_pk_bf16_f32 v{P+2*tau}, v{d}, v{d+1}')
        S(f'v_cvt_pk_bf16_f32 v{P+2*tau+1}, v{d+2}, v{d+3}')
    for p in range(2):
        x, y = P + 4*p, P + 4*p + 2
        S(f'v_permlane16_swap_b32 v{x}, v{y}')
        S(f'v_permlane16_swap_b32 v{x+1}, v{y+1}')
        S(f'buffer_store_dwordx4 {vr(x,4)}, v{vXo}, s[{sOut}:{sOut+3}], 0 offen offset:{64*p}')
    if stamps:
        S('s_waitcnt vmcnt(0)')
        S(f's_memtime s[{sSt+6}:{sSt+7}]\ns_memrealtime s[{sSt+8}:{sSt+9}]\ns_waitcnt lgkmcnt(0)')
        S(f's_sub_u32 s{sSt+2}, s{sSt+2}, s{sSt}\ns_sub_u32 s{sSt+4}, s{sSt+4}, s{sSt}\ns_sub_u32 s{sSt+6}, s{sSt+6}, s{sSt}\ns_sub_u32 s{sSt+8}, s{sSt+8}, s{sSt+10}')
        P = A[0][0]
        S(f'v_mov_b32 v{P}, s{sSt+2}\nv_mov_b32 v{P+1}, s{sSt+4}\nv_mov_b32 v{P+2}, s{sSt+6}\nv_mov_b32 v{P+3}, s{sSt+8}')
        S(f's_lshl_b32 s{sT}, s2, 3\ns_add_u32 s{sT}, s{sT}, s{sW}\ns_lshl_b32 s{sT}, s{sT}, 4\ns_add_u32 s{sT}, s{sT}, {STAMP_OFF}')
        S(f'v_mov_b32 v{t0}, 0')
        S(f'buffer_store_dwordx4 {vr(P,4)}, v{t0}, s[{sWS}:{sWS+3}], s{sT} offen')
    S.label(f'{L}_end')
    S('s_endpgm')
    p = Processor().run(S)
    lds = max(4 * RING, 65536)
    return kernel_text(name, p.text(), v.hi), p, v.hi, lds
if __name__ == '__main__':
    import sys
    t, p, hi, lds = gen_out()
    print(t)
    from collections import Counter
    print('vgprs', hi, 'lds', lds, 'nops', p.nops_inserted, Counter(w.split(' (')[0] for w, n, _ in p.nop_log), file=sys.stderr)
```

```python
from runlib import *
import runlib
if ON_GPU:
    from runlib import _check, _hip
from build_final import build as bf
txt, launches, ks = bf()
if not ON_GPU:
    build(ks, 't_all'); raise SystemExit(0)
m = Mod('t_all.co')
fs = [(m.fn(k), g, b, l) for k, g, b, l in launches]
for seed in (0, 1):
    env = Env(seed)
    def run(extra=0):
        for i, (f, g, b, l) in enumerate(fs): env.launch(f, g + extra, b, l, i)
    _check(_hip.hipMemset(env.ws._ptr, 0xff, 1 << 25)); _check(_hip.hipMemset(env.out._ptr, 0xff, 2048*512*2))
    run(3); sync()
    out = from_bits(env.out_read())
    ref = env.m.reference(**env.inp)[0].float()
    cmp('out vs bf16 ref', out, ref)
    r = env.ref_fp32()
    o = attn_ref(r['q'] * (0.25 * LOG2E), r['k'], r['v']).reshape(2048, 512)
    ex = r['x'] + o @ r['wo'] + r['h'] @ r['wd']
    cmp('out vs fp32', out.cuda(), ex)
    act = env.ws_read(ACT_OFF, (128, 72, 64, 8), np.uint16)
    cmp('o', from_bits(unfrag_act(act[:, 56:], OSLOT)).cuda(), o)
tm = Timer(); ts = []
for i in range(10):
    tm.start(); run(); ts.append(tm.stop())
print('event us (3 kernels)', [round(t, 1) for t in ts])
for i, (f, g, b, l) in enumerate(fs):
    ts = []
    for j in range(8):
        tm.start(); env.launch(f, g, b, l, i); ts.append(tm.stop())
    print(launches[i][0], [round(t, 1) for t in ts])
```

```python
import sys
from build_final import *
nop = kernel_text('nop_kernel', 's_endpgm', 8)
os.makedirs('var', exist_ok=True)
build(dict(extra_launch=[('nop_kernel', 256, 256, 0)], extra_text=nop), 'v_nop1.s')
build(dict(extra_launch=[('nop_kernel', 256, 256, 0)]*4, extra_text=nop), 'v_nop4.s')
build(dict(extra_launch=[('nop_kernel', 1, 64, 0)]*4, extra_text=nop), 'v_nop4s.s')
build(dict(), 'v_base.s')
```

```python
from common import *
def dbg_setup(S, sD, sTmp):
    S(f's_load_dwordx2 s[{sTmp}:{sTmp+1}], s[0:1], {KA_DBG}')
    S('s_waitcnt lgkmcnt(0)')
    srd(S, sD, sTmp, 256)
def dbg_stamp(S, sD, idx, vA, vB, sT, invert=False):
    S(f's_memrealtime s[{sT}:{sT+1}]')
    S('s_waitcnt lgkmcnt(0)')
    if invert: S(f's_not_b32 s{sT}, s{sT}')
    S(f'v_mov_b32 v{vA}, s{sT}')
    S(f'v_mov_b32 v{vB}, {4*idx}')
    S(f's_mov_b64 s[{sT}:{sT+1}], exec')
    S(f's_mov_b64 exec, 1')
    S(f'buffer_atomic_umax v{vA}, v{vB}, s[{sD}:{sD+3}], 0 offen')
    S(f's_mov_b64 exec, s[{sT}:{sT+1}]')
def collect_kernel(n):
    S = Stream()
    S(f's_cmp_ge_u32 s2, 1\ns_cbranch_scc1 collect_kernel_end')
    S(f's_load_dwordx2 s[4:5], s[0:1], {KA_DBG}')
    S('s_waitcnt lgkmcnt(0)')
    S(f's_sub_u32 s4, s4, {512*n}\ns_subb_u32 s5, s5, 0')
    srd(S, 8, 4, 512*n + 256)
    S('v_and_b32 v1, 3, v0\nv_lshrrev_b32 v2, 2, v0\nv_lshlrev_b32 v2, 9, v2\nv_lshl_add_u32 v2, v1, 2, v2')
    S('v_mov_b32 v5, 0')
    S('buffer_load_dword v3, v2, s[8:11], 0 offen sc1')
    S('buffer_load_dword v4, v5, s[8:11], 0 offen sc1')
    S('s_waitcnt vmcnt(0)')
    S('v_not_b32 v4, v4')
    S('v_not_b32 v6, v3')
    S('v_cmp_eq_u32 vcc, 0, v1')
    S('s_nop 1')
    S('v_cndmask_b32 v3, v3, v6, vcc')
    S('v_sub_u32 v3, v3, v4')
    S(f'v_lshlrev_b32 v7, 2, v0\nv_add_u32 v7, 16, v7')
    S(f'v_cmp_gt_u32 vcc, 12, v0\ns_and_saveexec_b64 s[12:13], vcc')
    S('buffer_store_dword v3, v7, s[8:11], 0 offen')
    S('s_mov_b64 exec, s[12:13]')
    S('s_waitcnt vmcnt(0)')
    S.label('collect_kernel_end')
    S('s_endpgm')
    p = Processor().run(S)
    return kernel_text('collect_kernel', p.text(), 16)
```

```python
from common import *
from diag import *

def gen_attn(name='attn_kernel', stamps=False, unroll=8, prio=0, xp='', dbg=False):
    S = Stream()
    v = VAlloc(256, 'v', 1)
    sWS = 8
    sW = 20; sHead = 21; sQt = 22; sT = 23; sT2 = 24; sCnt = 25
    sMask = 26
    sSt = 30
    vLane = v.alloc(1, name='lane'); vOff = v.alloc(1); vKa = v.alloc(1); vVa = v.alloc(1)
    vT0 = v.alloc(1); vT1 = v.alloc(1); vM = v.alloc(1); vT2 = v.alloc(1)
    vQ = v.alloc(4, 4); Kf = [v.alloc(4, 4) for _ in range(2)]
    Vf = [[v.alloc(4, 4) for _ in range(2)] for _ in range(2)]
    P = v.alloc(8, 4)
    Sx = [v.alloc(16, 4) for _ in range(2)]
    O = v.alloc(16, 4); Cm = v.alloc(16, 4)
    L = name

    S(f's_cmp_ge_u32 s2, 256')
    S(f's_cbranch_scc1 {L}_end')
    if stamps: S(f's_memtime s[{sSt}:{sSt+1}]\ns_memrealtime s[40:41]')
    if dbg: dbg_setup(S, 44, 48); dbg_stamp(S, 44, 0, vT0, vT1, 48, True)
    S(f's_load_dwordx2 s[4:5], s[0:1], {KA_WS}')
    S(f'v_and_b32 v{vLane}, 63, v0')
    S(f'v_lshrrev_b32 v{vT0}, 6, v0')
    S(f'v_lshlrev_b32 v{vOff}, 4, v{vLane}')
    S(f'v_readfirstlane_b32 s{sW}, v{vT0}')
    S(f's_and_b32 s{sHead}, s2, 7')
    S(f's_lshl_b32 s{sHead}, s{sHead}, 2')
    S(f's_lshr_b32 s{sT}, s2, 6')
    S(f's_add_u32 s{sHead}, s{sHead}, s{sT}')
    S(f's_lshr_b32 s{sQt}, s2, 3')
    S(f's_and_b32 s{sQt}, s{sQt}, 7')
    S(f's_lshl_b32 s{sQt}, s{sQt}, 3')
    S(f's_add_u32 s{sQt}, s{sQt}, s{sW}')
    S(f's_waitcnt lgkmcnt(0)')
    srd(S, sWS, 4, WS_SIZE)
    sKoff = 28; sLds = 29
    S(f's_lshl_b32 s{sKoff}, s{sHead}, 16')
    S(f's_lshl_b32 s{sT}, s{sW}, 10')
    S(f's_add_u32 s{sKoff}, s{sKoff}, s{sT}')
    def dma(i, tag):
        S(f's_add_u32 m0, s{sT}, {i*8192}')
        S(f's_add_u32 s{sT2}, s{sKoff}, {K_OFF + i*8192}')
        S(f'buffer_load_dwordx4 v{vOff}, s[{sWS}:{sWS+3}], s{sT2} offen lds', tag=tag)
        S(f's_add_u32 m0, s{sT}, {65536 + i*8192}')
        S(f's_add_u32 s{sT2}, s{sKoff}, {V_OFF + i*8192}')
        S(f'buffer_load_dwordx4 v{vOff}, s[{sWS}:{sWS+3}], s{sT2} offen lds', tag=tag)
    dma(0, 'kv0')
    S(f's_lshl_b32 s{sLds}, s{sHead}, 16')
    S(f's_lshl_b32 s{sT2}, s{sQt}, 10')
    S(f's_add_u32 s{sLds}, s{sLds}, s{sT2}')
    S(f's_add_u32 s{sLds}, s{sLds}, {Q_OFF}')
    S(f'buffer_load_dwordx4 {vr(vQ,4)}, v{vOff}, s[{sWS}:{sWS+3}], s{sLds} offen', tag='q')
    for i in range(1, 8): dma(i, 'kvrest')
    S(f'v_mov_b32 v{vKa}, v{vOff}')
    S(f'v_lshrrev_b32 v{vT0}, 5, v{vLane}')
    S(f'v_lshlrev_b32 v{vT0}, 8, v{vT0}')
    S(f'v_and_b32 v{vT1}, 15, v{vLane}')
    S(f'v_lshlrev_b32 v{vT1}, 4, v{vT1}')
    S(f'v_add_u32 v{vVa}, v{vT0}, v{vT1}')
    S(f'v_add_u32 v{vVa}, 0x10000, v{vVa}')
    S(f's_mov_b32 s{sMask}, 0x0000ffff')
    S(f's_mov_b32 s{sMask+1}, 0x0000ffff')
    S(f'v_and_b32 v{vT0}, 27, v{vLane}')
    S(f'v_cmp_eq_u32 vcc, 16, v{vT0}')
    S(f'v_mov_b32 v{vT1}, 0x3f803f80')
    S(f'v_cndmask_b32 v{vT1}, 0, v{vT1}, vcc')
    for a in Vf:
        for b in a:
            for i in range(4): S(f'v_mov_b32 v{b+i}, v{vT1}')
    S.wait_vm('kv0')
    S('s_barrier')
    if dbg: dbg_stamp(S, 44, 1, vT0, vT1, 48)
    if stamps: S(f's_memtime s[{sSt+2}:{sSt+3}]\ns_waitcnt lgkmcnt(0)')
    S(f'ds_read_b128 {vr(Kf[0],4)}, v{vKa}')
    S(f'ds_read_b128 {vr(Kf[1],4)}, v{vKa} offset:1024')
    S(f'v_mfma_f32_32x32x16_bf16 {vr(Sx[0],16)}, {vr(Kf[0],4)}, {vr(vQ,4)}, 0')
    S(f'v_mfma_f32_32x32x16_bf16 {vr(Sx[1],16)}, {vr(Kf[1],4)}, {vr(vQ,4)}, 0')
    S(f'v_max3_f32 v{vM}, v{Sx[0]}, v{Sx[0]+1}, v{Sx[0]+2}')
    for i in range(3, 15, 2): S(f'v_max3_f32 v{vM}, v{vM}, v{Sx[0]+i}, v{Sx[0]+i+1}')
    S(f'v_max3_f32 v{vM}, v{vM}, v{Sx[0]+15}, v{Sx[1]}')
    for i in range(1, 15, 2): S(f'v_max3_f32 v{vM}, v{vM}, v{Sx[1]+i}, v{Sx[1]+i+1}')
    S(f'v_max_f32 v{vM}, v{vM}, v{Sx[1]+15}')
    S(f'v_mov_b32 v{vT0}, v{vM}')
    S(f'v_permlane32_swap_b32 v{vM}, v{vT0}')
    S(f'v_max_f32 v{vM}, v{vM}, v{vT0}')
    DELTA = 64.0
    S(f'v_add_f32 v{vM}, {fhex(DELTA)}, v{vM}')
    for i in range(16): S(f'v_sub_f32 v{Cm+i}, 0, v{vM}')
    def rdK(t_off, buf):
        if 'K' in xp: return
        S(f'ds_read_b128 {vr(Kf[buf],4)}, v{vKa} offset:{t_off*1024}')
    def rdV(t_off, buf):
        if 'V' in xp: return
        if 'E' not in xp: S(f's_mov_b64 exec, s[{sMask}:{sMask+1}]')
        S(f'ds_read_b128 {vr(Vf[buf][0],4)}, v{vVa} offset:{t_off*1024}')
        if '1' not in xp: S(f'ds_read_b128 {vr(Vf[buf][1],4)}, v{vVa} offset:{t_off*1024+512}')
        if 'E' not in xp: S(f's_mov_b64 exec, -1')
    def qk(buf_s, buf_k): S(f'v_mfma_f32_32x32x16_bf16 {vr(Sx[buf_s],16)}, {vr(Kf[buf_k],4)}, {vr(vQ,4)}, {vr(Cm,16)}')
    def pv(u, buf, first=False):
        S(f'v_mfma_f32_32x32x16_bf16 {vr(O,16)}, {vr(Vf[buf][u],4)}, {vr(P+4*u,4)}, ' + ('0' if first else vr(O,16)))
    rdV(0, 0)
    qk(0, 0)
    for i in range(16): S(f'v_mov_b32 v{O+i}, 0')
    def tile(t, off, first=False, last_in_block=False):
        cur = Sx[t & 1]
        if 'W' not in xp: S('s_waitcnt lgkmcnt(0)')
        if 'Q' not in xp: qk((t+1) & 1, (t+1) & 1)
        rdK(off + 2, t & 1)
        e = lambda i: S(f'v_exp_f32 v{cur+i}, v{cur+i}')
        c = lambda i: S(f'v_cvt_pk_bf16_f32 v{P+i}, v{cur+2*i}, v{cur+2*i+1}')
        if prio == 1: S('s_setprio 1')
        e(0); e(1); e(2); c(0); e(3); e(4); c(1); e(5)
        if not first and 'P' not in xp: pv(1, (t+1) & 1)
        rdV(off + 1, (t+1) & 1)
        e(6); c(2); e(7); e(8); c(3); e(9); e(10)
        if prio == 1: S('s_setprio 0')
        if prio == 2: S('s_setprio %d' % (t & 1))
        if 'P' not in xp: pv(0, t & 1)
        c(4); e(11); e(12); c(5); e(13); e(14); e(15); c(6)
        if last_in_block:
            S(f'v_add_u32 v{vKa}, {unroll*1024}, v{vKa}')
        c(7)
        if last_in_block:
            S(f'v_add_u32 v{vVa}, {unroll*1024}, v{vVa}')
            S(f's_sub_u32 s{sCnt}, s{sCnt}, 1')
    def block(first):
        for t in range(unroll):
            if first and t == unroll - 2:
                S.wait_vm('kvrest'); S('s_barrier')
                if stamps: S(f's_memtime s[{sSt+4}:{sSt+5}]')
            tile(t, t, first=(first and t == 0), last_in_block=(t == unroll - 1))
    S(f's_mov_b32 s{sCnt}, {64//unroll}')
    block(True)
    S.label(f'{L}_loop')
    block(False)
    S(f's_cmp_lg_u32 s{sCnt}, 0')
    S(f's_cbranch_scc1 {L}_loop')
    pv(1, 1)
    S('s_waitcnt lgkmcnt(0)')
    if stamps: S(f's_memtime s[{sSt+6}:{sSt+7}]\ns_waitcnt lgkmcnt(0)')
    if dbg: dbg_stamp(S, 44, 2, vT0, vT1, 48)
    S('s_nop 7\ns_nop 3')
    S(f'v_add_f32 v{vT0}, |v{O}|, |v{O+1}|')
    for i in range(2, 8): S(f'v_add_f32 v{vT0}, v{vT0}, |v{O+i}|')
    S(f'v_mov_b32 v{vT1}, 0x7f800000')
    S(f'v_cmp_lt_f32 vcc, v{vT0}, v{vT1}')
    S(f'v_mov_b32 v{vT2}, {fhex(2.0**110)}')
    S(f'v_cmp_lt_f32 s[4:5], v{O+8}, v{vT2}')
    S(f's_and_b64 vcc, vcc, s[4:5]')
    S(f's_cmp_eq_u64 vcc, -1')
    S(f's_cbranch_scc1 {L}_fin')
    S(f'v_mov_b32 v{vKa}, v{vOff}')
    S(f'v_subrev_u32 v{vVa}, 0x10000, v{vVa}')
    S(f'v_mov_b32 v{vM}, 0xff800000')
    for i in range(16): S(f'v_mov_b32 v{O+i}, 0')
    S(f's_mov_b32 s{sCnt}, 64')
    S.label(f'{L}_slow')
    S(f'ds_read_b128 {vr(Kf[0],4)}, v{vKa}')
    rdV(0, 0)
    S('s_waitcnt lgkmcnt(0)')
    S(f'v_mfma_f32_32x32x16_bf16 {vr(Sx[0],16)}, {vr(Kf[0],4)}, {vr(vQ,4)}, 0')
    S(f'v_max3_f32 v{vT0}, v{Sx[0]}, v{Sx[0]+1}, v{Sx[0]+2}')
    for i in range(3, 15, 2): S(f'v_max3_f32 v{vT0}, v{vT0}, v{Sx[0]+i}, v{Sx[0]+i+1}')
    S(f'v_max3_f32 v{vT0}, v{vT0}, v{Sx[0]+15}, v{vM}')
    S(f'v_mov_b32 v{vT1}, v{vT0}')
    S(f'v_permlane32_swap_b32 v{vT0}, v{vT1}')
    S(f'v_max_f32 v{vT0}, v{vT0}, v{vT1}')
    S(f'v_sub_f32 v{vT1}, v{vM}, v{vT0}')
    S(f'v_exp_f32 v{vT1}, v{vT1}')
    S(f'v_mov_b32 v{vM}, v{vT0}')
    for i in range(16): S(f'v_mul_f32 v{O+i}, v{O+i}, v{vT1}')
    for i in range(16): S(f'v_sub_f32 v{Sx[0]+i}, v{Sx[0]+i}, v{vM}')
    for i in range(16): S(f'v_exp_f32 v{Sx[0]+i}, v{Sx[0]+i}')
    for i in range(8): S(f'v_cvt_pk_bf16_f32 v{P+i}, v{Sx[0]+2*i}, v{Sx[0]+2*i+1}')
    pv(0, 0); pv(1, 0)
    S(f'v_add_u32 v{vKa}, 1024, v{vKa}')
    S(f'v_add_u32 v{vVa}, 1024, v{vVa}')
    S(f's_sub_u32 s{sCnt}, s{sCnt}, 1')
    S(f's_cmp_lg_u32 s{sCnt}, 0')
    S('s_nop 7\ns_nop 7')
    S(f's_cbranch_scc1 {L}_slow')
    S.label(f'{L}_fin')
    S('s_nop 7\ns_nop 3')
    S(f'v_rcp_f32 v{vT0}, v{O+8}')
    for i in range(8): S(f'v_mul_f32 v{O+i}, v{O+i}, v{vT0}')
    for i in range(4): S(f'v_cvt_pk_bf16_f32 v{P+i}, v{O+2*i}, v{O+2*i+1}')
    S(f's_mul_i32 s{sT}, s{sQt}, {2*72*1024}')
    S(f's_lshr_b32 s{sT2}, s{sHead}, 1\ns_lshl_b32 s{sT2}, s{sT2}, 10')
    S(f's_add_u32 s{sT}, s{sT}, s{sT2}')
    S(f's_and_b32 s{sT2}, s{sHead}, 1\ns_lshl_b32 s{sT2}, s{sT2}, 9')
    S(f's_add_u32 s{sT}, s{sT}, s{sT2}')
    S(f's_add_u32 s{sT}, s{sT}, {ACT_OFF + 56*1024}')
    S(f'v_bfe_u32 v{vT0}, v{vLane}, 4, 1')
    S(f'v_mul_u32_u24 v{vT0}, {72*1024}, v{vT0}')
    S(f'v_lshrrev_b32 v{vT1}, 5, v{vLane}')
    S(f'v_lshl_add_u32 v{vT0}, v{vT1}, 8, v{vT0}')
    S(f'v_and_b32 v{vT1}, 15, v{vLane}')
    S(f'v_lshl_add_u32 v{vT0}, v{vT1}, 4, v{vT0}')
    S(f'buffer_store_dwordx4 {vr(P,4)}, v{vT0}, s[{sWS}:{sWS+3}], s{sT} offen')
    if stamps:
        S('s_waitcnt vmcnt(0)')
        S(f's_memtime s[4:5]\ns_memrealtime s[42:43]\ns_waitcnt lgkmcnt(0)')
        S(f's_sub_u32 s{sSt+4}, s42, s40')
        S(f's_add_u32 s{sSt+4}, s{sSt+4}, s{sSt}')
        for i, a in enumerate((sSt+2, sSt+4, sSt+6, 4)):
            S(f's_sub_u32 s{a}, s{a}, s{sSt}')
            S(f'v_mov_b32 v{P+i}, s{a}')
        S(f's_lshl_b32 s{sT}, s2, 3\ns_add_u32 s{sT}, s{sT}, s{sW}\ns_lshl_b32 s{sT}, s{sT}, 4')
        S(f's_add_u32 s{sT}, s{sT}, {STAMP_OFF}')
        S(f'v_mov_b32 v{vT0}, 0')
        S(f'buffer_store_dwordx4 {vr(P,4)}, v{vT0}, s[{sWS}:{sWS+3}], s{sT} offen')
    if dbg:
        S('s_waitcnt vmcnt(0)'); dbg_stamp(S, 44, 3, vT0, vT1, 48); S('s_waitcnt vmcnt(0)')
    S.label(f'{L}_end')
    S('s_endpgm')
    p = Processor().run(S)
    return kernel_text(name, p.text(), v.hi), p, v.hi
if __name__ == '__main__':
    t, p, hi = gen_attn()
    print(t)
    import sys
    print('vgprs', hi, 'nops', p.nops_inserted, p.nop_log, file=sys.stderr)
```

```python
from common import *
from diag import *

BIG = 0; BIGSZ = 24576; NBIG = 3
MB = BIG + NBIG * BIGSZ; MSZ = 16384; NM = 4
STAT = MB + NM * MSZ
ST_SUM = STAT; ST_SQ = STAT + 512; ST_CS = STAT + 1024
LDS1 = STAT + 1024 + 2 * 320 * 4
QSCALE = 0.25 * LOG2E

def gen_gemm1(name='gemm1_kernel', stamps=False, xp='', dbg=False):
    S = Stream(); L = name
    v = VAlloc(256, 'v', 1)
    sX, sQK, sM0, sM1, sWS = 8, 12, 16, 20, 24
    sW, sTb, sC, sTh, sFq, sT, sT2, sRS = 28, 29, 30, 31, 32, 33, 34, 35
    sXo, sQo, sM0o, sM1o, sLx, sLq, sLm = 36, 37, 38, 39, 40, 41, 42
    sIsB, sScale, sT3, sStepM, sDuty, sMaskHi = 43, 44, 45, 46, 58, 59
    sSt = 60
    vLane = v.alloc(); vN = v.alloc(); vG = v.alloc()
    vT = [v.alloc() for _ in range(6)]
    vDx = [v.alloc() for _ in range(2)]; vDq = v.alloc(); vDm = v.alloc()
    vXa = [v.alloc() for _ in range(2)]; vQa = v.alloc(); vMa = [v.alloc() for _ in range(4)]
    vSum = [v.alloc() for _ in range(2)]; vSq = [v.alloc() for _ in range(2)]; vLo = v.alloc(); vHi = v.alloc()
    vXs = [v.alloc() for _ in range(2)]
    vOnes = v.alloc(4, 4)
    A = [[v.alloc(4, 4) for _ in range(5)] for _ in range(2)]
    B = [[v.alloc(4, 4) for _ in range(4)] for _ in range(2)]
    Bs = [v.alloc(4, 4) for _ in range(2)]
    acc = [[v.alloc(4, 4) for _ in range(4)] for _ in range(5)]
    vCs = [v.alloc(4, 4) for _ in range(5)]
    vEp = v.alloc(16, 4)

    S(f's_cmp_ge_u32 s2, 256'); S(f's_cbranch_scc1 {L}_end')
    if stamps: S(f's_memtime s[{sSt}:{sSt+1}]\ns_memrealtime s[{sSt+10}:{sSt+11}]')
    if dbg: dbg_setup(S, 84, 88); dbg_stamp(S, 84, 0, vT[0], vT[1], 88, True)
    S(f's_load_dwordx4 s[48:51], s[0:1], {KA_X}')
    S(f's_load_dwordx4 s[52:55], s[0:1], {KA_WG}')
    S(f's_load_dwordx2 s[56:57], s[0:1], {KA_WS}')
    S(f'v_and_b32 v{vLane}, 63, v0')
    S(f'v_lshrrev_b32 v{vT[0]}, 6, v0')
    S(f'v_and_b32 v{vN}, 15, v0')
    S(f'v_readfirstlane_b32 s{sW}, v{vT[0]}')
    S(f'v_bfe_u32 v{vG}, v0, 4, 2')
    S(f's_and_b32 s{sT}, s2, 1\ns_lshl_b32 s{sT}, s{sT}, 3')
    S(f's_lshr_b32 s{sT2}, s2, 3\ns_and_b32 s{sT2}, s{sT2}, 7\ns_add_u32 s{sTb}, s{sT}, s{sT2}')
    S(f's_lshr_b32 s{sT}, s2, 1\ns_and_b32 s{sT}, s{sT}, 3\ns_lshl_b32 s{sT}, s{sT}, 2')
    S(f's_lshr_b32 s{sT2}, s2, 6\ns_add_u32 s{sC}, s{sT}, s{sT2}')
    S(f's_and_b32 s{sTh}, s{sW}, 1\ns_lshr_b32 s{sFq}, s{sW}, 1')
    S(f's_cmp_ge_u32 s{sC}, 14\ns_cselect_b32 s{sIsB}, 1, 0')
    S(f's_lshr_b32 s{sDuty}, s{sFq}, 1\ns_xor_b32 s{sDuty}, s{sDuty}, s{sTh}')
    S('s_waitcnt lgkmcnt(0)')
    srd(S, sX, 48, 2048 * 512 * 2)
    srd(S, sQK, 50, 512 * 1536 * 2)
    srd(S, sWS, 56, WS_SIZE)
    S(f's_cmp_eq_u32 s{sIsB}, 1')
    for d, p in ((sM0, 52), (sM1, 54)):
        S(f's_cselect_b32 s{d}, s50, s{p}')
        S(f's_cselect_b32 s{d+1}, s51, s{p+1}')
        S(f's_and_b32 s{d+1}, s{d+1}, 0xffff')
        S(f's_cmp_eq_u32 s{sIsB}, 1')
        S(f's_mov_b32 s{d+2}, {512*1792*2}\ns_cmov_b32 s{d+2}, {512*1536*2}')
        S(f's_mov_b32 s{d+3}, 0x20000')
    S(f's_mov_b32 s{sRS}, 3584\ns_cmov_b32 s{sRS}, 3072')
    S(f's_lshl_b32 s{sXo}, s{sTb}, 17')
    S(f's_lshl_b32 s{sQo}, s{sC}, 7')
    S(f's_lshl_b32 s{sM0o}, s{sC}, 8')
    S(f's_sub_u32 s{sT}, s{sC}, 14\ns_lshl_b32 s{sT}, s{sT}, 9\ns_add_u32 s{sT}, s{sT}, 2048')
    S(f's_cmp_eq_u32 s{sIsB}, 1')
    S(f's_cselect_b32 s{sM0o}, s{sT}, s{sM0o}')
    S(f's_cselect_b32 s{sT}, 256, 0')
    S(f's_add_u32 s{sM1o}, s{sM0o}, s{sT}')
    S(f's_lshl_b32 s{sStepM}, s{sRS}, 5')
    t0, t1, t2, t3, t4, t5 = vT
    for i in range(2):
        S(f'v_lshrrev_b32 v{t0}, 3, v{vLane}')
        S(f's_lshl_b32 s{sT}, s{sW}, 4\ns_add_u32 s{sT}, s{sT}, {8*i}')
        S(f'v_add_u32 v{t0}, s{sT}, v{t0}')
        S(f'v_lshlrev_b32 v{t0}, 10, v{t0}')
        S(f'v_and_b32 v{t1}, 7, v{vLane}')
        S(f'v_xor_b32 v{t1}, v{t1}, v{vG}')
        if i: S(f'v_xor_b32 v{t1}, 4, v{t1}')
        S(f'v_lshl_add_u32 v{vDx[i]}, v{t1}, 4, v{t0}')
    S(f'v_lshrrev_b32 v{t0}, 3, v{vLane}')
    S(f'v_bfe_u32 v{t2}, v{vLane}, 4, 1')
    S(f's_and_b32 s{sT}, s{sW}, 1\ns_lshl_b32 s{sT}, s{sT}, 1')
    S(f'v_or_b32 v{t2}, s{sT}, v{t2}')
    S(f'v_lshlrev_b32 v{t2}, 1, v{t2}')
    S(f'v_and_b32 v{t1}, 7, v{vLane}')
    S(f'v_xor_b32 v{t1}, v{t1}, v{t2}')
    S(f's_lshl_b32 s{sT}, s{sW}, 3')
    S(f'v_add_u32 v{t0}, s{sT}, v{t0}')
    S(f'v_mul_u32_u24 v{t0}, 3072, v{t0}')
    S(f'v_lshl_add_u32 v{vDq}, v{t1}, 4, v{t0}')
    S(f's_lshr_b32 s{sT}, s{sW}, 1\ns_and_b32 s{sT}, s{sT}, 1\ns_lshl_b32 s{sT}, s{sT}, 2')
    S(f'v_or_b32 v{t2}, s{sT}, v{vG}')
    S(f'v_lshlrev_b32 v{t2}, 1, v{t2}')
    S(f'v_xor_b32 v{t1}, v{vN}, v{t2}')
    S(f's_lshl_b32 s{sT}, s{sW}, 2')
    S(f'v_add_u32 v{t0}, s{sT}, v{vG}')
    S(f'v_mul_lo_u32 v{t0}, v{t0}, s{sRS}')
    S(f'v_lshl_add_u32 v{vDm}, v{t1}, 4, v{t0}')
    S(f's_lshl_b32 s{sLx}, s{sW}, 11')
    S(f's_lshl_b32 s{sLq}, s{sW}, 10\ns_add_u32 s{sLq}, s{sLq}, 16384')
    S(f's_lshl_b32 s{sLm}, s{sW}, 10\ns_add_u32 s{sLm}, s{sLm}, {MB}')
    def dma_big(j):
        slot = (j % NBIG) * BIGSZ + BIG
        for i in range(2):
            S(f's_add_u32 m0, s{sLx}, {slot + i*1024}')
            S(f's_add_u32 s{sT}, s{sXo}, {j*128}')
            S(f'buffer_load_dwordx4 v{vDx[i]}, s[{sX}:{sX+3}], s{sT} offen lds', tag=('big', j))
        S(f's_add_u32 m0, s{sLq}, {slot}')
        S(f's_add_u32 s{sT}, s{sQo}, {j*64*3072}')
        S(f'buffer_load_dwordx4 v{vDq}, s[{sQK}:{sQK+3}], s{sT} offen lds', tag=('big', j))
    def dma_m(s):
        slot = (s % NM) * MSZ
        S(f's_add_u32 m0, s{sLm}, {slot}')
        S(f's_nop 0')
        S(f'buffer_load_dwordx4 v{vDm}, s[{sM0}:{sM0+3}], s{sM0o} offen lds', tag=('m', s))
        S(f's_add_u32 m0, s{sLm}, {slot + 8192}')
        S(f's_add_u32 s{sM0o}, s{sM0o}, s{sStepM}')
        S(f'buffer_load_dwordx4 v{vDm}, s[{sM1}:{sM1+3}], s{sM1o} offen lds', tag=('m', s))
        S(f's_add_u32 s{sM1o}, s{sM1o}, s{sStepM}')
    dma_big(0); dma_m(0); dma_m(1); dma_big(1); dma_m(2); dma_m(3); dma_big(2)
    S(f's_lshl_b32 s{sT}, s{sTh}, 6')
    S(f'v_add_u32 v{t0}, s{sT}, v{vN}')
    S(f'v_lshlrev_b32 v{t0}, 7, v{t0}')
    S(f'v_lshrrev_b32 v{t1}, 1, v{vN}')
    S(f'v_xor_b32 v{t1}, v{t1}, v{vG}')
    S(f'v_lshl_add_u32 v{vXa[0]}, v{t1}, 4, v{t0}')
    S(f'v_xor_b32 v{vXa[1]}, 64, v{vXa[0]}')
    S(f's_lshl_b32 s{sT}, s{sFq}, 11')
    S(f'v_add_u32 v{vXs[0]}, s{sT}, v{vXa[0]}')
    S(f'v_add_u32 v{vXs[1]}, s{sT}, v{vXa[1]}')
    vR, vCq = t4, t5
    S(f'v_lshrrev_b32 v{vR}, 2, v{vN}')
    S(f'v_and_b32 v{vCq}, 3, v{vN}')
    S(f'v_lshl_add_u32 v{t0}, v{vG}, 3, v{vR}')
    S(f'v_lshrrev_b32 v{t1}, 1, v{vR}')
    S(f'v_and_b32 v{t2}, 1, v{vG}')
    S(f'v_lshl_or_b32 v{t1}, v{t2}, 1, v{t1}')
    S(f'v_xor_b32 v{t1}, s{sFq}, v{t1}')
    S(f'v_lshlrev_b32 v{t1}, 1, v{t1}')
    S(f'v_lshrrev_b32 v{t2}, 1, v{vCq}')
    S(f'v_add_u32 v{t1}, v{t1}, v{t2}')
    S(f'v_lshlrev_b32 v{t1}, 4, v{t1}')
    S(f'v_and_b32 v{t2}, 1, v{vCq}')
    S(f'v_lshl_add_u32 v{t1}, v{t2}, 3, v{t1}')
    S(f'v_lshl_add_u32 v{vQa}, v{t0}, 7, v{t1}')
    S(f'v_add_u32 v{vQa}, 16384, v{vQa}')
    S(f'v_and_b32 v{t2}, 1, v{vG}')
    S(f'v_lshl_or_b32 v{t1}, v{t2}, 2, v{vR}')
    S(f'v_lshlrev_b32 v{t1}, 1, v{t1}')
    S(f'v_lshrrev_b32 v{t2}, 1, v{vCq}')
    S(f'v_xor_b32 v{t1}, v{t1}, v{t2}')
    S(f'v_lshlrev_b32 v{t1}, 4, v{t1}')
    S(f'v_and_b32 v{t2}, 1, v{vCq}')
    S(f'v_lshl_add_u32 v{t1}, v{t2}, 3, v{t1}')
    S(f'v_lshl_add_u32 v{t1}, v{t0}, 8, v{t1}')
    for i in range(4):
        S(f's_lshl_b32 s{sT}, s{sFq}, 1\ns_add_u32 s{sT}, s{sT}, {i & 1}\ns_lshl_b32 s{sT}, s{sT}, 5')
        S(f's_add_u32 s{sT}, s{sT}, {(i >> 1) * 8192}')
        S(f's_and_b32 s{sT2}, s{sFq}, 1\ns_lshl_b32 s{sT2}, s{sT2}, 2\ns_add_u32 s{sT2}, s{sT2}, {i}\ns_lshl_b32 s{sT2}, s{sT2}, 5')
        S(f's_lshr_b32 s{sT3}, s{sFq}, 1\ns_lshl_b32 s{sT3}, s{sT3}, 13\ns_add_u32 s{sT2}, s{sT2}, s{sT3}')
        S(f's_cmp_eq_u32 s{sIsB}, 1\ns_cselect_b32 s{sT}, s{sT2}, s{sT}')
        S(f'v_xor_b32 v{vMa[i]}, s{sT}, v{t1}')
        S(f'v_add_u32 v{vMa[i]}, {MB}, v{vMa[i]}')
    for r in vSum + vSq: S(f'v_mov_b32 v{r}, 0')
    for i in range(4): S(f'v_mov_b32 v{vOnes+i}, 0x3f803f80')
    S(f's_mov_b32 s{sMaskHi}, 0xffff0000')

    def reads(s):
        b = s & 1; sp = s & 1; j = s // 2
        bs = (j % NBIG) * BIGSZ + BIG; ms = (s % NM) * MSZ
        out = []
        for tt in range(4):
            out.append(f'ds_read_b128 {vr(B[b][tt],4)}, v{vXa[sp]} offset:{bs + tt*2048}')
        for rd in range(2):
            out.append(f'ds_read_b64_tr_b16 {vr(A[b][0]+2*rd,2)}, v{vQa} offset:{bs + (32*sp + 4*rd)*128}')
        if 'S' not in xp: out.append(f'ds_read_b128 {vr(Bs[b],4)}, v{vXs[sp]} offset:{bs}')
        for i in range(4):
            for rd in range(2):
                out.append(f'ds_read_b64_tr_b16 {vr(A[b][1+i]+2*rd,2)}, v{vMa[i]} offset:{ms + rd*1024}')
        return out
    def mfmas(s, typeB):
        b = s & 1; out = []
        for f in range(5):
            for tt in range(4):
                c = '0' if s == 0 else vr(acc[f][tt], 4)
                a_, b_ = vr(A[b][f], 4), vr(B[b][tt], 4)
                if typeB and f > 0: a_, b_ = b_, a_
                out.append(f'v_mfma_f32_16x16x32_bf16 {vr(acc[f][tt],4)}, {a_}, {b_}, {c}')
        return out
    def stats(s):
        b = s & 1; out = []
        for r in range(4):
            p = Bs[b] + r
            out.append(f'v_lshlrev_b32 v{vLo}, 16, v{p}')
            out.append(f'v_and_b32 v{vHi}, s{sMaskHi}, v{p}')
            out.append(f'v_add_f32 v{vSum[0]}, v{vSum[0]}, v{vLo}')
            out.append(f'v_add_f32 v{vSum[1]}, v{vSum[1]}, v{vHi}')
            out.append(f'v_fma_f32 v{vSq[0]}, v{vLo}, v{vLo}, v{vSq[0]}')
            out.append(f'v_fma_f32 v{vSq[1]}, v{vHi}, v{vHi}, v{vSq[1]}')
        return out
    def csmfmas(s, typeB, first):
        b = s & 1; out = []
        for f in range(5):
            c = '0' if first else vr(vCs[f], 4)
            a_, b_ = vr(A[b][f], 4), vr(vOnes, 4)
            if typeB and f > 0: a_, b_ = b_, a_
            out.append(f'v_mfma_f32_16x16x32_bf16 {vr(vCs[f],4)}, {a_}, {b_}, {c}')
        return out

    def mainloop(typeB, duty):
        tag = ('B' if typeB else 'A') + str(duty)
        S.wait_vm(('big', 0)); S.wait_vm(('m', 0))
        S('s_waitcnt lgkmcnt(0)')
        S('s_barrier')
        if stamps: S(f's_memtime s[{sSt+2}:{sSt+3}]')
        if dbg: dbg_stamp(S, 84, 1, vT[0], vT[1], 88)
        for r in reads(0): S(r)
        for s in range(16):
            S('s_waitcnt lgkmcnt(0)')
            if s + 1 < 16:
                S.wait_vm(('m', s + 1)); S.wait_vm(('big', (s + 1) // 2))
            S('s_barrier')
            if s + 4 < 16 and 'D' not in xp: dma_m(s + 4)
            if s % 2 == 1 and (s - 1) // 2 + 3 < 8 and 'D' not in xp: dma_big((s - 1) // 2 + 3)
            mm = mfmas(s, typeB)
            if s % 2 == duty and 'S' not in xp:
                cm = csmfmas(s, typeB, s < 2)
                mm = [x for f in range(5) for x in mm[4*f:4*f+4] + [cm[f]]]
            rr = reads(s + 1) if s + 1 < 16 else []
            if 'R' in xp: rr = []
            st = stats(s) if 'S' not in xp else []
            k = 0; q = 0
            for i, m in enumerate(mm):
                S(m)
                if k < len(rr): S(rr[k]); k += 1
                nq = (len(st) * (i + 1) + len(mm) - 1) // len(mm)
                while q < nq: S(st[q]); q += 1
        if stamps: S(f's_memtime s[{sSt+4}:{sSt+5}]')

    def greduce(r):
        S(f'v_mov_b32 v{t0}, v{r}')
        S(f'v_permlane32_swap_b32 v{r}, v{t0}')
        S(f'v_add_f32 v{r}, v{r}, v{t0}')
        S(f'v_mov_b32 v{t0}, v{r}')
        S(f'v_permlane16_swap_b32 v{r}, v{t0}')
        S(f'v_add_f32 v{r}, v{r}, v{t0}')
    def reduce_stats(typeB):
        S(f'v_add_f32 v{vSum[0]}, v{vSum[0]}, v{vSum[1]}')
        S(f'v_add_f32 v{vSq[0]}, v{vSq[0]}, v{vSq[1]}')
        for r in [vSum[0], vSq[0]]: greduce(r)
        ab_from(vSum[0], vSq[0], vSum[1], vSq[1])
        S(f's_lshl_b32 s{sT}, s{sTh}, 6\ns_lshl_b32 s{sT2}, s{sFq}, 4\ns_add_u32 s{sT}, s{sT}, s{sT2}')
        S(f'v_add_u32 v{t0}, s{sT}, v{vN}')
        S(f'v_lshlrev_b32 v{t0}, 2, v{t0}')
        S(f'v_add_u32 v{t0}, {ST_SUM}, v{t0}')
        S(f'ds_write_b32 v{t0}, v{vSum[1]}')
        S(f'ds_write_b32 v{t0}, v{vSq[1]} offset:512')
        S(f's_mul_i32 s{sT}, s{sFq}, 320\ns_mul_i32 s{sT2}, s{sDuty}, 1280\ns_add_u32 s{sT}, s{sT}, s{sT2}\ns_add_u32 s{sT}, s{sT}, {ST_CS}')
        S(f'v_lshlrev_b32 v{t1}, 4, v{vG}')
        S(f'v_add_u32 v{t1}, s{sT}, v{t1}')
        S(f'v_lshlrev_b32 v{t2}, 2, v{vN}')
        S(f'v_add_u32 v{t2}, s{sT}, v{t2}')
        S('s_nop 7')
        for f in range(5):
            if typeB and f > 0: S(f'ds_write_b32 v{t2}, v{vCs[f]} offset:{f*64}')
            else: S(f'ds_write_b128 v{t1}, {vr(vCs[f],4)} offset:{f*64}')
        S('s_waitcnt lgkmcnt(0)')
        S('s_barrier')

    def ab_from(vs, vq, va, vb, scale_lit=None):
        S(f'v_mul_f32 v{vs}, {fhex(1/512)}, v{vs}')
        S(f'v_mul_f32 v{vq}, {fhex(1/512)}, v{vq}')
        S(f'v_fma_f32 v{vq}, -v{vs}, v{vs}, v{vq}')
        S(f'v_max_f32 v{vq}, 0, v{vq}')
        S(f'v_add_f32 v{vq}, {fhex(1e-5)}, v{vq}')
        S(f'v_rsq_f32 v{va}, v{vq}')
        S(f'v_mul_f32 v{vb}, v{vs}, v{va}')
        S(f'v_sub_f32 v{vb}, 0, v{vb}')

    def epilogue(typeB):
        v = VAlloc(Bs[1] + 4, 'v', A[0][0])
        vP = v.alloc(8, 4); vcsr = v.alloc(4, 4)
        va = [vEp + i for i in range(4)]; vb = [vEp + 4 + i for i in range(4)]
        tq = [vEp + 8 + i for i in range(4)]
        vOff = vEp + 12; vAq = vEp + 13; vBq = vEp + 14
        S(f'v_lshlrev_b32 v{vOff}, 4, v{vLane}')
        S(f's_lshl_b32 s{sT}, s{sTh}, 6')
        S(f'v_add_u32 v{t0}, s{sT}, v{vN}')
        S(f'v_lshlrev_b32 v{t0}, 2, v{t0}')
        S(f'v_add_u32 v{t0}, {ST_SUM}, v{t0}')
        for tt in range(4):
            S(f'ds_read_b32 v{va[tt]}, v{t0} offset:{tt*64}')
            S(f'ds_read_b32 v{vb[tt]}, v{t0} offset:{512 + tt*64}')
        S(f's_mul_i32 s{sT}, s{sFq}, 320')
        S(f'v_lshlrev_b32 v{t1}, 4, v{vG}')
        S(f'v_add_u32 v{t1}, s{sT}, v{t1}')
        S(f'v_add_u32 v{t1}, {ST_CS}, v{t1}')
        def rd_cs_row(dst, f):
            tmp = vCs[f]
            S(f'ds_read_b128 {vr(dst,4)}, v{t1} offset:{f*64}')
            S(f'ds_read_b128 {vr(tmp,4)}, v{t1} offset:{f*64 + 1280}')
            return [f'v_add_f32 v{dst+r}, v{dst+r}, v{tmp+r}' for r in range(4)]
        for x in rd_cs_row(vcsr, 0): S(x)
        S(f's_cmp_lt_u32 s{sC}, 8\ns_cselect_b32 s{sScale}, {fhex(QSCALE)}, 1.0')
        for tt in range(4):
            S(f'v_mul_f32 v{vAq}, s{sScale}, v{va[tt]}')
            S(f'v_mul_f32 v{vBq}, s{sScale}, v{vb[tt]}')
            for r in range(4):
                S(f'v_mul_f32 v{tq[r]}, v{vBq}, v{vcsr+r}')
            for r in range(4):
                S(f'v_fma_f32 v{acc[0][tt]+r}, v{acc[0][tt]+r}, v{vAq}, v{tq[r]}')
            S(f'v_cvt_pk_bf16_f32 v{vP+2*tt}, v{acc[0][tt]}, v{acc[0][tt]+1}')
            S(f'v_cvt_pk_bf16_f32 v{vP+2*tt+1}, v{acc[0][tt]+2}, v{acc[0][tt]+3}')
        S(f's_and_b32 s{sT}, s{sC}, 7\ns_lshl_b32 s{sT}, s{sT}, 2\ns_add_u32 s{sT}, s{sT}, s{sFq}\ns_lshl_b32 s{sT}, s{sT}, 16')
        S(f's_cmp_lt_u32 s{sC}, 8\ns_cselect_b32 s{sT2}, 0, {K_OFF - Q_OFF}\ns_add_u32 s{sT}, s{sT}, s{sT2}')
        S(f's_lshl_b32 s{sT2}, s{sTb}, 2\ns_lshl_b32 s{sT3}, s{sTh}, 1\ns_add_u32 s{sT2}, s{sT2}, s{sT3}\ns_lshl_b32 s{sT2}, s{sT2}, 10')
        S(f's_add_u32 s{sT}, s{sT}, s{sT2}')
        for p in range(2):
            x, y = vP + 4*p, vP + 4*p + 2
            S(f'v_permlane16_swap_b32 v{x}, v{y}')
            S(f'v_permlane16_swap_b32 v{x+1}, v{y+1}')
            S(f'buffer_store_dwordx4 {vr(x,4)}, v{vOff}, s[{sWS}:{sWS+3}], s{sT} offen offset:{p*1024}')
        if stamps: S(f's_memtime s[{sSt+14}:{sSt+15}]')
        if not typeB:
            cg = [v.alloc(4, 4) for _ in range(2)]; cu = [v.alloc(4, 4) for _ in range(2)]
            adds = []
            for i in range(2):
                adds += rd_cs_row(cg[i], 1+i); adds += rd_cs_row(cu[i], 3+i)
            for x in adds: S(x)
            K1 = -2 * LOG2E * 0.7978845608028654; K2 = K1 * 0.044715
            sK1, sK2 = 46, 47
            S(f's_mov_b32 s{sK1}, {fhex(K1)}\ns_mov_b32 s{sK2}, {fhex(K2)}')
            vk1 = v.alloc(); S(f'v_mov_b32 v{vk1}, s{sK1}')
            tg = v.alloc(4, 4); tu = v.alloc(4, 4); tz = v.alloc(4, 4)
            S(f's_lshl_b32 s{sT}, s{sTb}, 3\ns_lshl_b32 s{sT2}, s{sTh}, 2\ns_add_u32 s{sT}, s{sT}, s{sT2}\ns_mul_i32 s{sT}, s{sT}, {72*1024}')
            S(f's_lshl_b32 s{sT2}, s{sC}, 2\ns_add_u32 s{sT2}, s{sT2}, s{sFq}\ns_lshl_b32 s{sT2}, s{sT2}, 10\ns_add_u32 s{sT}, s{sT}, s{sT2}')
            S(f's_add_u32 s{sT}, s{sT}, {ACT_OFF}')
            vH = [v.alloc(4, 4) for _ in range(2)]
            for tt in range(4):
                H = vH[tt & 1]
                for i in range(2):
                    G, U = acc[1+i][tt], acc[3+i][tt]
                    for r in range(4): S(f'v_mul_f32 v{tg+r}, v{vb[tt]}, v{cg[i]+r}')
                    for r in range(4): S(f'v_mul_f32 v{tu+r}, v{vb[tt]}, v{cu[i]+r}')
                    for r in range(4): S(f'v_fma_f32 v{G+r}, v{G+r}, v{va[tt]}, v{tg+r}')
                    for r in range(4): S(f'v_fma_f32 v{U+r}, v{U+r}, v{va[tt]}, v{tu+r}')
                    for r in range(4): S(f'v_mul_f32 v{tz+r}, v{G+r}, v{G+r}')
                    for r in range(4): S(f'v_fma_f32 v{tz+r}, v{tz+r}, s{sK2}, v{vk1}')
                    for r in range(4): S(f'v_mul_f32 v{tz+r}, v{tz+r}, v{G+r}')
                    for r in range(4): S(f'v_exp_f32 v{tz+r}, v{tz+r}')
                    for r in range(4): S(f'v_mul_f32 v{U+r}, v{U+r}, v{G+r}')
                    for r in range(4): S(f'v_add_f32 v{tz+r}, 1.0, v{tz+r}')
                    for r in range(4): S(f'v_rcp_f32 v{tz+r}, v{tz+r}')
                    S('s_nop 0')
                    for r in range(4): S(f'v_mul_f32 v{U+r}, v{U+r}, v{tz+r}')
                    S(f'v_cvt_pk_bf16_f32 v{H+2*i}, v{U}, v{U+1}')
                    S(f'v_cvt_pk_bf16_f32 v{H+2*i+1}, v{U+2}, v{U+3}')
                S(f'buffer_store_dwordx4 {vr(H,4)}, v{vOff}, s[{sWS}:{sWS+3}], s{sT} offen')
                if tt < 3: S(f's_add_u32 s{sT}, s{sT}, {72*1024}')
        else:
            ra = [v.alloc(4, 4) for _ in range(4)]; rb = [v.alloc(4, 4) for _ in range(4)]
            S(f's_lshl_b32 s{sT}, s{sTh}, 8')
            S(f'v_lshlrev_b32 v{t2}, 4, v{vG}')
            S(f'v_add_u32 v{t2}, s{sT}, v{t2}')
            S(f'v_add_u32 v{t2}, {ST_SUM}, v{t2}')
            for tt in range(4):
                S(f'ds_read_b128 {vr(ra[tt],4)}, v{t2} offset:{tt*64}')
                S(f'ds_read_b128 {vr(rb[tt],4)}, v{t2} offset:{512 + tt*64}')
            cv = [v.alloc() for _ in range(4)]
            S(f's_mul_i32 s{sT}, s{sFq}, 320')
            S(f'v_lshlrev_b32 v{t3}, 2, v{vN}')
            S(f'v_add_u32 v{t3}, s{sT}, v{t3}')
            S(f'v_add_u32 v{t3}, {ST_CS}, v{t3}')
            for i in range(4):
                S(f'ds_read_b32 v{cv[i]}, v{t3} offset:{(1+i)*64}')
                S(f'ds_read_b32 v{vCs[1+i]}, v{t3} offset:{(1+i)*64 + 1280}')
            for i in range(4): S(f'v_add_f32 v{cv[i]}, v{cv[i]}, v{vCs[1+i]}')
            S(f's_sub_u32 s{sT}, s{sC}, 14\ns_lshl_b32 s{sT}, s{sT}, 4\ns_lshl_b32 s{sT2}, s{sFq}, 2\ns_add_u32 s{sT}, s{sT}, s{sT2}\ns_lshl_b32 s{sT}, s{sT}, 16')
            S(f's_lshl_b32 s{sT2}, s{sTb}, 2\ns_lshl_b32 s{sT3}, s{sTh}, 1\ns_add_u32 s{sT2}, s{sT2}, s{sT3}\ns_lshl_b32 s{sT2}, s{sT2}, 10')
            S(f's_add_u32 s{sT}, s{sT}, s{sT2}\ns_add_u32 s{sT}, s{sT}, {V_OFF}')
            vH = [v.alloc(4, 4) for _ in range(2)]
            n = 0
            for i in range(4):
                for p in range(2):
                    H = vH[n & 1]; n += 1
                    for u in range(2):
                        tt = 2*p + u; D = acc[1+i][tt]
                        for r in range(4): S(f'v_mul_f32 v{tq[r]}, v{rb[tt]+r}, v{cv[i]}')
                        for r in range(4): S(f'v_fma_f32 v{D+r}, v{D+r}, v{ra[tt]+r}, v{tq[r]}')
                        S(f'v_cvt_pk_bf16_f32 v{H+2*u}, v{D}, v{D+1}')
                        S(f'v_cvt_pk_bf16_f32 v{H+2*u+1}, v{D+2}, v{D+3}')
                    S(f'v_permlane32_swap_b32 v{H}, v{H+2}')
                    S(f'v_permlane32_swap_b32 v{H+1}, v{H+3}')
                    S(f'buffer_store_dwordx4 {vr(H,4)}, v{vOff}, s[{sWS}:{sWS+3}], s{sT} offen offset:{p*1024}')
                if i < 3: S(f's_add_u32 s{sT}, s{sT}, 65536')

    S(f's_cmp_eq_u32 s{sIsB}, 1\ns_cbranch_scc1 {L}_typeB')
    S(f's_cmp_eq_u32 s{sDuty}, 1\ns_cbranch_scc1 {L}_A1')
    procs = Processor().run(S)
    import copy
    outs = []
    def tail(typeB):
        if dbg: dbg_stamp(S, 84, 2, vT[0], vT[1], 88)
        reduce_stats(typeB)
        if stamps: S(f's_memtime s[{sSt+12}:{sSt+13}]')
        epilogue(typeB)
        if stamps:
            S(f's_memtime s[{sSt+16}:{sSt+17}]')
            S('s_waitcnt vmcnt(0)')
            S(f's_memtime s[{sSt+6}:{sSt+7}]\ns_memrealtime s[{sSt+8}:{sSt+9}]\ns_waitcnt lgkmcnt(0)')
            S(f's_sub_u32 s{sSt+2}, s{sSt+2}, s{sSt}\ns_sub_u32 s{sSt+4}, s{sSt+4}, s{sSt}\ns_sub_u32 s{sSt+6}, s{sSt+6}, s{sSt}\ns_sub_u32 s{sSt+8}, s{sSt+8}, s{sSt+10}')
            P = A[0][0]
            S(f'v_mov_b32 v{P}, s{sSt+2}\nv_mov_b32 v{P+1}, s{sSt+4}\nv_mov_b32 v{P+2}, s{sSt+6}\nv_mov_b32 v{P+3}, s{sSt+8}')
            S(f's_lshl_b32 s{sT}, s2, 3\ns_add_u32 s{sT}, s{sT}, s{sW}\ns_lshl_b32 s{sT}, s{sT}, 4\ns_add_u32 s{sT}, s{sT}, {STAMP_OFF}')
            S(f'v_mov_b32 v{t0}, 0')
            S(f'buffer_store_dwordx4 {vr(P,4)}, v{t0}, s[{sWS}:{sWS+3}], s{sT} offen')
            for a in (12, 14, 16): S(f's_sub_u32 s{sSt+a}, s{sSt+a}, s{sSt}')
            P = A[0][1]
            S(f'v_mov_b32 v{P}, s{sSt+12}\nv_mov_b32 v{P+1}, s{sSt+14}\nv_mov_b32 v{P+2}, s{sSt+16}\nv_mov_b32 v{P+3}, 0')
            S(f's_add_u32 s{sT}, s{sT}, {1 << 20}')
            S(f'buffer_store_dwordx4 {vr(P,4)}, v{t0}, s[{sWS}:{sWS+3}], s{sT} offen')
        if dbg:
            S('s_waitcnt vmcnt(0)'); dbg_stamp(S, 84, 3, vT[0], vT[1], 88); S('s_waitcnt vmcnt(0)')
        S('s_endpgm')
    for typeB in (False, True):
        tn = 'B' if typeB else 'A'
        S.ins = []
        if typeB:
            S.label(f'{L}_typeB')
            S(f's_cmp_eq_u32 s{sDuty}, 1\ns_cbranch_scc1 {L}_B1')
        mainloop(typeB, 0)
        S(f's_branch {L}_{tn}tail')
        p0 = copy.deepcopy(procs); n0 = len(p0.out); p0.run(S); outs.append('\n'.join(p0.out[n0:]))
        S.ins = []
        S.label(f'{L}_{tn}1')
        mainloop(typeB, 1)
        S.label(f'{L}_{tn}tail')
        S('s_nop 7')
        tail(typeB)
        p = copy.deepcopy(procs); n0 = len(p.out); p.run(S); outs.append('\n'.join(p.out[n0:])); last = p
    text = procs.text() + '\n' + '\n'.join(outs) + f'\n{L}_end:\ns_endpgm\n'
    return kernel_text(name, text, v.hi), last, v.hi

if __name__ == '__main__':
    import sys
    t, p, hi = gen_gemm1()
    print(t)
    from collections import Counter
    print('vgprs', hi, 'nops', p.nops_inserted, Counter(w.split(' (')[0] for w, n, _ in p.nop_log), file=sys.stderr)
```

```python
from common import *
from diag import *

def gen_out(name='out_kernel', stamps=False, DW=5, R=6, NH=14, NO=4, dbg=False):
    S = Stream(); L = name
    v = VAlloc(256, 'v', 1)
    DB = DW
    sWD, sWO, sWS, sX, sOut = 8, 12, 16, 20, 24
    sW, sTb, sFb, sT, sT2, sT3, sWo, sAo, sLds = 28, 29, 30, 31, 32, 33, 34, 35, 36
    sSt = 60
    vLane = v.alloc(); vN = v.alloc(); vG = v.alloc(); vOff = v.alloc(); vDw = v.alloc()
    t0, t1, t2, t3 = [v.alloc() for _ in range(4)]
    vAh = [v.alloc() for _ in range(4)]; vAo = [v.alloc() for _ in range(4)]
    vXo = v.alloc(); vXr = [v.alloc(2, 2) for _ in range(4)]
    A = [[v.alloc(4, 4) for _ in range(4)] for _ in range(2)]
    B = [[v.alloc(4, 4) for _ in range(4)] for _ in range(DB + 1)]
    acc = [[v.alloc(4, 4) for _ in range(4)] for _ in range(4)]
    NS = NH + NO
    SLOT = 4096; RING = R * SLOT
    S(f's_cmp_ge_u32 s2, 256'); S(f's_cbranch_scc1 {L}_end')
    if stamps: S(f's_memtime s[{sSt}:{sSt+1}]\ns_memrealtime s[{sSt+10}:{sSt+11}]')
    if dbg: dbg_setup(S, 52, 56); dbg_stamp(S, 52, 0, t0, t1, 56, True)
    S(f's_load_dwordx2 s[40:41], s[0:1], {KA_WD}')
    S(f's_load_dwordx2 s[42:43], s[0:1], {KA_WO}')
    S(f's_load_dwordx2 s[44:45], s[0:1], {KA_WS}')
    S(f's_load_dwordx2 s[46:47], s[0:1], {KA_X}')
    S(f's_load_dwordx2 s[48:49], s[0:1], {KA_OUT}')
    S(f'v_and_b32 v{vLane}, 63, v0')
    S(f'v_lshrrev_b32 v{t0}, 6, v0')
    S(f'v_and_b32 v{vN}, 15, v0')
    S(f'v_readfirstlane_b32 s{sW}, v{t0}')
    S(f'v_bfe_u32 v{vG}, v0, 4, 2')
    S(f'v_lshlrev_b32 v{vOff}, 4, v{vLane}')
    S(f's_and_b32 s{sT}, s2, 7\ns_lshl_b32 s{sT}, s{sT}, 2\ns_lshr_b32 s{sT2}, s2, 3\ns_and_b32 s{sT2}, s{sT2}, 3\ns_add_u32 s{sTb}, s{sT}, s{sT2}')
    S(f's_lshr_b32 s{sFb}, s2, 5')
    S(f'v_lshrrev_b32 v{t0}, 3, v{vLane}')
    S(f'v_lshlrev_b32 v{t0}, 10, v{t0}')
    S(f'v_and_b32 v{t1}, 7, v{vLane}')
    S(f'v_lshlrev_b32 v{t2}, 1, v{vG}')
    S(f'v_xor_b32 v{t1}, v{t1}, v{t2}')
    S(f'v_lshl_add_u32 v{vDw}, v{t1}, 4, v{t0}')
    S('s_waitcnt lgkmcnt(0)')
    srd(S, sWD, 40, 1792 * 512 * 2); srd(S, sWO, 42, 512 * 512 * 2); srd(S, sWS, 44, WS_SIZE)
    srd(S, sX, 46, 2048 * 512 * 2); srd(S, sOut, 48, 2048 * 512 * 2)
    S(f's_mul_i32 s{sLds}, s{sW}, {RING}')
    S(f's_mul_i32 s{sWo}, s{sW}, {32*NH*1024}\ns_lshl_b32 s{sT}, s{sFb}, 7\ns_add_u32 s{sWo}, s{sWo}, s{sT}')
    S(f's_mul_i32 s{sAo}, s{sTb}, {4*72*1024}\ns_mul_i32 s{sT}, s{sW}, {NH*1024}\ns_add_u32 s{sAo}, s{sAo}, s{sT}\ns_add_u32 s{sAo}, s{sAo}, {ACT_OFF}')
    sWo2, sAo2 = 37, 38
    S(f's_mul_i32 s{sWo2}, s{sW}, {32*NO*1024}\ns_lshl_b32 s{sT}, s{sFb}, 7\ns_add_u32 s{sWo2}, s{sWo2}, s{sT}')
    S(f's_mul_i32 s{sAo2}, s{sTb}, {4*72*1024}\ns_mul_i32 s{sT}, s{sW}, {NO*1024}\ns_add_u32 s{sAo2}, s{sAo2}, s{sT}\ns_add_u32 s{sAo2}, s{sAo2}, {ACT_OFF + 56*1024}')
    def issue(s):
        if s >= NS: return
        slot = (s % R) * SLOT
        h = s < NH
        srdw = sWD if h else sWO
        wo, ao, i0 = (sWo, sAo, s) if h else (sWo2, sAo2, s - NH)
        for i in range(4):
            S(f's_add_u32 m0, s{sLds}, {slot + i*1024}')
            S(f's_add_u32 s{sT}, s{wo}, {(32*i0 + 8*i)*1024}')
            S(f'buffer_load_dwordx4 v{vDw}, s[{srdw}:{srdw+3}], s{sT} offen lds', tag=('w', s))
        for tt in range(4):
            S(f's_add_u32 s{sT}, s{ao}, {(tt*72 + i0)*1024}')
            S(f'buffer_load_dwordx4 {vr(B[s % (DB+1)][tt],4)}, v{vOff}, s[{sWS}:{sWS+3}], s{sT} offen', tag=('b', s))
    for s in range(DW): issue(s)
    vR, vCq = t2, t3
    S(f'v_lshrrev_b32 v{vR}, 2, v{vN}')
    S(f'v_and_b32 v{vCq}, 3, v{vN}')
    S(f'v_and_b32 v{t0}, 1, v{vG}')
    S(f'v_lshlrev_b32 v{t0}, 1, v{t0}')
    S(f'v_lshrrev_b32 v{t1}, 1, v{vR}')
    S(f'v_add_u32 v{t0}, v{t0}, v{t1}')
    S(f'v_lshlrev_b32 v{t0}, 1, v{t0}')
    S(f'v_lshrrev_b32 v{t1}, 1, v{vCq}')
    S(f'v_xor_b32 v{t0}, v{t0}, v{t1}')
    S(f'v_lshlrev_b32 v{t0}, 4, v{t0}')
    S(f'v_and_b32 v{t1}, 1, v{vCq}')
    S(f'v_lshl_add_u32 v{t0}, v{t1}, 3, v{t0}')
    S(f'v_lshl_add_u32 v{t1}, v{vG}, 2, v{vR}')
    S(f'v_lshl_add_u32 v{vAh[0]}, v{t1}, 7, v{t0}')
    S(f'v_lshrrev_b32 v{t1}, 1, v{vG}')
    S(f'v_lshlrev_b32 v{t1}, 4, v{t1}')
    S(f'v_add_u32 v{t1}, v{t1}, v{vR}')
    S(f'v_and_b32 v{vCq}, 1, v{vG}')
    S(f'v_lshl_add_u32 v{t1}, v{vCq}, 2, v{t1}')
    S(f'v_lshl_add_u32 v{vAo[0]}, v{t1}, 7, v{t0}')
    for tau in range(1, 4):
        S(f'v_xor_b32 v{vAh[tau]}, {32*tau}, v{vAh[0]}')
        S(f'v_xor_b32 v{vAo[tau]}, {32*tau}, v{vAo[0]}')
    for tau in range(4):
        S(f'v_add_u32 v{vAh[tau]}, s{sLds}, v{vAh[tau]}')
        S(f'v_add_u32 v{vAo[tau]}, s{sLds}, v{vAo[tau]}')
    S(f's_lshl_b32 s{sT}, s{sTb}, 6\ns_lshl_b32 s{sT2}, s{sW}, 4\ns_add_u32 s{sT}, s{sT}, s{sT2}')
    S(f'v_add_u32 v{t0}, s{sT}, v{vN}')
    S(f'v_lshlrev_b32 v{t0}, 10, v{t0}')
    S(f's_lshl_b32 s{sT}, s{sFb}, 7')
    S(f'v_add_u32 v{t0}, s{sT}, v{t0}')
    S(f'v_lshl_add_u32 v{vXo}, v{vG}, 3, v{t0}')
    for tau in range(4):
        S(f'buffer_load_dwordx2 {vr(vXr[tau],2)}, v{vXo}, s[{sX}:{sX+3}], 0 offen offset:{32*tau}', tag='x')
    S(f'v_and_b32 v{t1}, 1, v{vG}')
    S(f'v_lshl_add_u32 v{t0}, v{t1}, 5, v{t0}')
    S(f'v_lshrrev_b32 v{t1}, 1, v{vG}')
    S(f'v_lshl_add_u32 v{vXo}, v{t1}, 4, v{t0}')
    def reads(s):
        h = s < NH; slot = (s % R) * SLOT; out = []
        for tau in range(4):
            for rd in range(2):
                a = vAh[tau] if h else vAo[tau]
                out.append(f'ds_read_b64_tr_b16 {vr(A[s&1][tau]+2*rd,2)}, v{a} offset:{slot + rd*(2048 if h else 1024)}')
        return out
    S.wait_vm(('w', 0))
    if dbg: dbg_stamp(S, 52, 1, t0, t1, 56)
    if stamps: S(f's_memtime s[{sSt+2}:{sSt+3}]')
    for r in reads(0): S(r)
    for s in range(NS):
        if s + 1 < NS: S.wait_vm(('w', s + 1))
        S('s_waitcnt lgkmcnt(0)')
        issue(s + DW)
        rr = reads(s + 1) if s + 1 < NS else []
        k = 0
        for tt in range(4):
            for tau in range(4):
                c = '0' if s == 0 else vr(acc[tau][tt], 4)
                S(f'v_mfma_f32_16x16x32_bf16 {vr(acc[tau][tt],4)}, {vr(A[s&1][tau],4)}, {vr(B[s % (DB+1)][tt],4)}, {c}')
                if k < len(rr): S(rr[k]); k += 1
    if stamps: S(f's_memtime s[{sSt+4}:{sSt+5}]')
    if dbg: dbg_stamp(S, 52, 2, t0, t1, 56)
    S('s_waitcnt lgkmcnt(0)')
    S('s_barrier')
    S(f's_lshl_b32 s{sT}, s{sW}, 14')
    S(f'v_add_u32 v{t0}, s{sT}, v{vOff}')
    S('s_nop 2')
    for tt in range(4):
        for tau in range(4):
            S(f'ds_write_b128 v{t0}, {vr(acc[tau][tt],4)} offset:{(tau*4 + tt)*1024}')
    S('s_waitcnt lgkmcnt(0)')
    S('s_barrier')
    S(f's_lshl_b32 s{sT}, s{sW}, 10')
    S(f'v_add_u32 v{t0}, s{sT}, v{vOff}')
    red = [[B[g][tau] for tau in range(4)] for g in range(4)]
    for tau in range(4):
        for g in range(4):
            S(f'ds_read_b128 {vr(red[g][tau],4)}, v{t0} offset:{g*16384 + tau*4096}')
    P = A[0][0]
    for tau in range(4):
        d = red[0][tau]
        for r in range(4): S(f'v_add_f32 v{d+r}, v{d+r}, v{red[1][tau]+r}')
        for r in range(4): S(f'v_add_f32 v{red[2][tau]+r}, v{red[2][tau]+r}, v{red[3][tau]+r}')
        S(f'v_lshlrev_b32 v{t1}, 16, v{vXr[tau]}')
        S(f'v_and_b32 v{t2}, 0xffff0000, v{vXr[tau]}')
        S(f'v_add_f32 v{d}, v{d}, v{t1}')
        S(f'v_add_f32 v{d+1}, v{d+1}, v{t2}')
        S(f'v_lshlrev_b32 v{t1}, 16, v{vXr[tau]+1}')
        S(f'v_and_b32 v{t2}, 0xffff0000, v{vXr[tau]+1}')
        S(f'v_add_f32 v{d+2}, v{d+2}, v{t1}')
        S(f'v_add_f32 v{d+3}, v{d+3}, v{t2}')
        for r in range(4): S(f'v_add_f32 v{d+r}, v{d+r}, v{red[2][tau]+r}')
        S(f'v_cvt_pk_bf16_f32 v{P+2*tau}, v{d}, v{d+1}')
        S(f'v_cvt_pk_bf16_f32 v{P+2*tau+1}, v{d+2}, v{d+3}')
    for p in range(2):
        x, y = P + 4*p, P + 4*p + 2
        S(f'v_permlane16_swap_b32 v{x}, v{y}')
        S(f'v_permlane16_swap_b32 v{x+1}, v{y+1}')
        S(f'buffer_store_dwordx4 {vr(x,4)}, v{vXo}, s[{sOut}:{sOut+3}], 0 offen offset:{64*p}')
    if stamps:
        S('s_waitcnt vmcnt(0)')
        S(f's_memtime s[{sSt+6}:{sSt+7}]\ns_memrealtime s[{sSt+8}:{sSt+9}]\ns_waitcnt lgkmcnt(0)')
        S(f's_sub_u32 s{sSt+2}, s{sSt+2}, s{sSt}\ns_sub_u32 s{sSt+4}, s{sSt+4}, s{sSt}\ns_sub_u32 s{sSt+6}, s{sSt+6}, s{sSt}\ns_sub_u32 s{sSt+8}, s{sSt+8}, s{sSt+10}')
        P = A[0][0]
        S(f'v_mov_b32 v{P}, s{sSt+2}\nv_mov_b32 v{P+1}, s{sSt+4}\nv_mov_b32 v{P+2}, s{sSt+6}\nv_mov_b32 v{P+3}, s{sSt+8}')
        S(f's_lshl_b32 s{sT}, s2, 3\ns_add_u32 s{sT}, s{sT}, s{sW}\ns_lshl_b32 s{sT}, s{sT}, 4\ns_add_u32 s{sT}, s{sT}, {STAMP_OFF}')
        S(f'v_mov_b32 v{t0}, 0')
        S(f'buffer_store_dwordx4 {vr(P,4)}, v{t0}, s[{sWS}:{sWS+3}], s{sT} offen')
    if dbg:
        S('s_waitcnt vmcnt(0)'); dbg_stamp(S, 52, 3, t0, t1, 56); S('s_waitcnt vmcnt(0)')
    S.label(f'{L}_end')
    S('s_endpgm')
    p = Processor().run(S)
    lds = max(4 * RING, 65536)
    return kernel_text(name, p.text(), v.hi), p, v.hi, lds
if __name__ == '__main__':
    import sys
    t, p, hi, lds = gen_out()
    print(t)
    from collections import Counter
    print('vgprs', hi, 'lds', lds, 'nops', p.nops_inserted, Counter(w.split(' (')[0] for w, n, _ in p.nop_log), file=sys.stderr)
```

```python
import sys
from build_final import *
from diag import collect_kernel
os.makedirs('var', exist_ok=True)
build(dict(g1=dict(dbg=True), attn=dict(dbg=True), out=dict(dbg=True), extra_launch=[('collect_kernel', 1, 256, 1024)], extra_text=collect_kernel(3, [8, 8, 4])), 'v_dbg.s')
```

```python
from common import *
def dbg_setup(S, sD, sTmp):
    S(f's_load_dwordx2 s[{sTmp}:{sTmp+1}], s[0:1], {KA_DBG}')
    S('s_waitcnt lgkmcnt(0)')
    srd(S, sD, sTmp, 256)
_lbl = [0]
def dbg_stamp(S, sD, idx, vA, vB, sT, invert=False):
    _lbl[0] += 1; lb = f'dbgskip{_lbl[0]}'
    S(f's_memrealtime s[{sT}:{sT+1}]')
    S(f'v_readfirstlane_b32 s{sT+2}, v0')
    S('s_waitcnt lgkmcnt(0)')
    S(f's_lshr_b32 s{sT+2}, s{sT+2}, 6')
    S(f's_cmp_lg_u32 s{sT+2}, 0')
    S(f's_cbranch_scc1 {lb}')
    if invert: S(f's_not_b32 s{sT}, s{sT}')
    S(f'v_mov_b32 v{vA}, s{sT}')
    S(f'v_mov_b32 v{vB}, {4*idx}')
    S(f's_mov_b64 s[{sT}:{sT+1}], exec')
    S(f's_mov_b64 exec, 1')
    S(f'buffer_atomic_umax v{vA}, v{vB}, s[{sD}:{sD+3}], 0 offen', tag='nocount')
    S(f's_mov_b64 exec, s[{sT}:{sT+1}]')
    S.label(lb)
def collect_kernel(n):
    S = Stream()
    S(f's_cmp_ge_u32 s2, 1\ns_cbranch_scc1 collect_kernel_end')
    S(f's_load_dwordx2 s[4:5], s[0:1], {KA_DBG}')
    S('s_waitcnt lgkmcnt(0)')
    S(f's_sub_u32 s4, s4, {512*n}\ns_subb_u32 s5, s5, 0')
    srd(S, 8, 4, 512*n + 256)
    S('v_and_b32 v1, 3, v0\nv_lshrrev_b32 v2, 2, v0\nv_lshlrev_b32 v2, 9, v2\nv_lshl_add_u32 v2, v1, 2, v2')
    S('v_mov_b32 v5, 0')
    S('buffer_load_dword v3, v2, s[8:11], 0 offen sc1')
    S('buffer_load_dword v4, v5, s[8:11], 0 offen sc1')
    S('s_waitcnt vmcnt(0)')
    S('v_not_b32 v4, v4')
    S('v_not_b32 v6, v3')
    S('v_cmp_eq_u32 vcc, 0, v1')
    S('s_nop 1')
    S('v_cndmask_b32 v3, v3, v6, vcc')
    S('v_sub_u32 v3, v3, v4')
    S(f'v_lshlrev_b32 v7, 2, v0\nv_add_u32 v7, {512*n}, v7')
    S(f'v_cmp_gt_u32 vcc, 12, v0\ns_and_saveexec_b64 s[12:13], vcc')
    S('buffer_store_dword v3, v7, s[8:11], 0 offen')
    S('s_mov_b64 exec, s[12:13]')
    S('s_waitcnt vmcnt(0)')
    S.label('collect_kernel_end')
    S('s_endpgm')
    p = Processor().run(S)
    return kernel_text('collect_kernel', p.text(), 16)
```

```python
from common import *
STAMP2 = 28 << 20
def dbg_setup(S, sD, sTmp):
    pass
def dbg_stamp(S, sD, idx, vA, vB, sT, invert=False, kidx=None, srd_ws=None, sW=None):
    S(f's_memrealtime s[{sD+2*idx}:{sD+2*idx+1}]')
def dbg_final(S, sD, vA, sT, kidx, srd_ws):
    S('s_waitcnt vmcnt(0)')
    S(f's_memrealtime s[{sD+6}:{sD+7}]')
    S('s_waitcnt lgkmcnt(0)')
    for i in range(4): S(f'v_mov_b32 v{vA+i}, s{sD+2*i}')
    S(f'v_lshrrev_b32 v{vA+4}, 6, v0')
    S(f'v_lshlrev_b32 v{vA+4}, 4, v{vA+4}')
    S(f's_lshl_b32 s{sT}, s2, 8')
    S(f's_add_u32 s{sT}, s{sT}, {STAMP2 + kidx*65536}')
    S(f'buffer_store_dwordx4 {vr(vA,4)}, v{vA+4}, s[{srd_ws}:{srd_ws+3}], s{sT} offen')
    S('s_waitcnt vmcnt(0)')
def collect_kernel(n, waves):
    S = Stream()
    S(f's_cmp_ge_u32 s2, 1\ns_cbranch_scc1 collect_kernel_end')
    S(f's_load_dwordx2 s[4:5], s[0:1], {KA_WS}')
    S(f's_load_dwordx2 s[6:7], s[0:1], {KA_DBG}')
    S('s_waitcnt lgkmcnt(0)')
    srd(S, 8, 4, WS_SIZE); srd(S, 12, 6, 256)
    S('v_lshlrev_b32 v1, 8, v0')
    S('v_mov_b32 v30, 0')
    res = []
    for k in range(n):
        S('v_mov_b32 v10, -1\nv_mov_b32 v11, 0\nv_mov_b32 v12, 0\nv_mov_b32 v13, 0\nv_mov_b32 v14, 0')
        for w in range(waves[k]):
            S(f's_mov_b32 s20, {STAMP2 + k*65536 + w*16}')
            S('buffer_load_dwordx4 v[4:7], v1, s[8:11], s20 offen sc1')
            S('s_waitcnt vmcnt(0)')
            S('v_min_u32 v10, v10, v4\nv_max_u32 v11, v11, v4\nv_max_u32 v12, v12, v5\nv_max_u32 v13, v13, v6\nv_max_u32 v14, v14, v7')
        S(f'v_mov_b32 v20, {k*32}')
        if k == 0:
            pass
        for i, op in enumerate(('ds_min_u32', 'ds_max_u32', 'ds_max_u32', 'ds_max_u32', 'ds_max_u32')):
            S(f'{op} v20, v{10+i} offset:{4*i}')
    return S
def collect_kernel(n, waves):
    S = Stream()
    S(f's_cmp_ge_u32 s2, 1\ns_cbranch_scc1 collect_kernel_end')
    S(f's_load_dwordx2 s[4:5], s[0:1], {KA_WS}')
    S(f's_load_dwordx2 s[6:7], s[0:1], {KA_DBG}')
    S('s_waitcnt lgkmcnt(0)')
    srd(S, 8, 4, WS_SIZE); srd(S, 12, 6, 256)
    S('v_lshlrev_b32 v2, 2, v0')
    S('v_mov_b32 v3, 0')
    S('ds_write_b32 v2, v3')
    S('s_waitcnt lgkmcnt(0)\ns_barrier')
    S('v_mov_b32 v3, -1\nv_mov_b32 v20, 0')
    for k in range(n): S(f'ds_write_b32 v20, v3 offset:{k*20}')
    S('s_waitcnt lgkmcnt(0)\ns_barrier')
    S('v_lshlrev_b32 v1, 8, v0')
    for k in range(n):
        S('v_mov_b32 v10, -1\nv_mov_b32 v11, 0\nv_mov_b32 v12, 0\nv_mov_b32 v13, 0\nv_mov_b32 v14, 0')
        for w in range(waves[k]):
            S(f's_mov_b32 s20, {STAMP2 + k*65536 + w*16}')
            S('buffer_load_dwordx4 v[4:7], v1, s[8:11], s20 offen sc1')
            S('s_waitcnt vmcnt(0)')
            S('v_min_u32 v10, v10, v4\nv_max_u32 v11, v11, v4\nv_max_u32 v12, v12, v5\nv_max_u32 v13, v13, v6\nv_max_u32 v14, v14, v7')
        for i, op in enumerate(('ds_min_u32', 'ds_max_u32', 'ds_max_u32', 'ds_max_u32', 'ds_max_u32')):
            S(f'{op} v20, v{10+i} offset:{k*20 + 4*i}')
    S('s_waitcnt lgkmcnt(0)\ns_barrier')
    S('ds_read_b32 v4, v2')
    S('ds_read_b32 v5, v20')
    S('s_waitcnt lgkmcnt(0)')
    S('v_sub_u32 v4, v4, v5')
    S(f'v_cmp_gt_u32 vcc, {5*n}, v0\ns_and_saveexec_b64 s[16:17], vcc')
    S('s_cbranch_execz collect_kernel_end')
    S('buffer_store_dword v4, v2, s[12:15], 0 offen')
    S('s_waitcnt vmcnt(0)')
    S.label('collect_kernel_end')
    S('s_endpgm')
    p = Processor().run(S)
    return kernel_text('collect_kernel', p.text(), 32)
```

```python
from common import *
from diag import *

def gen_attn(name='attn_kernel', stamps=False, unroll=8, prio=0, xp='', dbg=False):
    S = Stream()
    v = VAlloc(256, 'v', 1)
    sWS = 8
    sW = 20; sHead = 21; sQt = 22; sT = 23; sT2 = 24; sCnt = 25
    sMask = 26
    sSt = 30
    vLane = v.alloc(1, name='lane'); vOff = v.alloc(1); vKa = v.alloc(1); vVa = v.alloc(1)
    vT0 = v.alloc(1); vT1 = v.alloc(1); vM = v.alloc(1); vT2 = v.alloc(1)
    vQ = v.alloc(4, 4); Kf = [v.alloc(4, 4) for _ in range(2)]
    Vf = [[v.alloc(4, 4) for _ in range(2)] for _ in range(2)]
    P = v.alloc(8, 4)
    Sx = [v.alloc(16, 4) for _ in range(2)]
    O = v.alloc(16, 4); Cm = v.alloc(16, 4)
    L = name

    S(f's_cmp_ge_u32 s2, 256')
    S(f's_cbranch_scc1 {L}_end')
    if stamps: S(f's_memtime s[{sSt}:{sSt+1}]\ns_memrealtime s[40:41]')
    if dbg: dbg_stamp(S, 44, 0, 0, 0, 0)
    S(f's_load_dwordx2 s[4:5], s[0:1], {KA_WS}')
    S(f'v_and_b32 v{vLane}, 63, v0')
    S(f'v_lshrrev_b32 v{vT0}, 6, v0')
    S(f'v_lshlrev_b32 v{vOff}, 4, v{vLane}')
    S(f'v_readfirstlane_b32 s{sW}, v{vT0}')
    S(f's_and_b32 s{sHead}, s2, 7')
    S(f's_lshl_b32 s{sHead}, s{sHead}, 2')
    S(f's_lshr_b32 s{sT}, s2, 6')
    S(f's_add_u32 s{sHead}, s{sHead}, s{sT}')
    S(f's_lshr_b32 s{sQt}, s2, 3')
    S(f's_and_b32 s{sQt}, s{sQt}, 7')
    S(f's_lshl_b32 s{sQt}, s{sQt}, 3')
    S(f's_add_u32 s{sQt}, s{sQt}, s{sW}')
    S(f's_waitcnt lgkmcnt(0)')
    srd(S, sWS, 4, WS_SIZE)
    sKoff = 28; sLds = 29
    S(f's_lshl_b32 s{sKoff}, s{sHead}, 16')
    S(f's_lshl_b32 s{sT}, s{sW}, 10')
    S(f's_add_u32 s{sKoff}, s{sKoff}, s{sT}')
    def dma(i, tag):
        S(f's_add_u32 m0, s{sT}, {i*8192}')
        S(f's_add_u32 s{sT2}, s{sKoff}, {K_OFF + i*8192}')
        S(f'buffer_load_dwordx4 v{vOff}, s[{sWS}:{sWS+3}], s{sT2} offen lds', tag=tag)
        S(f's_add_u32 m0, s{sT}, {65536 + i*8192}')
        S(f's_add_u32 s{sT2}, s{sKoff}, {V_OFF + i*8192}')
        S(f'buffer_load_dwordx4 v{vOff}, s[{sWS}:{sWS+3}], s{sT2} offen lds', tag=tag)
    dma(0, 'kv0')
    S(f's_lshl_b32 s{sLds}, s{sHead}, 16')
    S(f's_lshl_b32 s{sT2}, s{sQt}, 10')
    S(f's_add_u32 s{sLds}, s{sLds}, s{sT2}')
    S(f's_add_u32 s{sLds}, s{sLds}, {Q_OFF}')
    S(f'buffer_load_dwordx4 {vr(vQ,4)}, v{vOff}, s[{sWS}:{sWS+3}], s{sLds} offen', tag='q')
    for i in range(1, 8): dma(i, 'kvrest')
    S(f'v_mov_b32 v{vKa}, v{vOff}')
    S(f'v_lshrrev_b32 v{vT0}, 5, v{vLane}')
    S(f'v_lshlrev_b32 v{vT0}, 8, v{vT0}')
    S(f'v_and_b32 v{vT1}, 15, v{vLane}')
    S(f'v_lshlrev_b32 v{vT1}, 4, v{vT1}')
    S(f'v_add_u32 v{vVa}, v{vT0}, v{vT1}')
    S(f'v_add_u32 v{vVa}, 0x10000, v{vVa}')
    S(f's_mov_b32 s{sMask}, 0x0000ffff')
    S(f's_mov_b32 s{sMask+1}, 0x0000ffff')
    S(f'v_and_b32 v{vT0}, 27, v{vLane}')
    S(f'v_cmp_eq_u32 vcc, 16, v{vT0}')
    S(f'v_mov_b32 v{vT1}, 0x3f803f80')
    S(f'v_cndmask_b32 v{vT1}, 0, v{vT1}, vcc')
    for a in Vf:
        for b in a:
            for i in range(4): S(f'v_mov_b32 v{b+i}, v{vT1}')
    S.wait_vm('kv0')
    S('s_barrier')
    if dbg: dbg_stamp(S, 44, 1, 0, 0, 0)
    if stamps: S(f's_memtime s[{sSt+2}:{sSt+3}]\ns_waitcnt lgkmcnt(0)')
    S(f'ds_read_b128 {vr(Kf[0],4)}, v{vKa}')
    S(f'ds_read_b128 {vr(Kf[1],4)}, v{vKa} offset:1024')
    S(f'v_mfma_f32_32x32x16_bf16 {vr(Sx[0],16)}, {vr(Kf[0],4)}, {vr(vQ,4)}, 0')
    S(f'v_mfma_f32_32x32x16_bf16 {vr(Sx[1],16)}, {vr(Kf[1],4)}, {vr(vQ,4)}, 0')
    S(f'v_max3_f32 v{vM}, v{Sx[0]}, v{Sx[0]+1}, v{Sx[0]+2}')
    for i in range(3, 15, 2): S(f'v_max3_f32 v{vM}, v{vM}, v{Sx[0]+i}, v{Sx[0]+i+1}')
    S(f'v_max3_f32 v{vM}, v{vM}, v{Sx[0]+15}, v{Sx[1]}')
    for i in range(1, 15, 2): S(f'v_max3_f32 v{vM}, v{vM}, v{Sx[1]+i}, v{Sx[1]+i+1}')
    S(f'v_max_f32 v{vM}, v{vM}, v{Sx[1]+15}')
    S(f'v_mov_b32 v{vT0}, v{vM}')
    S(f'v_permlane32_swap_b32 v{vM}, v{vT0}')
    S(f'v_max_f32 v{vM}, v{vM}, v{vT0}')
    DELTA = 64.0
    S(f'v_add_f32 v{vM}, {fhex(DELTA)}, v{vM}')
    for i in range(16): S(f'v_sub_f32 v{Cm+i}, 0, v{vM}')
    def rdK(t_off, buf):
        if 'K' in xp: return
        S(f'ds_read_b128 {vr(Kf[buf],4)}, v{vKa} offset:{t_off*1024}')
    def rdV(t_off, buf):
        if 'V' in xp: return
        if 'E' not in xp: S(f's_mov_b64 exec, s[{sMask}:{sMask+1}]')
        S(f'ds_read_b128 {vr(Vf[buf][0],4)}, v{vVa} offset:{t_off*1024}')
        if '1' not in xp: S(f'ds_read_b128 {vr(Vf[buf][1],4)}, v{vVa} offset:{t_off*1024+512}')
        if 'E' not in xp: S(f's_mov_b64 exec, -1')
    def qk(buf_s, buf_k): S(f'v_mfma_f32_32x32x16_bf16 {vr(Sx[buf_s],16)}, {vr(Kf[buf_k],4)}, {vr(vQ,4)}, {vr(Cm,16)}')
    def pv(u, buf, first=False):
        S(f'v_mfma_f32_32x32x16_bf16 {vr(O,16)}, {vr(Vf[buf][u],4)}, {vr(P+4*u,4)}, ' + ('0' if first else vr(O,16)))
    rdV(0, 0)
    qk(0, 0)
    for i in range(16): S(f'v_mov_b32 v{O+i}, 0')
    def tile(t, off, first=False, last_in_block=False):
        cur = Sx[t & 1]
        if 'W' not in xp: S('s_waitcnt lgkmcnt(0)')
        if 'Q' not in xp: qk((t+1) & 1, (t+1) & 1)
        rdK(off + 2, t & 1)
        e = lambda i: S(f'v_exp_f32 v{cur+i}, v{cur+i}')
        c = lambda i: S(f'v_cvt_pk_bf16_f32 v{P+i}, v{cur+2*i}, v{cur+2*i+1}')
        if prio == 1: S('s_setprio 1')
        e(0); e(1); e(2); c(0); e(3); e(4); c(1); e(5)
        if not first and 'P' not in xp: pv(1, (t+1) & 1)
        rdV(off + 1, (t+1) & 1)
        e(6); c(2); e(7); e(8); c(3); e(9); e(10)
        if prio == 1: S('s_setprio 0')
        if prio == 2: S('s_setprio %d' % (t & 1))
        if 'P' not in xp: pv(0, t & 1)
        c(4); e(11); e(12); c(5); e(13); e(14); e(15); c(6)
        if last_in_block:
            S(f'v_add_u32 v{vKa}, {unroll*1024}, v{vKa}')
        c(7)
        if last_in_block:
            S(f'v_add_u32 v{vVa}, {unroll*1024}, v{vVa}')
            S(f's_sub_u32 s{sCnt}, s{sCnt}, 1')
    def block(first):
        for t in range(unroll):
            if first and t == unroll - 2:
                S.wait_vm('kvrest'); S('s_barrier')
                if stamps: S(f's_memtime s[{sSt+4}:{sSt+5}]')
            tile(t, t, first=(first and t == 0), last_in_block=(t == unroll - 1))
    S(f's_mov_b32 s{sCnt}, {64//unroll}')
    block(True)
    S.label(f'{L}_loop')
    block(False)
    S(f's_cmp_lg_u32 s{sCnt}, 0')
    S(f's_cbranch_scc1 {L}_loop')
    pv(1, 1)
    S('s_waitcnt lgkmcnt(0)')
    if stamps: S(f's_memtime s[{sSt+6}:{sSt+7}]\ns_waitcnt lgkmcnt(0)')
    if dbg: dbg_stamp(S, 44, 2, 0, 0, 0)
    S('s_nop 7\ns_nop 3')
    S(f'v_add_f32 v{vT0}, |v{O}|, |v{O+1}|')
    for i in range(2, 8): S(f'v_add_f32 v{vT0}, v{vT0}, |v{O+i}|')
    S(f'v_mov_b32 v{vT1}, 0x7f800000')
    S(f'v_cmp_lt_f32 vcc, v{vT0}, v{vT1}')
    S(f'v_mov_b32 v{vT2}, {fhex(2.0**110)}')
    S(f'v_cmp_lt_f32 s[4:5], v{O+8}, v{vT2}')
    S(f's_and_b64 vcc, vcc, s[4:5]')
    S(f's_cmp_eq_u64 vcc, -1')
    S(f's_cbranch_scc1 {L}_fin')
    S(f'v_mov_b32 v{vKa}, v{vOff}')
    S(f'v_subrev_u32 v{vVa}, 0x10000, v{vVa}')
    S(f'v_mov_b32 v{vM}, 0xff800000')
    for i in range(16): S(f'v_mov_b32 v{O+i}, 0')
    S(f's_mov_b32 s{sCnt}, 64')
    S.label(f'{L}_slow')
    S(f'ds_read_b128 {vr(Kf[0],4)}, v{vKa}')
    rdV(0, 0)
    S('s_waitcnt lgkmcnt(0)')
    S(f'v_mfma_f32_32x32x16_bf16 {vr(Sx[0],16)}, {vr(Kf[0],4)}, {vr(vQ,4)}, 0')
    S(f'v_max3_f32 v{vT0}, v{Sx[0]}, v{Sx[0]+1}, v{Sx[0]+2}')
    for i in range(3, 15, 2): S(f'v_max3_f32 v{vT0}, v{vT0}, v{Sx[0]+i}, v{Sx[0]+i+1}')
    S(f'v_max3_f32 v{vT0}, v{vT0}, v{Sx[0]+15}, v{vM}')
    S(f'v_mov_b32 v{vT1}, v{vT0}')
    S(f'v_permlane32_swap_b32 v{vT0}, v{vT1}')
    S(f'v_max_f32 v{vT0}, v{vT0}, v{vT1}')
    S(f'v_sub_f32 v{vT1}, v{vM}, v{vT0}')
    S(f'v_exp_f32 v{vT1}, v{vT1}')
    S(f'v_mov_b32 v{vM}, v{vT0}')
    for i in range(16): S(f'v_mul_f32 v{O+i}, v{O+i}, v{vT1}')
    for i in range(16): S(f'v_sub_f32 v{Sx[0]+i}, v{Sx[0]+i}, v{vM}')
    for i in range(16): S(f'v_exp_f32 v{Sx[0]+i}, v{Sx[0]+i}')
    for i in range(8): S(f'v_cvt_pk_bf16_f32 v{P+i}, v{Sx[0]+2*i}, v{Sx[0]+2*i+1}')
    pv(0, 0); pv(1, 0)
    S(f'v_add_u32 v{vKa}, 1024, v{vKa}')
    S(f'v_add_u32 v{vVa}, 1024, v{vVa}')
    S(f's_sub_u32 s{sCnt}, s{sCnt}, 1')
    S(f's_cmp_lg_u32 s{sCnt}, 0')
    S('s_nop 7\ns_nop 7')
    S(f's_cbranch_scc1 {L}_slow')
    S.label(f'{L}_fin')
    S('s_nop 7\ns_nop 3')
    S(f'v_rcp_f32 v{vT0}, v{O+8}')
    for i in range(8): S(f'v_mul_f32 v{O+i}, v{O+i}, v{vT0}')
    for i in range(4): S(f'v_cvt_pk_bf16_f32 v{P+i}, v{O+2*i}, v{O+2*i+1}')
    S(f's_mul_i32 s{sT}, s{sQt}, {2*72*1024}')
    S(f's_lshr_b32 s{sT2}, s{sHead}, 1\ns_lshl_b32 s{sT2}, s{sT2}, 10')
    S(f's_add_u32 s{sT}, s{sT}, s{sT2}')
    S(f's_and_b32 s{sT2}, s{sHead}, 1\ns_lshl_b32 s{sT2}, s{sT2}, 9')
    S(f's_add_u32 s{sT}, s{sT}, s{sT2}')
    S(f's_add_u32 s{sT}, s{sT}, {ACT_OFF + 56*1024}')
    S(f'v_bfe_u32 v{vT0}, v{vLane}, 4, 1')
    S(f'v_mul_u32_u24 v{vT0}, {72*1024}, v{vT0}')
    S(f'v_lshrrev_b32 v{vT1}, 5, v{vLane}')
    S(f'v_lshl_add_u32 v{vT0}, v{vT1}, 8, v{vT0}')
    S(f'v_and_b32 v{vT1}, 15, v{vLane}')
    S(f'v_lshl_add_u32 v{vT0}, v{vT1}, 4, v{vT0}')
    S(f'buffer_store_dwordx4 {vr(P,4)}, v{vT0}, s[{sWS}:{sWS+3}], s{sT} offen')
    if stamps:
        S('s_waitcnt vmcnt(0)')
        S(f's_memtime s[4:5]\ns_memrealtime s[42:43]\ns_waitcnt lgkmcnt(0)')
        S(f's_sub_u32 s{sSt+4}, s42, s40')
        S(f's_add_u32 s{sSt+4}, s{sSt+4}, s{sSt}')
        for i, a in enumerate((sSt+2, sSt+4, sSt+6, 4)):
            S(f's_sub_u32 s{a}, s{a}, s{sSt}')
            S(f'v_mov_b32 v{P+i}, s{a}')
        S(f's_lshl_b32 s{sT}, s2, 3\ns_add_u32 s{sT}, s{sT}, s{sW}\ns_lshl_b32 s{sT}, s{sT}, 4')
        S(f's_add_u32 s{sT}, s{sT}, {STAMP_OFF}')
        S(f'v_mov_b32 v{vT0}, 0')
        S(f'buffer_store_dwordx4 {vr(P,4)}, v{vT0}, s[{sWS}:{sWS+3}], s{sT} offen')
    if dbg:
        dbg_final(S, 44, Sx[0], 52, 1, sWS)
    S.label(f'{L}_end')
    S('s_endpgm')
    p = Processor().run(S)
    return kernel_text(name, p.text(), v.hi), p, v.hi
if __name__ == '__main__':
    t, p, hi = gen_attn()
    print(t)
    import sys
    print('vgprs', hi, 'nops', p.nops_inserted, p.nop_log, file=sys.stderr)
```

```python
from common import *
from diag import *

BIG = 0; BIGSZ = 24576; NBIG = 3
MB = BIG + NBIG * BIGSZ; MSZ = 16384; NM = 4
STAT = MB + NM * MSZ
ST_SUM = STAT; ST_SQ = STAT + 512; ST_CS = STAT + 1024
LDS1 = STAT + 1024 + 2 * 320 * 4
QSCALE = 0.25 * LOG2E

def gen_gemm1(name='gemm1_kernel', stamps=False, xp='', dbg=False):
    S = Stream(); L = name
    v = VAlloc(256, 'v', 1)
    sX, sQK, sM0, sM1, sWS = 8, 12, 16, 20, 24
    sW, sTb, sC, sTh, sFq, sT, sT2, sRS = 28, 29, 30, 31, 32, 33, 34, 35
    sXo, sQo, sM0o, sM1o, sLx, sLq, sLm = 36, 37, 38, 39, 40, 41, 42
    sIsB, sScale, sT3, sStepM, sDuty, sMaskHi = 43, 44, 45, 46, 58, 59
    sSt = 60
    vLane = v.alloc(); vN = v.alloc(); vG = v.alloc()
    vT = [v.alloc() for _ in range(6)]
    vDx = [v.alloc() for _ in range(2)]; vDq = v.alloc(); vDm = v.alloc()
    vXa = [v.alloc() for _ in range(2)]; vQa = v.alloc(); vMa = [v.alloc() for _ in range(4)]
    vSum = [v.alloc() for _ in range(2)]; vSq = [v.alloc() for _ in range(2)]; vLo = v.alloc(); vHi = v.alloc()
    vXs = [v.alloc() for _ in range(2)]
    vOnes = v.alloc(4, 4)
    A = [[v.alloc(4, 4) for _ in range(5)] for _ in range(2)]
    B = [[v.alloc(4, 4) for _ in range(4)] for _ in range(2)]
    Bs = [v.alloc(4, 4) for _ in range(2)]
    acc = [[v.alloc(4, 4) for _ in range(4)] for _ in range(5)]
    vCs = [v.alloc(4, 4) for _ in range(5)]
    vEp = v.alloc(16, 4)

    S(f's_cmp_ge_u32 s2, 256'); S(f's_cbranch_scc1 {L}_end')
    if stamps: S(f's_memtime s[{sSt}:{sSt+1}]\ns_memrealtime s[{sSt+10}:{sSt+11}]')
    if dbg: dbg_stamp(S, 84, 0, 0, 0, 0)
    S(f's_load_dwordx4 s[48:51], s[0:1], {KA_X}')
    S(f's_load_dwordx4 s[52:55], s[0:1], {KA_WG}')
    S(f's_load_dwordx2 s[56:57], s[0:1], {KA_WS}')
    S(f'v_and_b32 v{vLane}, 63, v0')
    S(f'v_lshrrev_b32 v{vT[0]}, 6, v0')
    S(f'v_and_b32 v{vN}, 15, v0')
    S(f'v_readfirstlane_b32 s{sW}, v{vT[0]}')
    S(f'v_bfe_u32 v{vG}, v0, 4, 2')
    S(f's_and_b32 s{sT}, s2, 1\ns_lshl_b32 s{sT}, s{sT}, 3')
    S(f's_lshr_b32 s{sT2}, s2, 3\ns_and_b32 s{sT2}, s{sT2}, 7\ns_add_u32 s{sTb}, s{sT}, s{sT2}')
    S(f's_lshr_b32 s{sT}, s2, 1\ns_and_b32 s{sT}, s{sT}, 3\ns_lshl_b32 s{sT}, s{sT}, 2')
    S(f's_lshr_b32 s{sT2}, s2, 6\ns_add_u32 s{sC}, s{sT}, s{sT2}')
    S(f's_and_b32 s{sTh}, s{sW}, 1\ns_lshr_b32 s{sFq}, s{sW}, 1')
    S(f's_cmp_ge_u32 s{sC}, 14\ns_cselect_b32 s{sIsB}, 1, 0')
    S(f's_lshr_b32 s{sDuty}, s{sFq}, 1\ns_xor_b32 s{sDuty}, s{sDuty}, s{sTh}')
    S('s_waitcnt lgkmcnt(0)')
    srd(S, sX, 48, 2048 * 512 * 2)
    srd(S, sQK, 50, 512 * 1536 * 2)
    srd(S, sWS, 56, WS_SIZE)
    S(f's_cmp_eq_u32 s{sIsB}, 1')
    for d, p in ((sM0, 52), (sM1, 54)):
        S(f's_cselect_b32 s{d}, s50, s{p}')
        S(f's_cselect_b32 s{d+1}, s51, s{p+1}')
        S(f's_and_b32 s{d+1}, s{d+1}, 0xffff')
        S(f's_cmp_eq_u32 s{sIsB}, 1')
        S(f's_mov_b32 s{d+2}, {512*1792*2}\ns_cmov_b32 s{d+2}, {512*1536*2}')
        S(f's_mov_b32 s{d+3}, 0x20000')
    S(f's_mov_b32 s{sRS}, 3584\ns_cmov_b32 s{sRS}, 3072')
    S(f's_lshl_b32 s{sXo}, s{sTb}, 17')
    S(f's_lshl_b32 s{sQo}, s{sC}, 7')
    S(f's_lshl_b32 s{sM0o}, s{sC}, 8')
    S(f's_sub_u32 s{sT}, s{sC}, 14\ns_lshl_b32 s{sT}, s{sT}, 9\ns_add_u32 s{sT}, s{sT}, 2048')
    S(f's_cmp_eq_u32 s{sIsB}, 1')
    S(f's_cselect_b32 s{sM0o}, s{sT}, s{sM0o}')
    S(f's_cselect_b32 s{sT}, 256, 0')
    S(f's_add_u32 s{sM1o}, s{sM0o}, s{sT}')
    S(f's_lshl_b32 s{sStepM}, s{sRS}, 5')
    t0, t1, t2, t3, t4, t5 = vT
    for i in range(2):
        S(f'v_lshrrev_b32 v{t0}, 3, v{vLane}')
        S(f's_lshl_b32 s{sT}, s{sW}, 4\ns_add_u32 s{sT}, s{sT}, {8*i}')
        S(f'v_add_u32 v{t0}, s{sT}, v{t0}')
        S(f'v_lshlrev_b32 v{t0}, 10, v{t0}')
        S(f'v_and_b32 v{t1}, 7, v{vLane}')
        S(f'v_xor_b32 v{t1}, v{t1}, v{vG}')
        if i: S(f'v_xor_b32 v{t1}, 4, v{t1}')
        S(f'v_lshl_add_u32 v{vDx[i]}, v{t1}, 4, v{t0}')
    S(f'v_lshrrev_b32 v{t0}, 3, v{vLane}')
    S(f'v_bfe_u32 v{t2}, v{vLane}, 4, 1')
    S(f's_and_b32 s{sT}, s{sW}, 1\ns_lshl_b32 s{sT}, s{sT}, 1')
    S(f'v_or_b32 v{t2}, s{sT}, v{t2}')
    S(f'v_lshlrev_b32 v{t2}, 1, v{t2}')
    S(f'v_and_b32 v{t1}, 7, v{vLane}')
    S(f'v_xor_b32 v{t1}, v{t1}, v{t2}')
    S(f's_lshl_b32 s{sT}, s{sW}, 3')
    S(f'v_add_u32 v{t0}, s{sT}, v{t0}')
    S(f'v_mul_u32_u24 v{t0}, 3072, v{t0}')
    S(f'v_lshl_add_u32 v{vDq}, v{t1}, 4, v{t0}')
    S(f's_lshr_b32 s{sT}, s{sW}, 1\ns_and_b32 s{sT}, s{sT}, 1\ns_lshl_b32 s{sT}, s{sT}, 2')
    S(f'v_or_b32 v{t2}, s{sT}, v{vG}')
    S(f'v_lshlrev_b32 v{t2}, 1, v{t2}')
    S(f'v_xor_b32 v{t1}, v{vN}, v{t2}')
    S(f's_lshl_b32 s{sT}, s{sW}, 2')
    S(f'v_add_u32 v{t0}, s{sT}, v{vG}')
    S(f'v_mul_lo_u32 v{t0}, v{t0}, s{sRS}')
    S(f'v_lshl_add_u32 v{vDm}, v{t1}, 4, v{t0}')
    S(f's_lshl_b32 s{sLx}, s{sW}, 11')
    S(f's_lshl_b32 s{sLq}, s{sW}, 10\ns_add_u32 s{sLq}, s{sLq}, 16384')
    S(f's_lshl_b32 s{sLm}, s{sW}, 10\ns_add_u32 s{sLm}, s{sLm}, {MB}')
    def dma_big(j):
        slot = (j % NBIG) * BIGSZ + BIG
        for i in range(2):
            S(f's_add_u32 m0, s{sLx}, {slot + i*1024}')
            S(f's_add_u32 s{sT}, s{sXo}, {j*128}')
            S(f'buffer_load_dwordx4 v{vDx[i]}, s[{sX}:{sX+3}], s{sT} offen lds', tag=('big', j))
        S(f's_add_u32 m0, s{sLq}, {slot}')
        S(f's_add_u32 s{sT}, s{sQo}, {j*64*3072}')
        S(f'buffer_load_dwordx4 v{vDq}, s[{sQK}:{sQK+3}], s{sT} offen lds', tag=('big', j))
    def dma_m(s):
        slot = (s % NM) * MSZ
        S(f's_add_u32 m0, s{sLm}, {slot}')
        S(f's_nop 0')
        S(f'buffer_load_dwordx4 v{vDm}, s[{sM0}:{sM0+3}], s{sM0o} offen lds', tag=('m', s))
        S(f's_add_u32 m0, s{sLm}, {slot + 8192}')
        S(f's_add_u32 s{sM0o}, s{sM0o}, s{sStepM}')
        S(f'buffer_load_dwordx4 v{vDm}, s[{sM1}:{sM1+3}], s{sM1o} offen lds', tag=('m', s))
        S(f's_add_u32 s{sM1o}, s{sM1o}, s{sStepM}')
    dma_big(0); dma_m(0); dma_m(1); dma_big(1); dma_m(2); dma_m(3); dma_big(2)
    S(f's_lshl_b32 s{sT}, s{sTh}, 6')
    S(f'v_add_u32 v{t0}, s{sT}, v{vN}')
    S(f'v_lshlrev_b32 v{t0}, 7, v{t0}')
    S(f'v_lshrrev_b32 v{t1}, 1, v{vN}')
    S(f'v_xor_b32 v{t1}, v{t1}, v{vG}')
    S(f'v_lshl_add_u32 v{vXa[0]}, v{t1}, 4, v{t0}')
    S(f'v_xor_b32 v{vXa[1]}, 64, v{vXa[0]}')
    S(f's_lshl_b32 s{sT}, s{sFq}, 11')
    S(f'v_add_u32 v{vXs[0]}, s{sT}, v{vXa[0]}')
    S(f'v_add_u32 v{vXs[1]}, s{sT}, v{vXa[1]}')
    vR, vCq = t4, t5
    S(f'v_lshrrev_b32 v{vR}, 2, v{vN}')
    S(f'v_and_b32 v{vCq}, 3, v{vN}')
    S(f'v_lshl_add_u32 v{t0}, v{vG}, 3, v{vR}')
    S(f'v_lshrrev_b32 v{t1}, 1, v{vR}')
    S(f'v_and_b32 v{t2}, 1, v{vG}')
    S(f'v_lshl_or_b32 v{t1}, v{t2}, 1, v{t1}')
    S(f'v_xor_b32 v{t1}, s{sFq}, v{t1}')
    S(f'v_lshlrev_b32 v{t1}, 1, v{t1}')
    S(f'v_lshrrev_b32 v{t2}, 1, v{vCq}')
    S(f'v_add_u32 v{t1}, v{t1}, v{t2}')
    S(f'v_lshlrev_b32 v{t1}, 4, v{t1}')
    S(f'v_and_b32 v{t2}, 1, v{vCq}')
    S(f'v_lshl_add_u32 v{t1}, v{t2}, 3, v{t1}')
    S(f'v_lshl_add_u32 v{vQa}, v{t0}, 7, v{t1}')
    S(f'v_add_u32 v{vQa}, 16384, v{vQa}')
    S(f'v_and_b32 v{t2}, 1, v{vG}')
    S(f'v_lshl_or_b32 v{t1}, v{t2}, 2, v{vR}')
    S(f'v_lshlrev_b32 v{t1}, 1, v{t1}')
    S(f'v_lshrrev_b32 v{t2}, 1, v{vCq}')
    S(f'v_xor_b32 v{t1}, v{t1}, v{t2}')
    S(f'v_lshlrev_b32 v{t1}, 4, v{t1}')
    S(f'v_and_b32 v{t2}, 1, v{vCq}')
    S(f'v_lshl_add_u32 v{t1}, v{t2}, 3, v{t1}')
    S(f'v_lshl_add_u32 v{t1}, v{t0}, 8, v{t1}')
    for i in range(4):
        S(f's_lshl_b32 s{sT}, s{sFq}, 1\ns_add_u32 s{sT}, s{sT}, {i & 1}\ns_lshl_b32 s{sT}, s{sT}, 5')
        S(f's_add_u32 s{sT}, s{sT}, {(i >> 1) * 8192}')
        S(f's_and_b32 s{sT2}, s{sFq}, 1\ns_lshl_b32 s{sT2}, s{sT2}, 2\ns_add_u32 s{sT2}, s{sT2}, {i}\ns_lshl_b32 s{sT2}, s{sT2}, 5')
        S(f's_lshr_b32 s{sT3}, s{sFq}, 1\ns_lshl_b32 s{sT3}, s{sT3}, 13\ns_add_u32 s{sT2}, s{sT2}, s{sT3}')
        S(f's_cmp_eq_u32 s{sIsB}, 1\ns_cselect_b32 s{sT}, s{sT2}, s{sT}')
        S(f'v_xor_b32 v{vMa[i]}, s{sT}, v{t1}')
        S(f'v_add_u32 v{vMa[i]}, {MB}, v{vMa[i]}')
    for r in vSum + vSq: S(f'v_mov_b32 v{r}, 0')
    for i in range(4): S(f'v_mov_b32 v{vOnes+i}, 0x3f803f80')
    S(f's_mov_b32 s{sMaskHi}, 0xffff0000')

    def reads(s):
        b = s & 1; sp = s & 1; j = s // 2
        bs = (j % NBIG) * BIGSZ + BIG; ms = (s % NM) * MSZ
        out = []
        for tt in range(4):
            out.append(f'ds_read_b128 {vr(B[b][tt],4)}, v{vXa[sp]} offset:{bs + tt*2048}')
        for rd in range(2):
            out.append(f'ds_read_b64_tr_b16 {vr(A[b][0]+2*rd,2)}, v{vQa} offset:{bs + (32*sp + 4*rd)*128}')
        if 'S' not in xp: out.append(f'ds_read_b128 {vr(Bs[b],4)}, v{vXs[sp]} offset:{bs}')
        for i in range(4):
            for rd in range(2):
                out.append(f'ds_read_b64_tr_b16 {vr(A[b][1+i]+2*rd,2)}, v{vMa[i]} offset:{ms + rd*1024}')
        return out
    def mfmas(s, typeB):
        b = s & 1; out = []
        for f in range(5):
            for tt in range(4):
                c = '0' if s == 0 else vr(acc[f][tt], 4)
                a_, b_ = vr(A[b][f], 4), vr(B[b][tt], 4)
                if typeB and f > 0: a_, b_ = b_, a_
                out.append(f'v_mfma_f32_16x16x32_bf16 {vr(acc[f][tt],4)}, {a_}, {b_}, {c}')
        return out
    def stats(s):
        b = s & 1; out = []
        for r in range(4):
            p = Bs[b] + r
            out.append(f'v_lshlrev_b32 v{vLo}, 16, v{p}')
            out.append(f'v_and_b32 v{vHi}, s{sMaskHi}, v{p}')
            out.append(f'v_add_f32 v{vSum[0]}, v{vSum[0]}, v{vLo}')
            out.append(f'v_add_f32 v{vSum[1]}, v{vSum[1]}, v{vHi}')
            out.append(f'v_fma_f32 v{vSq[0]}, v{vLo}, v{vLo}, v{vSq[0]}')
            out.append(f'v_fma_f32 v{vSq[1]}, v{vHi}, v{vHi}, v{vSq[1]}')
        return out
    def csmfmas(s, typeB, first):
        b = s & 1; out = []
        for f in range(5):
            c = '0' if first else vr(vCs[f], 4)
            a_, b_ = vr(A[b][f], 4), vr(vOnes, 4)
            if typeB and f > 0: a_, b_ = b_, a_
            out.append(f'v_mfma_f32_16x16x32_bf16 {vr(vCs[f],4)}, {a_}, {b_}, {c}')
        return out

    def mainloop(typeB, duty):
        tag = ('B' if typeB else 'A') + str(duty)
        S.wait_vm(('big', 0)); S.wait_vm(('m', 0))
        S('s_waitcnt lgkmcnt(0)')
        S('s_barrier')
        if stamps: S(f's_memtime s[{sSt+2}:{sSt+3}]')
        if dbg: dbg_stamp(S, 84, 1, 0, 0, 0)
        for r in reads(0): S(r)
        for s in range(16):
            S('s_waitcnt lgkmcnt(0)')
            if s + 1 < 16:
                S.wait_vm(('m', s + 1)); S.wait_vm(('big', (s + 1) // 2))
            S('s_barrier')
            if s + 4 < 16 and 'D' not in xp: dma_m(s + 4)
            if s % 2 == 1 and (s - 1) // 2 + 3 < 8 and 'D' not in xp: dma_big((s - 1) // 2 + 3)
            mm = mfmas(s, typeB)
            if s % 2 == duty and 'S' not in xp:
                cm = csmfmas(s, typeB, s < 2)
                mm = [x for f in range(5) for x in mm[4*f:4*f+4] + [cm[f]]]
            rr = reads(s + 1) if s + 1 < 16 else []
            if 'R' in xp: rr = []
            st = stats(s) if 'S' not in xp else []
            k = 0; q = 0
            for i, m in enumerate(mm):
                S(m)
                if k < len(rr): S(rr[k]); k += 1
                nq = (len(st) * (i + 1) + len(mm) - 1) // len(mm)
                while q < nq: S(st[q]); q += 1
        if stamps: S(f's_memtime s[{sSt+4}:{sSt+5}]')

    def greduce(r):
        S(f'v_mov_b32 v{t0}, v{r}')
        S(f'v_permlane32_swap_b32 v{r}, v{t0}')
        S(f'v_add_f32 v{r}, v{r}, v{t0}')
        S(f'v_mov_b32 v{t0}, v{r}')
        S(f'v_permlane16_swap_b32 v{r}, v{t0}')
        S(f'v_add_f32 v{r}, v{r}, v{t0}')
    def reduce_stats(typeB):
        S(f'v_add_f32 v{vSum[0]}, v{vSum[0]}, v{vSum[1]}')
        S(f'v_add_f32 v{vSq[0]}, v{vSq[0]}, v{vSq[1]}')
        for r in [vSum[0], vSq[0]]: greduce(r)
        ab_from(vSum[0], vSq[0], vSum[1], vSq[1])
        S(f's_lshl_b32 s{sT}, s{sTh}, 6\ns_lshl_b32 s{sT2}, s{sFq}, 4\ns_add_u32 s{sT}, s{sT}, s{sT2}')
        S(f'v_add_u32 v{t0}, s{sT}, v{vN}')
        S(f'v_lshlrev_b32 v{t0}, 2, v{t0}')
        S(f'v_add_u32 v{t0}, {ST_SUM}, v{t0}')
        S(f'ds_write_b32 v{t0}, v{vSum[1]}')
        S(f'ds_write_b32 v{t0}, v{vSq[1]} offset:512')
        S(f's_mul_i32 s{sT}, s{sFq}, 320\ns_mul_i32 s{sT2}, s{sDuty}, 1280\ns_add_u32 s{sT}, s{sT}, s{sT2}\ns_add_u32 s{sT}, s{sT}, {ST_CS}')
        S(f'v_lshlrev_b32 v{t1}, 4, v{vG}')
        S(f'v_add_u32 v{t1}, s{sT}, v{t1}')
        S(f'v_lshlrev_b32 v{t2}, 2, v{vN}')
        S(f'v_add_u32 v{t2}, s{sT}, v{t2}')
        S('s_nop 7')
        for f in range(5):
            if typeB and f > 0: S(f'ds_write_b32 v{t2}, v{vCs[f]} offset:{f*64}')
            else: S(f'ds_write_b128 v{t1}, {vr(vCs[f],4)} offset:{f*64}')
        S('s_waitcnt lgkmcnt(0)')
        S('s_barrier')

    def ab_from(vs, vq, va, vb, scale_lit=None):
        S(f'v_mul_f32 v{vs}, {fhex(1/512)}, v{vs}')
        S(f'v_mul_f32 v{vq}, {fhex(1/512)}, v{vq}')
        S(f'v_fma_f32 v{vq}, -v{vs}, v{vs}, v{vq}')
        S(f'v_max_f32 v{vq}, 0, v{vq}')
        S(f'v_add_f32 v{vq}, {fhex(1e-5)}, v{vq}')
        S(f'v_rsq_f32 v{va}, v{vq}')
        S(f'v_mul_f32 v{vb}, v{vs}, v{va}')
        S(f'v_sub_f32 v{vb}, 0, v{vb}')

    def epilogue(typeB):
        v = VAlloc(Bs[1] + 4, 'v', A[0][0])
        vP = v.alloc(8, 4); vcsr = v.alloc(4, 4)
        va = [vEp + i for i in range(4)]; vb = [vEp + 4 + i for i in range(4)]
        tq = [vEp + 8 + i for i in range(4)]
        vOff = vEp + 12; vAq = vEp + 13; vBq = vEp + 14
        S(f'v_lshlrev_b32 v{vOff}, 4, v{vLane}')
        S(f's_lshl_b32 s{sT}, s{sTh}, 6')
        S(f'v_add_u32 v{t0}, s{sT}, v{vN}')
        S(f'v_lshlrev_b32 v{t0}, 2, v{t0}')
        S(f'v_add_u32 v{t0}, {ST_SUM}, v{t0}')
        for tt in range(4):
            S(f'ds_read_b32 v{va[tt]}, v{t0} offset:{tt*64}')
            S(f'ds_read_b32 v{vb[tt]}, v{t0} offset:{512 + tt*64}')
        S(f's_mul_i32 s{sT}, s{sFq}, 320')
        S(f'v_lshlrev_b32 v{t1}, 4, v{vG}')
        S(f'v_add_u32 v{t1}, s{sT}, v{t1}')
        S(f'v_add_u32 v{t1}, {ST_CS}, v{t1}')
        def rd_cs_row(dst, f):
            tmp = vCs[f]
            S(f'ds_read_b128 {vr(dst,4)}, v{t1} offset:{f*64}')
            S(f'ds_read_b128 {vr(tmp,4)}, v{t1} offset:{f*64 + 1280}')
            return [f'v_add_f32 v{dst+r}, v{dst+r}, v{tmp+r}' for r in range(4)]
        for x in rd_cs_row(vcsr, 0): S(x)
        S(f's_cmp_lt_u32 s{sC}, 8\ns_cselect_b32 s{sScale}, {fhex(QSCALE)}, 1.0')
        for tt in range(4):
            S(f'v_mul_f32 v{vAq}, s{sScale}, v{va[tt]}')
            S(f'v_mul_f32 v{vBq}, s{sScale}, v{vb[tt]}')
            for r in range(4):
                S(f'v_mul_f32 v{tq[r]}, v{vBq}, v{vcsr+r}')
            for r in range(4):
                S(f'v_fma_f32 v{acc[0][tt]+r}, v{acc[0][tt]+r}, v{vAq}, v{tq[r]}')
            S(f'v_cvt_pk_bf16_f32 v{vP+2*tt}, v{acc[0][tt]}, v{acc[0][tt]+1}')
            S(f'v_cvt_pk_bf16_f32 v{vP+2*tt+1}, v{acc[0][tt]+2}, v{acc[0][tt]+3}')
        S(f's_and_b32 s{sT}, s{sC}, 7\ns_lshl_b32 s{sT}, s{sT}, 2\ns_add_u32 s{sT}, s{sT}, s{sFq}\ns_lshl_b32 s{sT}, s{sT}, 16')
        S(f's_cmp_lt_u32 s{sC}, 8\ns_cselect_b32 s{sT2}, 0, {K_OFF - Q_OFF}\ns_add_u32 s{sT}, s{sT}, s{sT2}')
        S(f's_lshl_b32 s{sT2}, s{sTb}, 2\ns_lshl_b32 s{sT3}, s{sTh}, 1\ns_add_u32 s{sT2}, s{sT2}, s{sT3}\ns_lshl_b32 s{sT2}, s{sT2}, 10')
        S(f's_add_u32 s{sT}, s{sT}, s{sT2}')
        for p in range(2):
            x, y = vP + 4*p, vP + 4*p + 2
            S(f'v_permlane16_swap_b32 v{x}, v{y}')
            S(f'v_permlane16_swap_b32 v{x+1}, v{y+1}')
            S(f'buffer_store_dwordx4 {vr(x,4)}, v{vOff}, s[{sWS}:{sWS+3}], s{sT} offen offset:{p*1024}')
        if stamps: S(f's_memtime s[{sSt+14}:{sSt+15}]')
        if not typeB:
            cg = [v.alloc(4, 4) for _ in range(2)]; cu = [v.alloc(4, 4) for _ in range(2)]
            adds = []
            for i in range(2):
                adds += rd_cs_row(cg[i], 1+i); adds += rd_cs_row(cu[i], 3+i)
            for x in adds: S(x)
            K1 = -2 * LOG2E * 0.7978845608028654; K2 = K1 * 0.044715
            sK1, sK2 = 46, 47
            S(f's_mov_b32 s{sK1}, {fhex(K1)}\ns_mov_b32 s{sK2}, {fhex(K2)}')
            vk1 = v.alloc(); S(f'v_mov_b32 v{vk1}, s{sK1}')
            tg = v.alloc(4, 4); tu = v.alloc(4, 4); tz = v.alloc(4, 4)
            S(f's_lshl_b32 s{sT}, s{sTb}, 3\ns_lshl_b32 s{sT2}, s{sTh}, 2\ns_add_u32 s{sT}, s{sT}, s{sT2}\ns_mul_i32 s{sT}, s{sT}, {72*1024}')
            S(f's_lshl_b32 s{sT2}, s{sC}, 2\ns_add_u32 s{sT2}, s{sT2}, s{sFq}\ns_lshl_b32 s{sT2}, s{sT2}, 10\ns_add_u32 s{sT}, s{sT}, s{sT2}')
            S(f's_add_u32 s{sT}, s{sT}, {ACT_OFF}')
            vH = [v.alloc(4, 4) for _ in range(2)]
            for tt in range(4):
                H = vH[tt & 1]
                for i in range(2):
                    G, U = acc[1+i][tt], acc[3+i][tt]
                    for r in range(4): S(f'v_mul_f32 v{tg+r}, v{vb[tt]}, v{cg[i]+r}')
                    for r in range(4): S(f'v_mul_f32 v{tu+r}, v{vb[tt]}, v{cu[i]+r}')
                    for r in range(4): S(f'v_fma_f32 v{G+r}, v{G+r}, v{va[tt]}, v{tg+r}')
                    for r in range(4): S(f'v_fma_f32 v{U+r}, v{U+r}, v{va[tt]}, v{tu+r}')
                    for r in range(4): S(f'v_mul_f32 v{tz+r}, v{G+r}, v{G+r}')
                    for r in range(4): S(f'v_fma_f32 v{tz+r}, v{tz+r}, s{sK2}, v{vk1}')
                    for r in range(4): S(f'v_mul_f32 v{tz+r}, v{tz+r}, v{G+r}')
                    for r in range(4): S(f'v_exp_f32 v{tz+r}, v{tz+r}')
                    for r in range(4): S(f'v_mul_f32 v{U+r}, v{U+r}, v{G+r}')
                    for r in range(4): S(f'v_add_f32 v{tz+r}, 1.0, v{tz+r}')
                    for r in range(4): S(f'v_rcp_f32 v{tz+r}, v{tz+r}')
                    S('s_nop 0')
                    for r in range(4): S(f'v_mul_f32 v{U+r}, v{U+r}, v{tz+r}')
                    S(f'v_cvt_pk_bf16_f32 v{H+2*i}, v{U}, v{U+1}')
                    S(f'v_cvt_pk_bf16_f32 v{H+2*i+1}, v{U+2}, v{U+3}')
                S(f'buffer_store_dwordx4 {vr(H,4)}, v{vOff}, s[{sWS}:{sWS+3}], s{sT} offen')
                if tt < 3: S(f's_add_u32 s{sT}, s{sT}, {72*1024}')
        else:
            ra = [v.alloc(4, 4) for _ in range(4)]; rb = [v.alloc(4, 4) for _ in range(4)]
            S(f's_lshl_b32 s{sT}, s{sTh}, 8')
            S(f'v_lshlrev_b32 v{t2}, 4, v{vG}')
            S(f'v_add_u32 v{t2}, s{sT}, v{t2}')
            S(f'v_add_u32 v{t2}, {ST_SUM}, v{t2}')
            for tt in range(4):
                S(f'ds_read_b128 {vr(ra[tt],4)}, v{t2} offset:{tt*64}')
                S(f'ds_read_b128 {vr(rb[tt],4)}, v{t2} offset:{512 + tt*64}')
            cv = [v.alloc() for _ in range(4)]
            S(f's_mul_i32 s{sT}, s{sFq}, 320')
            S(f'v_lshlrev_b32 v{t3}, 2, v{vN}')
            S(f'v_add_u32 v{t3}, s{sT}, v{t3}')
            S(f'v_add_u32 v{t3}, {ST_CS}, v{t3}')
            for i in range(4):
                S(f'ds_read_b32 v{cv[i]}, v{t3} offset:{(1+i)*64}')
                S(f'ds_read_b32 v{vCs[1+i]}, v{t3} offset:{(1+i)*64 + 1280}')
            for i in range(4): S(f'v_add_f32 v{cv[i]}, v{cv[i]}, v{vCs[1+i]}')
            S(f's_sub_u32 s{sT}, s{sC}, 14\ns_lshl_b32 s{sT}, s{sT}, 4\ns_lshl_b32 s{sT2}, s{sFq}, 2\ns_add_u32 s{sT}, s{sT}, s{sT2}\ns_lshl_b32 s{sT}, s{sT}, 16')
            S(f's_lshl_b32 s{sT2}, s{sTb}, 2\ns_lshl_b32 s{sT3}, s{sTh}, 1\ns_add_u32 s{sT2}, s{sT2}, s{sT3}\ns_lshl_b32 s{sT2}, s{sT2}, 10')
            S(f's_add_u32 s{sT}, s{sT}, s{sT2}\ns_add_u32 s{sT}, s{sT}, {V_OFF}')
            vH = [v.alloc(4, 4) for _ in range(2)]
            n = 0
            for i in range(4):
                for p in range(2):
                    H = vH[n & 1]; n += 1
                    for u in range(2):
                        tt = 2*p + u; D = acc[1+i][tt]
                        for r in range(4): S(f'v_mul_f32 v{tq[r]}, v{rb[tt]+r}, v{cv[i]}')
                        for r in range(4): S(f'v_fma_f32 v{D+r}, v{D+r}, v{ra[tt]+r}, v{tq[r]}')
                        S(f'v_cvt_pk_bf16_f32 v{H+2*u}, v{D}, v{D+1}')
                        S(f'v_cvt_pk_bf16_f32 v{H+2*u+1}, v{D+2}, v{D+3}')
                    S(f'v_permlane32_swap_b32 v{H}, v{H+2}')
                    S(f'v_permlane32_swap_b32 v{H+1}, v{H+3}')
                    S(f'buffer_store_dwordx4 {vr(H,4)}, v{vOff}, s[{sWS}:{sWS+3}], s{sT} offen offset:{p*1024}')
                if i < 3: S(f's_add_u32 s{sT}, s{sT}, 65536')

    S(f's_cmp_eq_u32 s{sIsB}, 1\ns_cbranch_scc1 {L}_typeB')
    S(f's_cmp_eq_u32 s{sDuty}, 1\ns_cbranch_scc1 {L}_A1')
    procs = Processor().run(S)
    import copy
    outs = []
    def tail(typeB):
        if dbg: dbg_stamp(S, 84, 2, 0, 0, 0)
        reduce_stats(typeB)
        if stamps: S(f's_memtime s[{sSt+12}:{sSt+13}]')
        epilogue(typeB)
        if stamps:
            S(f's_memtime s[{sSt+16}:{sSt+17}]')
            S('s_waitcnt vmcnt(0)')
            S(f's_memtime s[{sSt+6}:{sSt+7}]\ns_memrealtime s[{sSt+8}:{sSt+9}]\ns_waitcnt lgkmcnt(0)')
            S(f's_sub_u32 s{sSt+2}, s{sSt+2}, s{sSt}\ns_sub_u32 s{sSt+4}, s{sSt+4}, s{sSt}\ns_sub_u32 s{sSt+6}, s{sSt+6}, s{sSt}\ns_sub_u32 s{sSt+8}, s{sSt+8}, s{sSt+10}')
            P = A[0][0]
            S(f'v_mov_b32 v{P}, s{sSt+2}\nv_mov_b32 v{P+1}, s{sSt+4}\nv_mov_b32 v{P+2}, s{sSt+6}\nv_mov_b32 v{P+3}, s{sSt+8}')
            S(f's_lshl_b32 s{sT}, s2, 3\ns_add_u32 s{sT}, s{sT}, s{sW}\ns_lshl_b32 s{sT}, s{sT}, 4\ns_add_u32 s{sT}, s{sT}, {STAMP_OFF}')
            S(f'v_mov_b32 v{t0}, 0')
            S(f'buffer_store_dwordx4 {vr(P,4)}, v{t0}, s[{sWS}:{sWS+3}], s{sT} offen')
            for a in (12, 14, 16): S(f's_sub_u32 s{sSt+a}, s{sSt+a}, s{sSt}')
            P = A[0][1]
            S(f'v_mov_b32 v{P}, s{sSt+12}\nv_mov_b32 v{P+1}, s{sSt+14}\nv_mov_b32 v{P+2}, s{sSt+16}\nv_mov_b32 v{P+3}, 0')
            S(f's_add_u32 s{sT}, s{sT}, {1 << 20}')
            S(f'buffer_store_dwordx4 {vr(P,4)}, v{t0}, s[{sWS}:{sWS+3}], s{sT} offen')
        if dbg:
            dbg_final(S, 84, acc[0][0], sT, 0, sWS)
        S('s_endpgm')
    for typeB in (False, True):
        tn = 'B' if typeB else 'A'
        S.ins = []
        if typeB:
            S.label(f'{L}_typeB')
            S(f's_cmp_eq_u32 s{sDuty}, 1\ns_cbranch_scc1 {L}_B1')
        mainloop(typeB, 0)
        S(f's_branch {L}_{tn}tail')
        p0 = copy.deepcopy(procs); n0 = len(p0.out); p0.run(S); outs.append('\n'.join(p0.out[n0:]))
        S.ins = []
        S.label(f'{L}_{tn}1')
        mainloop(typeB, 1)
        S.label(f'{L}_{tn}tail')
        S('s_nop 7')
        tail(typeB)
        p = copy.deepcopy(procs); n0 = len(p.out); p.run(S); outs.append('\n'.join(p.out[n0:])); last = p
    text = procs.text() + '\n' + '\n'.join(outs) + f'\n{L}_end:\ns_endpgm\n'
    return kernel_text(name, text, v.hi), last, v.hi

if __name__ == '__main__':
    import sys
    t, p, hi = gen_gemm1()
    print(t)
    from collections import Counter
    print('vgprs', hi, 'nops', p.nops_inserted, Counter(w.split(' (')[0] for w, n, _ in p.nop_log), file=sys.stderr)
```

```python
from common import *
from diag import *

def gen_out(name='out_kernel', stamps=False, DW=5, R=6, NH=14, NO=4, dbg=False):
    S = Stream(); L = name
    v = VAlloc(256, 'v', 1)
    DB = DW
    sWD, sWO, sWS, sX, sOut = 8, 12, 16, 20, 24
    sW, sTb, sFb, sT, sT2, sT3, sWo, sAo, sLds = 28, 29, 30, 31, 32, 33, 34, 35, 36
    sSt = 60
    vLane = v.alloc(); vN = v.alloc(); vG = v.alloc(); vOff = v.alloc(); vDw = v.alloc()
    t0, t1, t2, t3 = [v.alloc() for _ in range(4)]
    vAh = [v.alloc() for _ in range(4)]; vAo = [v.alloc() for _ in range(4)]
    vXo = v.alloc(); vXr = [v.alloc(2, 2) for _ in range(4)]
    A = [[v.alloc(4, 4) for _ in range(4)] for _ in range(2)]
    B = [[v.alloc(4, 4) for _ in range(4)] for _ in range(DB + 1)]
    acc = [[v.alloc(4, 4) for _ in range(4)] for _ in range(4)]
    NS = NH + NO
    SLOT = 4096; RING = R * SLOT
    S(f's_cmp_ge_u32 s2, 256'); S(f's_cbranch_scc1 {L}_end')
    if stamps: S(f's_memtime s[{sSt}:{sSt+1}]\ns_memrealtime s[{sSt+10}:{sSt+11}]')
    if dbg: dbg_stamp(S, 52, 0, 0, 0, 0)
    S(f's_load_dwordx2 s[40:41], s[0:1], {KA_WD}')
    S(f's_load_dwordx2 s[42:43], s[0:1], {KA_WO}')
    S(f's_load_dwordx2 s[44:45], s[0:1], {KA_WS}')
    S(f's_load_dwordx2 s[46:47], s[0:1], {KA_X}')
    S(f's_load_dwordx2 s[48:49], s[0:1], {KA_OUT}')
    S(f'v_and_b32 v{vLane}, 63, v0')
    S(f'v_lshrrev_b32 v{t0}, 6, v0')
    S(f'v_and_b32 v{vN}, 15, v0')
    S(f'v_readfirstlane_b32 s{sW}, v{t0}')
    S(f'v_bfe_u32 v{vG}, v0, 4, 2')
    S(f'v_lshlrev_b32 v{vOff}, 4, v{vLane}')
    S(f's_and_b32 s{sT}, s2, 7\ns_lshl_b32 s{sT}, s{sT}, 2\ns_lshr_b32 s{sT2}, s2, 3\ns_and_b32 s{sT2}, s{sT2}, 3\ns_add_u32 s{sTb}, s{sT}, s{sT2}')
    S(f's_lshr_b32 s{sFb}, s2, 5')
    S(f'v_lshrrev_b32 v{t0}, 3, v{vLane}')
    S(f'v_lshlrev_b32 v{t0}, 10, v{t0}')
    S(f'v_and_b32 v{t1}, 7, v{vLane}')
    S(f'v_lshlrev_b32 v{t2}, 1, v{vG}')
    S(f'v_xor_b32 v{t1}, v{t1}, v{t2}')
    S(f'v_lshl_add_u32 v{vDw}, v{t1}, 4, v{t0}')
    S('s_waitcnt lgkmcnt(0)')
    srd(S, sWD, 40, 1792 * 512 * 2); srd(S, sWO, 42, 512 * 512 * 2); srd(S, sWS, 44, WS_SIZE)
    srd(S, sX, 46, 2048 * 512 * 2); srd(S, sOut, 48, 2048 * 512 * 2)
    S(f's_mul_i32 s{sLds}, s{sW}, {RING}')
    S(f's_mul_i32 s{sWo}, s{sW}, {32*NH*1024}\ns_lshl_b32 s{sT}, s{sFb}, 7\ns_add_u32 s{sWo}, s{sWo}, s{sT}')
    S(f's_mul_i32 s{sAo}, s{sTb}, {4*72*1024}\ns_mul_i32 s{sT}, s{sW}, {NH*1024}\ns_add_u32 s{sAo}, s{sAo}, s{sT}\ns_add_u32 s{sAo}, s{sAo}, {ACT_OFF}')
    sWo2, sAo2 = 37, 38
    S(f's_mul_i32 s{sWo2}, s{sW}, {32*NO*1024}\ns_lshl_b32 s{sT}, s{sFb}, 7\ns_add_u32 s{sWo2}, s{sWo2}, s{sT}')
    S(f's_mul_i32 s{sAo2}, s{sTb}, {4*72*1024}\ns_mul_i32 s{sT}, s{sW}, {NO*1024}\ns_add_u32 s{sAo2}, s{sAo2}, s{sT}\ns_add_u32 s{sAo2}, s{sAo2}, {ACT_OFF + 56*1024}')
    def issue(s):
        if s >= NS: return
        slot = (s % R) * SLOT
        h = s < NH
        srdw = sWD if h else sWO
        wo, ao, i0 = (sWo, sAo, s) if h else (sWo2, sAo2, s - NH)
        for i in range(4):
            S(f's_add_u32 m0, s{sLds}, {slot + i*1024}')
            S(f's_add_u32 s{sT}, s{wo}, {(32*i0 + 8*i)*1024}')
            S(f'buffer_load_dwordx4 v{vDw}, s[{srdw}:{srdw+3}], s{sT} offen lds', tag=('w', s))
        for tt in range(4):
            S(f's_add_u32 s{sT}, s{ao}, {(tt*72 + i0)*1024}')
            S(f'buffer_load_dwordx4 {vr(B[s % (DB+1)][tt],4)}, v{vOff}, s[{sWS}:{sWS+3}], s{sT} offen', tag=('b', s))
    for s in range(DW): issue(s)
    vR, vCq = t2, t3
    S(f'v_lshrrev_b32 v{vR}, 2, v{vN}')
    S(f'v_and_b32 v{vCq}, 3, v{vN}')
    S(f'v_and_b32 v{t0}, 1, v{vG}')
    S(f'v_lshlrev_b32 v{t0}, 1, v{t0}')
    S(f'v_lshrrev_b32 v{t1}, 1, v{vR}')
    S(f'v_add_u32 v{t0}, v{t0}, v{t1}')
    S(f'v_lshlrev_b32 v{t0}, 1, v{t0}')
    S(f'v_lshrrev_b32 v{t1}, 1, v{vCq}')
    S(f'v_xor_b32 v{t0}, v{t0}, v{t1}')
    S(f'v_lshlrev_b32 v{t0}, 4, v{t0}')
    S(f'v_and_b32 v{t1}, 1, v{vCq}')
    S(f'v_lshl_add_u32 v{t0}, v{t1}, 3, v{t0}')
    S(f'v_lshl_add_u32 v{t1}, v{vG}, 2, v{vR}')
    S(f'v_lshl_add_u32 v{vAh[0]}, v{t1}, 7, v{t0}')
    S(f'v_lshrrev_b32 v{t1}, 1, v{vG}')
    S(f'v_lshlrev_b32 v{t1}, 4, v{t1}')
    S(f'v_add_u32 v{t1}, v{t1}, v{vR}')
    S(f'v_and_b32 v{vCq}, 1, v{vG}')
    S(f'v_lshl_add_u32 v{t1}, v{vCq}, 2, v{t1}')
    S(f'v_lshl_add_u32 v{vAo[0]}, v{t1}, 7, v{t0}')
    for tau in range(1, 4):
        S(f'v_xor_b32 v{vAh[tau]}, {32*tau}, v{vAh[0]}')
        S(f'v_xor_b32 v{vAo[tau]}, {32*tau}, v{vAo[0]}')
    for tau in range(4):
        S(f'v_add_u32 v{vAh[tau]}, s{sLds}, v{vAh[tau]}')
        S(f'v_add_u32 v{vAo[tau]}, s{sLds}, v{vAo[tau]}')
    S(f's_lshl_b32 s{sT}, s{sTb}, 6\ns_lshl_b32 s{sT2}, s{sW}, 4\ns_add_u32 s{sT}, s{sT}, s{sT2}')
    S(f'v_add_u32 v{t0}, s{sT}, v{vN}')
    S(f'v_lshlrev_b32 v{t0}, 10, v{t0}')
    S(f's_lshl_b32 s{sT}, s{sFb}, 7')
    S(f'v_add_u32 v{t0}, s{sT}, v{t0}')
    S(f'v_lshl_add_u32 v{vXo}, v{vG}, 3, v{t0}')
    for tau in range(4):
        S(f'buffer_load_dwordx2 {vr(vXr[tau],2)}, v{vXo}, s[{sX}:{sX+3}], 0 offen offset:{32*tau}', tag='x')
    S(f'v_and_b32 v{t1}, 1, v{vG}')
    S(f'v_lshl_add_u32 v{t0}, v{t1}, 5, v{t0}')
    S(f'v_lshrrev_b32 v{t1}, 1, v{vG}')
    S(f'v_lshl_add_u32 v{vXo}, v{t1}, 4, v{t0}')
    def reads(s):
        h = s < NH; slot = (s % R) * SLOT; out = []
        for tau in range(4):
            for rd in range(2):
                a = vAh[tau] if h else vAo[tau]
                out.append(f'ds_read_b64_tr_b16 {vr(A[s&1][tau]+2*rd,2)}, v{a} offset:{slot + rd*(2048 if h else 1024)}')
        return out
    S.wait_vm(('w', 0))
    if dbg: dbg_stamp(S, 52, 1, 0, 0, 0)
    if stamps: S(f's_memtime s[{sSt+2}:{sSt+3}]')
    for r in reads(0): S(r)
    for s in range(NS):
        if s + 1 < NS: S.wait_vm(('w', s + 1))
        S('s_waitcnt lgkmcnt(0)')
        issue(s + DW)
        rr = reads(s + 1) if s + 1 < NS else []
        k = 0
        for tt in range(4):
            for tau in range(4):
                c = '0' if s == 0 else vr(acc[tau][tt], 4)
                S(f'v_mfma_f32_16x16x32_bf16 {vr(acc[tau][tt],4)}, {vr(A[s&1][tau],4)}, {vr(B[s % (DB+1)][tt],4)}, {c}')
                if k < len(rr): S(rr[k]); k += 1
    if stamps: S(f's_memtime s[{sSt+4}:{sSt+5}]')
    if dbg: dbg_stamp(S, 52, 2, 0, 0, 0)
    S('s_waitcnt lgkmcnt(0)')
    S('s_barrier')
    S(f's_lshl_b32 s{sT}, s{sW}, 14')
    S(f'v_add_u32 v{t0}, s{sT}, v{vOff}')
    S('s_nop 2')
    for tt in range(4):
        for tau in range(4):
            S(f'ds_write_b128 v{t0}, {vr(acc[tau][tt],4)} offset:{(tau*4 + tt)*1024}')
    S('s_waitcnt lgkmcnt(0)')
    S('s_barrier')
    S(f's_lshl_b32 s{sT}, s{sW}, 10')
    S(f'v_add_u32 v{t0}, s{sT}, v{vOff}')
    red = [[B[g][tau] for tau in range(4)] for g in range(4)]
    for tau in range(4):
        for g in range(4):
            S(f'ds_read_b128 {vr(red[g][tau],4)}, v{t0} offset:{g*16384 + tau*4096}')
    P = A[0][0]
    for tau in range(4):
        d = red[0][tau]
        for r in range(4): S(f'v_add_f32 v{d+r}, v{d+r}, v{red[1][tau]+r}')
        for r in range(4): S(f'v_add_f32 v{red[2][tau]+r}, v{red[2][tau]+r}, v{red[3][tau]+r}')
        S(f'v_lshlrev_b32 v{t1}, 16, v{vXr[tau]}')
        S(f'v_and_b32 v{t2}, 0xffff0000, v{vXr[tau]}')
        S(f'v_add_f32 v{d}, v{d}, v{t1}')
        S(f'v_add_f32 v{d+1}, v{d+1}, v{t2}')
        S(f'v_lshlrev_b32 v{t1}, 16, v{vXr[tau]+1}')
        S(f'v_and_b32 v{t2}, 0xffff0000, v{vXr[tau]+1}')
        S(f'v_add_f32 v{d+2}, v{d+2}, v{t1}')
        S(f'v_add_f32 v{d+3}, v{d+3}, v{t2}')
        for r in range(4): S(f'v_add_f32 v{d+r}, v{d+r}, v{red[2][tau]+r}')
        S(f'v_cvt_pk_bf16_f32 v{P+2*tau}, v{d}, v{d+1}')
        S(f'v_cvt_pk_bf16_f32 v{P+2*tau+1}, v{d+2}, v{d+3}')
    for p in range(2):
        x, y = P + 4*p, P + 4*p + 2
        S(f'v_permlane16_swap_b32 v{x}, v{y}')
        S(f'v_permlane16_swap_b32 v{x+1}, v{y+1}')
        S(f'buffer_store_dwordx4 {vr(x,4)}, v{vXo}, s[{sOut}:{sOut+3}], 0 offen offset:{64*p}')
    if stamps:
        S('s_waitcnt vmcnt(0)')
        S(f's_memtime s[{sSt+6}:{sSt+7}]\ns_memrealtime s[{sSt+8}:{sSt+9}]\ns_waitcnt lgkmcnt(0)')
        S(f's_sub_u32 s{sSt+2}, s{sSt+2}, s{sSt}\ns_sub_u32 s{sSt+4}, s{sSt+4}, s{sSt}\ns_sub_u32 s{sSt+6}, s{sSt+6}, s{sSt}\ns_sub_u32 s{sSt+8}, s{sSt+8}, s{sSt+10}')
        P = A[0][0]
        S(f'v_mov_b32 v{P}, s{sSt+2}\nv_mov_b32 v{P+1}, s{sSt+4}\nv_mov_b32 v{P+2}, s{sSt+6}\nv_mov_b32 v{P+3}, s{sSt+8}')
        S(f's_lshl_b32 s{sT}, s2, 3\ns_add_u32 s{sT}, s{sT}, s{sW}\ns_lshl_b32 s{sT}, s{sT}, 4\ns_add_u32 s{sT}, s{sT}, {STAMP_OFF}')
        S(f'v_mov_b32 v{t0}, 0')
        S(f'buffer_store_dwordx4 {vr(P,4)}, v{t0}, s[{sWS}:{sWS+3}], s{sT} offen')
    if dbg:
        dbg_final(S, 52, acc[0][0], sT, 2, sWS)
    S.label(f'{L}_end')
    S('s_endpgm')
    p = Processor().run(S)
    lds = max(4 * RING, 65536)
    return kernel_text(name, p.text(), v.hi), p, v.hi, lds
if __name__ == '__main__':
    import sys
    t, p, hi, lds = gen_out()
    print(t)
    from collections import Counter
    print('vgprs', hi, 'lds', lds, 'nops', p.nops_inserted, Counter(w.split(' (')[0] for w, n, _ in p.nop_log), file=sys.stderr)
```

```python
from asmlib import *
Q_OFF   = 0
K_OFF   = 2 << 20
V_OFF   = 4 << 20
ACT_OFF = 6 << 20
ACT_KS  = 144
PART_OFF = 16 << 20
STAMP_OFF = 24 << 20
WS_SIZE = 0x2000000
KA_X, KA_WQKV, KA_WO, KA_BX, KA_WG, KA_WU, KA_WD, KA_OUT, KA_DBG, KA_WS = [8*i for i in range(10)]
LOG2E = 1.4426950408889634

def f2u(x):
    import struct
    return struct.unpack('<I', struct.pack('<f', x))[0]
def fhex(x): return '0x%08x' % f2u(x)

def srd(S, d, base_pair, nbytes):
    S(f's_mov_b32 s{d}, s{base_pair}')
    S(f's_and_b32 s{d+1}, s{base_pair+1}, 0xffff')
    S(f's_mov_b32 s{d+2}, {hex(nbytes)}')
    S(f's_mov_b32 s{d+3}, 0x20000')

def kernel_text(name, body, vgpr, sgpr=102, accum=None):
    accum = accum if accum is not None else min(256, (vgpr + 3) // 4 * 4)
    head = f""".text
.globl {name}
.p2align 8
.type {name},@function
{name}:
"""
    kd = f"""
.section .rodata,"a"
.p2align 6
.amdhsa_kernel {name}
  .amdhsa_next_free_vgpr {vgpr}
  .amdhsa_next_free_sgpr {sgpr}
  .amdhsa_accum_offset {accum}
  .amdhsa_group_segment_fixed_size 0
  .amdhsa_kernarg_size 80
  .amdhsa_user_sgpr_count 2
  .amdhsa_user_sgpr_kernarg_segment_ptr 1
  .amdhsa_system_sgpr_workgroup_id_x 1
  .amdhsa_float_denorm_mode_32 3
.end_amdhsa_kernel
"""
    return head + body + "\n" + kd

def stamp(S, slot, sreg_pair, dbg=False):
    S(f's_memtime s[{sreg_pair}:{sreg_pair+1}]')

FLAG_OFF = 20 << 20
FQ_OFF = FLAG_OFF
FH_OFF = FLAG_OFF + 1024
FO_OFF = FLAG_OFF + 2048
POLL_LIMIT = 4000
_pl = [0]
def poll(S, srd, vAddr, vTmp, sCnt, expected, nlanes, soff=None, sSave=4):
    _pl[0] += 1; lb = f'poll{_pl[0]}'
    S(f's_mov_b32 s{sCnt}, {POLL_LIMIT}')
    if nlanes < 64:
        m = (1 << nlanes) - 1
        S(f's_mov_b32 s{sSave}, {hex(m & 0xffffffff)}\ns_mov_b32 s{sSave+1}, {hex(m >> 32)}\ns_mov_b64 exec, s[{sSave}:{sSave+1}]')
    S.label(lb)
    so = '0' if soff is None else f's{soff}'
    S(f'buffer_load_dword v{vTmp}, v{vAddr}, s[{srd}:{srd+3}], {so} offen sc1', tag='poll')
    S('s_waitcnt vmcnt(0)')
    S(f'v_cmp_ne_u32 vcc, {expected}, v{vTmp}')
    S(f's_cmp_eq_u64 vcc, 0')
    S(f's_cbranch_scc1 {lb}_ok')
    S('s_sleep 2')
    S(f's_sub_u32 s{sCnt}, s{sCnt}, 1')
    S(f's_cmp_lg_u32 s{sCnt}, 0')
    S(f's_cbranch_scc1 {lb}')
    S.label(f'{lb}_ok')
    if nlanes < 64: S('s_mov_b64 exec, -1')
```

```python
from common import *
from k_gemm1 import gen_gemm1
from k_p2 import gen_p2, LDS2
def gen_fused(name='fused_kernel', g1=None, p2=None):
    g1 = g1 or {}; p2 = p2 or {}
    t1, p1, hi1 = gen_gemm1(name, fused=True, **g1)
    S = Stream()
    S.label(f'{name}_p2')
    t2, hi2, ps = gen_p2(S, name, fused=True, **p2)
    text = t1 + '\n' + t2 + f'\n{name}_end:\ns_endpgm\n'
    hi = 256
    return kernel_text(name, text, hi), hi
if __name__ == '__main__':
    t, hi = gen_fused()
    print(t)
```

```python
from common import *
from diag import *

BIG = 0; BIGSZ = 24576; NBIG = 3
MB = BIG + NBIG * BIGSZ; MSZ = 16384; NM = 4
STAT = MB + NM * MSZ
ST_SUM = STAT; ST_SQ = STAT + 512; ST_CS = STAT + 1024
LDS1 = STAT + 1024 + 2 * 320 * 4
QSCALE = 0.25 * LOG2E

def gen_gemm1(name='gemm1_kernel', stamps=False, xp='', dbg=False, DMA_FIRST=2, fused=False):
    S = Stream(); L = name
    v = VAlloc(256, 'v', 1)
    sX, sQK, sM0, sM1, sWS = 8, 12, 16, 20, 24
    sW, sTb, sC, sTh, sFq, sT, sT2, sRS = 28, 29, 30, 31, 32, 33, 34, 35
    sXo, sQo, sM0o, sM1o, sLx, sLq, sLm = 36, 37, 38, 39, 40, 41, 42
    sIsB, sScale, sT3, sStepM, sDuty, sMaskHi = 43, 44, 45, 46, 58, 59
    sSt = 60
    sDbg, sFQ, sFH = 96, 94, 95
    vLane = v.alloc(); vN = v.alloc(); vG = v.alloc()
    vT = [v.alloc() for _ in range(6)]
    vDx = [v.alloc() for _ in range(2)]; vDq = v.alloc(); vDm = v.alloc()
    vXa = [v.alloc() for _ in range(2)]; vQa = v.alloc(); vMa = [v.alloc() for _ in range(4)]
    vSum = [v.alloc() for _ in range(2)]; vSq = [v.alloc() for _ in range(2)]; vLo = v.alloc(); vHi = v.alloc()
    vXs = [v.alloc() for _ in range(2)]
    vOnes = v.alloc(4, 4)
    A = [[v.alloc(4, 4) for _ in range(5)] for _ in range(2)]
    B = [[v.alloc(4, 4) for _ in range(4)] for _ in range(2)]
    Bs = [v.alloc(4, 4) for _ in range(2)]
    acc = [[v.alloc(4, 4) for _ in range(4)] for _ in range(5)]
    vCs = [v.alloc(4, 4) for _ in range(5)]
    vEp = v.alloc(16, 4)

    S(f's_cmp_ge_u32 s2, 256'); S(f's_cbranch_scc1 {L}_end')
    if stamps: S(f's_memtime s[{sSt}:{sSt+1}]\ns_memrealtime s[{sSt+10}:{sSt+11}]')
    if dbg: dbg_stamp(S, 84, 0, 0, 0, 0)
    S(f's_load_dwordx4 s[48:51], s[0:1], {KA_X}')
    S(f's_load_dwordx4 s[52:55], s[0:1], {KA_WG}')
    S(f's_load_dwordx2 s[56:57], s[0:1], {KA_WS}')
    if fused: S(f's_load_dwordx2 s[92:93], s[0:1], {KA_DBG}')
    S(f'v_and_b32 v{vLane}, 63, v0')
    S(f'v_lshrrev_b32 v{vT[0]}, 6, v0')
    S(f'v_and_b32 v{vN}, 15, v0')
    S(f'v_readfirstlane_b32 s{sW}, v{vT[0]}')
    S(f'v_bfe_u32 v{vG}, v0, 4, 2')
    S(f's_and_b32 s{sT}, s2, 1\ns_lshl_b32 s{sT}, s{sT}, 3')
    S(f's_lshr_b32 s{sT2}, s2, 3\ns_and_b32 s{sT2}, s{sT2}, 7\ns_add_u32 s{sTb}, s{sT}, s{sT2}')
    S(f's_lshr_b32 s{sT}, s2, 1\ns_and_b32 s{sT}, s{sT}, 3\ns_lshl_b32 s{sT}, s{sT}, 2')
    S(f's_lshr_b32 s{sT2}, s2, 6\ns_add_u32 s{sC}, s{sT}, s{sT2}')
    S(f's_and_b32 s{sTh}, s{sW}, 1\ns_lshr_b32 s{sFq}, s{sW}, 1')
    S(f's_cmp_ge_u32 s{sC}, 14\ns_cselect_b32 s{sIsB}, 1, 0')
    S(f's_lshr_b32 s{sDuty}, s{sFq}, 1\ns_xor_b32 s{sDuty}, s{sDuty}, s{sTh}')
    S('s_waitcnt lgkmcnt(0)')
    srd(S, sX, 48, 2048 * 512 * 2)
    srd(S, sQK, 50, 512 * 1536 * 2)
    srd(S, sWS, 56, WS_SIZE)
    if fused:
        srd(S, sDbg, 92, 256)
        S(f's_lshl_b32 s{sT}, s{sC}, 6\ns_lshl_b32 s{sT2}, s{sTb}, 2\ns_add_u32 s{sFQ}, s{sT}, s{sT2}\ns_add_u32 s{sFQ}, s{sFQ}, {FQ_OFF}')
        S(f's_lshl_b32 s{sT}, s{sTb}, 6\ns_lshl_b32 s{sT2}, s{sC}, 2\ns_add_u32 s{sFH}, s{sT}, s{sT2}\ns_add_u32 s{sFH}, s{sFH}, {FH_OFF}')
        S(f's_cmp_lg_u32 s{sW}, 7\ns_cbranch_scc1 {L}_noclr')
        S(f's_and_b32 s{sT}, s2, 7\ns_lshl_b32 s{sT}, s{sT}, 2\ns_lshr_b32 s{sT2}, s2, 6\ns_add_u32 s{sT}, s{sT}, s{sT2}\ns_lshl_b32 s{sT}, s{sT}, 2')
        S(f's_lshr_b32 s{sT2}, s2, 3\ns_and_b32 s{sT2}, s{sT2}, 7\ns_lshl_b32 s{sT2}, s{sT2}, 9\ns_add_u32 s{sT}, s{sT}, s{sT2}\ns_add_u32 s{sT}, s{sT}, {FO_OFF}')
        S(f'v_lshlrev_b32 v{vT[1]}, 7, v{vLane}')
        S(f'v_add_u32 v{vT[1]}, s{sT}, v{vT[1]}')
        S(f'v_mov_b32 v{vT[2]}, s{sFQ}\nv_cmp_eq_u32 vcc, 4, v{vLane}\nv_cndmask_b32 v{vT[1]}, v{vT[1]}, v{vT[2]}, vcc')
        S(f'v_mov_b32 v{vT[2]}, s{sFH}\nv_cmp_eq_u32 vcc, 5, v{vLane}\nv_cndmask_b32 v{vT[1]}, v{vT[1]}, v{vT[2]}, vcc')
        S(f'v_mov_b32 v{vT[2]}, 0')
        S(f's_mov_b64 exec, 63')
        S(f'buffer_store_dword v{vT[2]}, v{vT[1]}, s[{sWS}:{sWS+3}], 0 offen sc1', tag='nocount')
        S(f's_mov_b64 exec, -1')
        S.label(f'{L}_noclr')
    S(f's_cmp_eq_u32 s{sIsB}, 1')
    for d, p in ((sM0, 52), (sM1, 54)):
        S(f's_cselect_b32 s{d}, s50, s{p}')
        S(f's_cselect_b32 s{d+1}, s51, s{p+1}')
        S(f's_and_b32 s{d+1}, s{d+1}, 0xffff')
        S(f's_cmp_eq_u32 s{sIsB}, 1')
        S(f's_mov_b32 s{d+2}, {512*1792*2}\ns_cmov_b32 s{d+2}, {512*1536*2}')
        S(f's_mov_b32 s{d+3}, 0x20000')
    S(f's_mov_b32 s{sRS}, 3584\ns_cmov_b32 s{sRS}, 3072')
    S(f's_lshl_b32 s{sXo}, s{sTb}, 17')
    S(f's_lshl_b32 s{sQo}, s{sC}, 7')
    S(f's_lshl_b32 s{sM0o}, s{sC}, 8')
    S(f's_sub_u32 s{sT}, s{sC}, 14\ns_lshl_b32 s{sT}, s{sT}, 9\ns_add_u32 s{sT}, s{sT}, 2048')
    S(f's_cmp_eq_u32 s{sIsB}, 1')
    S(f's_cselect_b32 s{sM0o}, s{sT}, s{sM0o}')
    S(f's_cselect_b32 s{sT}, 256, 0')
    S(f's_add_u32 s{sM1o}, s{sM0o}, s{sT}')
    S(f's_lshl_b32 s{sStepM}, s{sRS}, 5')
    t0, t1, t2, t3, t4, t5 = vT
    for i in range(2):
        S(f'v_lshrrev_b32 v{t0}, 3, v{vLane}')
        S(f's_lshl_b32 s{sT}, s{sW}, 4\ns_add_u32 s{sT}, s{sT}, {8*i}')
        S(f'v_add_u32 v{t0}, s{sT}, v{t0}')
        S(f'v_lshlrev_b32 v{t0}, 10, v{t0}')
        S(f'v_and_b32 v{t1}, 7, v{vLane}')
        S(f'v_xor_b32 v{t1}, v{t1}, v{vG}')
        if i: S(f'v_xor_b32 v{t1}, 4, v{t1}')
        S(f'v_lshl_add_u32 v{vDx[i]}, v{t1}, 4, v{t0}')
    S(f'v_lshrrev_b32 v{t0}, 3, v{vLane}')
    S(f'v_bfe_u32 v{t2}, v{vLane}, 4, 1')
    S(f's_and_b32 s{sT}, s{sW}, 1\ns_lshl_b32 s{sT}, s{sT}, 1')
    S(f'v_or_b32 v{t2}, s{sT}, v{t2}')
    S(f'v_lshlrev_b32 v{t2}, 1, v{t2}')
    S(f'v_and_b32 v{t1}, 7, v{vLane}')
    S(f'v_xor_b32 v{t1}, v{t1}, v{t2}')
    S(f's_lshl_b32 s{sT}, s{sW}, 3')
    S(f'v_add_u32 v{t0}, s{sT}, v{t0}')
    S(f'v_mul_u32_u24 v{t0}, 3072, v{t0}')
    S(f'v_lshl_add_u32 v{vDq}, v{t1}, 4, v{t0}')
    S(f's_lshr_b32 s{sT}, s{sW}, 1\ns_and_b32 s{sT}, s{sT}, 1\ns_lshl_b32 s{sT}, s{sT}, 2')
    S(f'v_or_b32 v{t2}, s{sT}, v{vG}')
    S(f'v_lshlrev_b32 v{t2}, 1, v{t2}')
    S(f'v_xor_b32 v{t1}, v{vN}, v{t2}')
    S(f's_lshl_b32 s{sT}, s{sW}, 2')
    S(f'v_add_u32 v{t0}, s{sT}, v{vG}')
    S(f'v_mul_lo_u32 v{t0}, v{t0}, s{sRS}')
    S(f'v_lshl_add_u32 v{vDm}, v{t1}, 4, v{t0}')
    S(f's_lshl_b32 s{sLx}, s{sW}, 11')
    S(f's_lshl_b32 s{sLq}, s{sW}, 10\ns_add_u32 s{sLq}, s{sLq}, 16384')
    S(f's_lshl_b32 s{sLm}, s{sW}, 10\ns_add_u32 s{sLm}, s{sLm}, {MB}')
    def dma_big_groups(j):
        slot = (j % NBIG) * BIGSZ + BIG; g = []
        for i in range(2):
            g.append([(f's_add_u32 m0, s{sLx}, {slot + i*1024}', None), (f's_add_u32 s{sT}, s{sXo}, {j*128}', None),
                      (f'buffer_load_dwordx4 v{vDx[i]}, s[{sX}:{sX+3}], s{sT} offen lds', ('big', j))])
        g.append([(f's_add_u32 m0, s{sLq}, {slot}', None), (f's_add_u32 s{sT}, s{sQo}, {j*64*3072}', None),
                  (f'buffer_load_dwordx4 v{vDq}, s[{sQK}:{sQK+3}], s{sT} offen lds', ('big', j))])
        return g
    def dma_m_groups(s):
        slot = (s % NM) * MSZ
        return [[(f's_add_u32 m0, s{sLm}, {slot}', None), (f's_add_u32 s{sT}, s{sM0o}, 0', None),
                 (f'buffer_load_dwordx4 v{vDm}, s[{sM0}:{sM0+3}], s{sT} offen lds', ('m', s)), (f's_add_u32 s{sM0o}, s{sM0o}, s{sStepM}', None)],
                [(f's_add_u32 m0, s{sLm}, {slot + 8192}', None), (f's_add_u32 s{sT}, s{sM1o}, 0', None),
                 (f'buffer_load_dwordx4 v{vDm}, s[{sM1}:{sM1+3}], s{sT} offen lds', ('m', s)), (f's_add_u32 s{sM1o}, s{sM1o}, s{sStepM}', None)]]
    def emit_group(g):
        for t, tag in g: S(t, tag=tag)
    def dma_big(j):
        for g in dma_big_groups(j): emit_group(g)
    def dma_m(s):
        for g in dma_m_groups(s): emit_group(g)
    dma_big(0); dma_m(0); dma_m(1); dma_big(1); dma_m(2); dma_m(3); dma_big(2)
    S(f's_lshl_b32 s{sT}, s{sTh}, 6')
    S(f'v_add_u32 v{t0}, s{sT}, v{vN}')
    S(f'v_lshlrev_b32 v{t0}, 7, v{t0}')
    S(f'v_lshrrev_b32 v{t1}, 1, v{vN}')
    S(f'v_xor_b32 v{t1}, v{t1}, v{vG}')
    S(f'v_lshl_add_u32 v{vXa[0]}, v{t1}, 4, v{t0}')
    S(f'v_xor_b32 v{vXa[1]}, 64, v{vXa[0]}')
    S(f's_lshl_b32 s{sT}, s{sFq}, 11')
    S(f'v_add_u32 v{vXs[0]}, s{sT}, v{vXa[0]}')
    S(f'v_add_u32 v{vXs[1]}, s{sT}, v{vXa[1]}')
    vR, vCq = t4, t5
    S(f'v_lshrrev_b32 v{vR}, 2, v{vN}')
    S(f'v_and_b32 v{vCq}, 3, v{vN}')
    S(f'v_lshl_add_u32 v{t0}, v{vG}, 3, v{vR}')
    S(f'v_lshrrev_b32 v{t1}, 1, v{vR}')
    S(f'v_and_b32 v{t2}, 1, v{vG}')
    S(f'v_lshl_or_b32 v{t1}, v{t2}, 1, v{t1}')
    S(f'v_xor_b32 v{t1}, s{sFq}, v{t1}')
    S(f'v_lshlrev_b32 v{t1}, 1, v{t1}')
    S(f'v_lshrrev_b32 v{t2}, 1, v{vCq}')
    S(f'v_add_u32 v{t1}, v{t1}, v{t2}')
    S(f'v_lshlrev_b32 v{t1}, 4, v{t1}')
    S(f'v_and_b32 v{t2}, 1, v{vCq}')
    S(f'v_lshl_add_u32 v{t1}, v{t2}, 3, v{t1}')
    S(f'v_lshl_add_u32 v{vQa}, v{t0}, 7, v{t1}')
    S(f'v_add_u32 v{vQa}, 16384, v{vQa}')
    S(f'v_and_b32 v{t2}, 1, v{vG}')
    S(f'v_lshl_or_b32 v{t1}, v{t2}, 2, v{vR}')
    S(f'v_lshlrev_b32 v{t1}, 1, v{t1}')
    S(f'v_lshrrev_b32 v{t2}, 1, v{vCq}')
    S(f'v_xor_b32 v{t1}, v{t1}, v{t2}')
    S(f'v_lshlrev_b32 v{t1}, 4, v{t1}')
    S(f'v_and_b32 v{t2}, 1, v{vCq}')
    S(f'v_lshl_add_u32 v{t1}, v{t2}, 3, v{t1}')
    S(f'v_lshl_add_u32 v{t1}, v{t0}, 8, v{t1}')
    for i in range(4):
        S(f's_lshl_b32 s{sT}, s{sFq}, 1\ns_add_u32 s{sT}, s{sT}, {i & 1}\ns_lshl_b32 s{sT}, s{sT}, 5')
        S(f's_add_u32 s{sT}, s{sT}, {(i >> 1) * 8192}')
        S(f's_and_b32 s{sT2}, s{sFq}, 1\ns_lshl_b32 s{sT2}, s{sT2}, 2\ns_add_u32 s{sT2}, s{sT2}, {i}\ns_lshl_b32 s{sT2}, s{sT2}, 5')
        S(f's_lshr_b32 s{sT3}, s{sFq}, 1\ns_lshl_b32 s{sT3}, s{sT3}, 13\ns_add_u32 s{sT2}, s{sT2}, s{sT3}')
        S(f's_cmp_eq_u32 s{sIsB}, 1\ns_cselect_b32 s{sT}, s{sT2}, s{sT}')
        S(f'v_xor_b32 v{vMa[i]}, s{sT}, v{t1}')
        S(f'v_add_u32 v{vMa[i]}, {MB}, v{vMa[i]}')
    for r in vSum + vSq: S(f'v_mov_b32 v{r}, 0')
    if 'O' in xp:
        for i in range(4): S(f'v_mov_b32 v{vOnes+i}, 0x3f803f80')
    else:
        S(f'v_cmp_eq_u32 vcc, 0, v{vN}')
        S(f'v_mov_b32 v{t0}, 0x3f803f80')
        S(f'v_cndmask_b32 v{vOnes}, 0, v{t0}, vcc')
        for i in range(1, 4): S(f'v_mov_b32 v{vOnes+i}, v{vOnes}')
    S(f's_mov_b32 s{sMaskHi}, 0xffff0000')

    def reads(s):
        b = s & 1; sp = s & 1; j = s // 2
        bs = (j % NBIG) * BIGSZ + BIG; ms = (s % NM) * MSZ
        out = []
        for tt in range(4):
            out.append(f'ds_read_b128 {vr(B[b][tt],4)}, v{vXa[sp]} offset:{bs + tt*2048}')
        for rd in range(2):
            out.append(f'ds_read_b64_tr_b16 {vr(A[b][0]+2*rd,2)}, v{vQa} offset:{bs + (32*sp + 4*rd)*128}')
        if 'S' not in xp: out.append(f'ds_read_b128 {vr(Bs[b],4)}, v{vXs[sp]} offset:{bs}')
        for i in range(4):
            for rd in range(2):
                out.append(f'ds_read_b64_tr_b16 {vr(A[b][1+i]+2*rd,2)}, v{vMa[i]} offset:{ms + rd*1024}')
        return out
    def mfmas(s, typeB):
        b = s & 1; out = []
        for f in range(5):
            for tt in range(4):
                c = '0' if s == 0 else vr(acc[f][tt], 4)
                a_, b_ = vr(A[b][f], 4), vr(B[b][tt], 4)
                if typeB and f > 0: a_, b_ = b_, a_
                out.append(f'v_mfma_f32_16x16x32_bf16 {vr(acc[f][tt],4)}, {a_}, {b_}, {c}')
        return out
    def stats(s):
        b = s & 1; out = []
        for r in range(4):
            p = Bs[b] + r
            out.append(f'v_lshlrev_b32 v{vLo}, 16, v{p}')
            out.append(f'v_and_b32 v{vHi}, s{sMaskHi}, v{p}')
            out.append(f'v_add_f32 v{vSum[0]}, v{vSum[0]}, v{vLo}')
            out.append(f'v_add_f32 v{vSum[1]}, v{vSum[1]}, v{vHi}')
            out.append(f'v_fma_f32 v{vSq[0]}, v{vLo}, v{vLo}, v{vSq[0]}')
            out.append(f'v_fma_f32 v{vSq[1]}, v{vHi}, v{vHi}, v{vSq[1]}')
        return out
    def csmfmas(s, typeB, first):
        b = s & 1; out = []
        for f in range(5):
            c = '0' if first else vr(vCs[f], 4)
            a_, b_ = vr(A[b][f], 4), vr(vOnes, 4)
            if typeB and f > 0: a_, b_ = b_, a_
            out.append(f'v_mfma_f32_16x16x32_bf16 {vr(vCs[f],4)}, {a_}, {b_}, {c}')
        return out

    def mainloop(typeB, duty):
        tag = ('B' if typeB else 'A') + str(duty)
        S.wait_vm(('big', 0)); S.wait_vm(('m', 0))
        S('s_waitcnt lgkmcnt(0)')
        S('s_barrier')
        if stamps: S(f's_memtime s[{sSt+2}:{sSt+3}]\ns_memrealtime s[{sSt+18}:{sSt+19}]')
        if dbg: dbg_stamp(S, 84, 1, 0, 0, 0)
        if fused:
            lb = f'{L}_{tag}_sig'
            S(f's_cmp_lg_u32 s{sW}, 7\ns_cbranch_scc1 {lb}')
            S(f'v_mov_b32 v{vT[0]}, s2\nv_mov_b32 v{vT[1]}, 1\ns_mov_b64 exec, 1')
            S(f'buffer_store_byte v{vT[1]}, v{vT[0]}, s[{sDbg}:{sDbg+3}], 0 offen sc1', tag='nocount')
            S('s_mov_b64 exec, -1')
            S.label(lb)
        for r in reads(0): S(r)
        for s in range(16):
            S('s_waitcnt lgkmcnt(0)')
            if s + 1 < 16:
                S.wait_vm(('m', s + 1)); S.wait_vm(('big', (s + 1) // 2))
            S('s_barrier')
            groups = []
            if s + 4 < 16 and 'D' not in xp: groups += dma_m_groups(s + 4)
            if s % 2 == 1 and (s - 1) // 2 + 3 < 8 and 'D' not in xp: groups += dma_big_groups((s - 1) // 2 + 3)
            mm = mfmas(s, typeB)
            if s % 2 == duty and 'S' not in xp:
                cm = csmfmas(s, typeB, s < 2)
                mm = [x for f in range(5) for x in mm[4*f:4*f+4] + [cm[f]]]
            rr = reads(s + 1) if s + 1 < 16 else []
            if 'R' in xp: rr = []
            st = stats(s) if 'S' not in xp else []
            n = len(mm)
            dpos = {}
            if groups:
                first = DMA_FIRST; stride = max(1, (n - first) // len(groups))
                for i, g in enumerate(groups): dpos[min(n - 1, first + i * stride)] = dpos.get(min(n - 1, first + i * stride), []) + [g]
            k = 0; q = 0
            for i, m in enumerate(mm):
                S(m)
                if k < len(rr): S(rr[k]); k += 1
                nq = (len(st) * (i + 1) + n - 1) // n
                while q < nq: S(st[q]); q += 1
                for g in dpos.get(i, []): emit_group(g)
        if stamps: S(f's_memtime s[{sSt+4}:{sSt+5}]\ns_memrealtime s[{sSt+20}:{sSt+21}]')

    def greduce(r):
        S(f'v_mov_b32 v{t0}, v{r}')
        S(f'v_permlane32_swap_b32 v{r}, v{t0}')
        S(f'v_add_f32 v{r}, v{r}, v{t0}')
        S(f'v_mov_b32 v{t0}, v{r}')
        S(f'v_permlane16_swap_b32 v{r}, v{t0}')
        S(f'v_add_f32 v{r}, v{r}, v{t0}')
    def reduce_stats(typeB):
        S(f'v_add_f32 v{vSum[0]}, v{vSum[0]}, v{vSum[1]}')
        S(f'v_add_f32 v{vSq[0]}, v{vSq[0]}, v{vSq[1]}')
        for r in [vSum[0], vSq[0]]: greduce(r)
        ab_from(vSum[0], vSq[0], vSum[1], vSq[1])
        S(f's_lshl_b32 s{sT}, s{sTh}, 6\ns_lshl_b32 s{sT2}, s{sFq}, 4\ns_add_u32 s{sT}, s{sT}, s{sT2}')
        S(f'v_add_u32 v{t0}, s{sT}, v{vN}')
        S(f'v_lshlrev_b32 v{t0}, 2, v{t0}')
        S(f'v_add_u32 v{t0}, {ST_SUM}, v{t0}')
        S(f'ds_write_b32 v{t0}, v{vSum[1]}')
        S(f'ds_write_b32 v{t0}, v{vSq[1]} offset:512')
        S(f's_mul_i32 s{sT}, s{sFq}, 320\ns_mul_i32 s{sT2}, s{sDuty}, 1280\ns_add_u32 s{sT}, s{sT}, s{sT2}\ns_add_u32 s{sT}, s{sT}, {ST_CS}')
        S(f'v_lshlrev_b32 v{t1}, 4, v{vG}')
        S(f'v_add_u32 v{t1}, s{sT}, v{t1}')
        S(f'v_lshlrev_b32 v{t2}, 2, v{vN}')
        S(f'v_add_u32 v{t2}, s{sT}, v{t2}')
        S('s_nop 7')
        S(f's_mov_b32 s4, 0x00010001\ns_mov_b32 s5, 0x00010001\ns_mov_b64 exec, s[4:5]')
        for f in range(5):
            if not (typeB and f > 0): S(f'ds_write_b128 v{t1}, {vr(vCs[f],4)} offset:{f*64}')
        if typeB:
            S(f's_mov_b64 exec, 0xffff')
            for f in range(1, 5): S(f'ds_write_b32 v{t2}, v{vCs[f]} offset:{f*64}')
        S('s_mov_b64 exec, -1')
        S('s_waitcnt lgkmcnt(0)')
        S('s_barrier')

    def ab_from(vs, vq, va, vb, scale_lit=None):
        S(f'v_mul_f32 v{vs}, {fhex(1/512)}, v{vs}')
        S(f'v_mul_f32 v{vq}, {fhex(1/512)}, v{vq}')
        S(f'v_fma_f32 v{vq}, -v{vs}, v{vs}, v{vq}')
        S(f'v_max_f32 v{vq}, 0, v{vq}')
        S(f'v_add_f32 v{vq}, {fhex(1e-5)}, v{vq}')
        S(f'v_rsq_f32 v{va}, v{vq}')
        S(f'v_mul_f32 v{vb}, v{vs}, v{va}')
        S(f'v_sub_f32 v{vb}, 0, v{vb}')

    SC = ' sc1' if fused else ''
    def publish(sflag, tag, lb):
        S.wait_vm(tag)
        S('s_barrier')
        S(f's_cmp_lg_u32 s{sW}, 0\ns_cbranch_scc1 {lb}')
        S(f'v_mov_b32 v{t4}, 0\nv_mov_b32 v{t5}, 1\ns_mov_b64 exec, 1')
        S(f'buffer_store_dword v{t5}, v{t4}, s[{sWS}:{sWS+3}], s{sflag} offen sc1', tag='nocount')
        S('s_mov_b64 exec, -1')
        S.label(lb)
    def epilogue(typeB):
        v = VAlloc(Bs[1] + 4, 'v', A[0][0])
        vP = v.alloc(8, 4); vcsr = v.alloc(4, 4)
        va = [vEp + i for i in range(4)]; vb = [vEp + 4 + i for i in range(4)]
        tq = [vEp + 8 + i for i in range(4)]
        vOff = vEp + 12; vAq = vEp + 13; vBq = vEp + 14
        S(f'v_lshlrev_b32 v{vOff}, 4, v{vLane}')
        S(f's_lshl_b32 s{sT}, s{sTh}, 6')
        S(f'v_add_u32 v{t0}, s{sT}, v{vN}')
        S(f'v_lshlrev_b32 v{t0}, 2, v{t0}')
        S(f'v_add_u32 v{t0}, {ST_SUM}, v{t0}')
        for tt in range(4):
            S(f'ds_read_b32 v{va[tt]}, v{t0} offset:{tt*64}')
            S(f'ds_read_b32 v{vb[tt]}, v{t0} offset:{512 + tt*64}')
        S(f's_mul_i32 s{sT}, s{sFq}, 320')
        S(f'v_lshlrev_b32 v{t1}, 4, v{vG}')
        S(f'v_add_u32 v{t1}, s{sT}, v{t1}')
        S(f'v_add_u32 v{t1}, {ST_CS}, v{t1}')
        def rd_cs_row(dst, f):
            tmp = vCs[f]
            S(f'ds_read_b128 {vr(dst,4)}, v{t1} offset:{f*64}')
            S(f'ds_read_b128 {vr(tmp,4)}, v{t1} offset:{f*64 + 1280}')
            return [f'v_add_f32 v{dst+r}, v{dst+r}, v{tmp+r}' for r in range(4)]
        for x in rd_cs_row(vcsr, 0): S(x)
        S(f's_cmp_lt_u32 s{sC}, 8\ns_cselect_b32 s{sScale}, {fhex(QSCALE)}, 1.0')
        for tt in range(4):
            S(f'v_mul_f32 v{vAq}, s{sScale}, v{va[tt]}')
            S(f'v_mul_f32 v{vBq}, s{sScale}, v{vb[tt]}')
            for r in range(4):
                S(f'v_mul_f32 v{tq[r]}, v{vBq}, v{vcsr+r}')
            for r in range(4):
                S(f'v_fma_f32 v{acc[0][tt]+r}, v{acc[0][tt]+r}, v{vAq}, v{tq[r]}')
            S(f'v_cvt_pk_bf16_f32 v{vP+2*tt}, v{acc[0][tt]}, v{acc[0][tt]+1}')
            S(f'v_cvt_pk_bf16_f32 v{vP+2*tt+1}, v{acc[0][tt]+2}, v{acc[0][tt]+3}')
        S(f's_and_b32 s{sT}, s{sC}, 7\ns_lshl_b32 s{sT}, s{sT}, 2\ns_add_u32 s{sT}, s{sT}, s{sFq}\ns_lshl_b32 s{sT}, s{sT}, 16')
        S(f's_cmp_lt_u32 s{sC}, 8\ns_cselect_b32 s{sT2}, 0, {K_OFF - Q_OFF}\ns_add_u32 s{sT}, s{sT}, s{sT2}')
        S(f's_lshl_b32 s{sT2}, s{sTb}, 2\ns_lshl_b32 s{sT3}, s{sTh}, 1\ns_add_u32 s{sT2}, s{sT2}, s{sT3}\ns_lshl_b32 s{sT2}, s{sT2}, 10')
        S(f's_add_u32 s{sT}, s{sT}, s{sT2}')
        for p in range(2):
            x, y = vP + 4*p, vP + 4*p + 2
            S(f'v_permlane16_swap_b32 v{x}, v{y}')
            S(f'v_permlane16_swap_b32 v{x+1}, v{y+1}')
            S(f'buffer_store_dwordx4 {vr(x,4)}, v{vOff}, s[{sWS}:{sWS+3}], s{sT} offen offset:{p*1024}{SC}', tag='qk')
        if stamps: S(f's_memtime s[{sSt+14}:{sSt+15}]')
        if not typeB:
            cg = [v.alloc(4, 4) for _ in range(2)]; cu = [v.alloc(4, 4) for _ in range(2)]
            adds = []
            for i in range(2):
                adds += rd_cs_row(cg[i], 1+i); adds += rd_cs_row(cu[i], 3+i)
            for x in adds: S(x)
            K1 = -2 * LOG2E * 0.7978845608028654; K2 = K1 * 0.044715
            sK1, sK2 = 46, 47
            S(f's_mov_b32 s{sK1}, {fhex(K1)}\ns_mov_b32 s{sK2}, {fhex(K2)}')
            vk1 = v.alloc(); S(f'v_mov_b32 v{vk1}, s{sK1}')
            tg = v.alloc(4, 4); tu = v.alloc(4, 4); tz = v.alloc(4, 4)
            S(f's_lshl_b32 s{sT}, s{sTb}, 3\ns_lshl_b32 s{sT2}, s{sTh}, 2\ns_add_u32 s{sT}, s{sT}, s{sT2}\ns_mul_i32 s{sT}, s{sT}, {72*1024}')
            S(f's_lshl_b32 s{sT2}, s{sC}, 2\ns_add_u32 s{sT2}, s{sT2}, s{sFq}\ns_lshl_b32 s{sT2}, s{sT2}, 10\ns_add_u32 s{sT}, s{sT}, s{sT2}')
            S(f's_add_u32 s{sT}, s{sT}, {ACT_OFF}')
            vH = [v.alloc(4, 4) for _ in range(2)]
            for tt in range(4):
                H = vH[tt & 1]
                for i in range(2):
                    G, U = acc[1+i][tt], acc[3+i][tt]
                    for r in range(4): S(f'v_mul_f32 v{tg+r}, v{vb[tt]}, v{cg[i]+r}')
                    for r in range(4): S(f'v_mul_f32 v{tu+r}, v{vb[tt]}, v{cu[i]+r}')
                    for r in range(4): S(f'v_fma_f32 v{G+r}, v{G+r}, v{va[tt]}, v{tg+r}')
                    for r in range(4): S(f'v_fma_f32 v{U+r}, v{U+r}, v{va[tt]}, v{tu+r}')
                    for r in range(4): S(f'v_mul_f32 v{tz+r}, v{G+r}, v{G+r}')
                    for r in range(4): S(f'v_fma_f32 v{tz+r}, v{tz+r}, s{sK2}, v{vk1}')
                    for r in range(4): S(f'v_mul_f32 v{tz+r}, v{tz+r}, v{G+r}')
                    for r in range(4): S(f'v_exp_f32 v{tz+r}, v{tz+r}')
                    for r in range(4): S(f'v_mul_f32 v{U+r}, v{U+r}, v{G+r}')
                    for r in range(4): S(f'v_add_f32 v{tz+r}, 1.0, v{tz+r}')
                    for r in range(4): S(f'v_rcp_f32 v{tz+r}, v{tz+r}')
                    S('s_nop 0')
                    for r in range(4): S(f'v_mul_f32 v{U+r}, v{U+r}, v{tz+r}')
                    S(f'v_cvt_pk_bf16_f32 v{H+2*i}, v{U}, v{U+1}')
                    S(f'v_cvt_pk_bf16_f32 v{H+2*i+1}, v{U+2}, v{U+3}')
                S(f'buffer_store_dwordx4 {vr(H,4)}, v{vOff}, s[{sWS}:{sWS+3}], s{sT} offen{SC}', tag='h')
                if tt < 3: S(f's_add_u32 s{sT}, s{sT}, {72*1024}')
                if fused and tt == 1: publish(sFQ, 'qk', f'{L}_pq')
            if fused: publish(sFH, 'h', f'{L}_ph')
        else:
            ra = [v.alloc(4, 4) for _ in range(4)]; rb = [v.alloc(4, 4) for _ in range(4)]
            S(f's_lshl_b32 s{sT}, s{sTh}, 8')
            S(f'v_lshlrev_b32 v{t2}, 4, v{vG}')
            S(f'v_add_u32 v{t2}, s{sT}, v{t2}')
            S(f'v_add_u32 v{t2}, {ST_SUM}, v{t2}')
            for tt in range(4):
                S(f'ds_read_b128 {vr(ra[tt],4)}, v{t2} offset:{tt*64}')
                S(f'ds_read_b128 {vr(rb[tt],4)}, v{t2} offset:{512 + tt*64}')
            cv = [v.alloc() for _ in range(4)]
            S(f's_mul_i32 s{sT}, s{sFq}, 320')
            S(f'v_lshlrev_b32 v{t3}, 2, v{vN}')
            S(f'v_add_u32 v{t3}, s{sT}, v{t3}')
            S(f'v_add_u32 v{t3}, {ST_CS}, v{t3}')
            for i in range(4):
                S(f'ds_read_b32 v{cv[i]}, v{t3} offset:{(1+i)*64}')
                S(f'ds_read_b32 v{vCs[1+i]}, v{t3} offset:{(1+i)*64 + 1280}')
            for i in range(4): S(f'v_add_f32 v{cv[i]}, v{cv[i]}, v{vCs[1+i]}')
            S(f's_sub_u32 s{sT}, s{sC}, 14\ns_lshl_b32 s{sT}, s{sT}, 4\ns_lshl_b32 s{sT2}, s{sFq}, 2\ns_add_u32 s{sT}, s{sT}, s{sT2}\ns_lshl_b32 s{sT}, s{sT}, 16')
            S(f's_lshl_b32 s{sT2}, s{sTb}, 2\ns_lshl_b32 s{sT3}, s{sTh}, 1\ns_add_u32 s{sT2}, s{sT2}, s{sT3}\ns_lshl_b32 s{sT2}, s{sT2}, 10')
            S(f's_add_u32 s{sT}, s{sT}, s{sT2}\ns_add_u32 s{sT}, s{sT}, {V_OFF}')
            vH = [v.alloc(4, 4) for _ in range(2)]
            n = 0
            for i in range(4):
                for p in range(2):
                    H = vH[n & 1]; n += 1
                    for u in range(2):
                        tt = 2*p + u; D = acc[1+i][tt]
                        for r in range(4): S(f'v_mul_f32 v{tq[r]}, v{rb[tt]+r}, v{cv[i]}')
                        for r in range(4): S(f'v_fma_f32 v{D+r}, v{D+r}, v{ra[tt]+r}, v{tq[r]}')
                        S(f'v_cvt_pk_bf16_f32 v{H+2*u}, v{D}, v{D+1}')
                        S(f'v_cvt_pk_bf16_f32 v{H+2*u+1}, v{D+2}, v{D+3}')
                    S(f'v_permlane32_swap_b32 v{H}, v{H+2}')
                    S(f'v_permlane32_swap_b32 v{H+1}, v{H+3}')
                    S(f'buffer_store_dwordx4 {vr(H,4)}, v{vOff}, s[{sWS}:{sWS+3}], s{sT} offen offset:{p*1024}{SC}', tag='v')
                if i < 3: S(f's_add_u32 s{sT}, s{sT}, 65536')
            if fused: publish(sFQ, 'v', f'{L}_pv')

    S(f's_cmp_eq_u32 s{sIsB}, 1\ns_cbranch_scc1 {L}_typeB')
    S(f's_cmp_eq_u32 s{sDuty}, 1\ns_cbranch_scc1 {L}_A1')
    procs = Processor().run(S)
    import copy
    outs = []
    def tail(typeB):
        if dbg: dbg_stamp(S, 84, 2, 0, 0, 0)
        reduce_stats(typeB)
        if stamps: S(f's_memtime s[{sSt+12}:{sSt+13}]')
        epilogue(typeB)
        if stamps:
            S(f's_memtime s[{sSt+16}:{sSt+17}]')
            S('s_waitcnt vmcnt(0)')
            S(f's_memtime s[{sSt+6}:{sSt+7}]\ns_memrealtime s[{sSt+8}:{sSt+9}]\ns_waitcnt lgkmcnt(0)')
            S(f's_sub_u32 s{sSt+2}, s{sSt+2}, s{sSt}\ns_sub_u32 s{sSt+4}, s{sSt+4}, s{sSt}\ns_sub_u32 s{sSt+6}, s{sSt+6}, s{sSt}\ns_sub_u32 s{sSt+8}, s{sSt+8}, s{sSt+10}')
            P = A[0][0]
            S(f'v_mov_b32 v{P}, s{sSt+2}\nv_mov_b32 v{P+1}, s{sSt+4}\nv_mov_b32 v{P+2}, s{sSt+6}\nv_mov_b32 v{P+3}, s{sSt+8}')
            S(f's_lshl_b32 s{sT}, s2, 3\ns_add_u32 s{sT}, s{sT}, s{sW}\ns_lshl_b32 s{sT}, s{sT}, 4\ns_add_u32 s{sT}, s{sT}, {STAMP_OFF}')
            S(f'v_mov_b32 v{t0}, 0')
            S(f'buffer_store_dwordx4 {vr(P,4)}, v{t0}, s[{sWS}:{sWS+3}], s{sT} offen')
            for a in (12, 14, 16): S(f's_sub_u32 s{sSt+a}, s{sSt+a}, s{sSt}')
            P = A[0][1]
            S(f's_sub_u32 s{sSt+18}, s{sSt+18}, s{sSt+10}\ns_sub_u32 s{sSt+20}, s{sSt+20}, s{sSt+10}\ns_lshl_b32 s{sSt+20}, s{sSt+20}, 16\ns_or_b32 s{sSt+18}, s{sSt+18}, s{sSt+20}')
            S(f'v_mov_b32 v{P}, s{sSt+12}\nv_mov_b32 v{P+1}, s{sSt+14}\nv_mov_b32 v{P+2}, s{sSt+16}\nv_mov_b32 v{P+3}, s{sSt+18}')
            S(f's_add_u32 s{sT}, s{sT}, {1 << 20}')
            S(f'buffer_store_dwordx4 {vr(P,4)}, v{t0}, s[{sWS}:{sWS+3}], s{sT} offen')
        if dbg:
            dbg_final(S, 84, acc[0][0], sT, 0, sWS)
        if fused: S(f's_branch {L}_p2')
        else: S('s_endpgm')
    for typeB in (False, True):
        tn = 'B' if typeB else 'A'
        S.ins = []
        if typeB:
            S.label(f'{L}_typeB')
            S(f's_cmp_eq_u32 s{sDuty}, 1\ns_cbranch_scc1 {L}_B1')
        mainloop(typeB, 0)
        S(f's_branch {L}_{tn}tail')
        p0 = copy.deepcopy(procs); n0 = len(p0.out); p0.run(S); outs.append('\n'.join(p0.out[n0:]))
        S.ins = []
        S.label(f'{L}_{tn}1')
        mainloop(typeB, 1)
        S.label(f'{L}_{tn}tail')
        S('s_nop 7')
        tail(typeB)
        p = copy.deepcopy(procs); n0 = len(p.out); p.run(S); outs.append('\n'.join(p.out[n0:])); last = p
    if fused: return procs.text() + '\n' + '\n'.join(outs), last, v.hi
    text = procs.text() + '\n' + '\n'.join(outs) + f'\n{L}_end:\ns_endpgm\n'
    return kernel_text(name, text, v.hi), last, v.hi

if __name__ == '__main__':
    import sys
    t, p, hi = gen_gemm1()
    print(t)
    from collections import Counter
    print('vgprs', hi, 'nops', p.nops_inserted, Counter(w.split(' (')[0] for w, n, _ in p.nop_log), file=sys.stderr)
```

```python
from common import *
from diag import *

LDS2 = 163840
GRING = 131072

def gen_p2(S, L, fused=True, stamps=False, dbg=False, xp='', G_R=2, aprio=1):
    sWS, sWD, sWO, sX, sOut, sDbg = 8, 12, 16, 20, 24, 28
    sW, sHead, sQb, sT, sT2, sT3, sCnt, sTb, sFb, sLds = 32, 33, 34, 35, 36, 37, 38, 39, 40, 41
    sWo, sAo, sWo2, sAo2, sMask, sKoff, sPoll, sG = 42, 43, 44, 45, 46, 48, 49, 50
    sSt = 64
    v = VAlloc(256, 'v', 1)
    vLane = v.alloc(); vOff = v.alloc(); t0, t1, t2, t3 = [v.alloc() for _ in range(4)]
    base_mark = v.mark()
    S(f's_load_dwordx4 s[52:55], s[0:1], {KA_X}')
    S(f's_load_dwordx2 s[56:57], s[0:1], {KA_WO}')
    S(f's_load_dwordx4 s[60:63], s[0:1], {KA_WD}')
    S(f's_load_dwordx4 s[4:7], s[0:1], {KA_DBG}')
    S(f'v_and_b32 v{vLane}, 63, v0')
    S(f'v_lshrrev_b32 v{t0}, 6, v0')
    S(f'v_lshlrev_b32 v{vOff}, 4, v{vLane}')
    S(f'v_readfirstlane_b32 s{sW}, v{t0}')
    S(f's_and_b32 s{sHead}, s2, 7\ns_lshl_b32 s{sHead}, s{sHead}, 2\ns_lshr_b32 s{sT}, s2, 6\ns_add_u32 s{sHead}, s{sHead}, s{sT}')
    S(f's_lshr_b32 s{sQb}, s2, 3\ns_and_b32 s{sQb}, s{sQb}, 7')
    S('s_waitcnt lgkmcnt(0)')
    srd(S, sWS, 6, WS_SIZE); srd(S, sDbg, 4, 256)
    srd(S, sX, 52, 2048 * 512 * 2); srd(S, sWO, 56, 512 * 512 * 2)
    srd(S, sWD, 60, 1792 * 512 * 2); srd(S, sOut, 62, 2048 * 512 * 2)
    if stamps: S(f's_memtime s[{sSt}:{sSt+1}]\ns_memrealtime s[{sSt+10}:{sSt+11}]')
    if fused and 'F' not in xp:
        S(f'v_lshlrev_b32 v{t0}, 2, v{vLane}')
        poll(S, sDbg, t0, t1, sPoll, '0x01010101', 64)
        S(f's_lshr_b32 s{sT}, s{sHead}, 2\ns_lshl_b32 s{sT}, s{sT}, 6')
        S(f's_lshr_b32 s{sT2}, s{sHead}, 4\ns_lshl_b32 s{sT2}, s{sT2}, 6\ns_add_u32 s{sT2}, s{sT2}, {14*64}')
        S(f'v_and_b32 v{t0}, 15, v{vLane}\nv_lshlrev_b32 v{t0}, 2, v{t0}')
        S(f'v_bfe_u32 v{t1}, v{vLane}, 4, 1\nv_lshlrev_b32 v{t1}, 9, v{t1}')
        S(f'v_add_u32 v{t1}, s{sT}, v{t1}')
        S(f'v_mov_b32 v{t2}, s{sT2}')
        S(f'v_cmp_gt_u32 vcc, 32, v{vLane}')
        S(f'v_cndmask_b32 v{t1}, v{t2}, v{t1}, vcc')
        S(f'v_add_u32 v{t0}, v{t0}, v{t1}')
        S(f's_mov_b32 s{sT3}, {FQ_OFF}')
        poll(S, sWS, t0, t1, sPoll, 1, 48, soff=sT3)
    if dbg: dbg_stamp(S, 80, 0, 0, 0, 0)
    S(f's_lshl_b32 s{sKoff}, s{sHead}, 16\ns_lshl_b32 s{sT3}, s{sW}, 10\ns_add_u32 s{sKoff}, s{sKoff}, s{sT3}')
    SC = ' sc1' if fused else ''
    def dma(i, tag):
        S(f's_add_u32 m0, s{sT3}, {i*8192}')
        S(f's_add_u32 s{sT2}, s{sKoff}, {K_OFF + i*8192}')
        S(f'buffer_load_dwordx4 v{vOff}, s[{sWS}:{sWS+3}], s{sT2} offen{SC} lds', tag=tag)
        S(f's_add_u32 m0, s{sT3}, {65536 + i*8192}')
        S(f's_add_u32 s{sT2}, s{sKoff}, {V_OFF + i*8192}')
        S(f'buffer_load_dwordx4 v{vOff}, s[{sWS}:{sWS+3}], s{sT2} offen{SC} lds', tag=tag)
    dma(0, 'kv0')
    S(f's_cmp_ge_u32 s{sW}, 4\ns_cbranch_scc1 {L}_G')
    import copy
    pre = Processor().run(S)
    SA = Stream(); S_ = SA
    v.release(base_mark)
    vKa = v.alloc(); vVa = v.alloc(); vM = v.alloc()
    Q = [v.alloc(4, 4) for _ in range(2)]; Kf = [v.alloc(4, 4) for _ in range(2)]
    Vf = [[v.alloc(4, 4) for _ in range(2)] for _ in range(2)]
    P = [v.alloc(8, 4) for _ in range(2)]; Sx = [v.alloc(16, 4) for _ in range(2)]
    O = [v.alloc(16, 4) for _ in range(2)]; Cm = [v.alloc(16, 4) for _ in range(2)]
    hiA = v.hi
    def dmaS(St, i, tag):
        St(f's_add_u32 m0, s{sT3}, {i*8192}')
        St(f's_add_u32 s{sT2}, s{sKoff}, {K_OFF + i*8192}')
        St(f'buffer_load_dwordx4 v{vOff}, s[{sWS}:{sWS+3}], s{sT2} offen{SC} lds', tag=tag)
        St(f's_add_u32 m0, s{sT3}, {65536 + i*8192}')
        St(f's_add_u32 s{sT2}, s{sKoff}, {V_OFF + i*8192}')
        St(f'buffer_load_dwordx4 v{vOff}, s[{sWS}:{sWS+3}], s{sT2} offen{SC} lds', tag=tag)
    A_ = SA
    A_(f's_lshl_b32 s{sT}, s{sHead}, 16\ns_lshl_b32 s{sT2}, s{sQb}, 13\ns_add_u32 s{sT}, s{sT}, s{sT2}\ns_lshl_b32 s{sT2}, s{sW}, 11\ns_add_u32 s{sT}, s{sT}, s{sT2}')
    if Q_OFF: A_(f's_add_u32 s{sT}, s{sT}, {Q_OFF}')
    for a in range(2):
        A_(f'buffer_load_dwordx4 {vr(Q[a],4)}, v{vOff}, s[{sWS}:{sWS+3}], s{sT} offen offset:{a*1024}{SC}', tag='q')
    for i in range(1, 8): dmaS(A_, i, 'kvrest')
    A_(f'v_mov_b32 v{vKa}, v{vOff}')
    A_(f'v_lshrrev_b32 v{t0}, 5, v{vLane}\nv_lshlrev_b32 v{t0}, 8, v{t0}\nv_and_b32 v{t1}, 15, v{vLane}\nv_lshlrev_b32 v{t1}, 4, v{t1}')
    A_(f'v_add_u32 v{vVa}, v{t0}, v{t1}\nv_add_u32 v{vVa}, 0x10000, v{vVa}')
    A_(f's_mov_b32 s{sMask}, 0x0000ffff\ns_mov_b32 s{sMask+1}, 0x0000ffff')
    A_(f'v_and_b32 v{t0}, 27, v{vLane}\nv_cmp_eq_u32 vcc, 16, v{t0}\nv_mov_b32 v{t1}, 0x3f803f80\nv_cndmask_b32 v{t1}, 0, v{t1}, vcc')
    for a in Vf:
        for b in a:
            for i in range(4): A_(f'v_mov_b32 v{b+i}, v{t1}')
    if aprio: A_(f's_setprio {aprio}')
    A_.wait_vm('kv0'); A_('s_barrier')
    if stamps: A_(f's_memtime s[{sSt+2}:{sSt+3}]')
    if dbg: dbg_stamp(A_, 80, 1, 0, 0, 0)
    M32 = 'v_mfma_f32_32x32x16_bf16'
    A_(f'ds_read_b128 {vr(Kf[0],4)}, v{vKa}\nds_read_b128 {vr(Kf[1],4)}, v{vKa} offset:1024')
    DELTA = 64.0
    for a in range(2):
        A_(f'{M32} {vr(Sx[0],16)}, {vr(Kf[0],4)}, {vr(Q[a],4)}, 0')
        A_(f'{M32} {vr(Sx[1],16)}, {vr(Kf[1],4)}, {vr(Q[a],4)}, 0')
        A_(f'v_max3_f32 v{vM}, v{Sx[0]}, v{Sx[0]+1}, v{Sx[0]+2}')
        for i in range(3, 15, 2): A_(f'v_max3_f32 v{vM}, v{vM}, v{Sx[0]+i}, v{Sx[0]+i+1}')
        A_(f'v_max3_f32 v{vM}, v{vM}, v{Sx[0]+15}, v{Sx[1]}')
        for i in range(1, 15, 2): A_(f'v_max3_f32 v{vM}, v{vM}, v{Sx[1]+i}, v{Sx[1]+i+1}')
        A_(f'v_max_f32 v{vM}, v{vM}, v{Sx[1]+15}')
        A_(f'v_mov_b32 v{t0}, v{vM}\nv_permlane32_swap_b32 v{vM}, v{t0}\nv_max_f32 v{vM}, v{vM}, v{t0}')
        A_(f'v_add_f32 v{vM}, {fhex(DELTA)}, v{vM}')
        for i in range(16): A_(f'v_sub_f32 v{Cm[a]+i}, 0, v{vM}')
    def rdK(off, buf): A_(f'ds_read_b128 {vr(Kf[buf],4)}, v{vKa} offset:{off*1024}')
    def rdV(off, buf):
        A_(f's_mov_b64 exec, s[{sMask}:{sMask+1}]')
        A_(f'ds_read_b128 {vr(Vf[buf][0],4)}, v{vVa} offset:{off*1024}')
        A_(f'ds_read_b128 {vr(Vf[buf][1],4)}, v{vVa} offset:{off*1024+512}')
        A_(f's_mov_b64 exec, -1')
    def qk(a, kb): A_(f'{M32} {vr(Sx[a],16)}, {vr(Kf[kb],4)}, {vr(Q[a],4)}, {vr(Cm[a],16)}')
    def pv(a, u, vb): A_(f'{M32} {vr(O[a],16)}, {vr(Vf[vb][u],4)}, {vr(P[a]+4*u,4)}, {vr(O[a],16)}')
    rdV(0, 0)
    for a in range(2):
        for i in range(16): A_(f'v_mov_b32 v{O[a]+i}, 0')
    qk(0, 0)
    UN = 8
    def tile(t, off, first=False, last=False):
        b = t & 1; nb = b ^ 1
        e = lambda a, i: A_(f'v_exp_f32 v{Sx[a]+i}, v{Sx[a]+i}')
        c = lambda a, i: A_(f'v_cvt_pk_bf16_f32 v{P[a]+i}, v{Sx[a]+2*i}, v{Sx[a]+2*i+1}')
        def phase(a, m_pre, m_mid):
            e(a,0); e(a,1); e(a,2); c(a,0); e(a,3); e(a,4); c(a,1); e(a,5)
            m_pre()
            e(a,6); c(a,2); e(a,7); e(a,8); c(a,3); e(a,9); e(a,10)
            m_mid()
            c(a,4); e(a,11); e(a,12); c(a,5); e(a,13); e(a,14); e(a,15); c(a,6); c(a,7)
        qk(1, b)
        rdK(off + 1, nb)
        def pre_a():
            if not first: pv(1, 1, nb)
            rdV(off + 1, nb)
        phase(0, pre_a, lambda: pv(0, 0, b))
        A_('s_waitcnt lgkmcnt(0)')
        qk(0, nb)
        if last:
            A_(f'v_add_u32 v{vKa}, {UN*1024}, v{vKa}\nv_add_u32 v{vVa}, {UN*1024}, v{vVa}\ns_sub_u32 s{sCnt}, s{sCnt}, 1')
        phase(1, lambda: pv(0, 1, b), lambda: pv(1, 0, b))
    def block(first):
        for t in range(UN):
            if first and t == UN - 1:
                A_.wait_vm('kvrest'); A_('s_barrier')
            tile(t, t, first=(first and t == 0), last=(t == UN - 1))
    A_(f's_mov_b32 s{sCnt}, {64 // UN}')
    block(True)
    A_.label(f'{L}_aloop')
    block(False)
    A_(f's_cmp_lg_u32 s{sCnt}, 0\ns_cbranch_scc1 {L}_aloop')
    pv(1, 1, 1)
    A_('s_waitcnt lgkmcnt(0)')
    if stamps: A_(f's_memtime s[{sSt+4}:{sSt+5}]')
    if dbg: dbg_stamp(A_, 80, 2, 0, 0, 0)
    A_('s_nop 7\ns_nop 3')
    A_(f'v_mov_b32 v{t1}, 0x7f800000\nv_mov_b32 v{t2}, {fhex(2.0**110)}')
    A_(f's_mov_b64 s[4:5], -1')
    for a in range(2):
        A_(f'v_add_f32 v{t0}, |v{O[a]}|, |v{O[a]+1}|')
        for i in range(2, 8): A_(f'v_add_f32 v{t0}, v{t0}, |v{O[a]+i}|')
        A_(f'v_cmp_lt_f32 vcc, v{t0}, v{t1}')
        A_(f's_and_b64 s[4:5], s[4:5], vcc')
        A_(f'v_cmp_lt_f32 vcc, v{O[a]+8}, v{t2}')
        A_(f's_and_b64 s[4:5], s[4:5], vcc')
    A_(f's_cmp_eq_u64 s[4:5], -1\ns_cbranch_scc1 {L}_afin')
    for a in range(2):
        A_(f'v_mov_b32 v{vKa}, v{vOff}')
        A_(f'v_lshrrev_b32 v{t0}, 5, v{vLane}\nv_lshlrev_b32 v{t0}, 8, v{t0}\nv_and_b32 v{t1}, 15, v{vLane}\nv_lshlrev_b32 v{t1}, 4, v{t1}')
        A_(f'v_add_u32 v{vVa}, v{t0}, v{t1}\nv_add_u32 v{vVa}, 0x10000, v{vVa}')
        A_(f'v_mov_b32 v{vM}, 0xff800000')
        for i in range(16): A_(f'v_mov_b32 v{O[a]+i}, 0')
        A_(f's_mov_b32 s{sCnt}, 64')
        A_.label(f'{L}_slow{a}')
        rdK(0, 0); rdV(0, 0)
        A_('s_waitcnt lgkmcnt(0)')
        X = Sx[0]
        A_(f'{M32} {vr(X,16)}, {vr(Kf[0],4)}, {vr(Q[a],4)}, 0')
        A_(f'v_max3_f32 v{t0}, v{X}, v{X+1}, v{X+2}')
        for i in range(3, 15, 2): A_(f'v_max3_f32 v{t0}, v{t0}, v{X+i}, v{X+i+1}')
        A_(f'v_max3_f32 v{t0}, v{t0}, v{X+15}, v{vM}')
        A_(f'v_mov_b32 v{t1}, v{t0}\nv_permlane32_swap_b32 v{t0}, v{t1}\nv_max_f32 v{t0}, v{t0}, v{t1}')
        A_(f'v_sub_f32 v{t1}, v{vM}, v{t0}\nv_exp_f32 v{t1}, v{t1}\nv_mov_b32 v{vM}, v{t0}')
        for i in range(16): A_(f'v_mul_f32 v{O[a]+i}, v{O[a]+i}, v{t1}')
        for i in range(16): A_(f'v_sub_f32 v{X+i}, v{X+i}, v{vM}')
        for i in range(16): A_(f'v_exp_f32 v{X+i}, v{X+i}')
        for i in range(8): A_(f'v_cvt_pk_bf16_f32 v{P[a]+i}, v{X+2*i}, v{X+2*i+1}')
        pv(a, 0, 0); pv(a, 1, 0)
        A_(f'v_add_u32 v{vKa}, 1024, v{vKa}\nv_add_u32 v{vVa}, 1024, v{vVa}')
        A_(f's_sub_u32 s{sCnt}, s{sCnt}, 1\ns_cmp_lg_u32 s{sCnt}, 0\ns_nop 7\ns_nop 7')
        A_(f's_cbranch_scc1 {L}_slow{a}')
    A_.label(f'{L}_afin')
    A_('s_nop 7\ns_nop 3')
    A_(f's_lshl_b32 s{sT}, s{sQb}, 2\ns_add_u32 s{sTb}, s{sT}, s{sW}')
    A_(f's_mul_i32 s{sT}, s{sTb}, {4*72*1024}')
    A_(f's_lshr_b32 s{sT2}, s{sHead}, 1\ns_lshl_b32 s{sT2}, s{sT2}, 10\ns_add_u32 s{sT}, s{sT}, s{sT2}')
    A_(f's_and_b32 s{sT2}, s{sHead}, 1\ns_lshl_b32 s{sT2}, s{sT2}, 9\ns_add_u32 s{sT}, s{sT}, s{sT2}\ns_add_u32 s{sT}, s{sT}, {ACT_OFF + 56*1024}')
    A_(f'v_bfe_u32 v{t0}, v{vLane}, 4, 1\nv_mul_u32_u24 v{t0}, {72*1024}, v{t0}\nv_lshrrev_b32 v{t1}, 5, v{vLane}\nv_lshl_add_u32 v{t0}, v{t1}, 8, v{t0}')
    A_(f'v_and_b32 v{t1}, 15, v{vLane}\nv_lshl_add_u32 v{t0}, v{t1}, 4, v{t0}')
    for a in range(2):
        A_(f'v_rcp_f32 v{t2}, v{O[a]+8}')
        A_('s_nop 0')
        for i in range(8): A_(f'v_mul_f32 v{O[a]+i}, v{O[a]+i}, v{t2}')
        for i in range(4): A_(f'v_cvt_pk_bf16_f32 v{P[a]+i}, v{O[a]+2*i}, v{O[a]+2*i+1}')
        A_(f'buffer_store_dwordx4 {vr(P[a],4)}, v{t0}, s[{sWS}:{sWS+3}], s{sT} offen sc1')
        if a == 0: A_(f's_add_u32 s{sT}, s{sT}, {2*72*1024}')
    A_(f's_lshl_b32 s{sT}, s{sTb}, 7\ns_lshl_b32 s{sT2}, s{sHead}, 2\ns_add_u32 s{sT}, s{sT}, s{sT2}\ns_add_u32 s{sT}, s{sT}, {FO_OFF}')
    A_(f'v_mov_b32 v{t0}, 0\nv_mov_b32 v{t1}, 1')
    A_('s_waitcnt vmcnt(0)')
    A_('s_mov_b64 exec, 1')
    A_(f'buffer_store_dword v{t1}, v{t0}, s[{sWS}:{sWS+3}], s{sT} offen sc1')
    A_('s_mov_b64 exec, -1')
    if stamps:
        A_('s_waitcnt vmcnt(0)')
        A_(f's_memtime s[{sSt+6}:{sSt+7}]\ns_memrealtime s[{sSt+8}:{sSt+9}]\ns_waitcnt lgkmcnt(0)')
        A_(f's_sub_u32 s{sSt+2}, s{sSt+2}, s{sSt}\ns_sub_u32 s{sSt+4}, s{sSt+4}, s{sSt}\ns_sub_u32 s{sSt+6}, s{sSt+6}, s{sSt}\ns_sub_u32 s{sSt+8}, s{sSt+8}, s{sSt+10}')
        X = Sx[0]
        A_(f'v_mov_b32 v{X}, s{sSt+2}\nv_mov_b32 v{X+1}, s{sSt+4}\nv_mov_b32 v{X+2}, s{sSt+6}\nv_mov_b32 v{X+3}, s{sSt+8}')
        A_(f's_lshl_b32 s{sT}, s2, 3\ns_add_u32 s{sT}, s{sT}, s{sW}\ns_lshl_b32 s{sT}, s{sT}, 4\ns_add_u32 s{sT}, s{sT}, {STAMP_OFF}')
        A_(f'v_mov_b32 v{t0}, 0\nbuffer_store_dwordx4 {vr(X,4)}, v{t0}, s[{sWS}:{sWS+3}], s{sT} offen')
    if dbg: dbg_final(A_, 80, Sx[0], sT, 1, sWS)
    A_('s_endpgm')
    pA = copy.deepcopy(pre); n0 = len(pA.out); pA.run(SA); textA = '\n'.join(pA.out[n0:])

    SG = Stream(); G_ = SG
    v.release(base_mark)
    vN = v.alloc(); vG = v.alloc(); vDw = v.alloc(); vXo = v.alloc()
    vAh = [v.alloc() for _ in range(4)]; vAo = [v.alloc() for _ in range(4)]
    vXr = [v.alloc(2, 2) for _ in range(4)]
    Af = [[v.alloc(4, 4) for _ in range(4)] for _ in range(4)]
    Bf = [[v.alloc(4, 4) for _ in range(4)] for _ in range(4)]
    acc = [[v.alloc(4, 4) for _ in range(4)] for _ in range(4)]
    hiG = v.hi
    G_.label(f'{L}_G')
    for i in range(1, 8): dmaS(G_, i, 'kvrest')
    G_(f's_sub_u32 s{sG}, s{sW}, 4')
    G_(f'v_and_b32 v{vN}, 15, v0\nv_bfe_u32 v{vG}, v0, 4, 2')
    G_(f's_and_b32 s{sT}, s2, 7\ns_lshl_b32 s{sT}, s{sT}, 2\ns_lshr_b32 s{sT2}, s2, 3\ns_and_b32 s{sT2}, s{sT2}, 3\ns_add_u32 s{sTb}, s{sT}, s{sT2}')
    G_(f's_lshr_b32 s{sFb}, s2, 5')
    G_(f'v_lshrrev_b32 v{t0}, 3, v{vLane}\nv_lshlrev_b32 v{t0}, 10, v{t0}\nv_and_b32 v{t1}, 7, v{vLane}\nv_lshlrev_b32 v{t2}, 1, v{vG}')
    G_(f'v_xor_b32 v{t1}, v{t1}, v{t2}\nv_lshl_add_u32 v{vDw}, v{t1}, 4, v{t0}')
    G_(f's_lshl_b32 s{sLds}, s{sG}, 13\ns_add_u32 s{sLds}, s{sLds}, {GRING}')
    NH, NO = 14, 4
    G_(f's_mul_i32 s{sWo}, s{sG}, {32*NH*1024}\ns_lshl_b32 s{sT}, s{sFb}, 7\ns_add_u32 s{sWo}, s{sWo}, s{sT}')
    G_(f's_mul_i32 s{sAo}, s{sTb}, {4*72*1024}\ns_mul_i32 s{sT}, s{sG}, {NH*1024}\ns_add_u32 s{sAo}, s{sAo}, s{sT}\ns_add_u32 s{sAo}, s{sAo}, {ACT_OFF}')
    G_(f's_mul_i32 s{sWo2}, s{sG}, {32*NO*1024}\ns_lshl_b32 s{sT}, s{sFb}, 7\ns_add_u32 s{sWo2}, s{sWo2}, s{sT}')
    G_(f's_mul_i32 s{sAo2}, s{sTb}, {4*72*1024}\ns_mul_i32 s{sT}, s{sG}, {NO*1024}\ns_add_u32 s{sAo2}, s{sAo2}, s{sT}\ns_add_u32 s{sAo2}, s{sAo2}, {ACT_OFF + 56*1024}')
    vR, vCq = t2, t3
    G_(f'v_lshrrev_b32 v{vR}, 2, v{vN}\nv_and_b32 v{vCq}, 3, v{vN}')
    G_(f'v_and_b32 v{t0}, 1, v{vG}\nv_lshlrev_b32 v{t0}, 1, v{t0}\nv_lshrrev_b32 v{t1}, 1, v{vR}\nv_add_u32 v{t0}, v{t0}, v{t1}')
    G_(f'v_lshlrev_b32 v{t0}, 1, v{t0}\nv_lshrrev_b32 v{t1}, 1, v{vCq}\nv_xor_b32 v{t0}, v{t0}, v{t1}\nv_lshlrev_b32 v{t0}, 4, v{t0}')
    G_(f'v_and_b32 v{t1}, 1, v{vCq}\nv_lshl_add_u32 v{t0}, v{t1}, 3, v{t0}')
    G_(f'v_lshl_add_u32 v{t1}, v{vG}, 2, v{vR}\nv_lshl_add_u32 v{vAh[0]}, v{t1}, 7, v{t0}')
    G_(f'v_lshrrev_b32 v{t1}, 1, v{vG}\nv_lshlrev_b32 v{t1}, 4, v{t1}\nv_add_u32 v{t1}, v{t1}, v{vR}')
    G_(f'v_and_b32 v{vCq}, 1, v{vG}\nv_lshl_add_u32 v{t1}, v{vCq}, 2, v{t1}\nv_lshl_add_u32 v{vAo[0]}, v{t1}, 7, v{t0}')
    for tau in range(1, 4):
        G_(f'v_xor_b32 v{vAh[tau]}, {32*tau}, v{vAh[0]}\nv_xor_b32 v{vAo[tau]}, {32*tau}, v{vAo[0]}')
    for tau in range(4):
        G_(f'v_add_u32 v{vAh[tau]}, s{sLds}, v{vAh[tau]}\nv_add_u32 v{vAo[tau]}, s{sLds}, v{vAo[tau]}')
    def wdma(s):
        if s >= NH + NO: return
        h = s < NH; slot = (s % 2) * 4096
        srdw = sWD if h else sWO; wo, i0 = (sWo, s) if h else (sWo2, s - NH)
        for i in range(4):
            G_(f's_add_u32 m0, s{sLds}, {slot + i*1024}')
            G_(f's_add_u32 s{sT}, s{wo}, {(32*i0 + 8*i)*1024}')
            G_(f'buffer_load_dwordx4 v{vDw}, s[{srdw}:{srdw+3}], s{sT} offen lds', tag=('w', s))
    def bload(s, dst):
        h = s < NH; ao, i0 = (sAo, s) if h else (sAo2, s - NH)
        for tt in range(4):
            G_(f's_add_u32 s{sT}, s{ao}, {(tt*72 + i0)*1024}')
            G_(f'buffer_load_dwordx4 {vr(dst[tt],4)}, v{vOff}, s[{sWS}:{sWS+3}], s{sT} offen{SC}', tag=('b', s))
    def areads(s, dst):
        h = s < NH; slot = (s % 2) * 4096
        for tau in range(4):
            for rd in range(2):
                a = vAh[tau] if h else vAo[tau]
                G_(f'ds_read_b64_tr_b16 {vr(dst[tau]+2*rd,2)}, v{a} offset:{slot + rd*(2048 if h else 1024)}')
    wdma(0); wdma(1)
    G_.wait_vm('kv0'); G_('s_barrier')
    G_.wait_vm('kvrest'); G_('s_barrier')
    if fused and 'F' not in xp:
        G_(f'v_lshlrev_b32 v{t0}, 2, v{vLane}')
        G_(f's_lshr_b32 s{sT}, s{sTb}, 1\ns_lshl_b32 s{sT}, s{sT}, 6\ns_add_u32 s{sT}, s{sT}, {FH_OFF}')
        poll(G_, sWS, t0, t1, sPoll, 1, 14, soff=sT)
    bload(0, Bf[0]); bload(1, Bf[1])
    def mfmas(s, A, B):
        for tt in range(4):
            for tau in range(4):
                c = '0' if s == 0 else vr(acc[tau][tt], 4)
                G_(f'v_mfma_f32_16x16x32_bf16 {vr(acc[tau][tt],4)}, {vr(A[tau],4)}, {vr(B[tt],4)}, {c}')
    for s in range(NH):
        G_.wait_vm(('w', s))
        areads(s, Af[s & 1])
        G_('s_waitcnt lgkmcnt(0)')
        wdma(s + 2)
        if s + 2 < NH: bload(s + 2, Bf[(s + 2) % 3])
        mfmas(s, Af[s & 1], Bf[s % 3])
    for i in range(NO):
        s = NH + i
        G_.wait_vm(('w', s))
        areads(s, Af[i])
        G_('s_waitcnt lgkmcnt(0)')
        wdma(s + 2)
    G_(f's_lshl_b32 s{sT}, s{sTb}, 6\ns_lshl_b32 s{sT2}, s{sG}, 4\ns_add_u32 s{sT}, s{sT}, s{sT2}')
    G_(f'v_add_u32 v{t0}, s{sT}, v{vN}\nv_lshlrev_b32 v{t0}, 10, v{t0}\ns_lshl_b32 s{sT}, s{sFb}, 7\nv_add_u32 v{t0}, s{sT}, v{t0}')
    G_(f'v_lshl_add_u32 v{vXo}, v{vG}, 3, v{t0}')
    for tau in range(4):
        G_(f'buffer_load_dwordx2 {vr(vXr[tau],2)}, v{vXo}, s[{sX}:{sX+3}], 0 offen offset:{32*tau}', tag='x')
    G_(f'v_and_b32 v{t1}, 1, v{vG}\nv_lshl_add_u32 v{t0}, v{t1}, 5, v{t0}\nv_lshrrev_b32 v{t1}, 1, v{vG}\nv_lshl_add_u32 v{vXo}, v{t1}, 4, v{t0}')
    if stamps: G_(f's_memtime s[{sSt+2}:{sSt+3}]')
    if dbg: dbg_stamp(G_, 80, 1, 0, 0, 0)
    if 'O' not in xp:
        G_(f'v_lshlrev_b32 v{t0}, 2, v{vLane}')
        G_(f's_lshl_b32 s{sT}, s{sTb}, 7\ns_add_u32 s{sT}, s{sT}, {FO_OFF}')
        poll(G_, sWS, t0, t1, sPoll, 1, 32, soff=sT)
    if stamps: G_(f's_memtime s[{sSt+4}:{sSt+5}]')
    if dbg: dbg_stamp(G_, 80, 2, 0, 0, 0)
    SCo = ' sc1'
    for i in range(NO):
        s = NH + i
        for tt in range(4):
            G_(f's_add_u32 s{sT}, s{sAo2}, {(tt*72 + i)*1024}')
            G_(f'buffer_load_dwordx4 {vr(Bf[i][tt],4)}, v{vOff}, s[{sWS}:{sWS+3}], s{sT} offen{SCo}', tag=('b', s))
    for i in range(NO): mfmas(NH + i, Af[i], Bf[i])
    G_('s_barrier')
    G_(f's_lshl_b32 s{sT}, s{sG}, 14\nv_add_u32 v{t0}, s{sT}, v{vOff}\ns_nop 4')
    for tt in range(4):
        for tau in range(4):
            G_(f'ds_write_b128 v{t0}, {vr(acc[tau][tt],4)} offset:{(tau*4 + tt)*1024}')
    G_('s_waitcnt lgkmcnt(0)\ns_barrier')
    G_(f's_lshl_b32 s{sT}, s{sG}, 10\nv_add_u32 v{t0}, s{sT}, v{vOff}')
    red = [[Bf[g][tau] for tau in range(4)] for g in range(4)]
    for tau in range(4):
        for g in range(4):
            G_(f'ds_read_b128 {vr(red[g][tau],4)}, v{t0} offset:{g*16384 + tau*4096}')
    Pk = Af[0][0]
    for tau in range(4):
        d = red[0][tau]
        for r in range(4): G_(f'v_add_f32 v{d+r}, v{d+r}, v{red[1][tau]+r}')
        for r in range(4): G_(f'v_add_f32 v{red[2][tau]+r}, v{red[2][tau]+r}, v{red[3][tau]+r}')
        G_(f'v_lshlrev_b32 v{t1}, 16, v{vXr[tau]}\nv_and_b32 v{t2}, 0xffff0000, v{vXr[tau]}\nv_add_f32 v{d}, v{d}, v{t1}\nv_add_f32 v{d+1}, v{d+1}, v{t2}')
        G_(f'v_lshlrev_b32 v{t1}, 16, v{vXr[tau]+1}\nv_and_b32 v{t2}, 0xffff0000, v{vXr[tau]+1}\nv_add_f32 v{d+2}, v{d+2}, v{t1}\nv_add_f32 v{d+3}, v{d+3}, v{t2}')
        for r in range(4): G_(f'v_add_f32 v{d+r}, v{d+r}, v{red[2][tau]+r}')
        G_(f'v_cvt_pk_bf16_f32 v{Pk+2*tau}, v{d}, v{d+1}\nv_cvt_pk_bf16_f32 v{Pk+2*tau+1}, v{d+2}, v{d+3}')
    for p in range(2):
        x, y = Pk + 4*p, Pk + 4*p + 2
        G_(f'v_permlane16_swap_b32 v{x}, v{y}\nv_permlane16_swap_b32 v{x+1}, v{y+1}')
        G_(f'buffer_store_dwordx4 {vr(x,4)}, v{vXo}, s[{sOut}:{sOut+3}], 0 offen offset:{64*p}')
    if stamps:
        G_('s_waitcnt vmcnt(0)')
        G_(f's_memtime s[{sSt+6}:{sSt+7}]\ns_memrealtime s[{sSt+8}:{sSt+9}]\ns_waitcnt lgkmcnt(0)')
        G_(f's_sub_u32 s{sSt+2}, s{sSt+2}, s{sSt}\ns_sub_u32 s{sSt+4}, s{sSt+4}, s{sSt}\ns_sub_u32 s{sSt+6}, s{sSt+6}, s{sSt}\ns_sub_u32 s{sSt+8}, s{sSt+8}, s{sSt+10}')
        X = acc[0][0]
        G_(f'v_mov_b32 v{X}, s{sSt+2}\nv_mov_b32 v{X+1}, s{sSt+4}\nv_mov_b32 v{X+2}, s{sSt+6}\nv_mov_b32 v{X+3}, s{sSt+8}')
        G_(f's_lshl_b32 s{sT}, s2, 3\ns_add_u32 s{sT}, s{sT}, s{sW}\ns_lshl_b32 s{sT}, s{sT}, 4\ns_add_u32 s{sT}, s{sT}, {STAMP_OFF}')
        G_(f'v_mov_b32 v{t0}, 0\nbuffer_store_dwordx4 {vr(X,4)}, v{t0}, s[{sWS}:{sWS+3}], s{sT} offen')
    if dbg: dbg_final(G_, 80, acc[0][0], sT, 1, sWS)
    G_('s_endpgm')
    pG = copy.deepcopy(pre); n0 = len(pG.out); pG.run(SG); textG = '\n'.join(pG.out[n0:])
    return pre.text() + '\n' + textA + '\n' + textG, max(hiA, hiG), (pA, pG)

def gen_p2_standalone(name='p2_kernel', **kw):
    S = Stream()
    S(f's_cmp_ge_u32 s2, 256\ns_cbranch_scc1 {name}_end')
    t, hi, ps = gen_p2(S, name, fused=False, **kw)
    return kernel_text(name, t + f'\n{name}_end:\ns_endpgm\n', hi), hi, ps
if __name__ == '__main__':
    import sys
    t, hi, ps = gen_p2_standalone()
    print(t)
    from collections import Counter
    for p in ps: print('vgprs', hi, 'nops', p.nops_inserted, Counter(w.split(' (')[0] for w, n, _ in p.nop_log), file=sys.stderr)
```

```python
import sys, os
sys.path.insert(0, 'gen')
from common import *
from k_fused import gen_fused, LDS2
NAME = 'parallel_sum__mha_block__geglu_ffn__prompt'
HEADER = open(f'cdna_kernels/{NAME}.s.ref').read().split('; Override launch geometry')[0]
def build(opts=None, path=None):
    opts = opts or {}
    k, hi = gen_fused(NAME + '_kernel', g1=opts.get('g1'), p2=opts.get('p2'))
    txt = HEADER
    txt += '; One persistent launch: 256 workgroups (one per CU); hand-offs between workgroups through flags in d_ws/d_debug.\n'
    txt += f'; @launch grid=(256,1,1) block=(512,1,1) lds={LDS2}\n'
    txt += '.amdgcn_target "amdgcn-amd-amdhsa--gfx950"\n' + k
    if path: open(path, 'w').write(txt)
    return txt
if __name__ == '__main__':
    build(path=f'cdna_kernels/{NAME}.s')
```

```python
from common import *
STAMP2 = 28 << 20
def dbg_setup(S, sD, sTmp):
    pass
def dbg_stamp(S, sD, idx, vA, vB, sT, invert=False, kidx=None, srd_ws=None, sW=None):
    S(f's_memrealtime s[{sD+2*idx}:{sD+2*idx+1}]')
def dbg_final(S, sD, vA, sT, kidx, srd_ws):
    S('s_waitcnt vmcnt(0)')
    S(f's_memrealtime s[{sD+6}:{sD+7}]')
    S('s_waitcnt lgkmcnt(0)')
    for i in range(4): S(f'v_mov_b32 v{vA+i}, s{sD+2*i}')
    S(f'v_lshrrev_b32 v{vA+4}, 6, v0')
    S(f'v_lshlrev_b32 v{vA+4}, 4, v{vA+4}')
    S(f's_lshl_b32 s{sT}, s2, 8')
    S(f's_add_u32 s{sT}, s{sT}, {STAMP2 + kidx*65536}')
    S(f'buffer_store_dwordx4 {vr(vA,4)}, v{vA+4}, s[{srd_ws}:{srd_ws+3}], s{sT} offen')
    S('s_waitcnt vmcnt(0)')
def collect_kernel(n, waves):
    S = Stream()
    S(f's_cmp_ge_u32 s2, 1\ns_cbranch_scc1 collect_kernel_end')
    S(f's_load_dwordx2 s[4:5], s[0:1], {KA_WS}')
    S(f's_load_dwordx2 s[6:7], s[0:1], {KA_DBG}')
    S('s_waitcnt lgkmcnt(0)')
    srd(S, 8, 4, WS_SIZE); srd(S, 12, 6, 256)
    S('v_lshlrev_b32 v1, 8, v0')
    S('v_mov_b32 v30, 0')
    res = []
    for k in range(n):
        S('v_mov_b32 v10, -1\nv_mov_b32 v11, 0\nv_mov_b32 v12, 0\nv_mov_b32 v13, 0\nv_mov_b32 v14, 0')
        for w in range(waves[k]):
            S(f's_mov_b32 s20, {STAMP2 + k*65536 + w*16}')
            S('buffer_load_dwordx4 v[4:7], v1, s[8:11], s20 offen sc1')
            S('s_waitcnt vmcnt(0)')
            S('v_min_u32 v10, v10, v4\nv_max_u32 v11, v11, v4\nv_max_u32 v12, v12, v5\nv_max_u32 v13, v13, v6\nv_max_u32 v14, v14, v7')
        S(f'v_mov_b32 v20, {k*32}')
        if k == 0:
            pass
        for i, op in enumerate(('ds_min_u32', 'ds_max_u32', 'ds_max_u32', 'ds_max_u32', 'ds_max_u32')):
            S(f'{op} v20, v{10+i} offset:{4*i}')
    return S
def collect_kernel(entries):
    n = len(entries)
    S = Stream()
    S(f's_cmp_ge_u32 s2, 1\ns_cbranch_scc1 collect_kernel_end')
    S(f's_load_dwordx2 s[4:5], s[0:1], {KA_WS}')
    S(f's_load_dwordx2 s[6:7], s[0:1], {KA_DBG}')
    S('s_waitcnt lgkmcnt(0)')
    srd(S, 8, 4, WS_SIZE); srd(S, 12, 6, 256)
    S('v_lshlrev_b32 v2, 2, v0')
    S('v_mov_b32 v3, 0')
    S('ds_write_b32 v2, v3')
    S('s_waitcnt lgkmcnt(0)\ns_barrier')
    S('v_mov_b32 v3, -1\nv_mov_b32 v20, 0')
    for k in range(n): S(f'ds_write_b32 v20, v3 offset:{k*20}')
    S('s_waitcnt lgkmcnt(0)\ns_barrier')
    S('v_lshlrev_b32 v1, 8, v0')
    for e, (k, w0, w1) in enumerate(entries):
        S('v_mov_b32 v10, -1\nv_mov_b32 v11, 0\nv_mov_b32 v12, 0\nv_mov_b32 v13, 0\nv_mov_b32 v14, 0')
        for w in range(w0, w1):
            S(f's_mov_b32 s20, {STAMP2 + k*65536 + w*16}')
            S('buffer_load_dwordx4 v[4:7], v1, s[8:11], s20 offen sc1')
            S('s_waitcnt vmcnt(0)')
            S('v_min_u32 v10, v10, v4\nv_max_u32 v11, v11, v4\nv_max_u32 v12, v12, v5\nv_max_u32 v13, v13, v6\nv_max_u32 v14, v14, v7')
        for i, op in enumerate(('ds_min_u32', 'ds_max_u32', 'ds_max_u32', 'ds_max_u32', 'ds_max_u32')):
            S(f'{op} v20, v{10+i} offset:{e*20 + 4*i}')
    S('s_waitcnt lgkmcnt(0)\ns_barrier')
    S('ds_read_b32 v4, v2')
    S('ds_read_b32 v5, v20')
    S('s_waitcnt lgkmcnt(0)')
    S('v_sub_u32 v4, v4, v5')
    S(f'v_cmp_gt_u32 vcc, {5*n}, v0\ns_and_saveexec_b64 s[16:17], vcc')
    S('s_cbranch_execz collect_kernel_end')
    S('buffer_store_dword v4, v2, s[12:15], 0 offen')
    S('s_waitcnt vmcnt(0)')
    S.label('collect_kernel_end')
    S('s_endpgm')
    p = Processor().run(S)
    return kernel_text('collect_kernel', p.text(), 32)
```

```python
import sys
from build_final import *
from diag import collect_kernel
from k_fused import gen_fused
os.makedirs('var', exist_ok=True)
def diag(path, g1=None, p2=None):
    g1 = dict(g1 or {}, dbg=True); p2 = dict(p2 or {}, dbg=True)
    k, hi = gen_fused('fused_kernel', g1=g1, p2=p2)
    txt = HEADER + f'; @launch kernel=fused_kernel grid=(256,1,1) block=(512,1,1) lds={LDS2}\n; @launch kernel=collect_kernel grid=(1,1,1) block=(256,1,1) lds=1024\n'
    txt += '.amdgcn_target "amdgcn-amd-amdhsa--gfx950"\n' + k + '\n' + collect_kernel([(0, 0, 8), (1, 0, 4), (1, 4, 8)])
    open(path, 'w').write(txt)
if __name__ == '__main__':
    diag('v_dbg.s')
```

```python
import re

REG_RE = re.compile(r'^(-|\|)?(abs\()?([vas])(\d+|\[(\d+):(\d+)\])\)?\|?$')

def regs_of(tok):
    tok = tok.strip()
    if tok.startswith('-'): tok = tok[1:]
    if tok.startswith('abs(') and tok.endswith(')'): tok = tok[4:-1]
    if tok.startswith('|') and tok.endswith('|'): tok = tok[1:-1]
    if tok == 'vcc': return [('s', 'vcc')]
    if tok == 'exec': return [('s', 'exec')]
    if tok == 'm0': return [('s', 'm0')]
    m = re.match(r'^([vas])(\d+)$', tok)
    if m: return [(m.group(1), int(m.group(2)))]
    m = re.match(r'^([vas])\[(\d+):(\d+)\]$', tok)
    if m: return [(m.group(1), i) for i in range(int(m.group(2)), int(m.group(3)) + 1)]
    return []

TRANS = ('v_exp_f32', 'v_log_f32', 'v_rcp_f32', 'v_rsq_f32', 'v_sqrt_f32', 'v_sin_f32', 'v_cos_f32', 'v_exp_f16', 'v_rcp_iflag_f32')
NO_DST_S = ('s_cmp', 's_waitcnt', 's_barrier', 's_nop', 's_branch', 's_cbranch', 's_setprio', 's_sleep', 's_endpgm', 's_bitcmp')

class Ins:
    __slots__ = ('text', 'op', 'kind', 'w', 'r', 'tag', 'passes', 'srcC', 'wide_store', 'is_label')
    def __init__(self, text, tag=None):
        self.text = text; self.tag = tag; self.is_label = False
        t = text.split(';')[0].strip()
        self.w = []; self.r = []; self.kind = 'other'; self.passes = 0; self.srcC = []; self.wide_store = False
        if not t: self.op = ''; self.kind = 'none'; return
        if t.endswith(':'): self.op = ''; self.kind = 'label'; self.is_label = True; return
        if t.startswith('.'): self.op = ''; self.kind = 'directive'; return
        parts = t.split(None, 1)
        op = parts[0]; self.op = op
        rest = parts[1] if len(parts) > 1 else ''
        mo = re.search(r'\s(op_sel|op_sel_hi|neg_lo|neg_hi):', rest)
        if mo: rest = rest[:mo.start()]
        ops = []; cur = ''; depth = 0
        for ch in rest:
            if ch == '[': depth += 1
            if ch == ']': depth -= 1
            if ch == ',' and depth == 0: ops.append(cur.strip()); cur = ''
            else: cur += ch
        if cur.strip(): ops.append(cur.strip())
        mods = ''
        if ops:
            sp = ops[-1].split(None, 1)
            if len(sp) > 1: ops[-1] = sp[0]; mods = sp[1]
        R = lambda i: regs_of(ops[i]) if i < len(ops) else []
        allr = lambda a: [x for i in range(a, len(ops)) for x in regs_of(ops[i])]
        base = op.replace('_e32', '').replace('_e64', '').replace('_dpp', '').replace('_sdwa', '')
        if op.startswith('v_mfma'):
            self.kind = 'mfma'; self.w = R(0); self.r = allr(1); self.srcC = R(3)
            self.passes = 8 if '32x32' in op else 4
        elif op.startswith('ds_read') or op.startswith('ds_bpermute') or op.startswith('ds_swizzle'):
            self.kind = 'ds'; self.w = R(0); self.r = allr(1)
        elif op.startswith('ds_'):
            self.kind = 'ds'; self.r = allr(0)
        elif op.startswith('buffer_') or op.startswith('global_'):
            self.kind = 'vmem'
            toks = (mods or '').split()
            if op in ('buffer_inv', 'buffer_wbl2'):
                pass
            elif 'lds' in toks or '_lds_' in op:
                self.r = allr(0) + [('s', 'm0')]
            elif 'load' in op:
                self.w = R(0); self.r = allr(1)
            elif 'atomic' in op:
                self.r = allr(0)
                if 'sc0' in toks: self.w = R(0)
            else:
                self.r = allr(0)
                if 'x4' in op or 'x3' in op: self.wide_store = True
        elif op.startswith('s_load') or op.startswith('s_memtime') or op.startswith('s_memrealtime') or op.startswith('s_buffer_load'):
            self.kind = 'smem'; self.w = R(0); self.r = allr(1)
        elif op.startswith('s_'):
            self.kind = 'salu'
            if any(op.startswith(p) for p in NO_DST_S):
                self.r = allr(0)
                if op == 's_waitcnt': self.kind = 'waitcnt'
                if op == 's_nop': self.kind = 'nop'
                if op == 's_barrier': self.kind = 'barrier'
                if op.startswith('s_branch') or op.startswith('s_cbranch') or op == 's_endpgm': self.kind = 'branch'
            else:
                self.w = R(0); self.r = allr(1)
                if 'saveexec' in op: self.w = self.w + [('s', 'exec')]; self.r = self.r + [('s', 'exec')]
        elif op.startswith('v_'):
            self.kind = 'trans' if base in TRANS else 'valu'
            if base.startswith('v_cmp'):
                self.w = R(0); self.r = allr(1)
                if base.startswith('v_cmpx'): self.w = self.w + [('s', 'exec')]
            elif base in ('v_permlane32_swap_b32', 'v_permlane16_swap_b32', 'v_swap_b32'):
                self.w = R(0) + R(1); self.r = R(0) + R(1); self.kind = 'permlane'
            elif base in ('v_add_co_u32', 'v_sub_co_u32', 'v_addc_co_u32', 'v_subb_co_u32'):
                self.w = R(0) + R(1); self.r = allr(2)
            elif base.startswith('v_fmac') or base.startswith('v_dot2c') or base.startswith('v_pk_fmac') or base.startswith('v_writelane'):
                self.w = R(0); self.r = allr(0)
            else:
                self.w = R(0); self.r = allr(1)
            if '_dpp' in op or 'row_' in mods or 'quad_perm' in mods: self.kind = 'dpp'
        else:
            raise ValueError('unknown instr: ' + text)

VALU_KINDS = ('valu', 'trans', 'permlane', 'dpp')

def isv(r): return r[0] in 'va'

class Stream:
    def __init__(self):
        self.ins = []
    def __call__(self, text, tag=None):
        for line in text.split('\n'):
            line = line.strip()
            if line == '' : continue
            self.ins.append(Ins(line, tag))
    def label(self, name): self.ins.append(Ins(name + ':'))
    def raw(self, ins): self.ins.append(ins)
    def wait_vm(self, tag):
        i = Ins('; wait_vm ' + str(tag)); i.kind = 'wait_vm'; i.tag = tag; self.ins.append(i)
    def wait_all(self):
        self('s_waitcnt vmcnt(0) lgkmcnt(0)')
    def raw_text(self, text):
        for line in text.split('\n'):
            if line.strip():
                i = Ins('; raw'); i.text = line.strip(); i.kind = 'directive'; self.ins.append(i)
    def reset_state(self):
        i = Ins('; reset_state'); i.kind = 'reset'; self.ins.append(i)

class Processor:
    def __init__(self, auto_nop=True, verbose=False):
        self.out = []
        self.lg = []
        self.vm = []
        self.slot = 0
        self.lastw = {}
        self.lastC = {}
        self.lastst = {}
        self.exec_valu = -100
        self.auto_nop = auto_nop
        self.nops_inserted = 0
        self.waits_inserted = 0
        self.nop_log = []
    def emit(self, text, slots=1):
        self.out.append(text); self.slot += slots
    def state_sig(self):
        return (tuple((tuple(sorted(map(str, s))), sm) for s, sm in self.lg), tuple((tuple(sorted(map(str, s))), t) for s, t in self.vm))
    def do_wait(self, vm=None, lg=None):
        parts = []
        if vm is not None:
            vm = min(vm, 63); parts.append(f'vmcnt({vm})');
            while len(self.vm) > vm: self.vm.pop(0)
        if lg is not None:
            lg = min(lg, 15); parts.append(f'lgkmcnt({lg})')
            while len(self.lg) > lg: self.lg.pop(0)
        self.emit('s_waitcnt ' + ' '.join(parts)); self.waits_inserted += 1
    def need(self, ins):
        worst = 0; why = ''
        def req(slot0, n, w):
            nonlocal worst, why
            have = self.slot - slot0 - 1
            if n - have > worst: worst = n - have; why = w
        rd = ins.r; wr = ins.w
        for r in rd:
            lw = self.lastw.get(r)
            if lw is None: continue
            s0, k, p = lw
            if isv(r):
                if k == 'mfma':
                    n_valu = {4: 8, 8: 12}[p]
                    if ins.kind == 'mfma':
                        if r in ins.srcC and set(ins.srcC) == set(ins.w) and self.mfma_same_chain(r, ins): pass
                        elif r in ins.srcC: req(s0, {4: 6, 8: 10}[p], f'mfma D->srcC overlap {r}')
                        else: req(s0, n_valu, f'mfma D->A/B {r}')
                    else: req(s0, n_valu, f'mfma D->read {r}')
                elif k in VALU_KINDS:
                    if ins.kind == 'mfma': req(s0, 2, f'valu->mfma {r}')
                    if ins.kind == 'permlane': req(s0, 2, f'valu->permlane {r}')
                    if ins.kind == 'dpp': req(s0, 2, f'valu->dpp {r}')
                    if ins.op.startswith('v_readfirstlane') or ins.op.startswith('v_readlane'): req(s0, 1, f'valu->readlane {r}')
                    if k == 'trans' and ins.kind in VALU_KINDS and ins.kind != 'trans': req(s0, 1, f'trans->valu {r}')
                    if k == 'trans' and ins.kind == 'trans': req(s0, 1, f'trans->trans {r}')
            else:
                if k in VALU_KINDS:
                    if ins.kind == 'vmem': req(s0, 5, f'valu sgpr->vmem {r}')
                    elif ins.kind in VALU_KINDS: req(s0, 2, f'valu sgpr->valu {r}')
                    elif ins.kind in ('salu', 'branch', 'smem'): req(s0, 4, f'valu sgpr->salu {r} (padded)')
                if k == 'salu' and r == ('s', 'm0') and ins.kind in ('vmem', 'ds'): req(s0, 1, 'm0->dma')
        for r in wr:
            if isv(r):
                lw = self.lastw.get(r)
                if lw and lw[1] == 'mfma':
                    s0, k, p = lw
                    if ins.kind == 'mfma':
                        if not (r in ins.srcC and set(ins.srcC) == set(ins.w)):
                            req(s0, {4: 8, 8: 12}[p], f'mfma WAW {r}')
                    else: req(s0, {4: 8, 8: 12}[p], f'mfma D->write {r}')
                lc = self.lastC.get(r)
                if lc and ins.kind in VALU_KINDS: req(lc[0], {4: 3, 8: 7}[lc[1]], f'mfma srcC WAR {r}')
                ls = self.lastst.get(r)
                if ls is not None and ins.kind != 'vmem': req(ls, 2, f'wide store WAR {r}')
        if ins.kind == 'mfma': req(self.exec_valu, 4, 'valu exec->mfma')
        return worst, why
    def mfma_same_chain(self, r, ins):
        lw = self.lastw.get(r)
        return lw is not None and getattr(self, '_lastD', {}).get(r) == tuple(ins.w)
    def step(self, ins):
        k = ins.kind
        if k in ('none', 'directive'):
            self.out.append(ins.text); return
        if k == 'label':
            self.out.append(ins.text); return
        if k == 'reset':
            assert not self.lg and not self.vm, f'reset with outstanding ops lg={self.lg} vm={self.vm}'
            return
        if k == 'wait_vm':
            idx = -1
            for i, (s, t) in enumerate(self.vm):
                if t == ins.tag or (isinstance(t, tuple) and ins.tag in t): idx = i
            if idx >= 0: self.do_wait(vm=len(self.vm) - 1 - idx)
            else: self.out.append(f'; (wait_vm {ins.tag}: nothing outstanding)')
            return
        if k == 'waitcnt':
            m = re.search(r'vmcnt\((\d+)\)', ins.text)
            if m:
                n = int(m.group(1))
                while len(self.vm) > n: self.vm.pop(0)
            m = re.search(r'lgkmcnt\((\d+)\)', ins.text)
            if m:
                n = int(m.group(1))
                if n == 0: self.lg = []
                elif not any(sm for _, sm in self.lg):
                    while len(self.lg) > n: self.lg.pop(0)
            self.emit(ins.text); return
        if k == 'nop':
            n = int(ins.text.split(';')[0].split()[1]); self.emit(ins.text, n + 1); return
        touched = set(ins.r) | set(ins.w)
        lgi = -1
        for i, (s, sm) in enumerate(self.lg):
            if s & touched: lgi = i
        vmi = -1
        for i, (s, t) in enumerate(self.vm):
            if s & touched: vmi = i
        nlg = nvm = None
        if lgi >= 0:
            nlg = 0 if any(sm for _, sm in self.lg) else len(self.lg) - 1 - lgi
        if vmi >= 0: nvm = len(self.vm) - 1 - vmi
        if nlg is not None or nvm is not None: self.do_wait(vm=nvm, lg=nlg)
        n, why = self.need(ins)
        if n > 0:
            if not self.auto_nop: raise RuntimeError(f'hazard: {why} needs {n} more before: {ins.text}')
            self.nop_log.append((why, n, ins.text))
            self.nops_inserted += n
            while n > 0:
                c = min(n, 16); self.emit(f's_nop {c-1}', c); n -= c
        s0 = self.slot
        self.emit(ins.text)
        if k == 'ds':
            if len(self.lg) >= 15: pass
            self.lg.append((set(ins.w), False))
        elif k == 'smem':
            self.lg.append((set(ins.w), True))
        elif k == 'vmem':
            if ins.tag != 'nocount': self.vm.append((set(ins.w), ins.tag))
            if ins.wide_store:
                for r in ins.r:
                    if isv(r): self.lastst[r] = s0
        for r in ins.w:
            if k in ('ds', 'smem', 'vmem'):
                self.lastw.pop(r, None); continue
            self.lastw[r] = (s0, k, ins.passes)
            if k == 'mfma':
                if not hasattr(self, '_lastD'): self._lastD = {}
                self._lastD[r] = tuple(ins.w)
            if r == ('s', 'exec') and k in VALU_KINDS: self.exec_valu = s0
        if k == 'mfma':
            for r in ins.srcC: self.lastC[r] = (s0, ins.passes)
    def run(self, stream):
        for ins in stream.ins: self.step(ins)
        return self
    def text(self): return '\n'.join(self.out)

class VAlloc:
    def __init__(self, n, prefix='v', start=0):
        self.n = n; self.p = prefix; self.next = start; self.names = {}; self.hi = start
    def alloc(self, cnt=1, align=1, name=None):
        a = (self.next + align - 1) // align * align
        assert a + cnt <= self.n, f'out of {self.p} regs ({name})'
        self.next = a + cnt; self.hi = max(self.hi, self.next)
        if name: self.names[name] = (a, cnt)
        return a
    def mark(self): return self.next
    def release(self, m): self.next = m

def vr(a, n=1, p='v'):
    return f'{p}{a}' if n == 1 else f'{p}[{a}:{a+n-1}]'
def sr(a, n=1): return vr(a, n, 's')
```

```python
from asmlib import *
Q_OFF   = 0
K_OFF   = 2 << 20
V_OFF   = 4 << 20
ACT_OFF = 6 << 20
ACT_KS  = 144
PART_OFF = 16 << 20
STAMP_OFF = 24 << 20
WS_SIZE = 0x2000000
KA_X, KA_WQKV, KA_WO, KA_BX, KA_WG, KA_WU, KA_WD, KA_OUT, KA_DBG, KA_WS = [8*i for i in range(10)]
LOG2E = 1.4426950408889634

def f2u(x):
    import struct
    return struct.unpack('<I', struct.pack('<f', x))[0]
def fhex(x): return '0x%08x' % f2u(x)

def srd(S, d, base_pair, nbytes):
    S(f's_mov_b32 s{d}, s{base_pair}')
    S(f's_and_b32 s{d+1}, s{base_pair+1}, 0xffff')
    S(f's_mov_b32 s{d+2}, {hex(nbytes)}')
    S(f's_mov_b32 s{d+3}, 0x20000')

def kernel_text(name, body, vgpr, sgpr=102, accum=None):
    accum = accum if accum is not None else min(256, (vgpr + 3) // 4 * 4)
    head = f""".text
.globl {name}
.p2align 8
.type {name},@function
{name}:
"""
    kd = f"""
.section .rodata,"a"
.p2align 6
.amdhsa_kernel {name}
  .amdhsa_next_free_vgpr {vgpr}
  .amdhsa_next_free_sgpr {sgpr}
  .amdhsa_accum_offset {accum}
  .amdhsa_group_segment_fixed_size 0
  .amdhsa_kernarg_size 80
  .amdhsa_user_sgpr_count 2
  .amdhsa_user_sgpr_kernarg_segment_ptr 1
  .amdhsa_system_sgpr_workgroup_id_x 1
  .amdhsa_float_denorm_mode_32 3
.end_amdhsa_kernel
"""
    return head + body + "\n" + kd

def stamp(S, slot, sreg_pair, dbg=False):
    S(f's_memtime s[{sreg_pair}:{sreg_pair+1}]')

FLAG_OFF = 20 << 20
FL = 128
FQ_OFF = FLAG_OFF
FH_OFF = FLAG_OFF + 256 * FL
FO_OFF = FLAG_OFF + 512 * FL
FLAG_BYTES = (512 + 1024) * FL
POLL_LIMIT = 4000
_pl = [0]
def poll(S, srd, vAddr, vTmp, sCnt, expected, nlanes, soff=None, sSave=4, mod='sc1', sleep=2):
    _pl[0] += 1; lb = f'poll{_pl[0]}'
    S(f's_mov_b32 s{sCnt}, {POLL_LIMIT}')
    if nlanes < 64:
        m = (1 << nlanes) - 1
        S(f's_mov_b32 s{sSave}, {hex(m & 0xffffffff)}\ns_mov_b32 s{sSave+1}, {hex(m >> 32)}\ns_mov_b64 exec, s[{sSave}:{sSave+1}]')
    S.label(lb)
    so = '0' if soff is None else f's{soff}'
    if mod == 'atomic':
        S(f'v_mov_b32 v{vTmp}, 0')
        S(f'buffer_atomic_add v{vTmp}, v{vAddr}, s[{srd}:{srd+3}], {so} offen sc0 sc1', tag='poll')
    elif mod == 'inv':
        S('buffer_inv sc1', tag='poll')
        S(f'buffer_load_dword v{vTmp}, v{vAddr}, s[{srd}:{srd+3}], {so} offen sc1', tag='poll')
    else:
        S(f'buffer_load_dword v{vTmp}, v{vAddr}, s[{srd}:{srd+3}], {so} offen {mod}', tag='poll')
    S('s_waitcnt vmcnt(0)')
    S(f'v_cmp_ne_u32 vcc, {expected}, v{vTmp}')
    S(f's_cmp_eq_u64 vcc, 0')
    S(f's_cbranch_scc1 {lb}_ok')
    S(f's_sleep {sleep}')
    S(f's_sub_u32 s{sCnt}, s{sCnt}, 1')
    S(f's_cmp_lg_u32 s{sCnt}, 0')
    S(f's_cbranch_scc1 {lb}')
    S.label(f'{lb}_ok')
    if nlanes < 64: S('s_mov_b64 exec, -1')

STATS_OFF = 21 << 20
```

```python
from common import *
STAMP2 = 28 << 20
def dbg_setup(S, sD, sTmp):
    pass
def dbg_stamp(S, sD, idx, vA, vB, sT, invert=False, kidx=None, srd_ws=None, sW=None):
    S(f's_memrealtime s[{sD+2*idx}:{sD+2*idx+1}]')
def dbg_final(S, sD, vA, sT, kidx, srd_ws):
    S('s_waitcnt vmcnt(0)')
    S(f's_memrealtime s[{sD+6}:{sD+7}]')
    S('s_waitcnt lgkmcnt(0)')
    for i in range(4): S(f'v_mov_b32 v{vA+i}, s{sD+2*i}')
    S(f'v_lshrrev_b32 v{vA+4}, 6, v0')
    S(f'v_lshlrev_b32 v{vA+4}, 4, v{vA+4}')
    S(f's_lshl_b32 s{sT}, s2, 8')
    S(f's_add_u32 s{sT}, s{sT}, {STAMP2 + kidx*65536}')
    S(f'buffer_store_dwordx4 {vr(vA,4)}, v{vA+4}, s[{srd_ws}:{srd_ws+3}], s{sT} offen')
    S('s_waitcnt vmcnt(0)')
def dbg_store(S, sD, vA, sT, kidx, srd_ws):
    for i in range(4): S(f'v_mov_b32 v{vA+i}, s{sD+2*i}')
    S(f'v_lshrrev_b32 v{vA+4}, 6, v0')
    S(f'v_lshlrev_b32 v{vA+4}, 4, v{vA+4}')
    S(f's_lshl_b32 s{sT}, s2, 8')
    S(f's_add_u32 s{sT}, s{sT}, {STAMP2 + kidx*65536}')
    S(f'buffer_store_dwordx4 {vr(vA,4)}, v{vA+4}, s[{srd_ws}:{srd_ws+3}], s{sT} offen')
    S('s_waitcnt vmcnt(0)')
def collect_kernel(n, waves):
    S = Stream()
    S(f's_cmp_ge_u32 s2, 1\ns_cbranch_scc1 collect_kernel_end')
    S(f's_load_dwordx2 s[4:5], s[0:1], {KA_WS}')
    S(f's_load_dwordx2 s[6:7], s[0:1], {KA_DBG}')
    S('s_waitcnt lgkmcnt(0)')
    srd(S, 8, 4, WS_SIZE); srd(S, 12, 6, 256)
    S('v_lshlrev_b32 v1, 8, v0')
    S('v_mov_b32 v30, 0')
    res = []
    for k in range(n):
        S('v_mov_b32 v10, -1\nv_mov_b32 v11, 0\nv_mov_b32 v12, 0\nv_mov_b32 v13, 0\nv_mov_b32 v14, 0')
        for w in range(waves[k]):
            S(f's_mov_b32 s20, {STAMP2 + k*65536 + w*16}')
            S('buffer_load_dwordx4 v[4:7], v1, s[8:11], s20 offen sc1')
            S('s_waitcnt vmcnt(0)')
            S('v_min_u32 v10, v10, v4\nv_max_u32 v11, v11, v4\nv_max_u32 v12, v12, v5\nv_max_u32 v13, v13, v6\nv_max_u32 v14, v14, v7')
        S(f'v_mov_b32 v20, {k*32}')
        if k == 0:
            pass
        for i, op in enumerate(('ds_min_u32', 'ds_max_u32', 'ds_max_u32', 'ds_max_u32', 'ds_max_u32')):
            S(f'{op} v20, v{10+i} offset:{4*i}')
    return S
def collect_kernel(entries):
    n = len(entries)
    S = Stream()
    S(f's_cmp_ge_u32 s2, 1\ns_cbranch_scc1 collect_kernel_end')
    S(f's_load_dwordx2 s[4:5], s[0:1], {KA_WS}')
    S(f's_load_dwordx2 s[6:7], s[0:1], {KA_DBG}')
    S('s_waitcnt lgkmcnt(0)')
    srd(S, 8, 4, WS_SIZE); srd(S, 12, 6, 256)
    S('v_lshlrev_b32 v2, 2, v0')
    S('v_mov_b32 v3, 0')
    S('ds_write_b32 v2, v3')
    S('s_waitcnt lgkmcnt(0)\ns_barrier')
    S('v_mov_b32 v3, -1\nv_mov_b32 v20, 0')
    for k in range(n): S(f'ds_write_b32 v20, v3 offset:{k*20}')
    S('s_waitcnt lgkmcnt(0)\ns_barrier')
    S('v_lshlrev_b32 v1, 8, v0')
    for e, (k, w0, w1) in enumerate(entries):
        S('v_mov_b32 v10, -1\nv_mov_b32 v11, 0\nv_mov_b32 v12, 0\nv_mov_b32 v13, 0\nv_mov_b32 v14, 0')
        for w in range(w0, w1):
            S(f's_mov_b32 s20, {STAMP2 + k*65536 + w*16}')
            S('buffer_load_dwordx4 v[4:7], v1, s[8:11], s20 offen sc1')
            S('s_waitcnt vmcnt(0)')
            S('v_min_u32 v10, v10, v4\nv_max_u32 v11, v11, v4\nv_max_u32 v12, v12, v5\nv_max_u32 v13, v13, v6\nv_max_u32 v14, v14, v7')
        for i, op in enumerate(('ds_min_u32', 'ds_max_u32', 'ds_max_u32', 'ds_max_u32', 'ds_max_u32')):
            S(f'{op} v20, v{10+i} offset:{e*20 + 4*i}')
    S('s_waitcnt lgkmcnt(0)\ns_barrier')
    S('ds_read_b32 v4, v2')
    S('ds_read_b32 v5, v20')
    S('s_waitcnt lgkmcnt(0)')
    S('v_sub_u32 v4, v4, v5')
    S(f'v_cmp_gt_u32 vcc, {5*n}, v0\ns_and_saveexec_b64 s[16:17], vcc')
    S('s_cbranch_execz collect_kernel_end')
    S('buffer_store_dword v4, v2, s[12:15], 0 offen')
    S('s_waitcnt vmcnt(0)')
    S.label('collect_kernel_end')
    S('s_endpgm')
    p = Processor().run(S)
    return kernel_text('collect_kernel', p.text(), 32)
```

```python
from common import *
from diag import *

BIG = 0; BIGSZ = 24576; NBIG = 3
MB = BIG + NBIG * BIGSZ; MSZ = 16384; NM = 4
STAT = MB + NM * MSZ
ST_SUM = STAT; ST_SQ = STAT + 512; ST_SD = STAT + 1024; ST_CS = STAT + 1536
LDS1 = STAT + 1536 + 2 * 320 * 4
QSCALE = 0.25 * LOG2E
HCARRY = 240

def gen_gemm1(name='gemm1_kernel', stamps=False, xp='', dbg=False, DMA_FIRST=2, fused=False, PUB_AT=1, setmod='atomic', defer=True, ndefer=1):
    S = Stream(); L = name
    v = VAlloc(256, 'v', 1)
    sX, sQK, sM0, sM1, sWS = 8, 12, 16, 20, 24
    sW, sTb, sC, sTh, sFq, sT, sT2, sRS = 28, 29, 30, 31, 32, 33, 34, 35
    sXo, sQo, sM0o, sM1o, sLx, sLq, sLm = 36, 37, 38, 39, 40, 41, 42
    sIsB, sScale, sT3, sStepM, sDuty, sMaskHi = 43, 44, 45, 46, 58, 59
    sSt = 60
    sDbg, sFQ, sFH, sHaddr, sIsBk = 96, 94, 95, 100, 101
    vLane = v.alloc(); vN = v.alloc(); vG = v.alloc()
    vT = [v.alloc() for _ in range(6)]
    vDx = [v.alloc() for _ in range(2)]; vDq = v.alloc(); vDm = v.alloc()
    vXa = [v.alloc() for _ in range(2)]; vQa = v.alloc(); vMa = [v.alloc() for _ in range(4)]
    vSum = [v.alloc() for _ in range(2)]; vSq = [v.alloc() for _ in range(2)]; vLo = v.alloc(); vHi = v.alloc()
    vXs = [v.alloc() for _ in range(2)]
    vOnes = v.alloc(4, 4)
    A = [[v.alloc(4, 4) for _ in range(5)] for _ in range(2)]
    B = [[v.alloc(4, 4) for _ in range(4)] for _ in range(2)]
    Bs = [v.alloc(4, 4) for _ in range(2)]
    acc = [[v.alloc(4, 4) for _ in range(4)] for _ in range(5)]
    vCs = [v.alloc(4, 4) for _ in range(5)]
    vEp = v.alloc(16, 4)

    S(f's_cmp_ge_u32 s2, 256'); S(f's_cbranch_scc1 {L}_end')
    if stamps: S(f's_memtime s[{sSt}:{sSt+1}]\ns_memrealtime s[{sSt+10}:{sSt+11}]')
    if dbg: dbg_stamp(S, 84, 0, 0, 0, 0)
    S(f's_load_dwordx4 s[48:51], s[0:1], {KA_X}')
    S(f's_load_dwordx4 s[52:55], s[0:1], {KA_WG}')
    S(f's_load_dwordx2 s[56:57], s[0:1], {KA_WS}')
    if fused: S(f's_load_dwordx2 s[92:93], s[0:1], {KA_DBG}')
    S(f'v_and_b32 v{vLane}, 63, v0')
    S(f'v_lshrrev_b32 v{vT[0]}, 6, v0')
    S(f'v_and_b32 v{vN}, 15, v0')
    S(f'v_readfirstlane_b32 s{sW}, v{vT[0]}')
    S(f'v_bfe_u32 v{vG}, v0, 4, 2')
    S(f's_and_b32 s{sT}, s2, 1\ns_lshl_b32 s{sT}, s{sT}, 3')
    S(f's_lshr_b32 s{sT2}, s2, 3\ns_and_b32 s{sT2}, s{sT2}, 7\ns_add_u32 s{sTb}, s{sT}, s{sT2}')
    S(f's_lshr_b32 s{sT}, s2, 1\ns_and_b32 s{sT}, s{sT}, 3\ns_lshl_b32 s{sT}, s{sT}, 2')
    S(f's_lshr_b32 s{sT2}, s2, 6\ns_add_u32 s{sC}, s{sT}, s{sT2}')
    S(f's_and_b32 s{sTh}, s{sW}, 1\ns_lshr_b32 s{sFq}, s{sW}, 1')
    S(f's_cmp_ge_u32 s{sC}, 14\ns_cselect_b32 s{sIsB}, 1, 0')
    S(f's_lshr_b32 s{sDuty}, s{sFq}, 1\ns_xor_b32 s{sDuty}, s{sDuty}, s{sTh}')
    S('s_waitcnt lgkmcnt(0)')
    srd(S, sX, 48, 2048 * 512 * 2)
    srd(S, sQK, 50, 512 * 1536 * 2)
    srd(S, sWS, 56, WS_SIZE)
    if fused:
        srd(S, sDbg, 92, 256)
        S(f's_lshl_b32 s{sT}, s{sC}, 11\ns_lshl_b32 s{sT2}, s{sTb}, 7\ns_add_u32 s{sFQ}, s{sT}, s{sT2}\ns_add_u32 s{sFQ}, s{sFQ}, {FQ_OFF}')
        S(f's_lshl_b32 s{sT}, s{sTb}, 11\ns_lshl_b32 s{sT2}, s{sC}, 7\ns_add_u32 s{sFH}, s{sT}, s{sT2}\ns_add_u32 s{sFH}, s{sFH}, {FH_OFF}')
        S(f's_cmp_lg_u32 s{sW}, 7\ns_cbranch_scc1 {L}_noclr')
        S(f's_and_b32 s{sT}, s2, 7\ns_lshl_b32 s{sT}, s{sT}, 2\ns_lshr_b32 s{sT2}, s2, 6\ns_add_u32 s{sT}, s{sT}, s{sT2}\ns_lshl_b32 s{sT}, s{sT}, 7')
        S(f's_lshr_b32 s{sT2}, s2, 3\ns_and_b32 s{sT2}, s{sT2}, 7\ns_lshl_b32 s{sT2}, s{sT2}, 14\ns_add_u32 s{sT}, s{sT}, s{sT2}\ns_add_u32 s{sT}, s{sT}, {FO_OFF}')
        S(f'v_lshlrev_b32 v{vT[1]}, 12, v{vLane}')
        S(f'v_add_u32 v{vT[1]}, s{sT}, v{vT[1]}')
        S(f'v_mov_b32 v{vT[2]}, s{sFQ}\nv_cmp_eq_u32 vcc, 4, v{vLane}\nv_cndmask_b32 v{vT[1]}, v{vT[1]}, v{vT[2]}, vcc')
        S(f'v_mov_b32 v{vT[2]}, s{sFH}\nv_cmp_eq_u32 vcc, 5, v{vLane}\nv_cndmask_b32 v{vT[1]}, v{vT[1]}, v{vT[2]}, vcc')
        S(f'v_mov_b32 v{vT[2]}, 0')
        S(f's_mov_b64 exec, 63')
        S(f'buffer_store_dword v{vT[2]}, v{vT[1]}, s[{sWS}:{sWS+3}], 0 offen sc1', tag='nocount')
        S(f's_mov_b64 exec, -1')
        S.label(f'{L}_noclr')
    S(f's_cmp_eq_u32 s{sIsB}, 1')
    for d, p in ((sM0, 52), (sM1, 54)):
        S(f's_cselect_b32 s{d}, s50, s{p}')
        S(f's_cselect_b32 s{d+1}, s51, s{p+1}')
        S(f's_and_b32 s{d+1}, s{d+1}, 0xffff')
        S(f's_cmp_eq_u32 s{sIsB}, 1')
        S(f's_mov_b32 s{d+2}, {512*1792*2}\ns_cmov_b32 s{d+2}, {512*1536*2}')
        S(f's_mov_b32 s{d+3}, 0x20000')
    S(f's_mov_b32 s{sRS}, 3584\ns_cmov_b32 s{sRS}, 3072')
    S(f's_lshl_b32 s{sXo}, s{sTb}, 17')
    S(f's_lshl_b32 s{sQo}, s{sC}, 7')
    S(f's_lshl_b32 s{sM0o}, s{sC}, 8')
    S(f's_sub_u32 s{sT}, s{sC}, 14\ns_lshl_b32 s{sT}, s{sT}, 9\ns_add_u32 s{sT}, s{sT}, 2048')
    S(f's_cmp_eq_u32 s{sIsB}, 1')
    S(f's_cselect_b32 s{sM0o}, s{sT}, s{sM0o}')
    S(f's_cselect_b32 s{sT}, 256, 0')
    S(f's_add_u32 s{sM1o}, s{sM0o}, s{sT}')
    S(f's_lshl_b32 s{sStepM}, s{sRS}, 5')
    t0, t1, t2, t3, t4, t5 = vT
    for i in range(2):
        S(f'v_lshrrev_b32 v{t0}, 3, v{vLane}')
        S(f's_lshl_b32 s{sT}, s{sW}, 4\ns_add_u32 s{sT}, s{sT}, {8*i}')
        S(f'v_add_u32 v{t0}, s{sT}, v{t0}')
        S(f'v_lshlrev_b32 v{t0}, 10, v{t0}')
        S(f'v_and_b32 v{t1}, 7, v{vLane}')
        S(f'v_xor_b32 v{t1}, v{t1}, v{vG}')
        if i: S(f'v_xor_b32 v{t1}, 4, v{t1}')
        S(f'v_lshl_add_u32 v{vDx[i]}, v{t1}, 4, v{t0}')
    S(f'v_lshrrev_b32 v{t0}, 3, v{vLane}')
    S(f'v_bfe_u32 v{t2}, v{vLane}, 4, 1')
    S(f's_and_b32 s{sT}, s{sW}, 1\ns_lshl_b32 s{sT}, s{sT}, 1')
    S(f'v_or_b32 v{t2}, s{sT}, v{t2}')
    S(f'v_lshlrev_b32 v{t2}, 1, v{t2}')
    S(f'v_and_b32 v{t1}, 7, v{vLane}')
    S(f'v_xor_b32 v{t1}, v{t1}, v{t2}')
    S(f's_lshl_b32 s{sT}, s{sW}, 3')
    S(f'v_add_u32 v{t0}, s{sT}, v{t0}')
    S(f'v_mul_u32_u24 v{t0}, 3072, v{t0}')
    S(f'v_lshl_add_u32 v{vDq}, v{t1}, 4, v{t0}')
    S(f's_lshr_b32 s{sT}, s{sW}, 1\ns_and_b32 s{sT}, s{sT}, 1\ns_lshl_b32 s{sT}, s{sT}, 2')
    S(f'v_or_b32 v{t2}, s{sT}, v{vG}')
    S(f'v_lshlrev_b32 v{t2}, 1, v{t2}')
    S(f'v_xor_b32 v{t1}, v{vN}, v{t2}')
    S(f's_lshl_b32 s{sT}, s{sW}, 2')
    S(f'v_add_u32 v{t0}, s{sT}, v{vG}')
    S(f'v_mul_lo_u32 v{t0}, v{t0}, s{sRS}')
    S(f'v_lshl_add_u32 v{vDm}, v{t1}, 4, v{t0}')
    S(f's_lshl_b32 s{sLx}, s{sW}, 11')
    S(f's_lshl_b32 s{sLq}, s{sW}, 10\ns_add_u32 s{sLq}, s{sLq}, 16384')
    S(f's_lshl_b32 s{sLm}, s{sW}, 10\ns_add_u32 s{sLm}, s{sLm}, {MB}')
    def dma_big_groups(j):
        slot = (j % NBIG) * BIGSZ + BIG; g = []
        for i in range(2):
            g.append([(f's_add_u32 m0, s{sLx}, {slot + i*1024}', None), (f's_add_u32 s{sT}, s{sXo}, {j*128}', None),
                      (f'buffer_load_dwordx4 v{vDx[i]}, s[{sX}:{sX+3}], s{sT} offen lds', ('big', j))])
        g.append([(f's_add_u32 m0, s{sLq}, {slot}', None), (f's_add_u32 s{sT}, s{sQo}, {j*64*3072}', None),
                  (f'buffer_load_dwordx4 v{vDq}, s[{sQK}:{sQK+3}], s{sT} offen lds', ('big', j))])
        return g
    def dma_m_groups(s):
        slot = (s % NM) * MSZ
        return [[(f's_add_u32 m0, s{sLm}, {slot}', None), (f's_add_u32 s{sT}, s{sM0o}, 0', None),
                 (f'buffer_load_dwordx4 v{vDm}, s[{sM0}:{sM0+3}], s{sT} offen lds', ('m', s)), (f's_add_u32 s{sM0o}, s{sM0o}, s{sStepM}', None)],
                [(f's_add_u32 m0, s{sLm}, {slot + 8192}', None), (f's_add_u32 s{sT}, s{sM1o}, 0', None),
                 (f'buffer_load_dwordx4 v{vDm}, s[{sM1}:{sM1+3}], s{sT} offen lds', ('m', s)), (f's_add_u32 s{sM1o}, s{sM1o}, s{sStepM}', None)]]
    def emit_group(g):
        for t, tag in g: S(t, tag=tag)
    def dma_big(j):
        for g in dma_big_groups(j): emit_group(g)
    def dma_m(s):
        for g in dma_m_groups(s): emit_group(g)
    dma_big(0); dma_m(0); dma_m(1); dma_big(1); dma_m(2); dma_m(3); dma_big(2)
    S(f's_lshl_b32 s{sT}, s{sTh}, 6')
    S(f'v_add_u32 v{t0}, s{sT}, v{vN}')
    S(f'v_lshlrev_b32 v{t0}, 7, v{t0}')
    S(f'v_lshrrev_b32 v{t1}, 1, v{vN}')
    S(f'v_xor_b32 v{t1}, v{t1}, v{vG}')
    S(f'v_lshl_add_u32 v{vXa[0]}, v{t1}, 4, v{t0}')
    S(f'v_xor_b32 v{vXa[1]}, 64, v{vXa[0]}')
    S(f's_lshl_b32 s{sT}, s{sFq}, 11')
    S(f'v_add_u32 v{vXs[0]}, s{sT}, v{vXa[0]}')
    S(f'v_add_u32 v{vXs[1]}, s{sT}, v{vXa[1]}')
    vR, vCq = t4, t5
    S(f'v_lshrrev_b32 v{vR}, 2, v{vN}')
    S(f'v_and_b32 v{vCq}, 3, v{vN}')
    S(f'v_lshl_add_u32 v{t0}, v{vG}, 3, v{vR}')
    S(f'v_lshrrev_b32 v{t1}, 1, v{vR}')
    S(f'v_and_b32 v{t2}, 1, v{vG}')
    S(f'v_lshl_or_b32 v{t1}, v{t2}, 1, v{t1}')
    S(f'v_xor_b32 v{t1}, s{sFq}, v{t1}')
    S(f'v_lshlrev_b32 v{t1}, 1, v{t1}')
    S(f'v_lshrrev_b32 v{t2}, 1, v{vCq}')
    S(f'v_add_u32 v{t1}, v{t1}, v{t2}')
    S(f'v_lshlrev_b32 v{t1}, 4, v{t1}')
    S(f'v_and_b32 v{t2}, 1, v{vCq}')
    S(f'v_lshl_add_u32 v{t1}, v{t2}, 3, v{t1}')
    S(f'v_lshl_add_u32 v{vQa}, v{t0}, 7, v{t1}')
    S(f'v_add_u32 v{vQa}, 16384, v{vQa}')
    S(f'v_and_b32 v{t2}, 1, v{vG}')
    S(f'v_lshl_or_b32 v{t1}, v{t2}, 2, v{vR}')
    S(f'v_lshlrev_b32 v{t1}, 1, v{t1}')
    S(f'v_lshrrev_b32 v{t2}, 1, v{vCq}')
    S(f'v_xor_b32 v{t1}, v{t1}, v{t2}')
    S(f'v_lshlrev_b32 v{t1}, 4, v{t1}')
    S(f'v_and_b32 v{t2}, 1, v{vCq}')
    S(f'v_lshl_add_u32 v{t1}, v{t2}, 3, v{t1}')
    S(f'v_lshl_add_u32 v{t1}, v{t0}, 8, v{t1}')
    for i in range(4):
        S(f's_lshl_b32 s{sT}, s{sFq}, 1\ns_add_u32 s{sT}, s{sT}, {i & 1}\ns_lshl_b32 s{sT}, s{sT}, 5')
        S(f's_add_u32 s{sT}, s{sT}, {(i >> 1) * 8192}')
        S(f's_and_b32 s{sT2}, s{sFq}, 1\ns_lshl_b32 s{sT2}, s{sT2}, 2\ns_add_u32 s{sT2}, s{sT2}, {i}\ns_lshl_b32 s{sT2}, s{sT2}, 5')
        S(f's_lshr_b32 s{sT3}, s{sFq}, 1\ns_lshl_b32 s{sT3}, s{sT3}, 13\ns_add_u32 s{sT2}, s{sT2}, s{sT3}')
        S(f's_cmp_eq_u32 s{sIsB}, 1\ns_cselect_b32 s{sT}, s{sT2}, s{sT}')
        S(f'v_xor_b32 v{vMa[i]}, s{sT}, v{t1}')
        S(f'v_add_u32 v{vMa[i]}, {MB}, v{vMa[i]}')
    for r in vSum + vSq: S(f'v_mov_b32 v{r}, 0')
    if 'O' in xp:
        for i in range(4): S(f'v_mov_b32 v{vOnes+i}, 0x3f803f80')
    else:
        S(f'v_cmp_eq_u32 vcc, 0, v{vN}')
        S(f'v_mov_b32 v{t0}, 0x3f803f80')
        S(f'v_cndmask_b32 v{vOnes}, 0, v{t0}, vcc')
        for i in range(1, 4): S(f'v_mov_b32 v{vOnes+i}, v{vOnes}')
    S(f's_mov_b32 s{sMaskHi}, 0xffff0000')

    def reads(s):
        b = s & 1; sp = s & 1; j = s // 2
        bs = (j % NBIG) * BIGSZ + BIG; ms = (s % NM) * MSZ
        out = []
        for tt in range(4):
            out.append(f'ds_read_b128 {vr(B[b][tt],4)}, v{vXa[sp]} offset:{bs + tt*2048}')
        for rd in range(2):
            out.append(f'ds_read_b64_tr_b16 {vr(A[b][0]+2*rd,2)}, v{vQa} offset:{bs + (32*sp + 4*rd)*128}')
        if 'S' not in xp: out.append(f'ds_read_b128 {vr(Bs[b],4)}, v{vXs[sp]} offset:{bs}')
        for i in range(4):
            for rd in range(2):
                out.append(f'ds_read_b64_tr_b16 {vr(A[b][1+i]+2*rd,2)}, v{vMa[i]} offset:{ms + rd*1024}')
        return out
    def mfmas(s, typeB):
        b = s & 1; out = []
        for f in range(5):
            for tt in range(4):
                c = '0' if s == 0 else vr(acc[f][tt], 4)
                a_, b_ = vr(A[b][f], 4), vr(B[b][tt], 4)
                if typeB and f > 0: a_, b_ = b_, a_
                out.append(f'v_mfma_f32_16x16x32_bf16 {vr(acc[f][tt],4)}, {a_}, {b_}, {c}')
        return out
    def stats(s):
        b = s & 1; out = []
        for r in range(4):
            p = Bs[b] + r
            out.append(f'v_lshlrev_b32 v{vLo}, 16, v{p}')
            out.append(f'v_and_b32 v{vHi}, s{sMaskHi}, v{p}')
            out.append(f'v_add_f32 v{vSum[0]}, v{vSum[0]}, v{vLo}')
            out.append(f'v_add_f32 v{vSum[1]}, v{vSum[1]}, v{vHi}')
            out.append(f'v_fma_f32 v{vSq[0]}, v{vLo}, v{vLo}, v{vSq[0]}')
            out.append(f'v_fma_f32 v{vSq[1]}, v{vHi}, v{vHi}, v{vSq[1]}')
        return out
    def csmfmas(s, typeB, first):
        b = s & 1; out = []
        for f in range(5):
            c = '0' if first else vr(vCs[f], 4)
            a_, b_ = vr(A[b][f], 4), vr(vOnes, 4)
            if typeB and f > 0: a_, b_ = b_, a_
            out.append(f'v_mfma_f32_16x16x32_bf16 {vr(vCs[f],4)}, {a_}, {b_}, {c}')
        return out

    def mainloop(typeB, duty):
        tag = ('B' if typeB else 'A') + str(duty)
        S.wait_vm(('big', 0)); S.wait_vm(('m', 0))
        S('s_waitcnt lgkmcnt(0)')
        S('s_barrier')
        if stamps: S(f's_memtime s[{sSt+2}:{sSt+3}]\ns_memrealtime s[{sSt+18}:{sSt+19}]')
        if dbg: dbg_stamp(S, 84, 1, 0, 0, 0)
        for r in reads(0): S(r)
        for s in range(16):
            S('s_waitcnt lgkmcnt(0)')
            if s + 1 < 16:
                S.wait_vm(('m', s + 1)); S.wait_vm(('big', (s + 1) // 2))
            S('s_barrier')
            if fused and s == 4:
                lb = f'{L}_{tag}_sig'
                S(f's_cmp_lg_u32 s{sW}, 7\ns_cbranch_scc1 {lb}')
                S(f'v_mov_b32 v{vT[0]}, s2\nv_mov_b32 v{vT[1]}, 1\ns_mov_b64 exec, 1')
                S(f'buffer_store_byte v{vT[1]}, v{vT[0]}, s[{sDbg}:{sDbg+3}], 0 offen sc1', tag='nocount')
                S('s_mov_b64 exec, -1')
                S.label(lb)
            groups = []
            if s + 4 < 16 and 'D' not in xp: groups += dma_m_groups(s + 4)
            if s % 2 == 1 and (s - 1) // 2 + 3 < 8 and 'D' not in xp: groups += dma_big_groups((s - 1) // 2 + 3)
            mm = mfmas(s, typeB)
            if s % 2 == duty and 'S' not in xp:
                cm = csmfmas(s, typeB, s < 2)
                mm = [x for f in range(5) for x in mm[4*f:4*f+4] + [cm[f]]]
            rr = reads(s + 1) if s + 1 < 16 else []
            if 'R' in xp: rr = []
            st = stats(s) if 'S' not in xp else []
            n = len(mm)
            dpos = {}
            if groups:
                first = DMA_FIRST; stride = max(1, (n - first) // len(groups))
                for i, g in enumerate(groups): dpos[min(n - 1, first + i * stride)] = dpos.get(min(n - 1, first + i * stride), []) + [g]
            k = 0; q = 0
            for i, m in enumerate(mm):
                S(m)
                if k < len(rr): S(rr[k]); k += 1
                nq = (len(st) * (i + 1) + n - 1) // n
                while q < nq: S(st[q]); q += 1
                for g in dpos.get(i, []): emit_group(g)
        if stamps: S(f's_memtime s[{sSt+4}:{sSt+5}]\ns_memrealtime s[{sSt+20}:{sSt+21}]')

    def greduce(r):
        S(f'v_mov_b32 v{t0}, v{r}')
        S(f'v_permlane32_swap_b32 v{r}, v{t0}')
        S(f'v_add_f32 v{r}, v{r}, v{t0}')
        S(f'v_mov_b32 v{t0}, v{r}')
        S(f'v_permlane16_swap_b32 v{r}, v{t0}')
        S(f'v_add_f32 v{r}, v{r}, v{t0}')
    def reduce_stats(typeB):
        S(f'v_add_f32 v{vSum[0]}, v{vSum[0]}, v{vSum[1]}')
        S(f'v_add_f32 v{vSq[0]}, v{vSq[0]}, v{vSq[1]}')
        for r in [vSum[0], vSq[0]]: greduce(r)
        ab_from(vSum[0], vSq[0], vSum[1], vSq[1], vLo)
        S(f's_lshl_b32 s{sT}, s{sTh}, 6\ns_lshl_b32 s{sT2}, s{sFq}, 4\ns_add_u32 s{sT}, s{sT}, s{sT2}')
        S(f'v_add_u32 v{t0}, s{sT}, v{vN}')
        S(f'v_lshlrev_b32 v{t0}, 2, v{t0}')
        S(f'v_add_u32 v{t0}, {ST_SUM}, v{t0}')
        S(f'ds_write_b32 v{t0}, v{vSum[1]}')
        S(f'ds_write_b32 v{t0}, v{vSq[1]} offset:512')
        S(f'ds_write_b32 v{t0}, v{vLo} offset:1024')
        S(f's_mul_i32 s{sT}, s{sFq}, 320\ns_mul_i32 s{sT2}, s{sDuty}, 1280\ns_add_u32 s{sT}, s{sT}, s{sT2}\ns_add_u32 s{sT}, s{sT}, {ST_CS}')
        S(f'v_lshlrev_b32 v{t1}, 4, v{vG}')
        S(f'v_add_u32 v{t1}, s{sT}, v{t1}')
        S(f'v_lshlrev_b32 v{t2}, 2, v{vN}')
        S(f'v_add_u32 v{t2}, s{sT}, v{t2}')
        S('s_nop 7')
        S(f's_mov_b32 s4, 0x00010001\ns_mov_b32 s5, 0x00010001\ns_mov_b64 exec, s[4:5]')
        for f in range(5):
            if not (typeB and f > 0): S(f'ds_write_b128 v{t1}, {vr(vCs[f],4)} offset:{f*64}')
        if typeB:
            S(f's_mov_b64 exec, 0xffff')
            for f in range(1, 5): S(f'ds_write_b32 v{t2}, v{vCs[f]} offset:{f*64}')
        S('s_mov_b64 exec, -1')
        S('s_waitcnt lgkmcnt(0)')
        S('s_barrier')

    def ab_from(vs, vq, va, vb, vsd):
        S(f'v_mul_f32 v{vs}, {fhex(1/512)}, v{vs}')
        S(f'v_mul_f32 v{vq}, {fhex(1/512)}, v{vq}')
        S(f'v_fma_f32 v{vq}, -v{vs}, v{vs}, v{vq}')
        S(f'v_max_f32 v{vq}, 0, v{vq}')
        S(f'v_add_f32 v{vq}, {fhex(1e-5)}, v{vq}')
        S(f'v_rsq_f32 v{va}, v{vq}')
        S(f'v_sqrt_f32 v{vsd}, v{vq}')
        S(f'v_sub_f32 v{vb}, 0, v{vs}')

    SC = ' sc1' if fused else ''
    def publish(sflag, tag, lb):
        S.wait_vm(tag)
        S('s_barrier')
        S(f's_cmp_lg_u32 s{sW}, 0\ns_cbranch_scc1 {lb}')
        S(f'v_mov_b32 v{t4}, 0\nv_mov_b32 v{t5}, 1\ns_mov_b64 exec, 1')
        if setmod == 'atomic': S(f'buffer_atomic_add v{t5}, v{t4}, s[{sWS}:{sWS+3}], s{sflag} offen sc1', tag='nocount')
        else: S(f'buffer_store_dword v{t5}, v{t4}, s[{sWS}:{sWS+3}], s{sflag} offen sc1', tag='nocount')
        S('s_mov_b64 exec, -1')
        S.label(lb)
    def epilogue(typeB):
        v = VAlloc(Bs[1] + 4, 'v', A[0][0])
        vP = v.alloc(8, 4); vcsr = v.alloc(4, 4)
        va = [vEp + i for i in range(4)]; vb = [vEp + 4 + i for i in range(4)]
        tq = [vEp + 8 + i for i in range(4)]
        vOff = vEp + 12; vAq = vEp + 13; vBq = vEp + 14
        vsd = [v.alloc() for _ in range(4)]
        S(f'v_lshlrev_b32 v{vOff}, 4, v{vLane}')
        S(f's_lshl_b32 s{sT}, s{sTh}, 6')
        S(f'v_add_u32 v{t0}, s{sT}, v{vN}')
        S(f'v_lshlrev_b32 v{t0}, 2, v{t0}')
        S(f'v_add_u32 v{t0}, {ST_SUM}, v{t0}')
        for tt in range(4):
            S(f'ds_read_b32 v{va[tt]}, v{t0} offset:{tt*64}')
            S(f'ds_read_b32 v{vb[tt]}, v{t0} offset:{512 + tt*64}')
            if not typeB: S(f'ds_read_b32 v{vsd[tt]}, v{t0} offset:{1024 + tt*64}')
        S(f's_mul_i32 s{sT}, s{sFq}, 320')
        S(f'v_lshlrev_b32 v{t1}, 4, v{vG}')
        S(f'v_add_u32 v{t1}, s{sT}, v{t1}')
        S(f'v_add_u32 v{t1}, {ST_CS}, v{t1}')
        def rd_cs_row(dst, f):
            tmp = vCs[f]
            S(f'ds_read_b128 {vr(dst,4)}, v{t1} offset:{f*64}')
            S(f'ds_read_b128 {vr(tmp,4)}, v{t1} offset:{f*64 + 1280}')
            return [f'v_add_f32 v{dst+r}, v{dst+r}, v{tmp+r}' for r in range(4)]
        for x in rd_cs_row(vcsr, 0): S(x)
        S(f's_cmp_lt_u32 s{sC}, 8\ns_cselect_b32 s{sScale}, {fhex(QSCALE)}, 1.0')
        for tt in range(4):
            S(f'v_mul_f32 v{vAq}, s{sScale}, v{va[tt]}')
            for r in range(4):
                S(f'v_fma_f32 v{acc[0][tt]+r}, v{vb[tt]}, v{vcsr+r}, v{acc[0][tt]+r}')
            for r in range(4):
                S(f'v_mul_f32 v{acc[0][tt]+r}, v{acc[0][tt]+r}, v{vAq}')
            S(f'v_cvt_pk_bf16_f32 v{vP+2*tt}, v{acc[0][tt]}, v{acc[0][tt]+1}')
            S(f'v_cvt_pk_bf16_f32 v{vP+2*tt+1}, v{acc[0][tt]+2}, v{acc[0][tt]+3}')
        S(f's_and_b32 s{sT}, s{sC}, 7\ns_lshl_b32 s{sT}, s{sT}, 2\ns_add_u32 s{sT}, s{sT}, s{sFq}\ns_lshl_b32 s{sT}, s{sT}, 16')
        S(f's_cmp_lt_u32 s{sC}, 8\ns_cselect_b32 s{sT2}, 0, {K_OFF - Q_OFF}\ns_add_u32 s{sT}, s{sT}, s{sT2}')
        S(f's_lshl_b32 s{sT2}, s{sTb}, 2\ns_lshl_b32 s{sT3}, s{sTh}, 1\ns_add_u32 s{sT2}, s{sT2}, s{sT3}\ns_lshl_b32 s{sT2}, s{sT2}, 10')
        S(f's_add_u32 s{sT}, s{sT}, s{sT2}')
        for p in range(2):
            x, y = vP + 4*p, vP + 4*p + 2
            S(f'v_permlane16_swap_b32 v{x}, v{y}')
            S(f'v_permlane16_swap_b32 v{x+1}, v{y+1}')
            S(f'buffer_store_dwordx4 {vr(x,4)}, v{vOff}, s[{sWS}:{sWS+3}], s{sT} offen offset:{p*1024}{SC}', tag='qk')
        if stamps: S(f's_memtime s[{sSt+14}:{sSt+15}]')
        if not typeB:
            cg = [v.alloc(4, 4) for _ in range(2)]; cu = [v.alloc(4, 4) for _ in range(2)]
            adds = []
            for i in range(2):
                adds += rd_cs_row(cg[i], 1+i); adds += rd_cs_row(cu[i], 3+i)
            for x in adds: S(x)
            K1 = -2 * LOG2E * 0.7978845608028654; K2 = K1 * 0.044715
            sK1, sK2 = 46, 47
            S(f's_mov_b32 s{sK1}, {fhex(K1)}\ns_mov_b32 s{sK2}, {fhex(K2)}')
            vk1 = v.alloc(); S(f'v_mov_b32 v{vk1}, s{sK1}')
            tg = v.alloc(4, 4); tu = v.alloc(4, 4); tz = v.alloc(4, 4)
            S(f's_lshl_b32 s{sT}, s{sTb}, 3\ns_lshl_b32 s{sT2}, s{sTh}, 2\ns_add_u32 s{sT}, s{sT}, s{sT2}\ns_mul_i32 s{sT}, s{sT}, {72*1024}')
            S(f's_lshl_b32 s{sT2}, s{sC}, 2\ns_add_u32 s{sT2}, s{sT2}, s{sFq}\ns_lshl_b32 s{sT2}, s{sT2}, 10\ns_add_u32 s{sT}, s{sT}, s{sT2}')
            S(f's_add_u32 s{sT}, s{sT}, {ACT_OFF}')
            vH = [v.alloc(4, 4) for _ in range(2)]
            ND = ndefer if (fused and defer) else 0
            for tt in range(4):
                H = vH[tt % 2] if tt < 4 - ND else HCARRY + 4*tt
                if ND and tt == 4 - ND: S(f's_mov_b32 s{sHaddr}, s{sT}')
                for i in range(2):
                    G, U = acc[1+i][tt], acc[3+i][tt]
                    for r in range(4): S(f'v_fma_f32 v{G+r}, v{vb[tt]}, v{cg[i]+r}, v{G+r}')
                    for r in range(4): S(f'v_fma_f32 v{U+r}, v{vb[tt]}, v{cu[i]+r}, v{U+r}')
                    for r in range(4): S(f'v_mul_f32 v{G+r}, v{G+r}, v{va[tt]}')
                    for r in range(4): S(f'v_mul_f32 v{tz+r}, v{G+r}, v{G+r}')
                    for r in range(4): S(f'v_fma_f32 v{tz+r}, v{tz+r}, s{sK2}, v{vk1}')
                    for r in range(4): S(f'v_mul_f32 v{tz+r}, v{tz+r}, v{G+r}')
                    for r in range(4): S(f'v_exp_f32 v{tz+r}, v{tz+r}')
                    for r in range(4): S(f'v_mul_f32 v{U+r}, v{U+r}, v{G+r}')
                    for r in range(4): S(f'v_fma_f32 v{tz+r}, v{tz+r}, v{vsd[tt]}, v{vsd[tt]}')
                    for r in range(4): S(f'v_rcp_f32 v{tz+r}, v{tz+r}')
                    S('s_nop 0')
                    for r in range(4): S(f'v_mul_f32 v{U+r}, v{U+r}, v{tz+r}')
                    S(f'v_cvt_pk_bf16_f32 v{H+2*i}, v{U}, v{U+1}')
                    S(f'v_cvt_pk_bf16_f32 v{H+2*i+1}, v{U+2}, v{U+3}')
                if tt < 4 - ND:
                    S(f'buffer_store_dwordx4 {vr(H,4)}, v{vOff}, s[{sWS}:{sWS+3}], s{sT} offen{SC}', tag='h')
                    if tt < 3: S(f's_add_u32 s{sT}, s{sT}, {72*1024}')
                if fused and tt == PUB_AT: publish(sFQ, 'qk', f'{L}_pq')
            if fused and not defer: publish(sFH, 'h', f'{L}_ph')
        else:
            ra = [v.alloc(4, 4) for _ in range(4)]; rb = [v.alloc(4, 4) for _ in range(4)]
            S(f's_lshl_b32 s{sT}, s{sTh}, 8')
            S(f'v_lshlrev_b32 v{t2}, 4, v{vG}')
            S(f'v_add_u32 v{t2}, s{sT}, v{t2}')
            S(f'v_add_u32 v{t2}, {ST_SUM}, v{t2}')
            for tt in range(4):
                S(f'ds_read_b128 {vr(ra[tt],4)}, v{t2} offset:{tt*64}')
                S(f'ds_read_b128 {vr(rb[tt],4)}, v{t2} offset:{512 + tt*64}')
            cv = [v.alloc() for _ in range(4)]
            S(f's_mul_i32 s{sT}, s{sFq}, 320')
            S(f'v_lshlrev_b32 v{t3}, 2, v{vN}')
            S(f'v_add_u32 v{t3}, s{sT}, v{t3}')
            S(f'v_add_u32 v{t3}, {ST_CS}, v{t3}')
            for i in range(4):
                S(f'ds_read_b32 v{cv[i]}, v{t3} offset:{(1+i)*64}')
                S(f'ds_read_b32 v{vCs[1+i]}, v{t3} offset:{(1+i)*64 + 1280}')
            for i in range(4): S(f'v_add_f32 v{cv[i]}, v{cv[i]}, v{vCs[1+i]}')
            S(f's_sub_u32 s{sT}, s{sC}, 14\ns_lshl_b32 s{sT}, s{sT}, 4\ns_lshl_b32 s{sT2}, s{sFq}, 2\ns_add_u32 s{sT}, s{sT}, s{sT2}\ns_lshl_b32 s{sT}, s{sT}, 16')
            S(f's_lshl_b32 s{sT2}, s{sTb}, 2\ns_lshl_b32 s{sT3}, s{sTh}, 1\ns_add_u32 s{sT2}, s{sT2}, s{sT3}\ns_lshl_b32 s{sT2}, s{sT2}, 10')
            S(f's_add_u32 s{sT}, s{sT}, s{sT2}\ns_add_u32 s{sT}, s{sT}, {V_OFF}')
            vH = [v.alloc(4, 4) for _ in range(2)]
            n = 0
            for i in range(4):
                for p in range(2):
                    H = vH[n & 1]; n += 1
                    for u in range(2):
                        tt = 2*p + u; D = acc[1+i][tt]
                        for r in range(4): S(f'v_fma_f32 v{D+r}, v{rb[tt]+r}, v{cv[i]}, v{D+r}')
                        for r in range(4): S(f'v_mul_f32 v{D+r}, v{D+r}, v{ra[tt]+r}')
                        S(f'v_cvt_pk_bf16_f32 v{H+2*u}, v{D}, v{D+1}')
                        S(f'v_cvt_pk_bf16_f32 v{H+2*u+1}, v{D+2}, v{D+3}')
                    S(f'v_permlane32_swap_b32 v{H}, v{H+2}')
                    S(f'v_permlane32_swap_b32 v{H+1}, v{H+3}')
                    S(f'buffer_store_dwordx4 {vr(H,4)}, v{vOff}, s[{sWS}:{sWS+3}], s{sT} offen offset:{p*1024}{SC}', tag='v')
                if i < 3: S(f's_add_u32 s{sT}, s{sT}, 65536')
            if fused: publish(sFQ, 'v', f'{L}_pv')

    S(f's_cmp_eq_u32 s{sIsB}, 1\ns_cbranch_scc1 {L}_typeB')
    S(f's_cmp_eq_u32 s{sDuty}, 1\ns_cbranch_scc1 {L}_A1')
    procs = Processor().run(S)
    import copy
    outs = []
    def tail(typeB):
        if dbg: dbg_stamp(S, 84, 2, 0, 0, 0)
        reduce_stats(typeB)
        if stamps: S(f's_memtime s[{sSt+12}:{sSt+13}]')
        epilogue(typeB)
        if stamps:
            S(f's_memtime s[{sSt+16}:{sSt+17}]')
            S('s_waitcnt vmcnt(0)')
            S(f's_memtime s[{sSt+6}:{sSt+7}]\ns_memrealtime s[{sSt+8}:{sSt+9}]\ns_waitcnt lgkmcnt(0)')
            S(f's_sub_u32 s{sSt+2}, s{sSt+2}, s{sSt}\ns_sub_u32 s{sSt+4}, s{sSt+4}, s{sSt}\ns_sub_u32 s{sSt+6}, s{sSt+6}, s{sSt}\ns_sub_u32 s{sSt+8}, s{sSt+8}, s{sSt+10}')
            P = A[0][0]
            S(f'v_mov_b32 v{P}, s{sSt+2}\nv_mov_b32 v{P+1}, s{sSt+4}\nv_mov_b32 v{P+2}, s{sSt+6}\nv_mov_b32 v{P+3}, s{sSt+8}')
            S(f's_lshl_b32 s{sT}, s2, 3\ns_add_u32 s{sT}, s{sT}, s{sW}\ns_lshl_b32 s{sT}, s{sT}, 4\ns_add_u32 s{sT}, s{sT}, {STAMP_OFF}')
            S(f'v_mov_b32 v{t0}, 0')
            S(f'buffer_store_dwordx4 {vr(P,4)}, v{t0}, s[{sWS}:{sWS+3}], s{sT} offen')
            for a in (12, 14, 16): S(f's_sub_u32 s{sSt+a}, s{sSt+a}, s{sSt}')
            P = A[0][1]
            S(f's_sub_u32 s{sSt+18}, s{sSt+18}, s{sSt+10}\ns_sub_u32 s{sSt+20}, s{sSt+20}, s{sSt+10}\ns_lshl_b32 s{sSt+20}, s{sSt+20}, 16\ns_or_b32 s{sSt+18}, s{sSt+18}, s{sSt+20}')
            S(f'v_mov_b32 v{P}, s{sSt+12}\nv_mov_b32 v{P+1}, s{sSt+14}\nv_mov_b32 v{P+2}, s{sSt+16}\nv_mov_b32 v{P+3}, s{sSt+18}')
            S(f's_add_u32 s{sT}, s{sT}, {1 << 20}')
            S(f'buffer_store_dwordx4 {vr(P,4)}, v{t0}, s[{sWS}:{sWS+3}], s{sT} offen')
        if dbg:
            if fused: dbg_stamp(S, 84, 3, 0, 0, 0); S('s_waitcnt lgkmcnt(0)')
            else: dbg_final(S, 84, acc[0][0], sT, 0, sWS)
        if fused: S(f's_mov_b32 s{sIsBk}, {1 if typeB else 0}\ns_branch {L}_p2')
        else: S('s_endpgm')
    for typeB in (False, True):
        tn = 'B' if typeB else 'A'
        S.ins = []
        if typeB:
            S.label(f'{L}_typeB')
            S(f's_cmp_eq_u32 s{sDuty}, 1\ns_cbranch_scc1 {L}_B1')
        mainloop(typeB, 0)
        S(f's_branch {L}_{tn}tail')
        p0 = copy.deepcopy(procs); n0 = len(p0.out); p0.run(S); outs.append('\n'.join(p0.out[n0:]))
        S.ins = []
        S.label(f'{L}_{tn}1')
        mainloop(typeB, 1)
        S.label(f'{L}_{tn}tail')
        S('s_nop 7')
        tail(typeB)
        p = copy.deepcopy(procs); n0 = len(p.out); p.run(S); outs.append('\n'.join(p.out[n0:])); last = p
    if fused: return procs.text() + '\n' + '\n'.join(outs), last, v.hi
    text = procs.text() + '\n' + '\n'.join(outs) + f'\n{L}_end:\ns_endpgm\n'
    return kernel_text(name, text, v.hi), last, v.hi

if __name__ == '__main__':
    import sys
    t, p, hi = gen_gemm1()
    print(t)
    from collections import Counter
    print('vgprs', hi, 'nops', p.nops_inserted, Counter(w.split(' (')[0] for w, n, _ in p.nop_log), file=sys.stderr)
```

```python
from common import *
from diag import *

LDS2 = 163840
GRING = 131072

def gen_p2(S, L, fused=True, stamps=False, dbg=False, xp='', G_R=2, aprio=1, pollmod='sc1', pollsleep=2, setmod='atomic', defer=True, hpos='late', kvmode='G', ndefer=1):
    sWS, sWD, sWO, sX, sOut, sDbg = 8, 12, 16, 20, 24, 28
    sW, sHead, sQb, sT, sT2, sT3, sCnt, sTb, sFb, sLds = 32, 33, 34, 35, 36, 37, 38, 39, 40, 41
    sWo, sAo, sWo2, sAo2, sMask, sKoff, sPoll, sG = 42, 43, 44, 45, 46, 48, 49, 50
    sSt = 64
    v = VAlloc(256, 'v', 1)
    vLane = v.alloc(); vOff = v.alloc(); t0, t1, t2, t3 = [v.alloc() for _ in range(4)]
    base_mark = v.mark()
    S(f's_load_dwordx4 s[52:55], s[0:1], {KA_X}')
    S(f's_load_dwordx2 s[56:57], s[0:1], {KA_WO}')
    S(f's_load_dwordx4 s[60:63], s[0:1], {KA_WD}')
    S(f's_load_dwordx4 s[4:7], s[0:1], {KA_DBG}')
    S(f'v_and_b32 v{vLane}, 63, v0')
    S(f'v_lshrrev_b32 v{t0}, 6, v0')
    S(f'v_lshlrev_b32 v{vOff}, 4, v{vLane}')
    S(f'v_readfirstlane_b32 s{sW}, v{t0}')
    S(f's_and_b32 s{sHead}, s2, 7\ns_lshl_b32 s{sHead}, s{sHead}, 2\ns_lshr_b32 s{sT}, s2, 6\ns_add_u32 s{sHead}, s{sHead}, s{sT}')
    S(f's_lshr_b32 s{sQb}, s2, 3\ns_and_b32 s{sQb}, s{sQb}, 7')
    S('s_waitcnt lgkmcnt(0)')
    srd(S, sWS, 6, WS_SIZE); srd(S, sDbg, 4, 256)
    srd(S, sX, 52, 2048 * 512 * 2); srd(S, sWO, 56, 512 * 512 * 2)
    srd(S, sWD, 60, 1792 * 512 * 2); srd(S, sOut, 62, 2048 * 512 * 2)
    if stamps: S(f's_memtime s[{sSt}:{sSt+1}]\ns_memrealtime s[{sSt+10}:{sSt+11}]')
    if fused and 'F' not in xp:
        S(f'v_lshlrev_b32 v{t0}, 2, v{vLane}')
        poll(S, sDbg, t0, t1, sPoll, '0x01010101', 64)
        S(f's_lshr_b32 s{sT}, s{sHead}, 2\ns_lshl_b32 s{sT}, s{sT}, 11')
        S(f's_lshr_b32 s{sT2}, s{sHead}, 4\ns_add_u32 s{sT2}, s{sT2}, 14\ns_lshl_b32 s{sT2}, s{sT2}, 11')
        S(f'v_and_b32 v{t0}, 15, v{vLane}\nv_lshlrev_b32 v{t0}, 7, v{t0}')
        S(f's_add_u32 s{sT3}, s{sT}, {8 << 11}')
        S(f'v_mov_b32 v{t1}, s{sT3}\nv_mov_b32 v{t2}, s{sT2}')
        S(f'v_cmp_gt_u32 vcc, 16, v{vLane}')
        S(f'v_cndmask_b32 v{t1}, v{t2}, v{t1}, vcc')
        S(f's_lshl_b32 s{sT2}, s{sQb}, 8\ns_add_u32 s{sT}, s{sT}, s{sT2}')
        S(f'v_mov_b32 v{t2}, s{sT}')
        S(f'v_cmp_gt_u32 vcc, 32, v{vLane}')
        S(f'v_cndmask_b32 v{t1}, v{t2}, v{t1}, vcc')
        S(f'v_add_u32 v{t0}, v{t0}, v{t1}')
        S(f's_mov_b32 s{sT3}, {FQ_OFF}')
        poll(S, sWS, t0, t1, sPoll, 1, 34, soff=sT3)
    if dbg: dbg_stamp(S, 64, 0, 0, 0, 0)
    S(f's_lshl_b32 s{sKoff}, s{sHead}, 16\ns_lshl_b32 s{sT3}, s{sW}, 10\ns_add_u32 s{sKoff}, s{sKoff}, s{sT3}')
    SC = ' sc1' if fused else ''
    def dma(i, tag):
        S(f's_add_u32 m0, s{sT3}, {i*8192}')
        S(f's_add_u32 s{sT2}, s{sKoff}, {K_OFF + i*8192}')
        S(f'buffer_load_dwordx4 v{vOff}, s[{sWS}:{sWS+3}], s{sT2} offen{SC} lds', tag=tag)
        S(f's_add_u32 m0, s{sT3}, {65536 + i*8192}')
        S(f's_add_u32 s{sT2}, s{sKoff}, {V_OFF + i*8192}')
        S(f'buffer_load_dwordx4 v{vOff}, s[{sWS}:{sWS+3}], s{sT2} offen{SC} lds', tag=tag)
    dma(0, 'kv0')
    S(f's_cmp_ge_u32 s{sW}, 4\ns_cbranch_scc1 {L}_G')
    import copy
    pre = Processor().run(S)
    SA = Stream(); S_ = SA
    v.release(base_mark)
    vKa = v.alloc(); vVa = v.alloc(); vM = v.alloc()
    Q = [v.alloc(4, 4) for _ in range(2)]; Kf = [v.alloc(4, 4) for _ in range(2)]
    Vf = [[v.alloc(4, 4) for _ in range(2)] for _ in range(2)]
    P = [v.alloc(8, 4) for _ in range(2)]; Sx = [v.alloc(16, 4) for _ in range(2)]
    O = [v.alloc(16, 4) for _ in range(2)]; Cm = [v.alloc(16, 4) for _ in range(2)]
    hiA = v.hi
    def dmaS(St, i, tag):
        St(f's_add_u32 m0, s{sT3}, {i*8192}')
        St(f's_add_u32 s{sT2}, s{sKoff}, {K_OFF + i*8192}')
        St(f'buffer_load_dwordx4 v{vOff}, s[{sWS}:{sWS+3}], s{sT2} offen{SC} lds', tag=tag)
        St(f's_add_u32 m0, s{sT3}, {65536 + i*8192}')
        St(f's_add_u32 s{sT2}, s{sKoff}, {V_OFF + i*8192}')
        St(f'buffer_load_dwordx4 v{vOff}, s[{sWS}:{sWS+3}], s{sT2} offen{SC} lds', tag=tag)
    A_ = SA
    HC = 240; sFH, sHaddr, sIsBk = 95, 100, 101
    def hstores(St, lb):
        if not (fused and defer): return
        St(f's_cmp_eq_u32 s{sIsBk}, 1\ns_cbranch_scc1 {lb}')
        for tt in range(4 - ndefer, 4):
            St(f'buffer_store_dwordx4 {vr(HC+4*tt,4)}, v{vOff}, s[{sWS}:{sWS+3}], s{sHaddr} offen sc1', tag='nocount')
            if tt < 3: St(f's_add_u32 s{sHaddr}, s{sHaddr}, {72*1024}')
        St.label(lb)
    A_(f's_lshl_b32 s{sT}, s{sHead}, 16\ns_lshl_b32 s{sT2}, s{sQb}, 13\ns_add_u32 s{sT}, s{sT}, s{sT2}\ns_lshl_b32 s{sT2}, s{sW}, 11\ns_add_u32 s{sT}, s{sT}, s{sT2}')
    if Q_OFF: A_(f's_add_u32 s{sT}, s{sT}, {Q_OFF}')
    for a in range(2):
        A_(f'buffer_load_dwordx4 {vr(Q[a],4)}, v{vOff}, s[{sWS}:{sWS+3}], s{sT} offen offset:{a*1024}{SC}', tag='q')
    if kvmode != 'G':
        for i in range(1, 8): dmaS(A_, i, 'kvrest')
    if hpos == 'after': hstores(A_, f'{L}_hsA')
    A_(f'v_mov_b32 v{vKa}, v{vOff}')
    A_(f'v_lshrrev_b32 v{t0}, 5, v{vLane}\nv_lshlrev_b32 v{t0}, 8, v{t0}\nv_and_b32 v{t1}, 15, v{vLane}\nv_lshlrev_b32 v{t1}, 4, v{t1}')
    A_(f'v_add_u32 v{vVa}, v{t0}, v{t1}\nv_add_u32 v{vVa}, 0x10000, v{vVa}')
    A_(f's_mov_b32 s{sMask}, 0x0000ffff\ns_mov_b32 s{sMask+1}, 0x0000ffff')
    A_(f'v_and_b32 v{t0}, 27, v{vLane}\nv_cmp_eq_u32 vcc, 16, v{t0}\nv_mov_b32 v{t1}, 0x3f803f80\nv_cndmask_b32 v{t1}, 0, v{t1}, vcc')
    for a in Vf:
        for b in a:
            for i in range(4): A_(f'v_mov_b32 v{b+i}, v{t1}')
    if aprio: A_(f's_setprio {aprio}')
    A_.wait_vm('kv0'); A_('s_barrier')
    if hpos == 'late': hstores(A_, f'{L}_hsA')
    if stamps: A_(f's_memtime s[{sSt+2}:{sSt+3}]')
    if dbg: dbg_stamp(A_, 64, 1, 0, 0, 0)
    M32 = 'v_mfma_f32_32x32x16_bf16'
    A_(f'ds_read_b128 {vr(Kf[0],4)}, v{vKa}\nds_read_b128 {vr(Kf[1],4)}, v{vKa} offset:1024')
    DELTA = 64.0
    for a in range(2):
        A_(f'{M32} {vr(Sx[0],16)}, {vr(Kf[0],4)}, {vr(Q[a],4)}, 0')
        A_(f'{M32} {vr(Sx[1],16)}, {vr(Kf[1],4)}, {vr(Q[a],4)}, 0')
        A_(f'v_max3_f32 v{vM}, v{Sx[0]}, v{Sx[0]+1}, v{Sx[0]+2}')
        for i in range(3, 15, 2): A_(f'v_max3_f32 v{vM}, v{vM}, v{Sx[0]+i}, v{Sx[0]+i+1}')
        A_(f'v_max3_f32 v{vM}, v{vM}, v{Sx[0]+15}, v{Sx[1]}')
        for i in range(1, 15, 2): A_(f'v_max3_f32 v{vM}, v{vM}, v{Sx[1]+i}, v{Sx[1]+i+1}')
        A_(f'v_max_f32 v{vM}, v{vM}, v{Sx[1]+15}')
        A_(f'v_mov_b32 v{t0}, v{vM}\nv_permlane32_swap_b32 v{vM}, v{t0}\nv_max_f32 v{vM}, v{vM}, v{t0}')
        A_(f'v_add_f32 v{vM}, {fhex(DELTA)}, v{vM}')
        for i in range(16): A_(f'v_sub_f32 v{Cm[a]+i}, 0, v{vM}')
    def rdK(off, buf): A_(f'ds_read_b128 {vr(Kf[buf],4)}, v{vKa} offset:{off*1024}')
    def rdV(off, buf):
        A_(f's_mov_b64 exec, s[{sMask}:{sMask+1}]')
        A_(f'ds_read_b128 {vr(Vf[buf][0],4)}, v{vVa} offset:{off*1024}')
        A_(f'ds_read_b128 {vr(Vf[buf][1],4)}, v{vVa} offset:{off*1024+512}')
        A_(f's_mov_b64 exec, -1')
    def qk(a, kb): A_(f'{M32} {vr(Sx[a],16)}, {vr(Kf[kb],4)}, {vr(Q[a],4)}, {vr(Cm[a],16)}')
    def pv(a, u, vb): A_(f'{M32} {vr(O[a],16)}, {vr(Vf[vb][u],4)}, {vr(P[a]+4*u,4)}, {vr(O[a],16)}')
    rdV(0, 0)
    for a in range(2):
        for i in range(16): A_(f'v_mov_b32 v{O[a]+i}, 0')
    qk(0, 0)
    UN = 8
    def tile(t, off, first=False, last=False):
        b = t & 1; nb = b ^ 1
        e = lambda a, i: A_(f'v_exp_f32 v{Sx[a]+i}, v{Sx[a]+i}')
        c = lambda a, i: A_(f'v_cvt_pk_bf16_f32 v{P[a]+i}, v{Sx[a]+2*i}, v{Sx[a]+2*i+1}')
        def phase(a, m_pre, m_mid):
            e(a,0); e(a,1); e(a,2); c(a,0); e(a,3); e(a,4); c(a,1); e(a,5)
            m_pre()
            e(a,6); c(a,2); e(a,7); e(a,8); c(a,3); e(a,9); e(a,10)
            m_mid()
            c(a,4); e(a,11); e(a,12); c(a,5); e(a,13); e(a,14); e(a,15); c(a,6); c(a,7)
        qk(1, b)
        rdK(off + 1, nb)
        def pre_a():
            if not first: pv(1, 1, nb)
            rdV(off + 1, nb)
        phase(0, pre_a, lambda: pv(0, 0, b))
        A_('s_waitcnt lgkmcnt(0)')
        qk(0, nb)
        if last:
            A_(f'v_add_u32 v{vKa}, {UN*1024}, v{vKa}\nv_add_u32 v{vVa}, {UN*1024}, v{vVa}\ns_sub_u32 s{sCnt}, s{sCnt}, 1')
        phase(1, lambda: pv(0, 1, b), lambda: pv(1, 0, b))
    def block(first):
        for t in range(UN):
            if first and t == UN - 1:
                A_.wait_vm('kvrest'); A_('s_waitcnt vmcnt(0)')
                if dbg and 'B' in xp: dbg_stamp(A_, 64, 0, 0, 0, 0)
                A_('s_barrier')
                if dbg and 'B' not in xp: dbg_stamp(A_, 64, 0, 0, 0, 0)
            tile(t, t, first=(first and t == 0), last=(t == UN - 1))
    A_(f's_mov_b32 s{sCnt}, {64 // UN}')
    block(True)
    A_.label(f'{L}_aloop')
    block(False)
    A_(f's_cmp_lg_u32 s{sCnt}, 0\ns_cbranch_scc1 {L}_aloop')
    pv(1, 1, 1)
    A_('s_waitcnt lgkmcnt(0)')
    if stamps: A_(f's_memtime s[{sSt+4}:{sSt+5}]')
    if dbg: dbg_stamp(A_, 64, 2, 0, 0, 0)
    if 'b' not in xp: A_('s_barrier')
    A_('s_nop 7\ns_nop 3')
    A_(f'v_mov_b32 v{t1}, 0x7f800000\nv_mov_b32 v{t2}, {fhex(2.0**110)}')
    A_(f's_mov_b64 s[4:5], -1')
    for a in range(2):
        A_(f'v_add_f32 v{t0}, |v{O[a]}|, |v{O[a]+1}|')
        for i in range(2, 8): A_(f'v_add_f32 v{t0}, v{t0}, |v{O[a]+i}|')
        A_(f'v_cmp_lt_f32 vcc, v{t0}, v{t1}')
        A_(f's_and_b64 s[4:5], s[4:5], vcc')
        A_(f'v_cmp_lt_f32 vcc, v{O[a]+8}, v{t2}')
        A_(f's_and_b64 s[4:5], s[4:5], vcc')
    A_(f's_cmp_eq_u64 s[4:5], -1\ns_cbranch_scc1 {L}_afin')
    for a in range(2):
        A_(f'v_mov_b32 v{vKa}, v{vOff}')
        A_(f'v_lshrrev_b32 v{t0}, 5, v{vLane}\nv_lshlrev_b32 v{t0}, 8, v{t0}\nv_and_b32 v{t1}, 15, v{vLane}\nv_lshlrev_b32 v{t1}, 4, v{t1}')
        A_(f'v_add_u32 v{vVa}, v{t0}, v{t1}\nv_add_u32 v{vVa}, 0x10000, v{vVa}')
        A_(f'v_mov_b32 v{vM}, 0xff800000')
        for i in range(16): A_(f'v_mov_b32 v{O[a]+i}, 0')
        A_(f's_mov_b32 s{sCnt}, 64')
        A_.label(f'{L}_slow{a}')
        rdK(0, 0); rdV(0, 0)
        A_('s_waitcnt lgkmcnt(0)')
        X = Sx[0]
        A_(f'{M32} {vr(X,16)}, {vr(Kf[0],4)}, {vr(Q[a],4)}, 0')
        A_(f'v_max3_f32 v{t0}, v{X}, v{X+1}, v{X+2}')
        for i in range(3, 15, 2): A_(f'v_max3_f32 v{t0}, v{t0}, v{X+i}, v{X+i+1}')
        A_(f'v_max3_f32 v{t0}, v{t0}, v{X+15}, v{vM}')
        A_(f'v_mov_b32 v{t1}, v{t0}\nv_permlane32_swap_b32 v{t0}, v{t1}\nv_max_f32 v{t0}, v{t0}, v{t1}')
        A_(f'v_sub_f32 v{t1}, v{vM}, v{t0}\nv_exp_f32 v{t1}, v{t1}\nv_mov_b32 v{vM}, v{t0}')
        for i in range(16): A_(f'v_mul_f32 v{O[a]+i}, v{O[a]+i}, v{t1}')
        for i in range(16): A_(f'v_sub_f32 v{X+i}, v{X+i}, v{vM}')
        for i in range(16): A_(f'v_exp_f32 v{X+i}, v{X+i}')
        for i in range(8): A_(f'v_cvt_pk_bf16_f32 v{P[a]+i}, v{X+2*i}, v{X+2*i+1}')
        pv(a, 0, 0); pv(a, 1, 0)
        A_(f'v_add_u32 v{vKa}, 1024, v{vKa}\nv_add_u32 v{vVa}, 1024, v{vVa}')
        A_(f's_sub_u32 s{sCnt}, s{sCnt}, 1\ns_cmp_lg_u32 s{sCnt}, 0\ns_nop 7\ns_nop 7')
        A_(f's_cbranch_scc1 {L}_slow{a}')
    A_.label(f'{L}_afin')
    A_('s_nop 7\ns_nop 3')
    A_(f's_lshl_b32 s{sT}, s{sQb}, 2\ns_add_u32 s{sTb}, s{sT}, s{sW}')
    A_(f's_mul_i32 s{sT}, s{sTb}, {4*72*1024}')
    A_(f's_lshr_b32 s{sT2}, s{sHead}, 1\ns_lshl_b32 s{sT2}, s{sT2}, 10\ns_add_u32 s{sT}, s{sT}, s{sT2}')
    A_(f's_and_b32 s{sT2}, s{sHead}, 1\ns_lshl_b32 s{sT2}, s{sT2}, 9\ns_add_u32 s{sT}, s{sT}, s{sT2}\ns_add_u32 s{sT}, s{sT}, {ACT_OFF + 56*1024}')
    A_(f'v_bfe_u32 v{t0}, v{vLane}, 4, 1\nv_mul_u32_u24 v{t0}, {72*1024}, v{t0}\nv_lshrrev_b32 v{t1}, 5, v{vLane}\nv_lshl_add_u32 v{t0}, v{t1}, 8, v{t0}')
    A_(f'v_and_b32 v{t1}, 15, v{vLane}\nv_lshl_add_u32 v{t0}, v{t1}, 4, v{t0}')
    for a in range(2):
        A_(f'v_rcp_f32 v{t2}, v{O[a]+8}')
        A_('s_nop 0')
        for i in range(8): A_(f'v_mul_f32 v{O[a]+i}, v{O[a]+i}, v{t2}')
        for i in range(4): A_(f'v_cvt_pk_bf16_f32 v{P[a]+i}, v{O[a]+2*i}, v{O[a]+2*i+1}')
        A_(f'buffer_store_dwordx4 {vr(P[a],4)}, v{t0}, s[{sWS}:{sWS+3}], s{sT} offen sc1')
        if a == 0: A_(f's_add_u32 s{sT}, s{sT}, {2*72*1024}')
    if True:
        A_(f's_lshl_b32 s{sT}, s{sTb}, 12\ns_lshl_b32 s{sT2}, s{sHead}, 7\ns_add_u32 s{sT}, s{sT}, s{sT2}\ns_add_u32 s{sT}, s{sT}, {FO_OFF}')
        A_(f'v_mov_b32 v{t0}, 0\nv_mov_b32 v{t1}, 1')
        A_('s_waitcnt vmcnt(0)')
        A_('s_mov_b64 exec, 1')
        if setmod == 'store': A_(f'buffer_store_dword v{t1}, v{t0}, s[{sWS}:{sWS+3}], s{sT} offen sc1')
        elif setmod == 'store2': A_(f'buffer_store_dword v{t1}, v{t0}, s[{sWS}:{sWS+3}], s{sT} offen sc0 sc1')
        else: A_(f'buffer_atomic_add v{t1}, v{t0}, s[{sWS}:{sWS+3}], s{sT} offen sc1')
        A_('s_mov_b64 exec, -1')
    if stamps:
        A_('s_waitcnt vmcnt(0)')
        A_(f's_memtime s[{sSt+6}:{sSt+7}]\ns_memrealtime s[{sSt+8}:{sSt+9}]\ns_waitcnt lgkmcnt(0)')
        A_(f's_sub_u32 s{sSt+2}, s{sSt+2}, s{sSt}\ns_sub_u32 s{sSt+4}, s{sSt+4}, s{sSt}\ns_sub_u32 s{sSt+6}, s{sSt+6}, s{sSt}\ns_sub_u32 s{sSt+8}, s{sSt+8}, s{sSt+10}')
        X = Sx[0]
        A_(f'v_mov_b32 v{X}, s{sSt+2}\nv_mov_b32 v{X+1}, s{sSt+4}\nv_mov_b32 v{X+2}, s{sSt+6}\nv_mov_b32 v{X+3}, s{sSt+8}')
        A_(f's_lshl_b32 s{sT}, s2, 3\ns_add_u32 s{sT}, s{sT}, s{sW}\ns_lshl_b32 s{sT}, s{sT}, 4\ns_add_u32 s{sT}, s{sT}, {STAMP_OFF}')
        A_(f'v_mov_b32 v{t0}, 0\nbuffer_store_dwordx4 {vr(X,4)}, v{t0}, s[{sWS}:{sWS+3}], s{sT} offen')
        X = Sx[1]
        A_(f's_add_u32 s{sSt+8}, s{sSt+8}, s{sSt+10}')
        A_(f'v_mov_b32 v{X}, s{sSt+10}\nv_mov_b32 v{X+1}, s{sSt+8}\nv_mov_b32 v{X+2}, 0\nv_mov_b32 v{X+3}, 0')
        A_(f's_add_u32 s{sT}, s{sT}, {2 << 20}\nbuffer_store_dwordx4 {vr(X,4)}, v{t0}, s[{sWS}:{sWS+3}], s{sT} offen')
    if dbg: dbg_final(A_, 64, Sx[0], sT, 1, sWS); (fused and dbg_store(A_, 84, Sx[0], sT, 0, sWS))
    A_('s_endpgm')
    pA = copy.deepcopy(pre); n0 = len(pA.out); pA.run(SA); textA = '\n'.join(pA.out[n0:])

    SG = Stream(); G_ = SG
    v.release(base_mark)
    vN = v.alloc(); vG = v.alloc(); vDw = v.alloc(); vXo = v.alloc()
    vAh = [v.alloc() for _ in range(4)]; vAo = [v.alloc() for _ in range(4)]
    vXr = [v.alloc(2, 2) for _ in range(4)]
    Af = [[v.alloc(4, 4) for _ in range(4)] for _ in range(4)]
    Bf = [[v.alloc(4, 4) for _ in range(4)] for _ in range(4)]
    acc = [[v.alloc(4, 4) for _ in range(4)] for _ in range(4)]
    hiG = v.hi
    G_.label(f'{L}_G')
    def kvrest_G():
        G_(f's_sub_u32 s{sT}, s{sW}, 4\ns_lshl_b32 s{sT3}, s{sT}, 11\ns_lshl_b32 s{sKoff}, s{sHead}, 16\ns_add_u32 s{sKoff}, s{sKoff}, s{sT3}')
        for i in range(1, 8):
            for j in range(2):
                for base, lb_ in ((K_OFF, 0), (V_OFF, 65536)):
                    G_(f's_add_u32 m0, s{sT3}, {lb_ + i*8192 + j*1024}')
                    G_(f's_add_u32 s{sT2}, s{sKoff}, {base + i*8192 + j*1024}')
                    G_(f'buffer_load_dwordx4 v{vOff}, s[{sWS}:{sWS+3}], s{sT2} offen{SC} lds', tag='kvrest')
    if kvmode != 'G':
        for i in range(1, 8): dmaS(G_, i, 'kvrest')
    if hpos == 'after': hstores(G_, f'{L}_hsG')
    G_(f's_sub_u32 s{sG}, s{sW}, 4')
    G_(f'v_and_b32 v{vN}, 15, v0\nv_bfe_u32 v{vG}, v0, 4, 2')
    G_(f's_and_b32 s{sT}, s2, 7\ns_lshl_b32 s{sT}, s{sT}, 2\ns_lshr_b32 s{sT2}, s2, 3\ns_and_b32 s{sT2}, s{sT2}, 3\ns_add_u32 s{sTb}, s{sT}, s{sT2}')
    G_(f's_lshr_b32 s{sFb}, s2, 5')
    G_(f'v_lshrrev_b32 v{t0}, 3, v{vLane}\nv_lshlrev_b32 v{t0}, 10, v{t0}\nv_and_b32 v{t1}, 7, v{vLane}\nv_lshlrev_b32 v{t2}, 1, v{vG}')
    G_(f'v_xor_b32 v{t1}, v{t1}, v{t2}\nv_lshl_add_u32 v{vDw}, v{t1}, 4, v{t0}')
    G_(f's_lshl_b32 s{sLds}, s{sG}, 13\ns_add_u32 s{sLds}, s{sLds}, {GRING}')
    NH, NO = 14, 4
    G_(f's_mul_i32 s{sWo}, s{sG}, {32*NH*1024}\ns_lshl_b32 s{sT}, s{sFb}, 7\ns_add_u32 s{sWo}, s{sWo}, s{sT}')
    G_(f's_mul_i32 s{sAo}, s{sTb}, {4*72*1024}\ns_mul_i32 s{sT}, s{sG}, {NH*1024}\ns_add_u32 s{sAo}, s{sAo}, s{sT}\ns_add_u32 s{sAo}, s{sAo}, {ACT_OFF}')
    G_(f's_mul_i32 s{sWo2}, s{sG}, {32*NO*1024}\ns_lshl_b32 s{sT}, s{sFb}, 7\ns_add_u32 s{sWo2}, s{sWo2}, s{sT}')
    G_(f's_mul_i32 s{sAo2}, s{sTb}, {4*72*1024}\ns_mul_i32 s{sT}, s{sG}, {NO*1024}\ns_add_u32 s{sAo2}, s{sAo2}, s{sT}\ns_add_u32 s{sAo2}, s{sAo2}, {ACT_OFF + 56*1024}')
    vR, vCq = t2, t3
    G_(f'v_lshrrev_b32 v{vR}, 2, v{vN}\nv_and_b32 v{vCq}, 3, v{vN}')
    G_(f'v_and_b32 v{t0}, 1, v{vG}\nv_lshlrev_b32 v{t0}, 1, v{t0}\nv_lshrrev_b32 v{t1}, 1, v{vR}\nv_add_u32 v{t0}, v{t0}, v{t1}')
    G_(f'v_lshlrev_b32 v{t0}, 1, v{t0}\nv_lshrrev_b32 v{t1}, 1, v{vCq}\nv_xor_b32 v{t0}, v{t0}, v{t1}\nv_lshlrev_b32 v{t0}, 4, v{t0}')
    G_(f'v_and_b32 v{t1}, 1, v{vCq}\nv_lshl_add_u32 v{t0}, v{t1}, 3, v{t0}')
    G_(f'v_lshl_add_u32 v{t1}, v{vG}, 2, v{vR}\nv_lshl_add_u32 v{vAh[0]}, v{t1}, 7, v{t0}')
    G_(f'v_lshrrev_b32 v{t1}, 1, v{vG}\nv_lshlrev_b32 v{t1}, 4, v{t1}\nv_add_u32 v{t1}, v{t1}, v{vR}')
    G_(f'v_and_b32 v{vCq}, 1, v{vG}\nv_lshl_add_u32 v{t1}, v{vCq}, 2, v{t1}\nv_lshl_add_u32 v{vAo[0]}, v{t1}, 7, v{t0}')
    for tau in range(1, 4):
        G_(f'v_xor_b32 v{vAh[tau]}, {32*tau}, v{vAh[0]}\nv_xor_b32 v{vAo[tau]}, {32*tau}, v{vAo[0]}')
    for tau in range(4):
        G_(f'v_add_u32 v{vAh[tau]}, s{sLds}, v{vAh[tau]}\nv_add_u32 v{vAo[tau]}, s{sLds}, v{vAo[tau]}')
    def wdma(s):
        if s >= NH + NO: return
        h = s < NH; slot = (s % 2) * 4096
        srdw = sWD if h else sWO; wo, i0 = (sWo, s) if h else (sWo2, s - NH)
        for i in range(4):
            G_(f's_add_u32 m0, s{sLds}, {slot + i*1024}')
            G_(f's_add_u32 s{sT}, s{wo}, {(32*i0 + 8*i)*1024}')
            G_(f'buffer_load_dwordx4 v{vDw}, s[{srdw}:{srdw+3}], s{sT} offen lds', tag=('w', s))
    sRot = [51, 58, 59, 79]
    for tt in range(4):
        G_(f's_add_u32 s{sT}, s{sG}, {tt}\ns_and_b32 s{sT}, s{sT}, 3\ns_mul_i32 s{sRot[tt]}, s{sT}, {72*1024}')
    def bload(s, dst, St=None, raw=False):
        h = s < NH; ao, i0 = (sAo, s) if h else (sAo2, s - NH)
        txt = ''
        for tt in range(4):
            t = f's_add_u32 s{sT}, s{ao}, s{sRot[tt]}\n'
            ld = f'buffer_load_dwordx4 {vr(dst[tt],4)}, v{vOff}, s[{sWS}:{sWS+3}], s{sT} offen offset:{i0*1024 if i0 < 4 else 0}{SC if h else " sc1"}'
            if i0 >= 4: t += f's_add_u32 s{sT}, s{sT}, {i0*1024}\n'
            if raw: txt += t + ld + '\n'
            else: G_(t); G_(ld, tag=('b', s))
        return txt
    def areads(s, dst):
        h = s < NH; slot = (s % 2) * 4096
        for tau in range(4):
            for rd in range(2):
                a = vAh[tau] if h else vAo[tau]
                G_(f'ds_read_b64_tr_b16 {vr(dst[tau]+2*rd,2)}, v{a} offset:{slot + rd*(2048 if h else 1024)}')
    if kvmode != 'G': wdma(0); wdma(1)
    G_.wait_vm('kv0'); G_('s_barrier')
    if hpos == 'late': hstores(G_, f'{L}_hsG')
    if kvmode == 'G':
        kvrest_G(); wdma(0); wdma(1)
    G_.wait_vm('kvrest'); G_('s_barrier')
    if fused and defer:
        G_(f's_cmp_lg_u32 s{sW}, 4\ns_cbranch_scc1 {L}_nofh\ns_cmp_eq_u32 s{sIsBk}, 1\ns_cbranch_scc1 {L}_nofh')
        G_(f'v_mov_b32 v{t0}, 0\nv_mov_b32 v{t1}, 1\ns_mov_b64 exec, 1')
        G_(f'buffer_atomic_add v{t1}, v{t0}, s[{sWS}:{sWS+3}], s{sFH} offen sc1', tag='nocount')
        G_('s_mov_b64 exec, -1')
        G_.label(f'{L}_nofh')
    if 'g' in xp: G_('s_waitcnt vmcnt(0)\ns_endpgm')
    if fused and 'F' not in xp:
        G_(f'v_lshlrev_b32 v{t0}, 7, v{vLane}')
        G_(f's_lshr_b32 s{sT}, s{sTb}, 1\ns_lshl_b32 s{sT}, s{sT}, 11\ns_add_u32 s{sT}, s{sT}, {FH_OFF}')
        poll(G_, sWS, t0, t1, sPoll, 1, 14, soff=sT)
    bload(0, Bf[0]); bload(1, Bf[1])
    def mfmas(s, A, B):
        for tt in range(4):
            for tau in range(4):
                c = '0' if s == 0 else vr(acc[tau][tt], 4)
                G_(f'v_mfma_f32_16x16x32_bf16 {vr(acc[tau][tt],4)}, {vr(A[tau],4)}, {vr(B[tt],4)}, {c}')
    for s in range(NH):
        G_.wait_vm(('w', s))
        areads(s, Af[s & 1])
        G_('s_waitcnt lgkmcnt(0)')
        wdma(s + 2)
        if s + 2 < NH: bload(s + 2, Bf[(s + 2) % 3])
        mfmas(s, Af[s & 1], Bf[s % 3])
    for i in range(NO):
        s = NH + i
        G_.wait_vm(('w', s))
        areads(s, Af[i])
        G_('s_waitcnt lgkmcnt(0)')
        wdma(s + 2)
    G_(f's_lshl_b32 s{sT}, s{sTb}, 6\ns_lshl_b32 s{sT2}, s{sG}, 4\ns_add_u32 s{sT}, s{sT}, s{sT2}')
    G_(f'v_add_u32 v{t0}, s{sT}, v{vN}\nv_lshlrev_b32 v{t0}, 10, v{t0}\ns_lshl_b32 s{sT}, s{sFb}, 7\nv_add_u32 v{t0}, s{sT}, v{t0}')
    G_(f'v_lshl_add_u32 v{vXo}, v{vG}, 3, v{t0}')
    for tau in range(4):
        G_(f'buffer_load_dwordx2 {vr(vXr[tau],2)}, v{vXo}, s[{sX}:{sX+3}], 0 offen offset:{32*tau}', tag='x')
    G_(f'v_and_b32 v{t1}, 1, v{vG}\nv_lshl_add_u32 v{t0}, v{t1}, 5, v{t0}\nv_lshrrev_b32 v{t1}, 1, v{vG}\nv_lshl_add_u32 v{vXo}, v{t1}, 4, v{t0}')
    if stamps: G_(f's_memtime s[{sSt+2}:{sSt+3}]')
    if dbg: dbg_stamp(G_, 64, 1, 0, 0, 0)
    if 'b' not in xp: G_('s_barrier')
    if 'O' not in xp:
        G_(f'v_lshlrev_b32 v{t0}, 7, v{vLane}')
        G_(f's_lshl_b32 s{sT}, s{sTb}, 12\ns_lshl_b32 s{sT2}, s{sG}, 10\ns_add_u32 s{sT}, s{sT}, s{sT2}\ns_add_u32 s{sT}, s{sT}, {FO_OFF}')
        poll(G_, sWS, t0, t1, sPoll, 1, 8, soff=sT, mod=pollmod, sleep=pollsleep)
    if stamps: G_(f's_memtime s[{sSt+4}:{sSt+5}]')
    if dbg: dbg_stamp(G_, 64, 2, 0, 0, 0)
    for i in range(NO): bload(NH + i, Bf[i])
    for i in range(NO): mfmas(NH + i, Af[i], Bf[i])
    if stamps: G_(f's_nop 7\ns_memtime s[88:89]')
    G_('s_barrier')
    if stamps: G_(f's_memtime s[90:91]')
    for tt in range(1, 4):
        G_(f's_add_u32 s{sT}, s{sG}, {tt}\ns_and_b32 s{sT}, s{sT}, 3\ns_mul_i32 s{sT}, s{sT}, 12288\nv_add_u32 v{t1}, s{sT}, v{vOff}')
        for tau in range(4):
            G_(f'ds_write_b128 v{t1}, {vr(acc[tau][tt],4)} offset:{((tt-1)*4 + tau)*1024}')
    G_('s_waitcnt lgkmcnt(0)\ns_barrier')
    if stamps: G_(f's_memtime s[92:93]')
    G_(f's_mul_i32 s{sT}, s{sG}, 12288\nv_add_u32 v{t0}, s{sT}, v{vOff}')
    red = [[Bf[j][tau] for tau in range(4)] for j in range(3)]
    for tau in range(4):
        for j in range(3):
            G_(f'ds_read_b128 {vr(red[j][tau],4)}, v{t0} offset:{(j*4 + tau)*1024}')
    Pk = Af[0][0]
    for tau in range(4):
        d = acc[tau][0]
        G_(f'v_lshlrev_b32 v{t1}, 16, v{vXr[tau]}\nv_and_b32 v{t2}, 0xffff0000, v{vXr[tau]}\nv_add_f32 v{d}, v{d}, v{t1}\nv_add_f32 v{d+1}, v{d+1}, v{t2}')
        G_(f'v_lshlrev_b32 v{t1}, 16, v{vXr[tau]+1}\nv_and_b32 v{t2}, 0xffff0000, v{vXr[tau]+1}\nv_add_f32 v{d+2}, v{d+2}, v{t1}\nv_add_f32 v{d+3}, v{d+3}, v{t2}')
    for tau in range(4):
        d = acc[tau][0]
        for r in range(4): G_(f'v_add_f32 v{red[0][tau]+r}, v{red[0][tau]+r}, v{red[1][tau]+r}')
        for r in range(4): G_(f'v_add_f32 v{d+r}, v{d+r}, v{red[2][tau]+r}')
        for r in range(4): G_(f'v_add_f32 v{d+r}, v{d+r}, v{red[0][tau]+r}')
        G_(f'v_cvt_pk_bf16_f32 v{Pk+2*tau}, v{d}, v{d+1}\nv_cvt_pk_bf16_f32 v{Pk+2*tau+1}, v{d+2}, v{d+3}')
    for p in range(2):
        x, y = Pk + 4*p, Pk + 4*p + 2
        G_(f'v_permlane16_swap_b32 v{x}, v{y}\nv_permlane16_swap_b32 v{x+1}, v{y+1}')
        G_(f'buffer_store_dwordx4 {vr(x,4)}, v{vXo}, s[{sOut}:{sOut+3}], 0 offen offset:{64*p}')
    if stamps:
        G_('s_waitcnt vmcnt(0)')
        G_(f's_memtime s[{sSt+6}:{sSt+7}]\ns_memrealtime s[{sSt+8}:{sSt+9}]\ns_waitcnt lgkmcnt(0)')
        G_(f's_sub_u32 s{sSt+2}, s{sSt+2}, s{sSt}\ns_sub_u32 s{sSt+4}, s{sSt+4}, s{sSt}\ns_sub_u32 s{sSt+6}, s{sSt+6}, s{sSt}\ns_sub_u32 s{sSt+8}, s{sSt+8}, s{sSt+10}')
        X = acc[0][0]
        G_(f'v_mov_b32 v{X}, s{sSt+2}\nv_mov_b32 v{X+1}, s{sSt+4}\nv_mov_b32 v{X+2}, s{sSt+6}\nv_mov_b32 v{X+3}, s{sSt+8}')
        G_(f's_lshl_b32 s{sT}, s2, 3\ns_add_u32 s{sT}, s{sT}, s{sW}\ns_lshl_b32 s{sT}, s{sT}, 4\ns_add_u32 s{sT}, s{sT}, {STAMP_OFF}')
        G_(f'v_mov_b32 v{t0}, 0\nbuffer_store_dwordx4 {vr(X,4)}, v{t0}, s[{sWS}:{sWS+3}], s{sT} offen')
        X = acc[0][1]
        G_(f's_sub_u32 s88, s88, s{sSt}\ns_sub_u32 s90, s90, s{sSt}\ns_sub_u32 s92, s92, s{sSt}')
        G_(f'v_mov_b32 v{X}, s88\nv_mov_b32 v{X+1}, s90\nv_mov_b32 v{X+2}, s92\nv_mov_b32 v{X+3}, s{sPoll}')
        G_(f's_add_u32 s{sT}, s{sT}, {1 << 20}\nbuffer_store_dwordx4 {vr(X,4)}, v{t0}, s[{sWS}:{sWS+3}], s{sT} offen')
        X = acc[0][2]
        G_(f's_add_u32 s{sSt+8}, s{sSt+8}, s{sSt+10}')
        G_(f'v_mov_b32 v{X}, s{sSt+10}\nv_mov_b32 v{X+1}, s{sSt+8}\nv_mov_b32 v{X+2}, 0\nv_mov_b32 v{X+3}, 0')
        G_(f's_add_u32 s{sT}, s{sT}, {1 << 20}\nbuffer_store_dwordx4 {vr(X,4)}, v{t0}, s[{sWS}:{sWS+3}], s{sT} offen')
    if dbg: dbg_final(G_, 64, acc[0][0], sT, 1, sWS); (fused and dbg_store(G_, 84, acc[0][0], sT, 0, sWS))
    G_('s_endpgm')
    pG = copy.deepcopy(pre); n0 = len(pG.out); pG.run(SG); textG = '\n'.join(pG.out[n0:])
    return pre.text() + '\n' + textA + '\n' + textG, max(hiA, hiG), (pA, pG)

def gen_p2_standalone(name='p2_kernel', **kw):
    S = Stream()
    S(f's_cmp_ge_u32 s2, 256\ns_cbranch_scc1 {name}_end')
    t, hi, ps = gen_p2(S, name, fused=False, **kw)
    return kernel_text(name, t + f'\n{name}_end:\ns_endpgm\n', hi), hi, ps
if __name__ == '__main__':
    import sys
    t, hi, ps = gen_p2_standalone()
    print(t)
    from collections import Counter
    for p in ps: print('vgprs', hi, 'nops', p.nops_inserted, Counter(w.split(' (')[0] for w, n, _ in p.nop_log), file=sys.stderr)
```

```python
from common import *
from diag import *

BIG = 0; BIGSZ = 24576; NBIG = 3
MB = BIG + NBIG * BIGSZ; MSZ = 16384; NM = 4
STAT = MB + NM * MSZ
ST_SUM = STAT; ST_SQ = STAT + 512; ST_SD = STAT + 1024; ST_CS = STAT + 1536
LDS1 = STAT + 1536 + 2 * 320 * 4
QSCALE = 0.25 * LOG2E
HCARRY = 240

def gen_gemm1(name='gemm1_kernel', stamps=False, xp='', dbg=False, DMA_FIRST=2, fused=False, PUB_AT=1, setmod='atomic', defer=True, ndefer=1, ROT=False, PF=1, PFSTEP=0, act32=True, PRO=4, TS=False):
    TS = TS and fused
    S = Stream(); L = name
    v = VAlloc(256, 'v', 1)
    sX, sQK, sM0, sM1, sWS = 8, 12, 16, 20, 24
    sW, sTb, sC, sTh, sFq, sT, sT2, sRS = 28, 29, 30, 31, 32, 33, 34, 35
    sXo, sQo, sM0o, sM1o, sLx, sLq, sLm = 36, 37, 38, 39, 40, 41, 42
    sIsB, sScale, sT3, sStepM, sDuty, sMaskHi = 43, 44, 45, 46, 58, 59
    sSt = 60
    sDbg, sFQ, sFH, sHaddr, sIsBk = 96, 94, 95, 100, 101
    sKcB, sKrM, sXc, sMc = 80, 81, 82, 83
    sPc = 78
    sTok = 77
    vLane = v.alloc(); vN = v.alloc(); vG = v.alloc()
    vT = [v.alloc() for _ in range(6)]
    vDx = [v.alloc() for _ in range(2)]; vDq = v.alloc(); vDm = v.alloc()
    vXa = [v.alloc() for _ in range(2)]; vQa = v.alloc(); vMa = [v.alloc() for _ in range(4)]
    vSum = [v.alloc() for _ in range(2)]; vSq = [v.alloc() for _ in range(2)]; vLo = v.alloc(); vHi = v.alloc()
    vXs = [v.alloc() for _ in range(2)]
    vOnes = v.alloc(4, 4)
    A = [[v.alloc(4, 4) for _ in range(5)] for _ in range(2)]
    B = [[v.alloc(4, 4) for _ in range(4)] for _ in range(2)]
    Bs = [v.alloc(4, 4) for _ in range(2)]
    acc = [[v.alloc(4, 4) for _ in range(4)] for _ in range(5)]
    vCs = [v.alloc(4, 4) for _ in range(5)]
    vEp = v.alloc(16, 4)

    S(f's_cmp_ge_u32 s2, 256'); S(f's_cbranch_scc1 {L}_end')
    if stamps: S(f's_memtime s[{sSt}:{sSt+1}]\ns_memrealtime s[{sSt+10}:{sSt+11}]')
    if dbg: dbg_stamp(S, 84, 0, 0, 0, 0)
    if PF:
        S(f's_getpc_b64 s[{sPc}:{sPc+1}]')
        S.label(f'{L}_pc')
    S(f's_load_dwordx4 s[48:51], s[0:1], {KA_X}')
    S(f's_load_dwordx4 s[52:55], s[0:1], {KA_WG}')
    S(f's_load_dwordx2 s[56:57], s[0:1], {KA_WS}')
    if fused: S(f's_load_dwordx2 s[92:93], s[0:1], {KA_DBG}')
    S(f'v_and_b32 v{vLane}, 63, v0')
    S(f'v_lshrrev_b32 v{vT[0]}, 6, v0')
    S(f'v_and_b32 v{vN}, 15, v0')
    S(f'v_readfirstlane_b32 s{sW}, v{vT[0]}')
    S(f'v_bfe_u32 v{vG}, v0, 4, 2')
    S(f's_and_b32 s{sT}, s2, 1\ns_lshl_b32 s{sT}, s{sT}, 3')
    S(f's_lshr_b32 s{sT2}, s2, 3\ns_and_b32 s{sT2}, s{sT2}, 7\ns_add_u32 s{sTb}, s{sT}, s{sT2}')
    S(f's_lshr_b32 s{sT}, s2, 1\ns_and_b32 s{sT}, s{sT}, 3\ns_lshl_b32 s{sT}, s{sT}, 2')
    S(f's_lshr_b32 s{sT2}, s2, 6\ns_add_u32 s{sC}, s{sT}, s{sT2}')
    S(f's_and_b32 s{sTh}, s{sW}, 1\ns_lshr_b32 s{sFq}, s{sW}, 1')
    S(f's_cmp_ge_u32 s{sC}, 14\ns_cselect_b32 s{sIsB}, 1, 0')
    S(f's_lshr_b32 s{sDuty}, s{sFq}, 1\ns_xor_b32 s{sDuty}, s{sDuty}, s{sTh}')
    S(f's_cmp_eq_u32 s{sIsB}, 1')
    S(f's_mov_b32 s{sRS}, 3584\ns_cmov_b32 s{sRS}, 3072')
    S(f's_lshl_b32 s{sXo}, s{sTb}, 17')
    S(f's_lshl_b32 s{sQo}, s{sC}, 7')
    S(f's_lshl_b32 s{sM0o}, s{sC}, 8')
    S(f's_sub_u32 s{sT}, s{sC}, 14\ns_lshl_b32 s{sT}, s{sT}, 9\ns_add_u32 s{sT}, s{sT}, 2048')
    S(f's_cmp_eq_u32 s{sIsB}, 1')
    S(f's_cselect_b32 s{sM0o}, s{sT}, s{sM0o}')
    S(f's_cselect_b32 s{sT}, 256, 0')
    S(f's_add_u32 s{sM1o}, s{sM0o}, s{sT}')
    S(f's_lshl_b32 s{sStepM}, s{sRS}, 5')
    if ROT:
        S(f's_lshl_b32 s{sKcB}, s{sC}, 1\ns_add_u32 s{sKcB}, s{sKcB}, s{sTb}\ns_and_b32 s{sKcB}, s{sKcB}, 7\ns_lshl_b32 s{sKrM}, s{sKcB}, 1')
    else:
        S(f's_mov_b32 s{sKcB}, 0\ns_mov_b32 s{sKrM}, 0')
    t0, t1, t2, t3, t4, t5 = vT
    S(f'v_lshrrev_b32 v{t3}, 3, v{vLane}')
    S(f'v_and_b32 v{t4}, 7, v{vLane}')
    S(f's_lshl_b32 s{sT}, s{sW}, 4')
    S(f'v_add_u32 v{t0}, s{sT}, v{t3}\nv_lshlrev_b32 v{t0}, 10, v{t0}\nv_xor_b32 v{t1}, v{t4}, v{vG}')
    S(f'v_lshl_add_u32 v{vDx[0]}, v{t1}, 4, v{t0}')
    S(f'v_xor_b32 v{vDx[1]}, 64, v{vDx[0]}\nv_add_u32 v{vDx[1]}, 8192, v{vDx[1]}')
    S(f'v_bfe_u32 v{t2}, v{vLane}, 4, 1')
    S(f's_and_b32 s{sT}, s{sW}, 1\ns_lshl_b32 s{sT}, s{sT}, 1')
    S(f'v_or_b32 v{t2}, s{sT}, v{t2}\nv_lshlrev_b32 v{t2}, 1, v{t2}\nv_xor_b32 v{t1}, v{t4}, v{t2}')
    S(f's_lshl_b32 s{sT}, s{sW}, 3')
    S(f'v_add_u32 v{t0}, s{sT}, v{t3}\nv_mul_u32_u24 v{t0}, 3072, v{t0}\nv_lshl_add_u32 v{vDq}, v{t1}, 4, v{t0}')
    S(f's_lshr_b32 s{sT}, s{sW}, 1\ns_and_b32 s{sT}, s{sT}, 1\ns_lshl_b32 s{sT}, s{sT}, 2')
    S(f'v_or_b32 v{t2}, s{sT}, v{vG}\nv_lshlrev_b32 v{t2}, 1, v{t2}\nv_xor_b32 v{t1}, v{vN}, v{t2}')
    S(f's_lshl_b32 s{sT}, s{sW}, 2')
    S(f'v_add_u32 v{t0}, s{sT}, v{vG}\nv_mul_lo_u32 v{t0}, v{t0}, s{sRS}\nv_lshl_add_u32 v{vDm}, v{t1}, 4, v{t0}')
    S(f's_lshl_b32 s{sLx}, s{sW}, 11')
    S(f's_lshl_b32 s{sLq}, s{sW}, 10\ns_add_u32 s{sLq}, s{sLq}, 16384')
    S(f's_lshl_b32 s{sLm}, s{sW}, 10\ns_add_u32 s{sLm}, s{sLm}, {MB}')
    if dbg and 'k' in xp: dbg_stamp(S, 84, 1, 0, 0, 0)
    S('s_waitcnt lgkmcnt(0)')
    if dbg and 'K' in xp: dbg_stamp(S, 84, 1, 0, 0, 0); S('s_waitcnt lgkmcnt(0)')
    srd(S, sX, 48, 2048 * 512 * 2)
    srd(S, sQK, 50, 512 * 1536 * 2)
    def ab_from(vs, vq, va, vb, vsd):
        S(f'v_mul_f32 v{vs}, {fhex(1/512)}, v{vs}')
        S(f'v_mul_f32 v{vq}, {fhex(1/512)}, v{vq}')
        S(f'v_fma_f32 v{vq}, -v{vs}, v{vs}, v{vq}')
        S(f'v_max_f32 v{vq}, 0, v{vq}')
        S(f'v_add_f32 v{vq}, {fhex(1e-5)}, v{vq}')
        S(f'v_rsq_f32 v{va}, v{vq}')
        S(f'v_sqrt_f32 v{vsd}, v{vq}')
        S(f'v_sub_f32 v{vb}, 0, v{vs}')

    XS = Bs[0]
    def dma_big_groups(j):
        slot = (j % NBIG) * BIGSZ + BIG; g = []
        g.append([(f's_lshl_b32 s{sXc}, s{sKcB}, 7', None), (f's_add_u32 m0, s{sLx}, {slot}', None), (f's_add_u32 s{sXc}, s{sXc}, s{sXo}', None),
                  (f'buffer_load_dwordx4 v{vDx[0]}, s[{sX}:{sX+3}], s{sXc} offen lds', ('big', j))])
        g.append([(f's_add_u32 m0, s{sLx}, {slot + 1024}', None), (f's_mul_i32 s{sT}, s{sKcB}, {64*3072}', None),
                  (f'buffer_load_dwordx4 v{vDx[1]}, s[{sX}:{sX+3}], s{sXc} offen lds', ('big', j))])
        g.append([(f's_add_u32 m0, s{sLq}, {slot}', None), (f's_mul_i32 s{sT}, s{sKcB}, {64*3072}', None), (f's_add_u32 s{sT}, s{sT}, s{sQo}', None),
                  (f'buffer_load_dwordx4 v{vDq}, s[{sQK}:{sQK+3}], s{sT} offen lds', ('big', j)),
                  (f's_add_u32 s{sKcB}, s{sKcB}, 1', None), (f's_and_b32 s{sKcB}, s{sKcB}, 7', None)])
        g[1] = [g[1][0], (f's_nop 0', None), g[1][2]]
        return g
    def dma_m_groups(s):
        slot = (s % NM) * MSZ
        return [[(f's_mul_i32 s{sMc}, s{sKrM}, s{sStepM}', None), (f's_add_u32 m0, s{sLm}, {slot}', None), (f's_add_u32 s{sT}, s{sMc}, s{sM0o}', None),
                 (f'buffer_load_dwordx4 v{vDm}, s[{sM0}:{sM0+3}], s{sT} offen lds', ('m', s))],
                [(f's_add_u32 m0, s{sLm}, {slot + 8192}', None), (f's_add_u32 s{sT}, s{sMc}, s{sM1o}', None),
                 (f'buffer_load_dwordx4 v{vDm}, s[{sM1}:{sM1+3}], s{sT} offen lds', ('m', s)),
                 (f's_add_u32 s{sKrM}, s{sKrM}, 1', None), (f's_and_b32 s{sKrM}, s{sKrM}, 15', None)]]
    def emit_group(g):
        for t, tag in g: S(t, tag=tag)
    def dma_big(j):
        for g in dma_big_groups(j): emit_group(g)
    def dma_m(s):
        for g in dma_m_groups(s): emit_group(g)
    dma_big(0)
    S(f's_cmp_eq_u32 s{sIsB}, 1')
    for d, p in ((sM0, 52), (sM1, 54)):
        S(f's_cselect_b32 s{d}, s50, s{p}')
        S(f's_cselect_b32 s{d+1}, s51, s{p+1}')
        S(f's_mov_b32 s{d+2}, {512*1792*2}\ns_cmov_b32 s{d+2}, {512*1536*2}')
        S(f's_mov_b32 s{d+3}, 0x20000')
    S(f's_and_b32 s{sM0+1}, s{sM0+1}, 0xffff\ns_and_b32 s{sM1+1}, s{sM1+1}, 0xffff')
    dma_m(0); dma_m(1)
    late = []
    if PRO >= 1: dma_big(1)
    else: late += [('big', 1)]
    if PRO >= 2: dma_m(2)
    else: late += [('m', 2)]
    if PRO >= 3: dma_m(3)
    else: late += [('m', 3)]
    if PRO >= 4: dma_big(2)
    else: late += [('big', 2)]
    if dbg and 'j' in xp: dbg_stamp(S, 84, 1, 0, 0, 0)
    if TS:
        S(f's_lshl_b32 s{sTok}, s{sTb}, 7\ns_lshl_b32 s{sT}, s{sC}, 3\ns_add_u32 s{sTok}, s{sTok}, s{sT}\ns_add_u32 s{sTok}, s{sTok}, s{sW}')
        S(f's_lshl_b32 s{sT}, s{sTok}, 10\nv_lshlrev_b32 v{t5}, 4, v{vLane}')
        S(f'buffer_load_dwordx4 {vr(XS,4)}, v{t5}, s[{sX}:{sX+3}], s{sT} offen', tag='tsx')
    srd(S, sWS, 56, WS_SIZE)
    if fused:
        srd(S, sDbg, 92, 256)
        S(f's_lshl_b32 s{sT}, s{sC}, 11\ns_lshl_b32 s{sT2}, s{sTb}, 7\ns_add_u32 s{sFQ}, s{sT}, s{sT2}\ns_add_u32 s{sFQ}, s{sFQ}, {FQ_OFF}')
        S(f's_lshl_b32 s{sT}, s{sTb}, 11\ns_lshl_b32 s{sT2}, s{sC}, 7\ns_add_u32 s{sFH}, s{sT}, s{sT2}\ns_add_u32 s{sFH}, s{sFH}, {FH_OFF}')
        S(f's_cmp_lg_u32 s{sW}, 7\ns_cbranch_scc1 {L}_noclr')
        S(f's_and_b32 s{sT}, s2, 7\ns_lshl_b32 s{sT}, s{sT}, 2\ns_lshr_b32 s{sT2}, s2, 6\ns_add_u32 s{sT}, s{sT}, s{sT2}\ns_lshl_b32 s{sT}, s{sT}, 7')
        S(f's_lshr_b32 s{sT2}, s2, 3\ns_and_b32 s{sT2}, s{sT2}, 7\ns_lshl_b32 s{sT2}, s{sT2}, 14\ns_add_u32 s{sT}, s{sT}, s{sT2}\ns_add_u32 s{sT}, s{sT}, {FO_OFF}')
        S(f'v_lshlrev_b32 v{vT[1]}, 12, v{vLane}')
        S(f'v_add_u32 v{vT[1]}, s{sT}, v{vT[1]}')
        S(f'v_mov_b32 v{vT[2]}, s{sFQ}\nv_cmp_eq_u32 vcc, 4, v{vLane}\nv_cndmask_b32 v{vT[1]}, v{vT[1]}, v{vT[2]}, vcc')
        S(f'v_mov_b32 v{vT[2]}, s{sFH}\nv_cmp_eq_u32 vcc, 5, v{vLane}\nv_cndmask_b32 v{vT[1]}, v{vT[1]}, v{vT[2]}, vcc')
        S(f'v_mov_b32 v{vT[2]}, 0')
        S(f's_mov_b64 exec, 63')
        S(f'buffer_store_dword v{vT[2]}, v{vT[1]}, s[{sWS}:{sWS+3}], 0 offen sc1', tag='nocount')
        S(f's_mov_b64 exec, -1')
        S.label(f'{L}_noclr')
    S(f's_lshl_b32 s{sT}, s{sTh}, 6')
    S(f'v_add_u32 v{t0}, s{sT}, v{vN}')
    S(f'v_lshlrev_b32 v{t0}, 7, v{t0}')
    S(f'v_lshrrev_b32 v{t1}, 1, v{vN}')
    S(f'v_xor_b32 v{t1}, v{t1}, v{vG}')
    S(f'v_lshl_add_u32 v{vXa[0]}, v{t1}, 4, v{t0}')
    S(f'v_xor_b32 v{vXa[1]}, 64, v{vXa[0]}')
    S(f's_lshl_b32 s{sT}, s{sFq}, 11')
    S(f'v_add_u32 v{vXs[0]}, s{sT}, v{vXa[0]}')
    S(f'v_add_u32 v{vXs[1]}, s{sT}, v{vXa[1]}')
    vR, vCq = t4, t5
    S(f'v_lshrrev_b32 v{vR}, 2, v{vN}')
    S(f'v_and_b32 v{vCq}, 3, v{vN}')
    S(f'v_lshl_add_u32 v{t0}, v{vG}, 3, v{vR}')
    S(f'v_lshrrev_b32 v{t1}, 1, v{vR}')
    S(f'v_and_b32 v{t2}, 1, v{vG}')
    S(f'v_lshl_or_b32 v{t1}, v{t2}, 1, v{t1}')
    S(f'v_xor_b32 v{t1}, s{sFq}, v{t1}')
    S(f'v_lshlrev_b32 v{t1}, 1, v{t1}')
    S(f'v_lshrrev_b32 v{t2}, 1, v{vCq}')
    S(f'v_add_u32 v{t1}, v{t1}, v{t2}')
    S(f'v_lshlrev_b32 v{t1}, 4, v{t1}')
    S(f'v_and_b32 v{t2}, 1, v{vCq}')
    S(f'v_lshl_add_u32 v{t1}, v{t2}, 3, v{t1}')
    S(f'v_lshl_add_u32 v{vQa}, v{t0}, 7, v{t1}')
    S(f'v_add_u32 v{vQa}, 16384, v{vQa}')
    S(f'v_and_b32 v{t2}, 1, v{vG}')
    S(f'v_lshl_or_b32 v{t1}, v{t2}, 2, v{vR}')
    S(f'v_lshlrev_b32 v{t1}, 1, v{t1}')
    S(f'v_lshrrev_b32 v{t2}, 1, v{vCq}')
    S(f'v_xor_b32 v{t1}, v{t1}, v{t2}')
    S(f'v_lshlrev_b32 v{t1}, 4, v{t1}')
    S(f'v_and_b32 v{t2}, 1, v{vCq}')
    S(f'v_lshl_add_u32 v{t1}, v{t2}, 3, v{t1}')
    S(f'v_lshl_add_u32 v{t1}, v{t0}, 8, v{t1}')
    for i in range(4):
        S(f's_lshl_b32 s{sT}, s{sFq}, 1\ns_add_u32 s{sT}, s{sT}, {i & 1}\ns_lshl_b32 s{sT}, s{sT}, 5')
        S(f's_add_u32 s{sT}, s{sT}, {(i >> 1) * 8192}')
        S(f's_and_b32 s{sT2}, s{sFq}, 1\ns_lshl_b32 s{sT2}, s{sT2}, 2\ns_add_u32 s{sT2}, s{sT2}, {i}\ns_lshl_b32 s{sT2}, s{sT2}, 5')
        S(f's_lshr_b32 s{sT3}, s{sFq}, 1\ns_lshl_b32 s{sT3}, s{sT3}, 13\ns_add_u32 s{sT2}, s{sT2}, s{sT3}')
        S(f's_cmp_eq_u32 s{sIsB}, 1\ns_cselect_b32 s{sT}, s{sT2}, s{sT}')
        S(f'v_xor_b32 v{vMa[i]}, s{sT}, v{t1}')
        S(f'v_add_u32 v{vMa[i]}, {MB}, v{vMa[i]}')
    for r in vSum + vSq: S(f'v_mov_b32 v{r}, 0')
    if 'O' in xp:
        for i in range(4): S(f'v_mov_b32 v{vOnes+i}, 0x3f803f80')
    else:
        S(f'v_cmp_eq_u32 vcc, 0, v{vN}')
        S(f'v_mov_b32 v{t0}, 0x3f803f80')
        S(f'v_cndmask_b32 v{vOnes}, 0, v{t0}, vcc')
        for i in range(1, 4): S(f'v_mov_b32 v{vOnes+i}, v{vOnes}')
    S(f's_mov_b32 s{sMaskHi}, 0xffff0000')

    def reads(s):
        b = s & 1; sp = s & 1; j = s // 2
        bs = (j % NBIG) * BIGSZ + BIG; ms = (s % NM) * MSZ
        out = []
        for tt in range(4):
            out.append(f'ds_read_b128 {vr(B[b][tt],4)}, v{vXa[sp]} offset:{bs + tt*2048}')
        for rd in range(2):
            out.append(f'ds_read_b64_tr_b16 {vr(A[b][0]+2*rd,2)}, v{vQa} offset:{bs + (32*sp + 4*rd)*128}')
        if 'S' not in xp and not TS: out.append(f'ds_read_b128 {vr(Bs[b],4)}, v{vXs[sp]} offset:{bs}')
        for i in range(4):
            for rd in range(2):
                out.append(f'ds_read_b64_tr_b16 {vr(A[b][1+i]+2*rd,2)}, v{vMa[i]} offset:{ms + rd*1024}')
        return out
    def mfmas(s, typeB):
        b = s & 1; out = []
        for f in range(5):
            for tt in range(4):
                c = '0' if s == 0 else vr(acc[f][tt], 4)
                a_, b_ = vr(A[b][f], 4), vr(B[b][tt], 4)
                if typeB and f > 0: a_, b_ = b_, a_
                out.append(f'v_mfma_f32_16x16x32_bf16 {vr(acc[f][tt],4)}, {a_}, {b_}, {c}')
        return out
    def stats(s):
        b = s & 1; out = []
        for r in range(4):
            p = Bs[b] + r
            out.append(f'v_lshlrev_b32 v{vLo}, 16, v{p}')
            out.append(f'v_and_b32 v{vHi}, s{sMaskHi}, v{p}')
            out.append(f'v_add_f32 v{vSum[0]}, v{vSum[0]}, v{vLo}')
            out.append(f'v_add_f32 v{vSum[1]}, v{vSum[1]}, v{vHi}')
            out.append(f'v_fma_f32 v{vSq[0]}, v{vLo}, v{vLo}, v{vSq[0]}')
            out.append(f'v_fma_f32 v{vSq[1]}, v{vHi}, v{vHi}, v{vSq[1]}')
        return out
    def ts_ops():
        a_, b_, lo, hi = Bs[1], Bs[1] + 1, Bs[1] + 2, Bs[1] + 3
        ra_, rb_, rs_, ro_ = vSum[0], vSum[1], vSq[0], vSq[1]
        o = [f'v_mov_b32 v{a_}, 0', f'v_mov_b32 v{b_}, 0']
        for r in range(4):
            o += [f'v_lshlrev_b32 v{lo}, 16, v{XS+r}', f'v_and_b32 v{hi}, s{sMaskHi}, v{XS+r}',
                  f'v_add_f32 v{a_}, v{a_}, v{lo}', f'v_fma_f32 v{b_}, v{lo}, v{lo}, v{b_}',
                  f'v_add_f32 v{a_}, v{a_}, v{hi}', f'v_fma_f32 v{b_}, v{hi}, v{hi}, v{b_}']
        for sh in (1, 2, 4, 8):
            for r in (a_, b_): o.append(f'v_add_f32_dpp v{r}, v{r}, v{r} row_shr:{sh} row_mask:0xf bank_mask:0xf bound_ctrl:0')
        for r in (a_, b_): o.append(f'v_add_f32_dpp v{r}, v{r}, v{r} row_bcast:15 row_mask:0xa bank_mask:0xf')
        for r in (a_, b_): o.append(f'v_add_f32_dpp v{r}, v{r}, v{r} row_bcast:31 row_mask:0xc bank_mask:0xf')
        o += [f'v_mul_f32 v{a_}, {fhex(1/512)}, v{a_}', f'v_mul_f32 v{b_}, {fhex(1/512)}, v{b_}', f'v_fma_f32 v{b_}, -v{a_}, v{a_}, v{b_}',
              f'v_max_f32 v{b_}, 0, v{b_}', f'v_add_f32 v{b_}, {fhex(1e-5)}, v{b_}', f'v_rsq_f32 v{ra_}, v{b_}', f'v_sqrt_f32 v{rs_}, v{b_}', f'v_sub_f32 v{rb_}, 0, v{a_}']
        return o
    def ts_store():
        ra_, rb_, rs_, ro_ = vSum[0], vSum[1], vSq[0], vSq[1]
        S(f's_lshl_b32 s{sT}, s{sTok}, 2\nv_mov_b32 v{ro_}, s{sT}\ns_mov_b32 s{sT2}, {STATS_OFF}')
        S(f's_mov_b32 exec_lo, 0\ns_mov_b32 exec_hi, 0x80000000')
        for k, r in enumerate((ra_, rb_, rs_)):
            S(f'buffer_store_dword v{r}, v{ro_}, s[{sWS}:{sWS+3}], s{sT2} offen sc1', tag='tss')
            if k < 2: S(f's_add_u32 s{sT2}, s{sT2}, 8192')
        S('s_mov_b64 exec, -1')
    def csmfmas(s, typeB, first):
        b = s & 1; out = []
        for f in range(5):
            c = '0' if first else vr(vCs[f], 4)
            a_, b_ = vr(A[b][f], 4), vr(vOnes, 4)
            if typeB and f > 0: a_, b_ = b_, a_
            out.append(f'v_mfma_f32_16x16x32_bf16 {vr(vCs[f],4)}, {a_}, {b_}, {c}')
        return out

    def mainloop(typeB, duty):
        tag = ('B' if typeB else 'A') + str(duty)
        S.wait_vm(('big', 0)); S.wait_vm(('m', 0))
        S('s_waitcnt lgkmcnt(0)')
        S('s_barrier')
        if stamps: S(f's_memtime s[{sSt+2}:{sSt+3}]\ns_memrealtime s[{sSt+18}:{sSt+19}]')
        if dbg and 'K' not in xp and 'k' not in xp and 'j' not in xp: dbg_stamp(S, 84, 1, 0, 0, 0)
        for r in reads(0): S(r)
        for s in range(16):
            S('s_waitcnt lgkmcnt(0)')
            if s + 1 < 16:
                S.wait_vm(('m', s + 1)); S.wait_vm(('big', (s + 1) // 2))
            S('s_barrier')
            if fused and s == (5 if TS else 4):
                lb = f'{L}_{tag}_sig'
                S(f's_cmp_lg_u32 s{sW}, 7\ns_cbranch_scc1 {lb}')
                S(f'v_mov_b32 v{vT[0]}, s2\nv_mov_b32 v{vT[1]}, 1\ns_mov_b64 exec, 1')
                S(f'buffer_store_byte v{vT[1]}, v{vT[0]}, s[{sDbg}:{sDbg+3}], 0 offen sc1', tag='nocount')
                S('s_mov_b64 exec, -1')
                S.label(lb)
            if TS and s == 9:
                S(f'v_lshlrev_b32 v{vLo}, 2, v{vLane}')
                S(f'buffer_load_dword v{vHi}, v{vLo}, s[{sDbg}:{sDbg+3}], 0 offen sc1', tag='dbgchk')
            if TS and s == 11:
                lb = f'{L}_{tag}_ts'
                S(f'v_cmp_ne_u32 vcc, 0x01010101, v{vHi}')
                S(f's_cmp_eq_u64 vcc, 0\ns_cbranch_scc1 {lb}')
                R = Stream(); poll(R, sDbg, vLo, vHi, sMc, '0x01010101', 64)
                S.raw_text(Processor().run(R).text())
                S.label(lb)
            if TS and s == 12:
                S(f's_min_u32 s{sT}, s{sW}, 5\ns_cmp_eq_u32 s{sW}, 6\ns_cselect_b32 s{sT}, 4, s{sT}')
                S(f's_lshr_b32 s{sT2}, s{sT}, 1\ns_and_b32 s{sT}, s{sT}, 1')
                S(f's_lshl_b32 s{sT3}, s{sT2}, 9\ns_lshl_b32 s{sMc}, s{sT}, 8\ns_add_u32 s{sT3}, s{sT3}, s{sMc}\ns_add_u32 m0, s{sT3}, {ST_SUM}')
                S(f's_lshl_b32 s{sT2}, s{sT2}, 13\ns_lshl_b32 s{sT3}, s{sTb}, 9\ns_add_u32 s{sT2}, s{sT2}, s{sT3}\ns_add_u32 s{sT2}, s{sT2}, s{sMc}\ns_add_u32 s{sT2}, s{sT2}, {STATS_OFF}')
                S(f'v_lshlrev_b32 v{vLo}, 2, v{vLane}')
                S(f'buffer_load_dword v{vLo}, s[{sWS}:{sWS+3}], s{sT2} offen sc1 lds', tag='ts')
            if PF and s == PFSTEP:
                S(f's_lshl_b32 s{sT}, s{sW}, 13')
                S(f'v_lshlrev_b32 v{vT[0]}, 7, v{vLane}\nv_add_u32 v{vT[0]}, s{sT}, v{vT[0]}')
                S(f's_mov_b32 s{sT}, {L}_end-{L}_pc-4')
                S(f'v_min_u32 v{vT[0]}, s{sT}, v{vT[0]}')
                for k in range(PF):
                    S(f'global_load_dword v{vEp+15}, v{vT[0]}, s[{sPc}:{sPc+1}]', tag='pf')
            groups = []
            if s == 0:
                for kind, idx in late: groups += (dma_big_groups(idx) if kind == 'big' else dma_m_groups(idx))
            if s + 4 < 16 and 'D' not in xp: groups += dma_m_groups(s + 4)
            if s % 2 == 1 and (s - 1) // 2 + 3 < 8 and 'D' not in xp: groups += dma_big_groups((s - 1) // 2 + 3)
            mm = mfmas(s, typeB)
            if s % 2 == duty and 'S' not in xp:
                cm = csmfmas(s, typeB, s < 2)
                mm = [x for f in range(5) for x in mm[4*f:4*f+4] + [cm[f]]]
            rr = reads(s + 1) if s + 1 < 16 else []
            if 'R' in xp: rr = []
            st = stats(s) if ('S' not in xp and not TS) else (ts_ops() if (TS and s == 1) else [])
            n = len(mm)
            dpos = {}
            if groups:
                first = DMA_FIRST; stride = max(1, (n - first) // len(groups))
                for i, g in enumerate(groups): dpos[min(n - 1, first + i * stride)] = dpos.get(min(n - 1, first + i * stride), []) + [g]
            k = 0; q = 0
            for i, m in enumerate(mm):
                S(m)
                if k < len(rr): S(rr[k]); k += 1
                nq = (len(st) * (i + 1) + n - 1) // n
                while q < nq: S(st[q]); q += 1
                for g in dpos.get(i, []): emit_group(g)
            if TS and s == 1: ts_store()
        if stamps: S(f's_memtime s[{sSt+4}:{sSt+5}]\ns_memrealtime s[{sSt+20}:{sSt+21}]')

    def greduce(r):
        S(f'v_mov_b32 v{t0}, v{r}')
        S(f'v_permlane32_swap_b32 v{r}, v{t0}')
        S(f'v_add_f32 v{r}, v{r}, v{t0}')
        S(f'v_mov_b32 v{t0}, v{r}')
        S(f'v_permlane16_swap_b32 v{r}, v{t0}')
        S(f'v_add_f32 v{r}, v{r}, v{t0}')
    def reduce_stats(typeB):
        if not TS:
            S(f'v_add_f32 v{vSum[0]}, v{vSum[0]}, v{vSum[1]}')
            S(f'v_add_f32 v{vSq[0]}, v{vSq[0]}, v{vSq[1]}')
            for r in [vSum[0], vSq[0]]: greduce(r)
            ab_from(vSum[0], vSq[0], vSum[1], vSq[1], vLo)
            S(f's_lshl_b32 s{sT}, s{sTh}, 6\ns_lshl_b32 s{sT2}, s{sFq}, 4\ns_add_u32 s{sT}, s{sT}, s{sT2}')
            S(f'v_add_u32 v{t0}, s{sT}, v{vN}')
            S(f'v_lshlrev_b32 v{t0}, 2, v{t0}')
            S(f'v_add_u32 v{t0}, {ST_SUM}, v{t0}')
            S(f'ds_write_b32 v{t0}, v{vSum[1]}')
            S(f'ds_write_b32 v{t0}, v{vSq[1]} offset:512')
            S(f'ds_write_b32 v{t0}, v{vLo} offset:1024')
        else:
            S.wait_vm('ts')
        S(f's_mul_i32 s{sT}, s{sFq}, 320\ns_mul_i32 s{sT2}, s{sDuty}, 1280\ns_add_u32 s{sT}, s{sT}, s{sT2}\ns_add_u32 s{sT}, s{sT}, {ST_CS}')
        S(f'v_lshlrev_b32 v{t1}, 4, v{vG}')
        S(f'v_add_u32 v{t1}, s{sT}, v{t1}')
        S(f'v_lshlrev_b32 v{t2}, 2, v{vN}')
        S(f'v_add_u32 v{t2}, s{sT}, v{t2}')
        S('s_nop 7')
        S(f's_mov_b32 s4, 0x00010001\ns_mov_b32 s5, 0x00010001\ns_mov_b64 exec, s[4:5]')
        for f in range(5):
            if not (typeB and f > 0): S(f'ds_write_b128 v{t1}, {vr(vCs[f],4)} offset:{f*64}')
        if typeB:
            S(f's_mov_b64 exec, 0xffff')
            for f in range(1, 5): S(f'ds_write_b32 v{t2}, v{vCs[f]} offset:{f*64}')
        S('s_mov_b64 exec, -1')
        S('s_waitcnt lgkmcnt(0)')
        S('s_barrier')

    SC = ' sc1' if fused else ''
    def publish(sflag, tag, lb):
        S.wait_vm(tag)
        S('s_barrier')
        S(f's_cmp_lg_u32 s{sW}, 0\ns_cbranch_scc1 {lb}')
        S(f'v_mov_b32 v{t4}, 0\nv_mov_b32 v{t5}, 1\ns_mov_b64 exec, 1')
        if setmod == 'atomic': S(f'buffer_atomic_add v{t5}, v{t4}, s[{sWS}:{sWS+3}], s{sflag} offen sc1', tag='nocount')
        else: S(f'buffer_store_dword v{t5}, v{t4}, s[{sWS}:{sWS+3}], s{sflag} offen sc1', tag='nocount')
        S('s_mov_b64 exec, -1')
        S.label(lb)
    def epilogue(typeB):
        v = VAlloc(Bs[1] + 4, 'v', A[0][0])
        vP = v.alloc(8, 4); vcsr = v.alloc(4, 4)
        va = [vEp + i for i in range(4)]; vb = [vEp + 4 + i for i in range(4)]
        tq = [vEp + 8 + i for i in range(4)]
        vOff = vEp + 12; vAq = vEp + 13; vBq = vEp + 14
        vsd = [v.alloc() for _ in range(4)]
        S(f'v_lshlrev_b32 v{vOff}, 4, v{vLane}')
        S(f's_lshl_b32 s{sT}, s{sTh}, 6')
        S(f'v_add_u32 v{t0}, s{sT}, v{vN}')
        S(f'v_lshlrev_b32 v{t0}, 2, v{t0}')
        S(f'v_add_u32 v{t0}, {ST_SUM}, v{t0}')
        for tt in range(4):
            S(f'ds_read_b32 v{va[tt]}, v{t0} offset:{tt*64}')
            S(f'ds_read_b32 v{vb[tt]}, v{t0} offset:{512 + tt*64}')
            if not typeB: S(f'ds_read_b32 v{vsd[tt]}, v{t0} offset:{1024 + tt*64}')
        S(f's_mul_i32 s{sT}, s{sFq}, 320')
        S(f'v_lshlrev_b32 v{t1}, 4, v{vG}')
        S(f'v_add_u32 v{t1}, s{sT}, v{t1}')
        S(f'v_add_u32 v{t1}, {ST_CS}, v{t1}')
        def rd_cs_row(dst, f):
            tmp = vCs[f]
            S(f'ds_read_b128 {vr(dst,4)}, v{t1} offset:{f*64}')
            S(f'ds_read_b128 {vr(tmp,4)}, v{t1} offset:{f*64 + 1280}')
            return [f'v_add_f32 v{dst+r}, v{dst+r}, v{tmp+r}' for r in range(4)]
        for x in rd_cs_row(vcsr, 0): S(x)
        S(f's_cmp_lt_u32 s{sC}, 8\ns_cselect_b32 s{sScale}, {fhex(QSCALE)}, 1.0')
        for tt in range(4):
            S(f'v_mul_f32 v{vAq}, s{sScale}, v{va[tt]}')
            for r in range(4):
                S(f'v_fma_f32 v{acc[0][tt]+r}, v{vb[tt]}, v{vcsr+r}, v{acc[0][tt]+r}')
            for r in range(4):
                S(f'v_mul_f32 v{acc[0][tt]+r}, v{acc[0][tt]+r}, v{vAq}')
            S(f'v_cvt_pk_bf16_f32 v{vP+2*tt}, v{acc[0][tt]}, v{acc[0][tt]+1}')
            S(f'v_cvt_pk_bf16_f32 v{vP+2*tt+1}, v{acc[0][tt]+2}, v{acc[0][tt]+3}')
        S(f's_and_b32 s{sT}, s{sC}, 7\ns_lshl_b32 s{sT}, s{sT}, 2\ns_add_u32 s{sT}, s{sT}, s{sFq}\ns_lshl_b32 s{sT}, s{sT}, 16')
        S(f's_cmp_lt_u32 s{sC}, 8\ns_cselect_b32 s{sT2}, 0, {K_OFF - Q_OFF}\ns_add_u32 s{sT}, s{sT}, s{sT2}')
        S(f's_lshl_b32 s{sT2}, s{sTb}, 2\ns_lshl_b32 s{sT3}, s{sTh}, 1\ns_add_u32 s{sT2}, s{sT2}, s{sT3}\ns_lshl_b32 s{sT2}, s{sT2}, 10')
        S(f's_add_u32 s{sT}, s{sT}, s{sT2}')
        for p in range(2):
            x, y = vP + 4*p, vP + 4*p + 2
            S(f'v_permlane16_swap_b32 v{x}, v{y}')
            S(f'v_permlane16_swap_b32 v{x+1}, v{y+1}')
            S(f'buffer_store_dwordx4 {vr(x,4)}, v{vOff}, s[{sWS}:{sWS+3}], s{sT} offen offset:{p*1024}{SC}', tag='qk')
        if stamps: S(f's_memtime s[{sSt+14}:{sSt+15}]')
        if not typeB:
            cg = [v.alloc(4, 4) for _ in range(2)]; cu = [v.alloc(4, 4) for _ in range(2)]
            adds = []
            for i in range(2):
                adds += rd_cs_row(cg[i], 1+i); adds += rd_cs_row(cu[i], 3+i)
            for x in adds: S(x)
            K1 = -2 * LOG2E * 0.7978845608028654; K2 = K1 * 0.044715
            sK1, sK2 = 46, 47
            S(f's_mov_b32 s{sK1}, {fhex(K1)}\ns_mov_b32 s{sK2}, {fhex(K2)}')
            vk1 = v.alloc(); S(f'v_mov_b32 v{vk1}, s{sK1}')
            tg = v.alloc(4, 4); tu = v.alloc(4, 4); tz = v.alloc(4, 4)
            def gelu(i, tt, H):
                G, U = acc[1+i][tt], acc[3+i][tt]
                for r in range(4): S(f'v_fma_f32 v{G+r}, v{vb[tt]}, v{cg[i]+r}, v{G+r}')
                for r in range(4): S(f'v_fma_f32 v{U+r}, v{vb[tt]}, v{cu[i]+r}, v{U+r}')
                for r in range(4): S(f'v_mul_f32 v{G+r}, v{G+r}, v{va[tt]}')
                for r in range(4): S(f'v_mul_f32 v{tz+r}, v{G+r}, v{G+r}')
                for r in range(4): S(f'v_fma_f32 v{tz+r}, v{tz+r}, s{sK2}, v{vk1}')
                for r in range(4): S(f'v_mul_f32 v{tz+r}, v{tz+r}, v{G+r}')
                for r in range(4): S(f'v_exp_f32 v{tz+r}, v{tz+r}')
                for r in range(4): S(f'v_mul_f32 v{U+r}, v{U+r}, v{G+r}')
                for r in range(4): S(f'v_fma_f32 v{tz+r}, v{tz+r}, v{vsd[tt]}, v{vsd[tt]}')
                for r in range(4): S(f'v_rcp_f32 v{tz+r}, v{tz+r}')
                S('s_nop 0')
                for r in range(4): S(f'v_mul_f32 v{U+r}, v{U+r}, v{tz+r}')
                S(f'v_cvt_pk_bf16_f32 v{H}, v{U}, v{U+1}')
                S(f'v_cvt_pk_bf16_f32 v{H+1}, v{U+2}, v{U+3}')
            if act32:
                S(f's_lshl_b32 s{sT}, s{sTb}, 2\ns_lshl_b32 s{sT2}, s{sTh}, 1\ns_add_u32 s{sT}, s{sT}, s{sT2}\ns_mul_i32 s{sT}, s{sT}, {144*1024}')
                S(f's_lshl_b32 s{sT2}, s{sC}, 3\ns_lshl_b32 s{sT3}, s{sFq}, 1\ns_add_u32 s{sT2}, s{sT2}, s{sT3}\ns_lshl_b32 s{sT2}, s{sT2}, 10\ns_add_u32 s{sT}, s{sT}, s{sT2}')
                S(f's_add_u32 s{sT}, s{sT}, {ACT_OFF}')
                vH = [v.alloc(4, 4) for _ in range(2)]
                ND = ndefer if (fused and defer) else 0
                assert ND in (0, 1)
                blocks = [(p, i) for p in range(2) for i in range(2)]
                for n, (p, i) in enumerate(blocks):
                    last = ND and n == 3
                    H = HCARRY + 12 if last else vH[n & 1]
                    gelu(i, 2*p, H); gelu(i, 2*p + 1, H + 2)
                    S(f'v_permlane16_swap_b32 v{H}, v{H+2}\nv_permlane16_swap_b32 v{H+1}, v{H+3}')
                    if last: S(f's_add_u32 s{sHaddr}, s{sT}, {i*1024}')
                    else: S(f'buffer_store_dwordx4 {vr(H,4)}, v{vOff}, s[{sWS}:{sWS+3}], s{sT} offen offset:{i*1024}{SC}', tag='h')
                    if n == 1: S(f's_add_u32 s{sT}, s{sT}, {144*1024}')
                    if fused and n == PUB_AT: publish(sFQ, 'qk', f'{L}_pq')
            else:
                S(f's_lshl_b32 s{sT}, s{sTb}, 3\ns_lshl_b32 s{sT2}, s{sTh}, 2\ns_add_u32 s{sT}, s{sT}, s{sT2}\ns_mul_i32 s{sT}, s{sT}, {72*1024}')
                S(f's_lshl_b32 s{sT2}, s{sC}, 2\ns_add_u32 s{sT2}, s{sT2}, s{sFq}\ns_lshl_b32 s{sT2}, s{sT2}, 10\ns_add_u32 s{sT}, s{sT}, s{sT2}')
                S(f's_add_u32 s{sT}, s{sT}, {ACT_OFF}')
                vH = [v.alloc(4, 4) for _ in range(2)]
                ND = ndefer if (fused and defer) else 0
                for tt in range(4):
                    H = vH[tt % 2] if tt < 4 - ND else HCARRY + 4*tt
                    if ND and tt == 4 - ND: S(f's_mov_b32 s{sHaddr}, s{sT}')
                    for i in range(2): gelu(i, tt, H + 2*i)
                    if tt < 4 - ND:
                        S(f'buffer_store_dwordx4 {vr(H,4)}, v{vOff}, s[{sWS}:{sWS+3}], s{sT} offen{SC}', tag='h')
                        if tt < 3: S(f's_add_u32 s{sT}, s{sT}, {72*1024}')
                    if fused and tt == PUB_AT: publish(sFQ, 'qk', f'{L}_pq')
            if fused and not defer: publish(sFH, 'h', f'{L}_ph')
        else:
            ra = [v.alloc(4, 4) for _ in range(4)]; rb = [v.alloc(4, 4) for _ in range(4)]
            S(f's_lshl_b32 s{sT}, s{sTh}, 8')
            S(f'v_lshlrev_b32 v{t2}, 4, v{vG}')
            S(f'v_add_u32 v{t2}, s{sT}, v{t2}')
            S(f'v_add_u32 v{t2}, {ST_SUM}, v{t2}')
            for tt in range(4):
                S(f'ds_read_b128 {vr(ra[tt],4)}, v{t2} offset:{tt*64}')
                S(f'ds_read_b128 {vr(rb[tt],4)}, v{t2} offset:{512 + tt*64}')
            cv = [v.alloc() for _ in range(4)]
            S(f's_mul_i32 s{sT}, s{sFq}, 320')
            S(f'v_lshlrev_b32 v{t3}, 2, v{vN}')
            S(f'v_add_u32 v{t3}, s{sT}, v{t3}')
            S(f'v_add_u32 v{t3}, {ST_CS}, v{t3}')
            for i in range(4):
                S(f'ds_read_b32 v{cv[i]}, v{t3} offset:{(1+i)*64}')
                S(f'ds_read_b32 v{vCs[1+i]}, v{t3} offset:{(1+i)*64 + 1280}')
            for i in range(4): S(f'v_add_f32 v{cv[i]}, v{cv[i]}, v{vCs[1+i]}')
            S(f's_sub_u32 s{sT}, s{sC}, 14\ns_lshl_b32 s{sT}, s{sT}, 4\ns_lshl_b32 s{sT2}, s{sFq}, 2\ns_add_u32 s{sT}, s{sT}, s{sT2}\ns_lshl_b32 s{sT}, s{sT}, 16')
            S(f's_lshl_b32 s{sT2}, s{sTb}, 2\ns_lshl_b32 s{sT3}, s{sTh}, 1\ns_add_u32 s{sT2}, s{sT2}, s{sT3}\ns_lshl_b32 s{sT2}, s{sT2}, 10')
            S(f's_add_u32 s{sT}, s{sT}, s{sT2}\ns_add_u32 s{sT}, s{sT}, {V_OFF}')
            vH = [v.alloc(4, 4) for _ in range(2)]
            n = 0
            for i in range(4):
                for p in range(2):
                    H = vH[n & 1]; n += 1
                    for u in range(2):
                        tt = 2*p + u; D = acc[1+i][tt]
                        for r in range(4): S(f'v_fma_f32 v{D+r}, v{rb[tt]+r}, v{cv[i]}, v{D+r}')
                        for r in range(4): S(f'v_mul_f32 v{D+r}, v{D+r}, v{ra[tt]+r}')
                        S(f'v_cvt_pk_bf16_f32 v{H+2*u}, v{D}, v{D+1}')
                        S(f'v_cvt_pk_bf16_f32 v{H+2*u+1}, v{D+2}, v{D+3}')
                    S(f'v_permlane32_swap_b32 v{H}, v{H+2}')
                    S(f'v_permlane32_swap_b32 v{H+1}, v{H+3}')
                    S(f'buffer_store_dwordx4 {vr(H,4)}, v{vOff}, s[{sWS}:{sWS+3}], s{sT} offen offset:{p*1024}{SC}', tag='v')
                if i < 3: S(f's_add_u32 s{sT}, s{sT}, 65536')
            if fused: publish(sFQ, 'v', f'{L}_pv')

    S(f's_cmp_eq_u32 s{sIsB}, 1\ns_cbranch_scc1 {L}_typeB')
    S(f's_cmp_eq_u32 s{sDuty}, 1\ns_cbranch_scc1 {L}_A1')
    procs = Processor().run(S)
    import copy
    outs = []
    def tail(typeB):
        if dbg: dbg_stamp(S, 84, 2, 0, 0, 0)
        reduce_stats(typeB)
        if stamps: S(f's_memtime s[{sSt+12}:{sSt+13}]')
        epilogue(typeB)
        if stamps:
            S(f's_memtime s[{sSt+16}:{sSt+17}]')
            S('s_waitcnt vmcnt(0)')
            S(f's_memtime s[{sSt+6}:{sSt+7}]\ns_memrealtime s[{sSt+8}:{sSt+9}]\ns_waitcnt lgkmcnt(0)')
            S(f's_sub_u32 s{sSt+2}, s{sSt+2}, s{sSt}\ns_sub_u32 s{sSt+4}, s{sSt+4}, s{sSt}\ns_sub_u32 s{sSt+6}, s{sSt+6}, s{sSt}\ns_sub_u32 s{sSt+8}, s{sSt+8}, s{sSt+10}')
            P = A[0][0]
            S(f'v_mov_b32 v{P}, s{sSt+2}\nv_mov_b32 v{P+1}, s{sSt+4}\nv_mov_b32 v{P+2}, s{sSt+6}\nv_mov_b32 v{P+3}, s{sSt+8}')
            S(f's_lshl_b32 s{sT}, s2, 3\ns_add_u32 s{sT}, s{sT}, s{sW}\ns_lshl_b32 s{sT}, s{sT}, 4\ns_add_u32 s{sT}, s{sT}, {STAMP_OFF}')
            S(f'v_mov_b32 v{t0}, 0')
            S(f'buffer_store_dwordx4 {vr(P,4)}, v{t0}, s[{sWS}:{sWS+3}], s{sT} offen')
            for a in (12, 14, 16): S(f's_sub_u32 s{sSt+a}, s{sSt+a}, s{sSt}')
            P = A[0][1]
            S(f's_sub_u32 s{sSt+18}, s{sSt+18}, s{sSt+10}\ns_sub_u32 s{sSt+20}, s{sSt+20}, s{sSt+10}\ns_lshl_b32 s{sSt+20}, s{sSt+20}, 16\ns_or_b32 s{sSt+18}, s{sSt+18}, s{sSt+20}')
            S(f'v_mov_b32 v{P}, s{sSt+12}\nv_mov_b32 v{P+1}, s{sSt+14}\nv_mov_b32 v{P+2}, s{sSt+16}\nv_mov_b32 v{P+3}, s{sSt+18}')
            S(f's_add_u32 s{sT}, s{sT}, {1 << 20}')
            S(f'buffer_store_dwordx4 {vr(P,4)}, v{t0}, s[{sWS}:{sWS+3}], s{sT} offen')
        if dbg:
            if fused: dbg_stamp(S, 84, 3, 0, 0, 0); S('s_waitcnt lgkmcnt(0)')
            else: dbg_final(S, 84, acc[0][0], sT, 0, sWS)
        if fused: S(f's_mov_b32 s{sIsBk}, {1 if typeB else 0}\ns_branch {L}_p2')
        else: S('s_endpgm')
    for typeB in (False, True):
        tn = 'B' if typeB else 'A'
        S.ins = []
        if typeB:
            S.label(f'{L}_typeB')
            S(f's_cmp_eq_u32 s{sDuty}, 1\ns_cbranch_scc1 {L}_B1')
        mainloop(typeB, 0)
        S(f's_branch {L}_{tn}tail')
        p0 = copy.deepcopy(procs); n0 = len(p0.out); p0.run(S); outs.append('\n'.join(p0.out[n0:]))
        S.ins = []
        S.label(f'{L}_{tn}1')
        mainloop(typeB, 1)
        S.label(f'{L}_{tn}tail')
        S('s_nop 7')
        tail(typeB)
        p = copy.deepcopy(procs); n0 = len(p.out); p.run(S); outs.append('\n'.join(p.out[n0:])); last = p
    if fused: return procs.text() + '\n' + '\n'.join(outs), last, v.hi
    text = procs.text() + '\n' + '\n'.join(outs) + f'\n{L}_end:\ns_endpgm\n'
    return kernel_text(name, text, v.hi), last, v.hi

if __name__ == '__main__':
    import sys
    t, p, hi = gen_gemm1()
    print(t)
    from collections import Counter
    print('vgprs', hi, 'nops', p.nops_inserted, Counter(w.split(' (')[0] for w, n, _ in p.nop_log), file=sys.stderr)
```

```python
from common import *
from diag import *

LDS2 = 163840
GRING = 131072

def gen_p2(S, L, fused=True, stamps=False, dbg=False, xp='', G_R=2, aprio=1, pollmod='sc1', pollsleep=2, setmod='atomic', defer=True, hpos='late', kvmode='G', ndefer=1, outmod='', UN=8, align=0, pad=0, act32=True):
    sWS, sWD, sWO, sX, sOut, sDbg = 8, 12, 16, 20, 24, 28
    sW, sHead, sQb, sT, sT2, sT3, sCnt, sTb, sFb, sLds = 32, 33, 34, 35, 36, 37, 38, 39, 40, 41
    sWo, sAo, sWo2, sAo2, sMask, sKoff, sPoll, sG = 42, 43, 44, 45, 46, 48, 49, 50
    sSt = 64
    v = VAlloc(256, 'v', 1)
    vLane = v.alloc(); vOff = v.alloc(); t0, t1, t2, t3 = [v.alloc() for _ in range(4)]
    base_mark = v.mark()
    S(f's_load_dwordx4 s[52:55], s[0:1], {KA_X}')
    S(f's_load_dwordx2 s[56:57], s[0:1], {KA_WO}')
    S(f's_load_dwordx4 s[60:63], s[0:1], {KA_WD}')
    S(f's_load_dwordx4 s[4:7], s[0:1], {KA_DBG}')
    S(f'v_and_b32 v{vLane}, 63, v0')
    S(f'v_lshrrev_b32 v{t0}, 6, v0')
    S(f'v_lshlrev_b32 v{vOff}, 4, v{vLane}')
    S(f'v_readfirstlane_b32 s{sW}, v{t0}')
    S(f's_and_b32 s{sHead}, s2, 7\ns_lshl_b32 s{sHead}, s{sHead}, 2\ns_lshr_b32 s{sT}, s2, 6\ns_add_u32 s{sHead}, s{sHead}, s{sT}')
    S(f's_lshr_b32 s{sQb}, s2, 3\ns_and_b32 s{sQb}, s{sQb}, 7')
    S('s_waitcnt lgkmcnt(0)')
    srd(S, sWS, 6, WS_SIZE); srd(S, sDbg, 4, 256)
    srd(S, sX, 52, 2048 * 512 * 2); srd(S, sWO, 56, 512 * 512 * 2)
    srd(S, sWD, 60, 1792 * 512 * 2); srd(S, sOut, 62, 2048 * 512 * 2)
    if stamps: S(f's_memtime s[{sSt}:{sSt+1}]\ns_memrealtime s[{sSt+10}:{sSt+11}]')
    if fused and 'F' not in xp:
        S(f'v_lshlrev_b32 v{t0}, 2, v{vLane}')
        poll(S, sDbg, t0, t1, sPoll, '0x01010101', 64)
        S(f's_lshr_b32 s{sT}, s{sHead}, 2\ns_lshl_b32 s{sT}, s{sT}, 11')
        S(f's_lshr_b32 s{sT2}, s{sHead}, 4\ns_add_u32 s{sT2}, s{sT2}, 14\ns_lshl_b32 s{sT2}, s{sT2}, 11')
        S(f'v_and_b32 v{t0}, 15, v{vLane}\nv_lshlrev_b32 v{t0}, 7, v{t0}')
        S(f's_add_u32 s{sT3}, s{sT}, {8 << 11}')
        S(f'v_mov_b32 v{t1}, s{sT3}\nv_mov_b32 v{t2}, s{sT2}')
        S(f'v_cmp_gt_u32 vcc, 16, v{vLane}')
        S(f'v_cndmask_b32 v{t1}, v{t2}, v{t1}, vcc')
        S(f's_lshl_b32 s{sT2}, s{sQb}, 8\ns_add_u32 s{sT}, s{sT}, s{sT2}')
        S(f'v_mov_b32 v{t2}, s{sT}')
        S(f'v_cmp_gt_u32 vcc, 32, v{vLane}')
        S(f'v_cndmask_b32 v{t1}, v{t2}, v{t1}, vcc')
        S(f'v_add_u32 v{t0}, v{t0}, v{t1}')
        S(f's_mov_b32 s{sT3}, {FQ_OFF}')
        poll(S, sWS, t0, t1, sPoll, 1, 34, soff=sT3)
    if dbg: dbg_stamp(S, 64, 0, 0, 0, 0)
    S(f's_lshl_b32 s{sKoff}, s{sHead}, 16\ns_lshl_b32 s{sT3}, s{sW}, 10\ns_add_u32 s{sKoff}, s{sKoff}, s{sT3}')
    SC = ' sc1' if fused else ''
    def dma(i, tag):
        S(f's_add_u32 m0, s{sT3}, {i*8192}')
        S(f's_add_u32 s{sT2}, s{sKoff}, {K_OFF + i*8192}')
        S(f'buffer_load_dwordx4 v{vOff}, s[{sWS}:{sWS+3}], s{sT2} offen{SC} lds', tag=tag)
        S(f's_add_u32 m0, s{sT3}, {65536 + i*8192}')
        S(f's_add_u32 s{sT2}, s{sKoff}, {V_OFF + i*8192}')
        S(f'buffer_load_dwordx4 v{vOff}, s[{sWS}:{sWS+3}], s{sT2} offen{SC} lds', tag=tag)
    dma(0, 'kv0')
    S(f's_cmp_ge_u32 s{sW}, 4\ns_cbranch_scc1 {L}_G')
    import copy
    pre = Processor().run(S)
    SA = Stream(); S_ = SA
    v.release(base_mark)
    vKa = v.alloc(); vVa = v.alloc(); vM = v.alloc()
    Q = [v.alloc(4, 4) for _ in range(2)]; Kf = [v.alloc(4, 4) for _ in range(2)]
    Vf = [[v.alloc(4, 4) for _ in range(2)] for _ in range(2)]
    P = [v.alloc(8, 4) for _ in range(2)]; Sx = [v.alloc(16, 4) for _ in range(2)]
    O = [v.alloc(16, 4) for _ in range(2)]; Cm = [v.alloc(16, 4) for _ in range(2)]
    hiA = v.hi
    def dmaS(St, i, tag):
        St(f's_add_u32 m0, s{sT3}, {i*8192}')
        St(f's_add_u32 s{sT2}, s{sKoff}, {K_OFF + i*8192}')
        St(f'buffer_load_dwordx4 v{vOff}, s[{sWS}:{sWS+3}], s{sT2} offen{SC} lds', tag=tag)
        St(f's_add_u32 m0, s{sT3}, {65536 + i*8192}')
        St(f's_add_u32 s{sT2}, s{sKoff}, {V_OFF + i*8192}')
        St(f'buffer_load_dwordx4 v{vOff}, s[{sWS}:{sWS+3}], s{sT2} offen{SC} lds', tag=tag)
    A_ = SA
    HC = 240; sFH, sHaddr, sIsBk = 95, 100, 101
    assert not (act32 and fused and defer and ndefer != 1)
    def hstores(St, lb):
        if not (fused and defer): return
        St(f's_cmp_eq_u32 s{sIsBk}, 1\ns_cbranch_scc1 {lb}')
        for tt in range(4 - ndefer, 4):
            St(f'buffer_store_dwordx4 {vr(HC+4*tt,4)}, v{vOff}, s[{sWS}:{sWS+3}], s{sHaddr} offen sc1', tag='nocount')
            if tt < 3: St(f's_add_u32 s{sHaddr}, s{sHaddr}, {72*1024}')
        St.label(lb)
    A_(f's_lshl_b32 s{sT}, s{sHead}, 16\ns_lshl_b32 s{sT2}, s{sQb}, 13\ns_add_u32 s{sT}, s{sT}, s{sT2}\ns_lshl_b32 s{sT2}, s{sW}, 11\ns_add_u32 s{sT}, s{sT}, s{sT2}')
    if Q_OFF: A_(f's_add_u32 s{sT}, s{sT}, {Q_OFF}')
    for a in range(2):
        A_(f'buffer_load_dwordx4 {vr(Q[a],4)}, v{vOff}, s[{sWS}:{sWS+3}], s{sT} offen offset:{a*1024}{SC}', tag='q')
    if kvmode != 'G':
        for i in range(1, 8): dmaS(A_, i, 'kvrest')
    if hpos == 'after': hstores(A_, f'{L}_hsA')
    A_(f'v_mov_b32 v{vKa}, v{vOff}')
    A_(f'v_lshrrev_b32 v{t0}, 5, v{vLane}\nv_lshlrev_b32 v{t0}, 8, v{t0}\nv_and_b32 v{t1}, 15, v{vLane}\nv_lshlrev_b32 v{t1}, 4, v{t1}')
    A_(f'v_add_u32 v{vVa}, v{t0}, v{t1}\nv_add_u32 v{vVa}, 0x10000, v{vVa}')
    A_(f's_mov_b32 s{sMask}, 0x0000ffff\ns_mov_b32 s{sMask+1}, 0x0000ffff')
    A_(f'v_and_b32 v{t0}, 27, v{vLane}\nv_cmp_eq_u32 vcc, 16, v{t0}\nv_mov_b32 v{t1}, 0x3f803f80\nv_cndmask_b32 v{t1}, 0, v{t1}, vcc')
    for a in Vf:
        for b in a:
            for i in range(4): A_(f'v_mov_b32 v{b+i}, v{t1}')
    if aprio: A_(f's_setprio {aprio}')
    A_.wait_vm('kv0'); A_('s_barrier')
    if hpos == 'late': hstores(A_, f'{L}_hsA')
    if stamps: A_(f's_memtime s[{sSt+2}:{sSt+3}]')
    if dbg: dbg_stamp(A_, 64, 1, 0, 0, 0)
    M32 = 'v_mfma_f32_32x32x16_bf16'
    A_(f'ds_read_b128 {vr(Kf[0],4)}, v{vKa}\nds_read_b128 {vr(Kf[1],4)}, v{vKa} offset:1024')
    DELTA = 64.0
    for a in range(2):
        A_(f'{M32} {vr(Sx[0],16)}, {vr(Kf[0],4)}, {vr(Q[a],4)}, 0')
        A_(f'{M32} {vr(Sx[1],16)}, {vr(Kf[1],4)}, {vr(Q[a],4)}, 0')
        A_(f'v_max3_f32 v{vM}, v{Sx[0]}, v{Sx[0]+1}, v{Sx[0]+2}')
        for i in range(3, 15, 2): A_(f'v_max3_f32 v{vM}, v{vM}, v{Sx[0]+i}, v{Sx[0]+i+1}')
        A_(f'v_max3_f32 v{vM}, v{vM}, v{Sx[0]+15}, v{Sx[1]}')
        for i in range(1, 15, 2): A_(f'v_max3_f32 v{vM}, v{vM}, v{Sx[1]+i}, v{Sx[1]+i+1}')
        A_(f'v_max_f32 v{vM}, v{vM}, v{Sx[1]+15}')
        A_(f'v_mov_b32 v{t0}, v{vM}\nv_permlane32_swap_b32 v{vM}, v{t0}\nv_max_f32 v{vM}, v{vM}, v{t0}')
        A_(f'v_add_f32 v{vM}, {fhex(DELTA)}, v{vM}')
        for i in range(16): A_(f'v_sub_f32 v{Cm[a]+i}, 0, v{vM}')
    def rdK(off, buf):
        if off < 64: A_(f'ds_read_b128 {vr(Kf[buf],4)}, v{vKa} offset:{off*1024}')
    def rdV(off, buf):
        if off >= 64: return
        A_(f's_mov_b64 exec, s[{sMask}:{sMask+1}]')
        A_(f'ds_read_b128 {vr(Vf[buf][0],4)}, v{vVa} offset:{off*1024}')
        A_(f'ds_read_b128 {vr(Vf[buf][1],4)}, v{vVa} offset:{off*1024+512}')
        A_(f's_mov_b64 exec, -1')
    def qk(a, kb): A_(f'{M32} {vr(Sx[a],16)}, {vr(Kf[kb],4)}, {vr(Q[a],4)}, {vr(Cm[a],16)}')
    def pv(a, u, vb): A_(f'{M32} {vr(O[a],16)}, {vr(Vf[vb][u],4)}, {vr(P[a]+4*u,4)}, {vr(O[a],16)}')
    rdV(0, 0)
    for a in range(2):
        for i in range(16): A_(f'v_mov_b32 v{O[a]+i}, 0')
    qk(0, 0)
    def tile(t, off, first=False, last=False):
        b = t & 1; nb = b ^ 1
        e = lambda a, i: A_(f'v_exp_f32 v{Sx[a]+i}, v{Sx[a]+i}')
        c = lambda a, i: A_(f'v_cvt_pk_bf16_f32 v{P[a]+i}, v{Sx[a]+2*i}, v{Sx[a]+2*i+1}')
        def phase(a, m_pre, m_mid):
            e(a,0); e(a,1); e(a,2); c(a,0); e(a,3); e(a,4); c(a,1); e(a,5)
            m_pre()
            e(a,6); c(a,2); e(a,7); e(a,8); c(a,3); e(a,9); e(a,10)
            m_mid()
            c(a,4); e(a,11); e(a,12); c(a,5); e(a,13); e(a,14); e(a,15); c(a,6); c(a,7)
        qk(1, b)
        rdK(off + 1, nb)
        def pre_a():
            if not first: pv(1, 1, nb)
            rdV(off + 1, nb)
        phase(0, pre_a, lambda: pv(0, 0, b))
        A_('s_waitcnt lgkmcnt(0)')
        qk(0, nb)
        if last:
            A_(f'v_add_u32 v{vKa}, {UN*1024}, v{vKa}\nv_add_u32 v{vVa}, {UN*1024}, v{vVa}\ns_sub_u32 s{sCnt}, s{sCnt}, 1')
        phase(1, lambda: pv(0, 1, b), lambda: pv(1, 0, b))
    def block(first):
        for t in range(UN):
            if first and t == 7:
                A_.wait_vm('kvrest'); A_('s_waitcnt vmcnt(0)')
                if dbg and 'B' in xp: dbg_stamp(A_, 64, 0, 0, 0, 0)
                A_('s_barrier')
                if dbg and 'B' not in xp: dbg_stamp(A_, 64, 0, 0, 0, 0)
            tile(t, t, first=(first and t == 0), last=(t == UN - 1))
    A_(f's_mov_b32 s{sCnt}, {64 // UN}')
    block(True)
    if 64 // UN > 1:
        if align: A_(f'.p2align {align}')
        for _ in range(pad): A_('s_nop 0')
        A_.label(f'{L}_aloop')
        block(False)
        A_(f's_cmp_lg_u32 s{sCnt}, 0\ns_cbranch_scc1 {L}_aloop')
    pv(1, 1, 1)
    A_('s_waitcnt lgkmcnt(0)')
    if stamps: A_(f's_memtime s[{sSt+4}:{sSt+5}]')
    if dbg: dbg_stamp(A_, 64, 2, 0, 0, 0)
    if 'b' not in xp: A_('s_barrier')
    A_('s_nop 7\ns_nop 3')
    A_(f'v_mov_b32 v{t1}, 0x7f800000\nv_mov_b32 v{t2}, {fhex(2.0**110)}')
    A_(f's_mov_b64 s[4:5], -1')
    for a in range(2):
        A_(f'v_add_f32 v{t0}, |v{O[a]}|, |v{O[a]+1}|')
        for i in range(2, 8): A_(f'v_add_f32 v{t0}, v{t0}, |v{O[a]+i}|')
        A_(f'v_cmp_lt_f32 vcc, v{t0}, v{t1}')
        A_(f's_and_b64 s[4:5], s[4:5], vcc')
        A_(f'v_cmp_lt_f32 vcc, v{O[a]+8}, v{t2}')
        A_(f's_and_b64 s[4:5], s[4:5], vcc')
    A_(f's_cmp_eq_u64 s[4:5], -1\ns_cbranch_scc1 {L}_afin')
    for a in range(2):
        A_(f'v_mov_b32 v{vKa}, v{vOff}')
        A_(f'v_lshrrev_b32 v{t0}, 5, v{vLane}\nv_lshlrev_b32 v{t0}, 8, v{t0}\nv_and_b32 v{t1}, 15, v{vLane}\nv_lshlrev_b32 v{t1}, 4, v{t1}')
        A_(f'v_add_u32 v{vVa}, v{t0}, v{t1}\nv_add_u32 v{vVa}, 0x10000, v{vVa}')
        A_(f'v_mov_b32 v{vM}, 0xff800000')
        for i in range(16): A_(f'v_mov_b32 v{O[a]+i}, 0')
        A_(f's_mov_b32 s{sCnt}, 64')
        A_.label(f'{L}_slow{a}')
        rdK(0, 0); rdV(0, 0)
        A_('s_waitcnt lgkmcnt(0)')
        X = Sx[0]
        A_(f'{M32} {vr(X,16)}, {vr(Kf[0],4)}, {vr(Q[a],4)}, 0')
        A_(f'v_max3_f32 v{t0}, v{X}, v{X+1}, v{X+2}')
        for i in range(3, 15, 2): A_(f'v_max3_f32 v{t0}, v{t0}, v{X+i}, v{X+i+1}')
        A_(f'v_max3_f32 v{t0}, v{t0}, v{X+15}, v{vM}')
        A_(f'v_mov_b32 v{t1}, v{t0}\nv_permlane32_swap_b32 v{t0}, v{t1}\nv_max_f32 v{t0}, v{t0}, v{t1}')
        A_(f'v_sub_f32 v{t1}, v{vM}, v{t0}\nv_exp_f32 v{t1}, v{t1}\nv_mov_b32 v{vM}, v{t0}')
        for i in range(16): A_(f'v_mul_f32 v{O[a]+i}, v{O[a]+i}, v{t1}')
        for i in range(16): A_(f'v_sub_f32 v{X+i}, v{X+i}, v{vM}')
        for i in range(16): A_(f'v_exp_f32 v{X+i}, v{X+i}')
        for i in range(8): A_(f'v_cvt_pk_bf16_f32 v{P[a]+i}, v{X+2*i}, v{X+2*i+1}')
        pv(a, 0, 0); pv(a, 1, 0)
        A_(f'v_add_u32 v{vKa}, 1024, v{vKa}\nv_add_u32 v{vVa}, 1024, v{vVa}')
        A_(f's_sub_u32 s{sCnt}, s{sCnt}, 1\ns_cmp_lg_u32 s{sCnt}, 0\ns_nop 7\ns_nop 7')
        A_(f's_cbranch_scc1 {L}_slow{a}')
    A_.label(f'{L}_afin')
    A_('s_nop 7\ns_nop 3')
    A_(f's_lshl_b32 s{sT}, s{sQb}, 2\ns_add_u32 s{sTb}, s{sT}, s{sW}')
    if act32:
        A_(f's_mul_i32 s{sT}, s{sTb}, {2*144*1024}\ns_lshl_b32 s{sT2}, s{sHead}, 10\ns_add_u32 s{sT}, s{sT}, s{sT2}\ns_add_u32 s{sT}, s{sT}, {ACT_OFF + 112*1024}')
        A_(f'v_mov_b32 v{t0}, v{vOff}')
        OSTEP = 144*1024
    else:
        A_(f's_mul_i32 s{sT}, s{sTb}, {4*72*1024}')
        A_(f's_lshr_b32 s{sT2}, s{sHead}, 1\ns_lshl_b32 s{sT2}, s{sT2}, 10\ns_add_u32 s{sT}, s{sT}, s{sT2}')
        A_(f's_and_b32 s{sT2}, s{sHead}, 1\ns_lshl_b32 s{sT2}, s{sT2}, 9\ns_add_u32 s{sT}, s{sT}, s{sT2}\ns_add_u32 s{sT}, s{sT}, {ACT_OFF + 56*1024}')
        A_(f'v_bfe_u32 v{t0}, v{vLane}, 4, 1\nv_mul_u32_u24 v{t0}, {72*1024}, v{t0}\nv_lshrrev_b32 v{t1}, 5, v{vLane}\nv_lshl_add_u32 v{t0}, v{t1}, 8, v{t0}')
        A_(f'v_and_b32 v{t1}, 15, v{vLane}\nv_lshl_add_u32 v{t0}, v{t1}, 4, v{t0}')
        OSTEP = 2*72*1024
    for a in range(2):
        A_(f'v_rcp_f32 v{t2}, v{O[a]+8}')
        A_('s_nop 0')
        for i in range(8): A_(f'v_mul_f32 v{O[a]+i}, v{O[a]+i}, v{t2}')
        for i in range(4): A_(f'v_cvt_pk_bf16_f32 v{P[a]+i}, v{O[a]+2*i}, v{O[a]+2*i+1}')
        A_(f'buffer_store_dwordx4 {vr(P[a],4)}, v{t0}, s[{sWS}:{sWS+3}], s{sT} offen sc1')
        if a == 0: A_(f's_add_u32 s{sT}, s{sT}, {OSTEP}')
    if True:
        A_(f's_lshl_b32 s{sT}, s{sTb}, 12\ns_lshl_b32 s{sT2}, s{sHead}, 7\ns_add_u32 s{sT}, s{sT}, s{sT2}\ns_add_u32 s{sT}, s{sT}, {FO_OFF}')
        A_(f'v_mov_b32 v{t0}, 0\nv_mov_b32 v{t1}, 1')
        A_('s_waitcnt vmcnt(0)')
        A_('s_mov_b64 exec, 1')
        if setmod == 'store': A_(f'buffer_store_dword v{t1}, v{t0}, s[{sWS}:{sWS+3}], s{sT} offen sc1')
        elif setmod == 'store2': A_(f'buffer_store_dword v{t1}, v{t0}, s[{sWS}:{sWS+3}], s{sT} offen sc0 sc1')
        else: A_(f'buffer_atomic_add v{t1}, v{t0}, s[{sWS}:{sWS+3}], s{sT} offen sc1')
        A_('s_mov_b64 exec, -1')
    if stamps:
        A_('s_waitcnt vmcnt(0)')
        A_(f's_memtime s[{sSt+6}:{sSt+7}]\ns_memrealtime s[{sSt+8}:{sSt+9}]\ns_waitcnt lgkmcnt(0)')
        A_(f's_sub_u32 s{sSt+2}, s{sSt+2}, s{sSt}\ns_sub_u32 s{sSt+4}, s{sSt+4}, s{sSt}\ns_sub_u32 s{sSt+6}, s{sSt+6}, s{sSt}\ns_sub_u32 s{sSt+8}, s{sSt+8}, s{sSt+10}')
        X = Sx[0]
        A_(f'v_mov_b32 v{X}, s{sSt+2}\nv_mov_b32 v{X+1}, s{sSt+4}\nv_mov_b32 v{X+2}, s{sSt+6}\nv_mov_b32 v{X+3}, s{sSt+8}')
        A_(f's_lshl_b32 s{sT}, s2, 3\ns_add_u32 s{sT}, s{sT}, s{sW}\ns_lshl_b32 s{sT}, s{sT}, 4\ns_add_u32 s{sT}, s{sT}, {STAMP_OFF}')
        A_(f'v_mov_b32 v{t0}, 0\nbuffer_store_dwordx4 {vr(X,4)}, v{t0}, s[{sWS}:{sWS+3}], s{sT} offen')
        X = Sx[1]
        A_(f's_add_u32 s{sSt+8}, s{sSt+8}, s{sSt+10}')
        A_(f'v_mov_b32 v{X}, s{sSt+10}\nv_mov_b32 v{X+1}, s{sSt+8}\nv_mov_b32 v{X+2}, 0\nv_mov_b32 v{X+3}, 0')
        A_(f's_add_u32 s{sT}, s{sT}, {2 << 20}\nbuffer_store_dwordx4 {vr(X,4)}, v{t0}, s[{sWS}:{sWS+3}], s{sT} offen')
    if dbg: dbg_final(A_, 64, Sx[0], sT, 1, sWS); (fused and dbg_store(A_, 84, Sx[0], sT, 0, sWS))
    A_('s_endpgm')
    pA = copy.deepcopy(pre); n0 = len(pA.out); pA.run(SA); textA = '\n'.join(pA.out[n0:])

    SG = Stream(); G_ = SG
    v.release(base_mark)
    vN = v.alloc(); vG = v.alloc(); vDw = v.alloc(); vXo = v.alloc()
    vAh = [v.alloc() for _ in range(4)]; vAo = [v.alloc() for _ in range(4)]
    vXr = [v.alloc(2, 2) for _ in range(4)]
    Af = [[v.alloc(4, 4) for _ in range(4)] for _ in range(4)]
    Bf = [[v.alloc(4, 4) for _ in range(4)] for _ in range(4)]
    acc = [[v.alloc(4, 4) for _ in range(4)] for _ in range(4)]
    hiG = v.hi
    G_.label(f'{L}_G')
    def kvrest_G():
        G_(f's_sub_u32 s{sT}, s{sW}, 4\ns_lshl_b32 s{sT3}, s{sT}, 11\ns_lshl_b32 s{sKoff}, s{sHead}, 16\ns_add_u32 s{sKoff}, s{sKoff}, s{sT3}')
        for i in range(1, 8):
            for j in range(2):
                for base, lb_ in ((K_OFF, 0), (V_OFF, 65536)):
                    G_(f's_add_u32 m0, s{sT3}, {lb_ + i*8192 + j*1024}')
                    G_(f's_add_u32 s{sT2}, s{sKoff}, {base + i*8192 + j*1024}')
                    G_(f'buffer_load_dwordx4 v{vOff}, s[{sWS}:{sWS+3}], s{sT2} offen{SC} lds', tag='kvrest')
    if kvmode != 'G':
        for i in range(1, 8): dmaS(G_, i, 'kvrest')
    if hpos == 'after': hstores(G_, f'{L}_hsG')
    G_(f's_sub_u32 s{sG}, s{sW}, 4')
    G_(f'v_and_b32 v{vN}, 15, v0\nv_bfe_u32 v{vG}, v0, 4, 2')
    G_(f's_and_b32 s{sT}, s2, 7\ns_lshl_b32 s{sT}, s{sT}, 2\ns_lshr_b32 s{sT2}, s2, 3\ns_and_b32 s{sT2}, s{sT2}, 3\ns_add_u32 s{sTb}, s{sT}, s{sT2}')
    G_(f's_lshr_b32 s{sFb}, s2, 5')
    G_(f'v_lshrrev_b32 v{t0}, 3, v{vLane}\nv_lshlrev_b32 v{t0}, 10, v{t0}\nv_and_b32 v{t1}, 7, v{vLane}')
    if act32: G_(f'v_and_b32 v{t2}, 1, v{vG}\nv_lshlrev_b32 v{t2}, 2, v{t2}')
    else: G_(f'v_lshlrev_b32 v{t2}, 1, v{vG}')
    G_(f'v_xor_b32 v{t1}, v{t1}, v{t2}\nv_lshl_add_u32 v{vDw}, v{t1}, 4, v{t0}')
    G_(f's_lshl_b32 s{sLds}, s{sG}, 13\ns_add_u32 s{sLds}, s{sLds}, {GRING}')
    NH, NO = 14, 4
    G_(f's_mul_i32 s{sWo}, s{sG}, {32*NH*1024}\ns_lshl_b32 s{sT}, s{sFb}, 7\ns_add_u32 s{sWo}, s{sWo}, s{sT}')
    if act32:
        G_(f's_mul_i32 s{sAo}, s{sTb}, {2*144*1024}\ns_mul_i32 s{sT}, s{sG}, {2*NH*1024}\ns_add_u32 s{sAo}, s{sAo}, s{sT}\ns_add_u32 s{sAo}, s{sAo}, {ACT_OFF}')
    else:
        G_(f's_mul_i32 s{sAo}, s{sTb}, {4*72*1024}\ns_mul_i32 s{sT}, s{sG}, {NH*1024}\ns_add_u32 s{sAo}, s{sAo}, s{sT}\ns_add_u32 s{sAo}, s{sAo}, {ACT_OFF}')
    G_(f's_mul_i32 s{sWo2}, s{sG}, {32*NO*1024}\ns_lshl_b32 s{sT}, s{sFb}, 7\ns_add_u32 s{sWo2}, s{sWo2}, s{sT}')
    if act32:
        G_(f's_mul_i32 s{sAo2}, s{sTb}, {2*144*1024}\ns_mul_i32 s{sT}, s{sG}, {2*NO*1024}\ns_add_u32 s{sAo2}, s{sAo2}, s{sT}\ns_add_u32 s{sAo2}, s{sAo2}, {ACT_OFF + 112*1024}')
    else:
        G_(f's_mul_i32 s{sAo2}, s{sTb}, {4*72*1024}\ns_mul_i32 s{sT}, s{sG}, {NO*1024}\ns_add_u32 s{sAo2}, s{sAo2}, s{sT}\ns_add_u32 s{sAo2}, s{sAo2}, {ACT_OFF + 56*1024}')
    vR, vCq = t2, t3
    G_(f'v_lshrrev_b32 v{vR}, 2, v{vN}\nv_and_b32 v{vCq}, 3, v{vN}')
    if act32:
        G_(f'v_and_b32 v{t0}, 1, v{vG}\nv_lshlrev_b32 v{t0}, 1, v{t0}\nv_lshrrev_b32 v{t1}, 1, v{vCq}\nv_add_u32 v{t0}, v{t0}, v{t1}')
        G_(f'v_lshrrev_b32 v{t1}, 1, v{vR}\nv_lshlrev_b32 v{t1}, 2, v{t1}\nv_xor_b32 v{t0}, v{t0}, v{t1}\nv_lshlrev_b32 v{t0}, 4, v{t0}')
        G_(f'v_and_b32 v{t1}, 1, v{vCq}\nv_lshl_add_u32 v{t0}, v{t1}, 3, v{t0}')
        G_(f'v_lshrrev_b32 v{vCq}, 1, v{vG}')
        G_(f'v_lshl_add_u32 v{t1}, v{vCq}, 3, v{vR}\nv_lshl_add_u32 v{vAh[0]}, v{t1}, 7, v{t0}')
        G_(f'v_lshl_add_u32 v{t1}, v{vCq}, 2, v{vR}\nv_lshl_add_u32 v{vAo[0]}, v{t1}, 7, v{t0}')
        G_(f's_and_b32 s{sT}, s{sG}, 1\ns_lshl_b32 s{sT}, s{sT}, 6')
        G_(f'v_xor_b32 v{vAh[0]}, s{sT}, v{vAh[0]}\nv_xor_b32 v{vAo[0]}, s{sT}, v{vAo[0]}')
        G_(f'v_xor_b32 v{vAh[1]}, 64, v{vAh[0]}\nv_xor_b32 v{vAo[1]}, 64, v{vAo[0]}')
        for k in range(2):
            G_(f'v_add_u32 v{vAh[k]}, s{sLds}, v{vAh[k]}\nv_add_u32 v{vAo[k]}, s{sLds}, v{vAo[k]}')
    else:
        G_(f'v_and_b32 v{t0}, 1, v{vG}\nv_lshlrev_b32 v{t0}, 1, v{t0}\nv_lshrrev_b32 v{t1}, 1, v{vR}\nv_add_u32 v{t0}, v{t0}, v{t1}')
        G_(f'v_lshlrev_b32 v{t0}, 1, v{t0}\nv_lshrrev_b32 v{t1}, 1, v{vCq}\nv_xor_b32 v{t0}, v{t0}, v{t1}\nv_lshlrev_b32 v{t0}, 4, v{t0}')
        G_(f'v_and_b32 v{t1}, 1, v{vCq}\nv_lshl_add_u32 v{t0}, v{t1}, 3, v{t0}')
        G_(f'v_lshl_add_u32 v{t1}, v{vG}, 2, v{vR}\nv_lshl_add_u32 v{vAh[0]}, v{t1}, 7, v{t0}')
        G_(f'v_lshrrev_b32 v{t1}, 1, v{vG}\nv_lshlrev_b32 v{t1}, 4, v{t1}\nv_add_u32 v{t1}, v{t1}, v{vR}')
        G_(f'v_and_b32 v{vCq}, 1, v{vG}\nv_lshl_add_u32 v{t1}, v{vCq}, 2, v{t1}\nv_lshl_add_u32 v{vAo[0]}, v{t1}, 7, v{t0}')
        for tau in range(1, 4):
            G_(f'v_xor_b32 v{vAh[tau]}, {32*tau}, v{vAh[0]}\nv_xor_b32 v{vAo[tau]}, {32*tau}, v{vAo[0]}')
        for tau in range(4):
            G_(f'v_add_u32 v{vAh[tau]}, s{sLds}, v{vAh[tau]}\nv_add_u32 v{vAo[tau]}, s{sLds}, v{vAo[tau]}')
    def wdma(s):
        if s >= NH + NO: return
        h = s < NH; slot = (s % 2) * 4096
        srdw = sWD if h else sWO; wo, i0 = (sWo, s) if h else (sWo2, s - NH)
        for i in range(4):
            G_(f's_add_u32 m0, s{sLds}, {slot + i*1024}')
            G_(f's_add_u32 s{sT}, s{wo}, {(32*i0 + 8*i)*1024}')
            G_(f'buffer_load_dwordx4 v{vDw}, s[{srdw}:{srdw+3}], s{sT} offen lds', tag=('w', s))
    sRot = [51, 58, 59, 79]
    if act32:
        for tt in range(2):
            G_(f's_lshr_b32 s{sT}, s{sG}, 1\ns_xor_b32 s{sT}, s{sT}, {tt}\ns_mul_i32 s{sRot[tt]}, s{sT}, {144*1024}')
    else:
        for tt in range(4):
            G_(f's_add_u32 s{sT}, s{sG}, {tt}\ns_and_b32 s{sT}, s{sT}, 3\ns_mul_i32 s{sRot[tt]}, s{sT}, {72*1024}')
    def bload(s, dst):
        h = s < NH; ao, i0 = (sAo, s) if h else (sAo2, s - NH)
        mod = SC if h else ' sc1'
        if act32:
            for tt in range(2):
                G_(f's_add_u32 s{sT}, s{ao}, s{sRot[tt]}')
                if i0 >= 2: G_(f's_add_u32 s{sT}, s{sT}, {2*i0*1024}')
                for ks in range(2):
                    off = ks*1024 + (2*i0*1024 if i0 < 2 else 0)
                    G_(f'buffer_load_dwordx4 {vr(dst[2*ks + tt],4)}, v{vOff}, s[{sWS}:{sWS+3}], s{sT} offen offset:{off}{mod}', tag=('b', s))
            return
        for tt in range(4):
            G_(f's_add_u32 s{sT}, s{ao}, s{sRot[tt]}')
            if i0 >= 4: G_(f's_add_u32 s{sT}, s{sT}, {i0*1024}')
            G_(f'buffer_load_dwordx4 {vr(dst[tt],4)}, v{vOff}, s[{sWS}:{sWS+3}], s{sT} offen offset:{i0*1024 if i0 < 4 else 0}{mod}', tag=('b', s))
    def areads(s, dst):
        h = s < NH; slot = (s % 2) * 4096
        if act32:
            for ks in range(2):
                for ph in range(2):
                    for rd in range(2):
                        a = vAh[ph] if h else vAo[ph]
                        G_(f'ds_read_b64_tr_b16 {vr(dst[2*ks + ph]+2*rd,2)}, v{a} offset:{slot + ks*2048 + rd*(512 if h else 1024)}')
            return
        for tau in range(4):
            for rd in range(2):
                a = vAh[tau] if h else vAo[tau]
                G_(f'ds_read_b64_tr_b16 {vr(dst[tau]+2*rd,2)}, v{a} offset:{slot + rd*(2048 if h else 1024)}')
    if kvmode != 'G': wdma(0); wdma(1)
    G_.wait_vm('kv0'); G_('s_barrier')
    if hpos == 'late': hstores(G_, f'{L}_hsG')
    if kvmode == 'G':
        kvrest_G(); wdma(0); wdma(1)
    G_.wait_vm('kvrest'); G_('s_barrier')
    if fused and defer:
        G_(f's_cmp_lg_u32 s{sW}, 4\ns_cbranch_scc1 {L}_nofh\ns_cmp_eq_u32 s{sIsBk}, 1\ns_cbranch_scc1 {L}_nofh')
        G_(f'v_mov_b32 v{t0}, 0\nv_mov_b32 v{t1}, 1\ns_mov_b64 exec, 1')
        G_(f'buffer_atomic_add v{t1}, v{t0}, s[{sWS}:{sWS+3}], s{sFH} offen sc1', tag='nocount')
        G_('s_mov_b64 exec, -1')
        G_.label(f'{L}_nofh')
    if 'g' in xp: G_('s_waitcnt vmcnt(0)\ns_endpgm')
    if fused and 'F' not in xp:
        G_(f'v_lshlrev_b32 v{t0}, 7, v{vLane}')
        G_(f's_lshr_b32 s{sT}, s{sTb}, 1\ns_lshl_b32 s{sT}, s{sT}, 11\ns_add_u32 s{sT}, s{sT}, {FH_OFF}')
        poll(G_, sWS, t0, t1, sPoll, 1, 14, soff=sT)
    bload(0, Bf[0]); bload(1, Bf[1])
    acc32 = [[acc[0][0] + 16*(ph + 2*tt) for tt in range(2)] for ph in range(2)]
    def mfmas(s, A, B):
        if act32:
            for ks in range(2):
                for tt in range(2):
                    for ph in range(2):
                        c = '0' if (s == 0 and ks == 0) else vr(acc32[ph][tt], 16)
                        G_(f'v_mfma_f32_32x32x16_bf16 {vr(acc32[ph][tt],16)}, {vr(A[2*ks + ph],4)}, {vr(B[2*ks + tt],4)}, {c}')
            return
        for tt in range(4):
            for tau in range(4):
                c = '0' if s == 0 else vr(acc[tau][tt], 4)
                G_(f'v_mfma_f32_16x16x32_bf16 {vr(acc[tau][tt],4)}, {vr(A[tau],4)}, {vr(B[tt],4)}, {c}')
    for s in range(NH):
        G_.wait_vm(('w', s))
        if 'r' not in xp: areads(s, Af[s & 1])
        G_('s_waitcnt lgkmcnt(0)')
        if 'l' not in xp or s + 2 >= NH:
            wdma(s + 2)
            if s + 2 < NH: bload(s + 2, Bf[(s + 2) % 3])
        if 'm' not in xp or s == 0: mfmas(s, Af[s & 1], Bf[s % 3])
    for i in range(NO):
        s = NH + i
        G_.wait_vm(('w', s))
        areads(s, Af[i])
        G_('s_waitcnt lgkmcnt(0)')
        wdma(s + 2)
    if act32:
        G_(f's_lshl_b32 s{sT}, s{sTb}, 6\ns_lshr_b32 s{sT2}, s{sG}, 1\ns_lshl_b32 s{sT2}, s{sT2}, 5\ns_add_u32 s{sT}, s{sT}, s{sT2}')
        G_(f'v_and_b32 v{t0}, 31, v{vLane}\nv_add_u32 v{t0}, s{sT}, v{t0}\nv_lshlrev_b32 v{t0}, 10, v{t0}')
        G_(f's_lshl_b32 s{sT}, s{sFb}, 7\ns_and_b32 s{sT2}, s{sG}, 1\ns_lshl_b32 s{sT2}, s{sT2}, 6\ns_add_u32 s{sT}, s{sT}, s{sT2}\nv_add_u32 v{t0}, s{sT}, v{t0}')
        G_(f'v_lshrrev_b32 v{t1}, 5, v{vLane}\nv_lshl_add_u32 v{vXo}, v{t1}, 3, v{t0}')
        for q in range(4):
            G_(f'buffer_load_dwordx2 {vr(vXr[q],2)}, v{vXo}, s[{sX}:{sX+3}], 0 offen offset:{16*q}', tag='x')
        G_(f'v_lshl_add_u32 v{vXo}, v{t1}, 4, v{t0}')
    else:
        G_(f's_lshl_b32 s{sT}, s{sTb}, 6\ns_lshl_b32 s{sT2}, s{sG}, 4\ns_add_u32 s{sT}, s{sT}, s{sT2}')
        G_(f'v_add_u32 v{t0}, s{sT}, v{vN}\nv_lshlrev_b32 v{t0}, 10, v{t0}\ns_lshl_b32 s{sT}, s{sFb}, 7\nv_add_u32 v{t0}, s{sT}, v{t0}')
        G_(f'v_lshl_add_u32 v{vXo}, v{vG}, 3, v{t0}')
        for tau in range(4):
            G_(f'buffer_load_dwordx2 {vr(vXr[tau],2)}, v{vXo}, s[{sX}:{sX+3}], 0 offen offset:{32*tau}', tag='x')
        G_(f'v_and_b32 v{t1}, 1, v{vG}\nv_lshl_add_u32 v{t0}, v{t1}, 5, v{t0}\nv_lshrrev_b32 v{t1}, 1, v{vG}\nv_lshl_add_u32 v{vXo}, v{t1}, 4, v{t0}')
    if stamps: G_(f's_memtime s[{sSt+2}:{sSt+3}]')
    if dbg: dbg_stamp(G_, 64, 1, 0, 0, 0)
    if 'b' not in xp: G_('s_barrier')
    if 'O' not in xp:
        G_(f'v_lshlrev_b32 v{t0}, 7, v{vLane}')
        G_(f's_lshl_b32 s{sT}, s{sTb}, 12\ns_lshl_b32 s{sT2}, s{sG}, 10\ns_add_u32 s{sT}, s{sT}, s{sT2}\ns_add_u32 s{sT}, s{sT}, {FO_OFF}')
        poll(G_, sWS, t0, t1, sPoll, 1, 8, soff=sT, mod=pollmod, sleep=pollsleep)
    if stamps: G_(f's_memtime s[{sSt+4}:{sSt+5}]')
    if dbg: dbg_stamp(G_, 64, 2, 0, 0, 0)
    for i in range(NO): bload(NH + i, Bf[i])
    for i in range(NO): mfmas(NH + i, Af[i], Bf[i])
    if stamps: G_(f's_nop 7\ns_memtime s[88:89]')
    G_('s_barrier')
    if stamps: G_(f's_memtime s[90:91]')
    if act32:
        G_('s_nop 7')
        for sg in range(1, 4):
            G_(f's_xor_b32 s{sT}, s{sG}, {sg}\ns_mul_i32 s{sT}, s{sT}, 12288\nv_add_u32 v{t1}, s{sT}, v{vOff}')
            D = acc32[sg & 1][sg >> 1]
            for q in range(4):
                G_(f'ds_write_b128 v{t1}, {vr(D+4*q,4)} offset:{((sg-1)*4 + q)*1024}')
        G_('s_waitcnt lgkmcnt(0)\ns_barrier')
        if stamps: G_(f's_memtime s[92:93]')
        G_(f's_mul_i32 s{sT}, s{sG}, 12288\nv_add_u32 v{t0}, s{sT}, v{vOff}')
        red = [[Bf[j][q] for q in range(4)] for j in range(3)]
        for q in range(4):
            for j in range(3):
                G_(f'ds_read_b128 {vr(red[j][q],4)}, v{t0} offset:{(j*4 + q)*1024}')
        Pk = Af[0][0]; D0 = acc32[0][0]
        for q in range(4):
            d = D0 + 4*q
            G_(f'v_lshlrev_b32 v{t1}, 16, v{vXr[q]}\nv_and_b32 v{t2}, 0xffff0000, v{vXr[q]}\nv_add_f32 v{d}, v{d}, v{t1}\nv_add_f32 v{d+1}, v{d+1}, v{t2}')
            G_(f'v_lshlrev_b32 v{t1}, 16, v{vXr[q]+1}\nv_and_b32 v{t2}, 0xffff0000, v{vXr[q]+1}\nv_add_f32 v{d+2}, v{d+2}, v{t1}\nv_add_f32 v{d+3}, v{d+3}, v{t2}')
        for q in range(4):
            d = D0 + 4*q
            for r in range(4): G_(f'v_add_f32 v{red[0][q]+r}, v{red[0][q]+r}, v{red[1][q]+r}')
            for r in range(4): G_(f'v_add_f32 v{d+r}, v{d+r}, v{red[2][q]+r}')
            for r in range(4): G_(f'v_add_f32 v{d+r}, v{d+r}, v{red[0][q]+r}')
            G_(f'v_cvt_pk_bf16_f32 v{Pk+2*q}, v{d}, v{d+1}\nv_cvt_pk_bf16_f32 v{Pk+2*q+1}, v{d+2}, v{d+3}')
        for p in range(2):
            x, y = Pk + 4*p, Pk + 4*p + 2
            G_(f'v_permlane32_swap_b32 v{x}, v{y}\nv_permlane32_swap_b32 v{x+1}, v{y+1}')
            G_(f'buffer_store_dwordx4 {vr(x,4)}, v{vXo}, s[{sOut}:{sOut+3}], 0 offen offset:{32*p} {outmod}')
    else:
        for tt in range(1, 4):
            G_(f's_add_u32 s{sT}, s{sG}, {tt}\ns_and_b32 s{sT}, s{sT}, 3\ns_mul_i32 s{sT}, s{sT}, 12288\nv_add_u32 v{t1}, s{sT}, v{vOff}')
            for tau in range(4):
                G_(f'ds_write_b128 v{t1}, {vr(acc[tau][tt],4)} offset:{((tt-1)*4 + tau)*1024}')
        G_('s_waitcnt lgkmcnt(0)\ns_barrier')
        if stamps: G_(f's_memtime s[92:93]')
        G_(f's_mul_i32 s{sT}, s{sG}, 12288\nv_add_u32 v{t0}, s{sT}, v{vOff}')
        red = [[Bf[j][tau] for tau in range(4)] for j in range(3)]
        for tau in range(4):
            for j in range(3):
                G_(f'ds_read_b128 {vr(red[j][tau],4)}, v{t0} offset:{(j*4 + tau)*1024}')
        Pk = Af[0][0]
        for tau in range(4):
            d = acc[tau][0]
            G_(f'v_lshlrev_b32 v{t1}, 16, v{vXr[tau]}\nv_and_b32 v{t2}, 0xffff0000, v{vXr[tau]}\nv_add_f32 v{d}, v{d}, v{t1}\nv_add_f32 v{d+1}, v{d+1}, v{t2}')
            G_(f'v_lshlrev_b32 v{t1}, 16, v{vXr[tau]+1}\nv_and_b32 v{t2}, 0xffff0000, v{vXr[tau]+1}\nv_add_f32 v{d+2}, v{d+2}, v{t1}\nv_add_f32 v{d+3}, v{d+3}, v{t2}')
        for tau in range(4):
            d = acc[tau][0]
            for r in range(4): G_(f'v_add_f32 v{red[0][tau]+r}, v{red[0][tau]+r}, v{red[1][tau]+r}')
            for r in range(4): G_(f'v_add_f32 v{d+r}, v{d+r}, v{red[2][tau]+r}')
            for r in range(4): G_(f'v_add_f32 v{d+r}, v{d+r}, v{red[0][tau]+r}')
            G_(f'v_cvt_pk_bf16_f32 v{Pk+2*tau}, v{d}, v{d+1}\nv_cvt_pk_bf16_f32 v{Pk+2*tau+1}, v{d+2}, v{d+3}')
        for p in range(2):
            x, y = Pk + 4*p, Pk + 4*p + 2
            G_(f'v_permlane16_swap_b32 v{x}, v{y}\nv_permlane16_swap_b32 v{x+1}, v{y+1}')
            G_(f'buffer_store_dwordx4 {vr(x,4)}, v{vXo}, s[{sOut}:{sOut+3}], 0 offen offset:{64*p} {outmod}')
    if stamps:
        G_('s_waitcnt vmcnt(0)')
        G_(f's_memtime s[{sSt+6}:{sSt+7}]\ns_memrealtime s[{sSt+8}:{sSt+9}]\ns_waitcnt lgkmcnt(0)')
        G_(f's_sub_u32 s{sSt+2}, s{sSt+2}, s{sSt}\ns_sub_u32 s{sSt+4}, s{sSt+4}, s{sSt}\ns_sub_u32 s{sSt+6}, s{sSt+6}, s{sSt}\ns_sub_u32 s{sSt+8}, s{sSt+8}, s{sSt+10}')
        X = acc[0][0]
        G_(f'v_mov_b32 v{X}, s{sSt+2}\nv_mov_b32 v{X+1}, s{sSt+4}\nv_mov_b32 v{X+2}, s{sSt+6}\nv_mov_b32 v{X+3}, s{sSt+8}')
        G_(f's_lshl_b32 s{sT}, s2, 3\ns_add_u32 s{sT}, s{sT}, s{sW}\ns_lshl_b32 s{sT}, s{sT}, 4\ns_add_u32 s{sT}, s{sT}, {STAMP_OFF}')
        G_(f'v_mov_b32 v{t0}, 0\nbuffer_store_dwordx4 {vr(X,4)}, v{t0}, s[{sWS}:{sWS+3}], s{sT} offen')
        X = acc[0][1]
        G_(f's_sub_u32 s88, s88, s{sSt}\ns_sub_u32 s90, s90, s{sSt}\ns_sub_u32 s92, s92, s{sSt}')
        G_(f'v_mov_b32 v{X}, s88\nv_mov_b32 v{X+1}, s90\nv_mov_b32 v{X+2}, s92\nv_mov_b32 v{X+3}, s{sPoll}')
        G_(f's_add_u32 s{sT}, s{sT}, {1 << 20}\nbuffer_store_dwordx4 {vr(X,4)}, v{t0}, s[{sWS}:{sWS+3}], s{sT} offen')
        X = acc[0][2]
        G_(f's_add_u32 s{sSt+8}, s{sSt+8}, s{sSt+10}')
        G_(f'v_mov_b32 v{X}, s{sSt+10}\nv_mov_b32 v{X+1}, s{sSt+8}\nv_mov_b32 v{X+2}, 0\nv_mov_b32 v{X+3}, 0')
        G_(f's_add_u32 s{sT}, s{sT}, {1 << 20}\nbuffer_store_dwordx4 {vr(X,4)}, v{t0}, s[{sWS}:{sWS+3}], s{sT} offen')
    if dbg: dbg_final(G_, 64, acc[0][0], sT, 1, sWS); (fused and dbg_store(G_, 84, acc[0][0], sT, 0, sWS))
    G_('s_endpgm')
    pG = copy.deepcopy(pre); n0 = len(pG.out); pG.run(SG); textG = '\n'.join(pG.out[n0:])
    return pre.text() + '\n' + textA + '\n' + textG, max(hiA, hiG), (pA, pG)

def gen_p2_standalone(name='p2_kernel', **kw):
    S = Stream()
    S(f's_cmp_ge_u32 s2, 256\ns_cbranch_scc1 {name}_end')
    t, hi, ps = gen_p2(S, name, fused=False, **kw)
    return kernel_text(name, t + f'\n{name}_end:\ns_endpgm\n', hi), hi, ps
if __name__ == '__main__':
    import sys
    t, hi, ps = gen_p2_standalone()
    print(t)
    from collections import Counter
    for p in ps: print('vgprs', hi, 'nops', p.nops_inserted, Counter(w.split(' (')[0] for w, n, _ in p.nop_log), file=sys.stderr)
```

```python
from asmlib import *
Q_OFF   = 0
K_OFF   = 2 << 20
V_OFF   = 4 << 20
ACT_OFF = 6 << 20
ACT_KS  = 144
PART_OFF = 16 << 20
STAMP_OFF = 24 << 20
WS_SIZE = 0x2000000
KA_X, KA_WQKV, KA_WO, KA_BX, KA_WG, KA_WU, KA_WD, KA_OUT, KA_DBG, KA_WS = [8*i for i in range(10)]
LOG2E = 1.4426950408889634

def f2u(x):
    import struct
    return struct.unpack('<I', struct.pack('<f', x))[0]
def fhex(x): return '0x%08x' % f2u(x)

WS_BASE = [0]
def srd_ws(S, d, base_pair):
    if WS_BASE[0]:
        S(f's_add_u32 s{base_pair}, s{base_pair}, {hex(WS_BASE[0])}')
        S(f's_addc_u32 s{base_pair+1}, s{base_pair+1}, 0')
    srd(S, d, base_pair, WS_SIZE)
def srd(S, d, base_pair, nbytes):
    S(f's_mov_b32 s{d}, s{base_pair}')
    S(f's_and_b32 s{d+1}, s{base_pair+1}, 0xffff')
    S(f's_mov_b32 s{d+2}, {hex(nbytes)}')
    S(f's_mov_b32 s{d+3}, 0x20000')

def kernel_text(name, body, vgpr, sgpr=102, accum=None):
    accum = accum if accum is not None else min(256, (vgpr + 3) // 4 * 4)
    head = f""".text
.globl {name}
.p2align 8
.type {name},@function
{name}:
"""
    kd = f"""
.section .rodata,"a"
.p2align 6
.amdhsa_kernel {name}
  .amdhsa_next_free_vgpr {vgpr}
  .amdhsa_next_free_sgpr {sgpr}
  .amdhsa_accum_offset {accum}
  .amdhsa_group_segment_fixed_size 0
  .amdhsa_kernarg_size 80
  .amdhsa_user_sgpr_count 2
  .amdhsa_user_sgpr_kernarg_segment_ptr 1
  .amdhsa_system_sgpr_workgroup_id_x 1
  .amdhsa_float_denorm_mode_32 3
.end_amdhsa_kernel
"""
    return head + body + "\n" + kd

def stamp(S, slot, sreg_pair, dbg=False):
    S(f's_memtime s[{sreg_pair}:{sreg_pair+1}]')

FLAG_OFF = 20 << 20
FL = 128
FQ_OFF = FLAG_OFF
FH_OFF = FLAG_OFF + 256 * FL
FO_OFF = FLAG_OFF + (256 + 1024) * FL
FLAG_BYTES = (256 + 1024 + 1024) * FL
POLL_LIMIT = 100000
_pl = [0]
def poll(S, srd, vAddr, vTmp, sCnt, expected, nlanes, soff=None, sSave=4, mod='sc1', sleep=2):
    _pl[0] += 1; lb = f'poll{_pl[0]}'
    S(f's_mov_b32 s{sCnt}, {POLL_LIMIT}')
    if nlanes < 64:
        m = (1 << nlanes) - 1
        S(f's_mov_b32 s{sSave}, {hex(m & 0xffffffff)}\ns_mov_b32 s{sSave+1}, {hex(m >> 32)}\ns_mov_b64 exec, s[{sSave}:{sSave+1}]')
    S.label(lb)
    so = '0' if soff is None else f's{soff}'
    if mod == 'atomic':
        S(f'v_mov_b32 v{vTmp}, 0')
        S(f'buffer_atomic_add v{vTmp}, v{vAddr}, s[{srd}:{srd+3}], {so} offen sc0 sc1', tag='poll')
    elif mod == 'inv':
        S('buffer_inv sc1', tag='poll')
        S(f'buffer_load_dword v{vTmp}, v{vAddr}, s[{srd}:{srd+3}], {so} offen sc1', tag='poll')
    else:
        S(f'buffer_load_dword v{vTmp}, v{vAddr}, s[{srd}:{srd+3}], {so} offen {mod}', tag='poll')
    S('s_waitcnt vmcnt(0)')
    S(f'v_cmp_ne_u32 vcc, {expected}, v{vTmp}')
    S(f's_cmp_eq_u64 vcc, 0')
    S(f's_cbranch_scc1 {lb}_ok')
    S(f's_sleep {sleep}')
    S(f's_sub_u32 s{sCnt}, s{sCnt}, 1')
    S(f's_cmp_lg_u32 s{sCnt}, 0')
    S(f's_cbranch_scc1 {lb}')
    S.label(f'{lb}_ok')
    if nlanes < 64: S('s_mov_b64 exec, -1')

STATS_OFF = 21 << 20
CSP_OFF = 22 << 20
```

```python
from common import *
from diag import *

BIG = 0; BIGSZ = 24576; NBIG = 3
MB = BIG + NBIG * BIGSZ; MSZ = 16384
def lds_map(NM):
    STAT = MB + NM * MSZ
    return STAT, STAT, STAT + 512, STAT + 1024, STAT + 1536, STAT + 1536 + 2 * 320 * 4
STAT, ST_SUM, ST_SQ, ST_SD, ST_CS, LDS1 = lds_map(4)
QSCALE = 0.25 * LOG2E
HCARRY = 240

def gen_gemm1(name='gemm1_kernel', stamps=False, xp='', dbg=False, DMA_FIRST=2, fused=False, PUB_AT=1, setmod='atomic', defer=True, ndefer=1, ROT=False, PF=1, PFSTEP=0, act32=True, PRO=2, TS=False, CSS=False, CSL=11, LPF=0, NM=5, steptrace=False, SCHED=1, SIG=14, PROT=2):
    STAT, ST_SUM, ST_SQ, ST_SD, ST_CS, LDS1 = lds_map(NM)
    assert LDS1 <= 163840 and (NM == 4 or fused)
    assert not (PROT == 2 and (TS or CSS))
    TS = TS and fused
    CSS = CSS and fused
    CSB = LDS1; CT = [232 + 4*f for f in range(5)]
    assert (not CSS) or CSB + 20480 <= 163840
    S = Stream(); L = name
    v = VAlloc(256, 'v', 1)
    sX, sQK, sM0, sM1, sWS = 8, 12, 16, 20, 24
    sW, sTb, sC, sTh, sFq, sT, sT2, sRS = 28, 29, 30, 31, 32, 33, 34, 35
    sXo, sQo, sM0o, sM1o, sLx, sLq, sLm = 36, 37, 38, 39, 40, 41, 42
    sIsB, sScale, sT3, sStepM, sDuty, sMaskHi = 43, 44, 45, 46, 58, 59
    sSt = 60
    sDbg, sFQ, sFH, sHaddr, sIsBk = 96, 94, 95, 100, 101
    sKcB, sKrM, sXc, sMc = 80, 81, 82, 83
    sPc = 78
    sTok = 77
    vLane = v.alloc(); vN = v.alloc(); vG = v.alloc()
    vT = [v.alloc() for _ in range(6)]
    vDx = [v.alloc() for _ in range(2)]; vDq = v.alloc(); vDm = v.alloc()
    vXa = [v.alloc() for _ in range(2)]; vQa = v.alloc(); vMa = [v.alloc() for _ in range(4)]
    vMb = [v.alloc() for _ in range(4)] if NM > 4 else None
    vSum = [v.alloc() for _ in range(2)]; vSq = [v.alloc() for _ in range(2)]; vLo = v.alloc(); vHi = v.alloc()
    vXs = [v.alloc() for _ in range(2)]
    vOnes = v.alloc(4, 4)
    A = [[v.alloc(4, 4) for _ in range(5)] for _ in range(2)]
    B = [[v.alloc(4, 4) for _ in range(4)] for _ in range(2)]
    Bs = [v.alloc(4, 4) for _ in range(2)]
    acc = [[v.alloc(4, 4) for _ in range(4)] for _ in range(5)]
    vCs = [v.alloc(4, 4) for _ in range(5)]
    vEp = v.alloc(16, 4)

    S(f's_cmp_ge_u32 s2, 256'); S(f's_cbranch_scc1 {L}_end')
    if stamps: S(f's_memtime s[{sSt}:{sSt+1}]\ns_memrealtime s[{sSt+10}:{sSt+11}]')
    if dbg: dbg_stamp(S, 84, 0, 0, 0, 0)
    if PF:
        S(f's_getpc_b64 s[{sPc}:{sPc+1}]')
        S.label(f'{L}_pc')
    S(f's_load_dwordx4 s[48:51], s[0:1], {KA_X}')
    S(f's_load_dwordx4 s[52:55], s[0:1], {KA_WG}')
    S(f's_load_dwordx2 s[56:57], s[0:1], {KA_WS}')
    if fused: S(f's_load_dwordx2 s[92:93], s[0:1], {KA_DBG}')
    S(f'v_and_b32 v{vLane}, 63, v0')
    S(f'v_lshrrev_b32 v{vT[0]}, 6, v0')
    S(f'v_and_b32 v{vN}, 15, v0')
    S(f'v_readfirstlane_b32 s{sW}, v{vT[0]}')
    S(f'v_bfe_u32 v{vG}, v0, 4, 2')
    S(f's_and_b32 s{sT}, s2, 1\ns_lshl_b32 s{sT}, s{sT}, 3')
    S(f's_lshr_b32 s{sT2}, s2, 3\ns_and_b32 s{sT2}, s{sT2}, 7\ns_add_u32 s{sTb}, s{sT}, s{sT2}')
    S(f's_lshr_b32 s{sT}, s2, 1\ns_and_b32 s{sT}, s{sT}, 3\ns_lshl_b32 s{sT}, s{sT}, 2')
    S(f's_lshr_b32 s{sT2}, s2, 6\ns_add_u32 s{sC}, s{sT}, s{sT2}')
    S(f's_and_b32 s{sTh}, s{sW}, 1\ns_lshr_b32 s{sFq}, s{sW}, 1')
    S(f's_cmp_ge_u32 s{sC}, 14\ns_cselect_b32 s{sIsB}, 1, 0')
    S(f's_lshr_b32 s{sDuty}, s{sFq}, 1\ns_xor_b32 s{sDuty}, s{sDuty}, s{sTh}')
    S(f's_cmp_eq_u32 s{sIsB}, 1')
    S(f's_mov_b32 s{sRS}, 3584\ns_cmov_b32 s{sRS}, 3072')
    S(f's_lshl_b32 s{sXo}, s{sTb}, 17')
    S(f's_lshl_b32 s{sQo}, s{sC}, 7')
    S(f's_lshl_b32 s{sM0o}, s{sC}, 8')
    S(f's_sub_u32 s{sT}, s{sC}, 14\ns_lshl_b32 s{sT}, s{sT}, 9\ns_add_u32 s{sT}, s{sT}, 2048')
    S(f's_cmp_eq_u32 s{sIsB}, 1')
    S(f's_cselect_b32 s{sM0o}, s{sT}, s{sM0o}')
    S(f's_cselect_b32 s{sT}, 256, 0')
    S(f's_add_u32 s{sM1o}, s{sM0o}, s{sT}')
    S(f's_lshl_b32 s{sStepM}, s{sRS}, 5')
    if ROT:
        S(f's_lshl_b32 s{sKcB}, s{sC}, 1\ns_add_u32 s{sKcB}, s{sKcB}, s{sTb}\ns_and_b32 s{sKcB}, s{sKcB}, 7\ns_lshl_b32 s{sKrM}, s{sKcB}, 1')
    else:
        S(f's_mov_b32 s{sKcB}, 0\ns_mov_b32 s{sKrM}, 0')
    t0, t1, t2, t3, t4, t5 = vT
    S(f'v_lshrrev_b32 v{t3}, 3, v{vLane}')
    S(f'v_and_b32 v{t4}, 7, v{vLane}')
    S(f's_lshl_b32 s{sT}, s{sW}, 4')
    S(f'v_add_u32 v{t0}, s{sT}, v{t3}\nv_lshlrev_b32 v{t0}, 10, v{t0}\nv_xor_b32 v{t1}, v{t4}, v{vG}')
    S(f'v_lshl_add_u32 v{vDx[0]}, v{t1}, 4, v{t0}')
    S(f'v_xor_b32 v{vDx[1]}, 64, v{vDx[0]}\nv_add_u32 v{vDx[1]}, 8192, v{vDx[1]}')
    S(f'v_bfe_u32 v{t2}, v{vLane}, 4, 1')
    S(f's_and_b32 s{sT}, s{sW}, 1\ns_lshl_b32 s{sT}, s{sT}, 1')
    S(f'v_or_b32 v{t2}, s{sT}, v{t2}\nv_lshlrev_b32 v{t2}, 1, v{t2}\nv_xor_b32 v{t1}, v{t4}, v{t2}')
    S(f's_lshl_b32 s{sT}, s{sW}, 3')
    S(f'v_add_u32 v{t0}, s{sT}, v{t3}\nv_mul_u32_u24 v{t0}, 3072, v{t0}\nv_lshl_add_u32 v{vDq}, v{t1}, 4, v{t0}')
    S(f's_lshr_b32 s{sT}, s{sW}, 1\ns_and_b32 s{sT}, s{sT}, 1\ns_lshl_b32 s{sT}, s{sT}, 2')
    S(f'v_or_b32 v{t2}, s{sT}, v{vG}\nv_lshlrev_b32 v{t2}, 1, v{t2}\nv_xor_b32 v{t1}, v{vN}, v{t2}')
    S(f's_lshl_b32 s{sT}, s{sW}, 2')
    S(f'v_add_u32 v{t0}, s{sT}, v{vG}\nv_mul_lo_u32 v{t0}, v{t0}, s{sRS}\nv_lshl_add_u32 v{vDm}, v{t1}, 4, v{t0}')
    S(f's_lshl_b32 s{sLx}, s{sW}, 11')
    S(f's_lshl_b32 s{sLq}, s{sW}, 10\ns_add_u32 s{sLq}, s{sLq}, 16384')
    S(f's_lshl_b32 s{sLm}, s{sW}, 10\ns_add_u32 s{sLm}, s{sLm}, {MB}')
    if dbg and 'k' in xp: dbg_stamp(S, 84, 1, 0, 0, 0)
    S('s_waitcnt lgkmcnt(0)')
    if dbg and 'K' in xp: dbg_stamp(S, 84, 1, 0, 0, 0); S('s_waitcnt lgkmcnt(0)')
    srd(S, sX, 48, 2048 * 512 * 2)
    srd(S, sQK, 50, 512 * 1536 * 2)
    def ab_from(vs, vq, va, vb, vsd):
        S(f'v_mul_f32 v{vs}, {fhex(1/512)}, v{vs}')
        S(f'v_mul_f32 v{vq}, {fhex(1/512)}, v{vq}')
        S(f'v_fma_f32 v{vq}, -v{vs}, v{vs}, v{vq}')
        S(f'v_max_f32 v{vq}, 0, v{vq}')
        S(f'v_add_f32 v{vq}, {fhex(1e-5)}, v{vq}')
        S(f'v_rsq_f32 v{va}, v{vq}')
        S(f'v_sqrt_f32 v{vsd}, v{vq}')
        S(f'v_sub_f32 v{vb}, 0, v{vs}')

    XS = Bs[0]
    def dma_big_groups(j):
        slot = (j % NBIG) * BIGSZ + BIG; g = []
        g.append([(f's_lshl_b32 s{sXc}, s{sKcB}, 7', None), (f's_add_u32 m0, s{sLx}, {slot}', None), (f's_add_u32 s{sXc}, s{sXc}, s{sXo}', None),
                  (f'buffer_load_dwordx4 v{vDx[0]}, s[{sX}:{sX+3}], s{sXc} offen lds', ('big', j))])
        g.append([(f's_add_u32 m0, s{sLx}, {slot + 1024}', None), (f's_mul_i32 s{sT}, s{sKcB}, {64*3072}', None),
                  (f'buffer_load_dwordx4 v{vDx[1]}, s[{sX}:{sX+3}], s{sXc} offen lds', ('big', j))])
        g.append([(f's_add_u32 m0, s{sLq}, {slot}', None), (f's_mul_i32 s{sT}, s{sKcB}, {64*3072}', None), (f's_add_u32 s{sT}, s{sT}, s{sQo}', None),
                  (f'buffer_load_dwordx4 v{vDq}, s[{sQK}:{sQK+3}], s{sT} offen lds', ('big', j)),
                  (f's_add_u32 s{sKcB}, s{sKcB}, 1', None), (f's_and_b32 s{sKcB}, s{sKcB}, 7', None)])
        g[1] = [g[1][0], (f's_nop 0', None), g[1][2]]
        return g
    def dma_m_groups(s):
        slot = (s % NM) * MSZ
        return [[(f's_mul_i32 s{sMc}, s{sKrM}, s{sStepM}', None), (f's_add_u32 m0, s{sLm}, {slot}', None), (f's_add_u32 s{sT}, s{sMc}, s{sM0o}', None),
                 (f'buffer_load_dwordx4 v{vDm}, s[{sM0}:{sM0+3}], s{sT} offen lds', ('m', s))],
                [(f's_add_u32 m0, s{sLm}, {slot + 8192}', None), (f's_add_u32 s{sT}, s{sMc}, s{sM1o}', None),
                 (f'buffer_load_dwordx4 v{vDm}, s[{sM1}:{sM1+3}], s{sT} offen lds', ('m', s)),
                 (f's_add_u32 s{sKrM}, s{sKrM}, 1', None), (f's_and_b32 s{sKrM}, s{sKrM}, 15', None)]]
    def emit_group(g):
        for t, tag in g: S(t, tag=tag)
    def dma_big(j):
        for g in dma_big_groups(j): emit_group(g)
    def dma_m(s):
        for g in dma_m_groups(s): emit_group(g)
    dma_big(0)
    S(f's_cmp_eq_u32 s{sIsB}, 1')
    for d, p in ((sM0, 52), (sM1, 54)):
        S(f's_cselect_b32 s{d}, s50, s{p}')
        S(f's_cselect_b32 s{d+1}, s51, s{p+1}')
        S(f's_mov_b32 s{d+2}, {512*1792*2}\ns_cmov_b32 s{d+2}, {512*1536*2}')
        S(f's_mov_b32 s{d+3}, 0x20000')
    S(f's_and_b32 s{sM0+1}, s{sM0+1}, 0xffff\ns_and_b32 s{sM1+1}, s{sM1+1}, 0xffff')
    dma_m(0); dma_m(1)
    late = []
    if PRO >= 1: dma_big(1)
    else: late += [('big', 1)]
    if PRO >= 2: dma_m(2)
    else: late += [('m', 2)]
    if PRO >= 3: dma_m(3)
    else: late += [('m', 3)]
    if PRO >= 4: dma_big(2)
    else: late += [('big', 2)]
    for k in range(4, NM): late += [('m', k)]
    if dbg and 'j' in xp: dbg_stamp(S, 84, 1, 0, 0, 0)
    vDq2 = 252
    if LPF:
        dmy = 253
        S(f's_and_b32 s{sT}, s{sTb}, 7\ns_lshl_b32 s{sT}, s{sT}, 6\ns_lshl_b32 s{sT2}, s{sW}, 3\ns_add_u32 s{sT}, s{sT}, s{sT2}')
        S(f'v_add_u32 v{t0}, s{sT}, v{vLane}')
        S(f'v_mul_u32_u24 v{t1}, 3072, v{t0}\nv_mul_lo_u32 v{t2}, v{t0}, s{sRS}')
        S(f's_mov_b64 exec, 0xff')
        S(f'buffer_load_dword v{244}, v{t1}, s[{sQK}:{sQK+3}], s{sQo} offen', tag='lpf')
        for k, off in enumerate((0, 128)):
            S(f'buffer_load_dword v{245 + 2*k}, v{t2}, s[{sM0}:{sM0+3}], s{sM0o} offen offset:{off}', tag='lpf')
            S(f'buffer_load_dword v{246 + 2*k}, v{t2}, s[{sM1}:{sM1+3}], s{sM1o} offen offset:{off}', tag='lpf')
        S(f's_mov_b64 exec, -1')
        S(f's_and_b32 s{sT}, s{sC}, 3\ns_lshl_b32 s{sT}, s{sT}, 5\ns_lshl_b32 s{sT2}, s{sW}, 2\ns_add_u32 s{sT}, s{sT}, s{sT2}')
        S(f'v_lshrrev_b32 v{t0}, 3, v{vLane}\nv_add_u32 v{t0}, s{sT}, v{t0}\nv_lshlrev_b32 v{t0}, 10, v{t0}\nv_and_b32 v{t1}, 7, v{vLane}\nv_lshl_add_u32 v{t0}, v{t1}, 7, v{t0}')
        S(f's_mov_b32 exec_hi, 0')
        S(f'buffer_load_dword v{249}, v{t0}, s[{sX}:{sX+3}], s{sXo} offen', tag='lpf')
        S(f's_mov_b32 exec_hi, -1')
    if CSS:
        S(f'v_lshrrev_b32 v{t0}, 3, v{vLane}\ns_lshl_b32 s{sT}, s{sW}, 2\nv_add_u32 v{t0}, s{sT}, v{t0}\nv_mul_u32_u24 v{t0}, 3072, v{t0}')
        S(f's_lshr_b32 s{sT}, s{sW}, 1\ns_and_b32 s{sT}, s{sT}, 1\ns_lshl_b32 s{sT}, s{sT}, 1')
        S(f'v_bfe_u32 v{t1}, v{vLane}, 4, 1\nv_or_b32 v{t1}, s{sT}, v{t1}\nv_lshlrev_b32 v{t1}, 1, v{t1}\nv_and_b32 v{t2}, 7, v{vLane}\nv_xor_b32 v{t1}, v{t1}, v{t2}')
        S(f'v_lshl_add_u32 v{vDq2}, v{t1}, 4, v{t0}')
    def cs_groups():
        return [[(f's_mul_i32 s{sXc}, s{sTb}, s{sStepM}', None), (f's_lshl_b32 s{sT2}, s{sW}, 10', None), (f's_add_u32 m0, s{sT2}, {CSB}', None), (f's_add_u32 s{sT}, s{sXc}, s{sM0o}', None),
                 (f'buffer_load_dwordx4 v{vDm}, s[{sM0}:{sM0+3}], s{sT} offen lds', 'cs')],
                [(f's_mul_i32 s{sXc}, s{sTb}, s{sStepM}', None), (f's_lshl_b32 s{sT2}, s{sW}, 10', None), (f's_add_u32 m0, s{sT2}, {CSB + 8192}', None), (f's_add_u32 s{sT}, s{sXc}, s{sM1o}', None),
                 (f'buffer_load_dwordx4 v{vDm}, s[{sM1}:{sM1+3}], s{sT} offen lds', 'cs')],
                [(f's_lshl_b32 s{sT2}, s{sW}, 9', None), (f's_add_u32 m0, s{sT2}, {CSB + 16384}', None), (f's_mul_i32 s{sT}, s{sTb}, {32*3072}', None), (f's_add_u32 s{sT}, s{sT}, s{sQo}', None),
                 (f's_mov_b32 exec_hi, 0', None), (f'buffer_load_dwordx4 v{vDq2}, s[{sQK}:{sQK+3}], s{sT} offen lds', 'cs'), (f's_mov_b32 exec_hi, -1', None)]]
    if TS:
        S(f's_lshl_b32 s{sTok}, s{sTb}, 7\ns_lshl_b32 s{sT}, s{sC}, 3\ns_add_u32 s{sTok}, s{sTok}, s{sT}\ns_add_u32 s{sTok}, s{sTok}, s{sW}')
        S(f's_lshl_b32 s{sT}, s{sTok}, 10\nv_lshlrev_b32 v{t5}, 4, v{vLane}')
        S(f'buffer_load_dwordx4 {vr(XS,4)}, v{t5}, s[{sX}:{sX+3}], s{sT} offen', tag='tsx')
    srd_ws(S, sWS, 56)
    if fused:
        srd(S, sDbg, 92, 256)
        S(f's_lshl_b32 s{sT}, s{sC}, 11\ns_lshl_b32 s{sT2}, s{sTb}, 7\ns_add_u32 s{sFQ}, s{sT}, s{sT2}\ns_add_u32 s{sFQ}, s{sFQ}, {FQ_OFF}')
        S(f's_lshl_b32 s{sT}, s{sTb}, 11\ns_lshl_b32 s{sT2}, s{sC}, 7\ns_add_u32 s{sFH}, s{sT}, s{sT2}\ns_add_u32 s{sFH}, s{sFH}, {FH_OFF}')
        if PROT == 2:
            S(f's_cmp_ge_u32 s2, 8\ns_cbranch_scc1 {L}_noclr')
            X = acc[0][0]
            for i in range(4): S(f'v_mov_b32 v{X+i}, 0')
            S(f's_mul_i32 s{sT}, s2, 24576\ns_mul_i32 s{sT2}, s{sW}, 3072\ns_add_u32 s{sT}, s{sT}, s{sT2}\ns_add_u32 s{sT}, s{sT}, {FLAG_OFF}')
            S(f'v_lshlrev_b32 v{vT[1]}, 4, v{vLane}')
            for k in range(3): S(f'buffer_store_dwordx4 {vr(X,4)}, v{vT[1]}, s[{sWS}:{sWS+3}], s{sT} offen offset:{k*1024} sc1', tag='nocount')
        else:
            S(f's_cmp_lg_u32 s{sW}, 7\ns_cbranch_scc1 {L}_noclr')
            S(f's_and_b32 s{sT}, s2, 7\ns_lshl_b32 s{sT}, s{sT}, 2\ns_lshr_b32 s{sT2}, s2, 6\ns_add_u32 s{sT}, s{sT}, s{sT2}\ns_lshl_b32 s{sT}, s{sT}, 7')
            S(f's_lshr_b32 s{sT2}, s2, 3\ns_and_b32 s{sT2}, s{sT2}, 7\ns_lshl_b32 s{sT2}, s{sT2}, 14\ns_add_u32 s{sT}, s{sT}, s{sT2}\ns_add_u32 s{sT}, s{sT}, {FO_OFF}')
            S(f'v_lshlrev_b32 v{vT[1]}, 12, v{vLane}')
            S(f'v_add_u32 v{vT[1]}, s{sT}, v{vT[1]}')
            S(f'v_mov_b32 v{vT[2]}, s{sFQ}\nv_cmp_eq_u32 vcc, 4, v{vLane}\nv_cndmask_b32 v{vT[1]}, v{vT[1]}, v{vT[2]}, vcc')
            S(f'v_mov_b32 v{vT[2]}, s{sFH}\nv_cmp_eq_u32 vcc, 5, v{vLane}\nv_cndmask_b32 v{vT[1]}, v{vT[1]}, v{vT[2]}, vcc')
            S(f'v_mov_b32 v{vT[2]}, 0')
            S(f's_mov_b64 exec, 63')
            S(f'buffer_store_dword v{vT[2]}, v{vT[1]}, s[{sWS}:{sWS+3}], 0 offen sc1', tag='nocount')
            S(f's_mov_b64 exec, -1')
        S.label(f'{L}_noclr')
    S(f's_lshl_b32 s{sT}, s{sTh}, 6')
    S(f'v_add_u32 v{t0}, s{sT}, v{vN}')
    S(f'v_lshlrev_b32 v{t0}, 7, v{t0}')
    S(f'v_lshrrev_b32 v{t1}, 1, v{vN}')
    S(f'v_xor_b32 v{t1}, v{t1}, v{vG}')
    S(f'v_lshl_add_u32 v{vXa[0]}, v{t1}, 4, v{t0}')
    S(f'v_xor_b32 v{vXa[1]}, 64, v{vXa[0]}')
    S(f's_lshl_b32 s{sT}, s{sFq}, 11')
    S(f'v_add_u32 v{vXs[0]}, s{sT}, v{vXa[0]}')
    S(f'v_add_u32 v{vXs[1]}, s{sT}, v{vXa[1]}')
    vR, vCq = t4, t5
    S(f'v_lshrrev_b32 v{vR}, 2, v{vN}')
    S(f'v_and_b32 v{vCq}, 3, v{vN}')
    S(f'v_lshl_add_u32 v{t0}, v{vG}, 3, v{vR}')
    S(f'v_lshrrev_b32 v{t1}, 1, v{vR}')
    S(f'v_and_b32 v{t2}, 1, v{vG}')
    S(f'v_lshl_or_b32 v{t1}, v{t2}, 1, v{t1}')
    S(f'v_xor_b32 v{t1}, s{sFq}, v{t1}')
    S(f'v_lshlrev_b32 v{t1}, 1, v{t1}')
    S(f'v_lshrrev_b32 v{t2}, 1, v{vCq}')
    S(f'v_add_u32 v{t1}, v{t1}, v{t2}')
    S(f'v_lshlrev_b32 v{t1}, 4, v{t1}')
    S(f'v_and_b32 v{t2}, 1, v{vCq}')
    S(f'v_lshl_add_u32 v{t1}, v{t2}, 3, v{t1}')
    S(f'v_lshl_add_u32 v{vQa}, v{t0}, 7, v{t1}')
    S(f'v_add_u32 v{vQa}, 16384, v{vQa}')
    S(f'v_and_b32 v{t2}, 1, v{vG}')
    S(f'v_lshl_or_b32 v{t1}, v{t2}, 2, v{vR}')
    S(f'v_lshlrev_b32 v{t1}, 1, v{t1}')
    S(f'v_lshrrev_b32 v{t2}, 1, v{vCq}')
    S(f'v_xor_b32 v{t1}, v{t1}, v{t2}')
    S(f'v_lshlrev_b32 v{t1}, 4, v{t1}')
    S(f'v_and_b32 v{t2}, 1, v{vCq}')
    S(f'v_lshl_add_u32 v{t1}, v{t2}, 3, v{t1}')
    S(f'v_lshl_add_u32 v{t1}, v{t0}, 8, v{t1}')
    for i in range(4):
        S(f's_lshl_b32 s{sT}, s{sFq}, 1\ns_add_u32 s{sT}, s{sT}, {i & 1}\ns_lshl_b32 s{sT}, s{sT}, 5')
        S(f's_add_u32 s{sT}, s{sT}, {(i >> 1) * 8192}')
        S(f's_and_b32 s{sT2}, s{sFq}, 1\ns_lshl_b32 s{sT2}, s{sT2}, 2\ns_add_u32 s{sT2}, s{sT2}, {i}\ns_lshl_b32 s{sT2}, s{sT2}, 5')
        S(f's_lshr_b32 s{sT3}, s{sFq}, 1\ns_lshl_b32 s{sT3}, s{sT3}, 13\ns_add_u32 s{sT2}, s{sT2}, s{sT3}')
        S(f's_cmp_eq_u32 s{sIsB}, 1\ns_cselect_b32 s{sT}, s{sT2}, s{sT}')
        S(f'v_xor_b32 v{vMa[i]}, s{sT}, v{t1}')
        S(f'v_add_u32 v{vMa[i]}, {MB}, v{vMa[i]}')
        if NM > 4: S(f'v_add_u32 v{vMb[i]}, {2*MSZ}, v{vMa[i]}')
    if 'q' in xp:
        for f in range(2, 5):
            for tt in range(4):
                for r in range(4): S(f'v_mov_b32 v{acc[f][tt]+r}, 0')
        for f in range(5):
            for r in range(4): S(f'v_mov_b32 v{vCs[f]+r}, 0')
    for r in vSum + vSq: S(f'v_mov_b32 v{r}, 0')
    if 'O' in xp:
        for i in range(4): S(f'v_mov_b32 v{vOnes+i}, 0x3f803f80')
    else:
        S(f'v_cmp_eq_u32 vcc, 0, v{vN}')
        S(f'v_mov_b32 v{t0}, 0x3f803f80')
        S(f'v_cndmask_b32 v{vOnes}, 0, v{t0}, vcc')
        for i in range(1, 4): S(f'v_mov_b32 v{vOnes+i}, v{vOnes}')
    S(f's_mov_b32 s{sMaskHi}, 0xffff0000')

    def reads(s):
        b = s & 1; sp = s & 1; j = s // 2
        bs = (j % NBIG) * BIGSZ + BIG; ms = (s % NM) * MSZ
        out = []
        for tt in range(4):
            out.append(f'ds_read_b128 {vr(B[b][tt],4)}, v{vXa[sp]} offset:{bs + tt*2048}')
        for rd in range(2):
            out.append(f'ds_read_b64_tr_b16 {vr(A[b][0]+2*rd,2)}, v{vQa} offset:{bs + (32*sp + 4*rd)*128}')
        if 'S' not in xp and not TS: out.append(f'ds_read_b128 {vr(Bs[b],4)}, v{vXs[sp]} offset:{bs}')
        for i in range(4):
            for rd in range(2):
                if ms >= 2*MSZ and NM > 4: out.append(f'ds_read_b64_tr_b16 {vr(A[b][1+i]+2*rd,2)}, v{vMb[i]} offset:{ms - 2*MSZ + rd*1024}')
                else: out.append(f'ds_read_b64_tr_b16 {vr(A[b][1+i]+2*rd,2)}, v{vMa[i]} offset:{ms + rd*1024}')
        return out
    def mfmas(s, typeB):
        b = s & 1; out = []
        for f in range(5):
            for tt in range(4):
                c = '0' if s == 0 else vr(acc[f][tt], 4)
                a_, b_ = vr(A[b][f], 4), vr(B[b][tt], 4)
                if typeB and f > 0: a_, b_ = b_, a_
                out.append(f'v_mfma_f32_16x16x32_bf16 {vr(acc[f][tt],4)}, {a_}, {b_}, {c}')
        return out
    def stats(s):
        b = s & 1; out = []
        for r in range(4):
            p = Bs[b] + r
            out.append(f'v_lshlrev_b32 v{vLo}, 16, v{p}')
            out.append(f'v_and_b32 v{vHi}, s{sMaskHi}, v{p}')
            out.append(f'v_add_f32 v{vSum[0]}, v{vSum[0]}, v{vLo}')
            out.append(f'v_add_f32 v{vSum[1]}, v{vSum[1]}, v{vHi}')
            out.append(f'v_fma_f32 v{vSq[0]}, v{vLo}, v{vLo}, v{vSq[0]}')
            out.append(f'v_fma_f32 v{vSq[1]}, v{vHi}, v{vHi}, v{vSq[1]}')
        return out
    def ts_ops():
        a_, b_, lo, hi = Bs[1], Bs[1] + 1, Bs[1] + 2, Bs[1] + 3
        ra_, rb_, rs_, ro_ = vSum[0], vSum[1], vSq[0], vSq[1]
        o = [f'v_mov_b32 v{a_}, 0', f'v_mov_b32 v{b_}, 0']
        for r in range(4):
            o += [f'v_lshlrev_b32 v{lo}, 16, v{XS+r}', f'v_and_b32 v{hi}, s{sMaskHi}, v{XS+r}',
                  f'v_add_f32 v{a_}, v{a_}, v{lo}', f'v_fma_f32 v{b_}, v{lo}, v{lo}, v{b_}',
                  f'v_add_f32 v{a_}, v{a_}, v{hi}', f'v_fma_f32 v{b_}, v{hi}, v{hi}, v{b_}']
        for sh in (1, 2, 4, 8):
            for r in (a_, b_): o.append(f'v_add_f32_dpp v{r}, v{r}, v{r} row_shr:{sh} row_mask:0xf bank_mask:0xf bound_ctrl:0')
        for r in (a_, b_): o.append(f'v_add_f32_dpp v{r}, v{r}, v{r} row_bcast:15 row_mask:0xa bank_mask:0xf')
        for r in (a_, b_): o.append(f'v_add_f32_dpp v{r}, v{r}, v{r} row_bcast:31 row_mask:0xc bank_mask:0xf')
        o += [f'v_mul_f32 v{a_}, {fhex(1/512)}, v{a_}', f'v_mul_f32 v{b_}, {fhex(1/512)}, v{b_}', f'v_fma_f32 v{b_}, -v{a_}, v{a_}, v{b_}',
              f'v_max_f32 v{b_}, 0, v{b_}', f'v_add_f32 v{b_}, {fhex(1e-5)}, v{b_}', f'v_rsq_f32 v{ra_}, v{b_}', f'v_sqrt_f32 v{rs_}, v{b_}', f'v_sub_f32 v{rb_}, 0, v{a_}']
        return o
    def ts_store():
        ra_, rb_, rs_, ro_ = vSum[0], vSum[1], vSq[0], vSq[1]
        S(f's_lshl_b32 s{sT}, s{sTok}, 2\nv_mov_b32 v{ro_}, s{sT}\ns_mov_b32 s{sT2}, {STATS_OFF}')
        S(f's_mov_b32 exec_lo, 0\ns_mov_b32 exec_hi, 0x80000000')
        for k, r in enumerate((ra_, rb_, rs_)):
            S(f'buffer_store_dword v{r}, v{ro_}, s[{sWS}:{sWS+3}], s{sT2} offen sc1', tag='tss')
            if k < 2: S(f's_add_u32 s{sT2}, s{sT2}, 8192')
        S('s_mov_b64 exec, -1')
    def csmfmas(s, typeB, first):
        b = s & 1; out = []
        for f in range(5):
            c = '0' if first else vr(vCs[f], 4)
            a_, b_ = vr(A[b][f], 4), vr(vOnes, 4)
            if typeB and f > 0: a_, b_ = b_, a_
            out.append(f'v_mfma_f32_16x16x32_bf16 {vr(vCs[f],4)}, {a_}, {b_}, {c}')
        return out

    def mainloop(typeB, duty):
        tag = ('B' if typeB else 'A') + str(duty)
        S.wait_vm(('big', 0)); S.wait_vm(('m', 0))
        S('s_waitcnt lgkmcnt(0)')
        S('s_barrier')
        if stamps: S(f's_memtime s[{sSt+2}:{sSt+3}]\ns_memrealtime s[{sSt+18}:{sSt+19}]')
        if dbg and 'K' not in xp and 'k' not in xp and 'j' not in xp: dbg_stamp(S, 84, 1, 0, 0, 0)
        for r in reads(0): S(r)
        for s in range(16):
            S('s_waitcnt lgkmcnt(0)')
            if s + 1 < 16:
                S.wait_vm(('m', s + 1)); S.wait_vm(('big', (s + 1) // 2))
            if CSS and s == 2: S.wait_vm('cs')
            if CSS and s == 15: S.wait_vm('csg')
            if steptrace:
                if s > 0: S(f'v_writelane_b32 v254, s72, {2*s-2}\nv_writelane_b32 v254, s74, {2*s-1}')
                S('s_memtime s[72:73]')
            S('s_barrier')
            if steptrace: S('s_memtime s[74:75]')
            if fused and PROT == 2 and s == 10:
                S(f'v_lshlrev_b32 v{vT[4]}, 2, v{vLane}\ns_mov_b64 exec, 3')
                S(f'buffer_load_dword v{vT[5]}, v{vT[4]}, s[{sDbg}:{sDbg+3}], 0 offen sc1', tag='clrchk')
                S('s_mov_b64 exec, -1')
            if fused and s == (4 if PROT == 2 else 7 if CSS else 5 if TS else SIG):
                lb = f'{L}_{tag}_sig'
                if PROT == 2: S(f's_cmp_ge_u32 s2, 8\ns_cbranch_scc1 {lb}')
                S(f's_cmp_lg_u32 s{sW}, 7\ns_cbranch_scc1 {lb}')
                S(f'v_mov_b32 v{vT[0]}, s2\nv_mov_b32 v{vT[1]}, 1\ns_mov_b64 exec, 1')
                S(f'buffer_store_byte v{vT[1]}, v{vT[0]}, s[{sDbg}:{sDbg+3}], 0 offen sc1', tag='nocount')
                S('s_mov_b64 exec, -1')
                S.label(lb)
            if CSS and s == 4:
                lb = f'{L}_{tag}_css'
                S(f's_cmp_lg_u32 s{sTh}, 0\ns_cbranch_scc1 {lb}')
                S(f's_lshl_b32 s{sT}, s{sC}, 4\ns_add_u32 s{sT}, s{sT}, s{sTb}\ns_mul_i32 s{sT}, s{sT}, 1280\ns_mul_i32 s{sT2}, s{sFq}, 320\ns_add_u32 s{sT}, s{sT}, s{sT2}\ns_add_u32 s{sT}, s{sT}, {CSP_OFF}')
                S(f'v_lshlrev_b32 v{vT[2]}, 4, v{vG}\nv_lshlrev_b32 v{vT[3]}, 2, v{vN}')
                S(f's_mov_b32 s4, 0x00010001\ns_mov_b32 s5, 0x00010001\ns_mov_b64 exec, s[4:5]')
                for f in range(5):
                    if not (typeB and f > 0): S(f'buffer_store_dwordx4 {vr(vCs[f],4)}, v{vT[2]}, s[{sWS}:{sWS+3}], s{sT} offen offset:{f*64} sc1', tag='nocount')
                if typeB:
                    S('s_mov_b64 exec, 0xffff')
                    for f in range(1, 5): S(f'buffer_store_dword v{vCs[f]}, v{vT[3]}, s[{sWS}:{sWS+3}], s{sT} offen offset:{f*64} sc1', tag='nocount')
                S('s_mov_b64 exec, -1')
                S.label(lb)
            if CSS and s == CSL:
                S(f'v_lshlrev_b32 v{vT[4]}, 2, v{vLane}')
                S(f'buffer_load_dword v{vT[5]}, v{vT[4]}, s[{sDbg}:{sDbg+3}], 0 offen sc1', tag='dbgchk')
            if CSS and s == CSL + 2:
                lb = f'{L}_{tag}_csc'
                S(f'v_cmp_ne_u32 vcc, 0x01010101, v{vT[5]}')
                S(f's_cmp_eq_u64 vcc, 0\ns_cbranch_scc1 {lb}')
                if 'Z' in xp: S(f's_branch {lb}')
                R = Stream(); poll(R, sDbg, vT[4], vT[5], sMc, '0x01010101', 64)
                S.raw_text(Processor().run(R).text())
                S.label(lb)
                S(f'v_lshlrev_b32 v{vT[4]}, 4, v{vLane}\ns_mul_i32 s{sT3}, s{sC}, 20480\ns_add_u32 s{sT3}, s{sT3}, {CSP_OFF}')
                for k in range(3):
                    S(f's_mul_i32 s{sT}, s{sW}, 3\ns_add_u32 s{sT}, s{sT}, {k}\ns_min_u32 s{sT}, s{sT}, 19\ns_lshl_b32 s{sT}, s{sT}, 10')
                    S(f's_add_u32 m0, s{sT}, {CSB}\ns_add_u32 s{sT}, s{sT}, s{sT3}')
                    S(f'buffer_load_dwordx4 v{vT[4]}, s[{sWS}:{sWS+3}], s{sT} offen sc1 lds', tag='csg')
            if TS and s == 9:
                S(f'v_lshlrev_b32 v{vLo}, 2, v{vLane}')
                S(f'buffer_load_dword v{vHi}, v{vLo}, s[{sDbg}:{sDbg+3}], 0 offen sc1', tag='dbgchk')
            if TS and s == 11:
                lb = f'{L}_{tag}_ts'
                S(f'v_cmp_ne_u32 vcc, 0x01010101, v{vHi}')
                S(f's_cmp_eq_u64 vcc, 0\ns_cbranch_scc1 {lb}')
                R = Stream(); poll(R, sDbg, vLo, vHi, sMc, '0x01010101', 64)
                S.raw_text(Processor().run(R).text())
                S.label(lb)
            if TS and s == 12:
                S(f's_min_u32 s{sT}, s{sW}, 5\ns_cmp_eq_u32 s{sW}, 6\ns_cselect_b32 s{sT}, 4, s{sT}')
                S(f's_lshr_b32 s{sT2}, s{sT}, 1\ns_and_b32 s{sT}, s{sT}, 1')
                S(f's_lshl_b32 s{sT3}, s{sT2}, 9\ns_lshl_b32 s{sMc}, s{sT}, 8\ns_add_u32 s{sT3}, s{sT3}, s{sMc}\ns_add_u32 m0, s{sT3}, {ST_SUM}')
                S(f's_lshl_b32 s{sT2}, s{sT2}, 13\ns_lshl_b32 s{sT3}, s{sTb}, 9\ns_add_u32 s{sT2}, s{sT2}, s{sT3}\ns_add_u32 s{sT2}, s{sT2}, s{sMc}\ns_add_u32 s{sT2}, s{sT2}, {STATS_OFF}')
                S(f'v_lshlrev_b32 v{vLo}, 2, v{vLane}')
                S(f'buffer_load_dword v{vLo}, s[{sWS}:{sWS+3}], s{sT2} offen sc1 lds', tag='ts')
            if PF and s == PFSTEP:
                S(f's_lshl_b32 s{sT}, s{sW}, 13')
                S(f'v_lshlrev_b32 v{vT[0]}, 7, v{vLane}\nv_add_u32 v{vT[0]}, s{sT}, v{vT[0]}')
                S(f's_mov_b32 s{sT}, {L}_end-{L}_pc-4')
                S(f'v_min_u32 v{vT[0]}, s{sT}, v{vT[0]}')
                for k in range(PF):
                    S(f'global_load_dword v{vEp+15}, v{vT[0]}, s[{sPc}:{sPc+1}]', tag='pf')
            groups = []
            if SCHED and NM == 5 and PRO == 2:
                table = {0: [('m', 3), ('big', 2)], 1: [('m', 4), ('m', 5)], 2: [('m', 6), ('big', 3)], 3: [('m', 7), ('m', 8)], 4: [('m', 9), ('big', 4)],
                         5: [('m', 10)], 6: [('m', 11), ('big', 5)], 7: [('m', 12)], 8: [('m', 13), ('big', 6)], 9: [('m', 14)], 10: [('m', 15), ('big', 7)]}
                for kind, idx in table.get(s, []): groups += (dma_big_groups(idx) if kind == 'big' else dma_m_groups(idx))
            else:
                if s == 0:
                    for kind, idx in late: groups += (dma_big_groups(idx) if kind == 'big' else dma_m_groups(idx))
                if s + NM < 16 and 'D' not in xp: groups += (dma_m_groups(s + NM) if 'q' not in xp else dma_m_groups(s + NM)[:1] if s % 2 == 0 else [])
                if s % 2 == 1 and (s - 1) // 2 + 3 < 8 and 'D' not in xp: groups += dma_big_groups((s - 1) // 2 + 3)
            if CSS and s == 0: groups += cs_groups()
            mm = mfmas(s, typeB)
            if 'q' in xp:
                mm = mm[:4] + mm[4:9]
            if 'q' not in xp and not CSS and s % 2 == duty and 'S' not in xp:
                cm = csmfmas(s, typeB, s < 2)
                mm = [x for f in range(5) for x in mm[4*f:4*f+4] + [cm[f]]]
            if CSS and s == 3:
                cm = []
                for f in range(5):
                    a_, b_ = vr(CT[f], 4), vr(vOnes, 4)
                    if typeB and f > 0: a_, b_ = b_, a_
                    cm.append(f'v_mfma_f32_16x16x32_bf16 {vr(vCs[f],4)}, {a_}, {b_}, 0')
                mm = [x for f in range(5) for x in mm[4*f:4*f+4] + [cm[f]]]
            rr = reads(s + 1) if s + 1 < 16 else []
            if 'q' in xp: rr = rr[:11]
            if CSS and s == 2:
                rr = list(rr)
                rr += [f'v_add_u32 v{vT[2]}, {CSB + 16384 - 16384}, v{vQa}',
                       f'ds_read_b64_tr_b16 {vr(CT[0],2)}, v{vT[2]} offset:0', f'ds_read_b64_tr_b16 {vr(CT[0]+2,2)}, v{vT[2]} offset:512']
                for i in range(4):
                    tv = vT[3 + (i & 1)]
                    rr += [f'v_add_u32 v{tv}, {CSB - MB}, v{vMa[i]}',
                           f'ds_read_b64_tr_b16 {vr(CT[1+i],2)}, v{tv} offset:0', f'ds_read_b64_tr_b16 {vr(CT[1+i]+2,2)}, v{tv} offset:1024']
            if CSS and s == 15:
                rr = [f'v_min_u32 v{vT[2]}, 319, v0', f'v_lshlrev_b32 v{vT[2]}, 2, v{vT[2]}', f'v_add_u32 v{vT[3]}, {CSB}, v{vT[2]}']
                rr += [f'ds_read_b32 v{232 + j}, v{vT[3]} offset:{j*1280}' for j in range(16)]
            if 'R' in xp: rr = []
            st = stats(s) if ('S' not in xp and not TS) else (ts_ops() if (TS and s == 1) else [])
            n = len(mm)
            dpos = {}
            if groups:
                first = DMA_FIRST; stride = max(1, (n - first) // len(groups))
                for i, g in enumerate(groups): dpos[min(n - 1, first + i * stride)] = dpos.get(min(n - 1, first + i * stride), []) + [g]
            k = 0; q = 0
            for i, m in enumerate(mm):
                S(m)
                nr = max(1, (len(rr) + n - 1) // n) if len(rr) > n else 1
                for _ in range(nr):
                    if k < len(rr): S(rr[k]); k += 1
                nq = (len(st) * (i + 1) + n - 1) // n
                while q < nq: S(st[q]); q += 1
                for g in dpos.get(i, []): emit_group(g)
            if TS and s == 1: ts_store()
        if stamps: S(f's_memtime s[{sSt+4}:{sSt+5}]\ns_memrealtime s[{sSt+20}:{sSt+21}]')

    def greduce(r):
        S(f'v_mov_b32 v{t0}, v{r}')
        S(f'v_permlane32_swap_b32 v{r}, v{t0}')
        S(f'v_add_f32 v{r}, v{r}, v{t0}')
        S(f'v_mov_b32 v{t0}, v{r}')
        S(f'v_permlane16_swap_b32 v{r}, v{t0}')
        S(f'v_add_f32 v{r}, v{r}, v{t0}')
    def reduce_stats(typeB):
        if not TS:
            S(f'v_add_f32 v{vSum[0]}, v{vSum[0]}, v{vSum[1]}')
            S(f'v_add_f32 v{vSq[0]}, v{vSq[0]}, v{vSq[1]}')
            for r in [vSum[0], vSq[0]]: greduce(r)
            ab_from(vSum[0], vSq[0], vSum[1], vSq[1], vLo)
            S(f's_lshl_b32 s{sT}, s{sTh}, 6\ns_lshl_b32 s{sT2}, s{sFq}, 4\ns_add_u32 s{sT}, s{sT}, s{sT2}')
            S(f'v_add_u32 v{t0}, s{sT}, v{vN}')
            S(f'v_lshlrev_b32 v{t0}, 2, v{t0}')
            S(f'v_add_u32 v{t0}, {ST_SUM}, v{t0}')
            S(f'ds_write_b32 v{t0}, v{vSum[1]}')
            S(f'ds_write_b32 v{t0}, v{vSq[1]} offset:512')
            S(f'ds_write_b32 v{t0}, v{vLo} offset:1024')
        else:
            S.wait_vm('ts')
        if CSS:
            for st_ in (1, 2, 4, 8):
                for j in range(0, 16, 2*st_): S(f'v_add_f32 v{232+j}, v{232+j}, v{232+j+st_}')
            S(f'v_add_u32 v{vT[2]}, {ST_CS}, v{vT[2]}')
            S(f'ds_write_b32 v{vT[2]}, v232')
        else:
            S(f's_mul_i32 s{sT}, s{sFq}, 320\ns_mul_i32 s{sT2}, s{sDuty}, 1280\ns_add_u32 s{sT}, s{sT}, s{sT2}\ns_add_u32 s{sT}, s{sT}, {ST_CS}')
            S(f'v_lshlrev_b32 v{t1}, 4, v{vG}')
            S(f'v_add_u32 v{t1}, s{sT}, v{t1}')
            S(f'v_lshlrev_b32 v{t2}, 2, v{vN}')
            S(f'v_add_u32 v{t2}, s{sT}, v{t2}')
            S('s_nop 7')
            S(f's_mov_b32 s4, 0x00010001\ns_mov_b32 s5, 0x00010001\ns_mov_b64 exec, s[4:5]')
            for f in range(5):
                if not (typeB and f > 0): S(f'ds_write_b128 v{t1}, {vr(vCs[f],4)} offset:{f*64}')
            if typeB:
                S(f's_mov_b64 exec, 0xffff')
                for f in range(1, 5): S(f'ds_write_b32 v{t2}, v{vCs[f]} offset:{f*64}')
            S('s_mov_b64 exec, -1')
        S('s_waitcnt lgkmcnt(0)')
        S('s_barrier')

    SC = ' sc1' if fused else ''
    def publish(sflag, tag, lb):
        S.wait_vm(tag)
        S('s_barrier')
        S(f's_cmp_lg_u32 s{sW}, 0\ns_cbranch_scc1 {lb}')
        S(f'v_mov_b32 v{t4}, 0\nv_mov_b32 v{t5}, 1\ns_mov_b64 exec, 1')
        if setmod == 'atomic': S(f'buffer_atomic_add v{t5}, v{t4}, s[{sWS}:{sWS+3}], s{sflag} offen sc1', tag='nocount')
        else: S(f'buffer_store_dword v{t5}, v{t4}, s[{sWS}:{sWS+3}], s{sflag} offen sc1', tag='nocount')
        S('s_mov_b64 exec, -1')
        S.label(lb)
    def epilogue(typeB):
        v = VAlloc(Bs[1] + 4, 'v', A[0][0])
        vP = v.alloc(8, 4); vcsr = v.alloc(4, 4)
        va = [vEp + i for i in range(4)]; vb = [vEp + 4 + i for i in range(4)]
        tq = [vEp + 8 + i for i in range(4)]
        vOff = vEp + 12; vAq = vEp + 13; vBq = vEp + 14
        vsd = [v.alloc() for _ in range(4)]
        S(f'v_lshlrev_b32 v{vOff}, 4, v{vLane}')
        S(f's_lshl_b32 s{sT}, s{sTh}, 6')
        S(f'v_add_u32 v{t0}, s{sT}, v{vN}')
        S(f'v_lshlrev_b32 v{t0}, 2, v{t0}')
        S(f'v_add_u32 v{t0}, {ST_SUM}, v{t0}')
        for tt in range(4):
            S(f'ds_read_b32 v{va[tt]}, v{t0} offset:{tt*64}')
            S(f'ds_read_b32 v{vb[tt]}, v{t0} offset:{512 + tt*64}')
            if not typeB: S(f'ds_read_b32 v{vsd[tt]}, v{t0} offset:{1024 + tt*64}')
        S(f's_mul_i32 s{sT}, s{sFq}, 320')
        S(f'v_lshlrev_b32 v{t1}, 4, v{vG}')
        S(f'v_add_u32 v{t1}, s{sT}, v{t1}')
        S(f'v_add_u32 v{t1}, {ST_CS}, v{t1}')
        def rd_cs_row(dst, f):
            tmp = vCs[f]
            S(f'ds_read_b128 {vr(dst,4)}, v{t1} offset:{f*64}')
            if CSS: return []
            S(f'ds_read_b128 {vr(tmp,4)}, v{t1} offset:{f*64 + 1280}')
            return [f'v_add_f32 v{dst+r}, v{dst+r}, v{tmp+r}' for r in range(4)]
        for x in rd_cs_row(vcsr, 0): S(x)
        S(f's_cmp_lt_u32 s{sC}, 8\ns_cselect_b32 s{sScale}, {fhex(QSCALE)}, 1.0')
        for tt in range(4):
            S(f'v_mul_f32 v{vAq}, s{sScale}, v{va[tt]}')
            for r in range(4):
                S(f'v_fma_f32 v{acc[0][tt]+r}, v{vb[tt]}, v{vcsr+r}, v{acc[0][tt]+r}')
            for r in range(4):
                S(f'v_mul_f32 v{acc[0][tt]+r}, v{acc[0][tt]+r}, v{vAq}')
            S(f'v_cvt_pk_bf16_f32 v{vP+2*tt}, v{acc[0][tt]}, v{acc[0][tt]+1}')
            S(f'v_cvt_pk_bf16_f32 v{vP+2*tt+1}, v{acc[0][tt]+2}, v{acc[0][tt]+3}')
        S(f's_and_b32 s{sT}, s{sC}, 7\ns_lshl_b32 s{sT}, s{sT}, 2\ns_add_u32 s{sT}, s{sT}, s{sFq}\ns_lshl_b32 s{sT}, s{sT}, 16')
        S(f's_cmp_lt_u32 s{sC}, 8\ns_cselect_b32 s{sT2}, 0, {K_OFF - Q_OFF}\ns_add_u32 s{sT}, s{sT}, s{sT2}')
        S(f's_lshl_b32 s{sT2}, s{sTb}, 2\ns_lshl_b32 s{sT3}, s{sTh}, 1\ns_add_u32 s{sT2}, s{sT2}, s{sT3}\ns_lshl_b32 s{sT2}, s{sT2}, 10')
        S(f's_add_u32 s{sT}, s{sT}, s{sT2}')
        for p in range(2):
            x, y = vP + 4*p, vP + 4*p + 2
            S(f'v_permlane16_swap_b32 v{x}, v{y}')
            S(f'v_permlane16_swap_b32 v{x+1}, v{y+1}')
            S(f'buffer_store_dwordx4 {vr(x,4)}, v{vOff}, s[{sWS}:{sWS+3}], s{sT} offen offset:{p*1024}{SC}', tag='qk')
        if stamps: S(f's_memtime s[{sSt+14}:{sSt+15}]')
        if not typeB:
            cg = [v.alloc(4, 4) for _ in range(2)]; cu = [v.alloc(4, 4) for _ in range(2)]
            adds = []
            for i in range(2):
                adds += rd_cs_row(cg[i], 1+i); adds += rd_cs_row(cu[i], 3+i)
            for x in adds: S(x)
            K1 = -2 * LOG2E * 0.7978845608028654; K2 = K1 * 0.044715
            sK1, sK2 = 46, 47
            S(f's_mov_b32 s{sK1}, {fhex(K1)}\ns_mov_b32 s{sK2}, {fhex(K2)}')
            vk1 = v.alloc(); S(f'v_mov_b32 v{vk1}, s{sK1}')
            tg = v.alloc(4, 4); tu = v.alloc(4, 4); tz = v.alloc(4, 4)
            def gelu(i, tt, H):
                G, U = acc[1+i][tt], acc[3+i][tt]
                for r in range(4): S(f'v_fma_f32 v{G+r}, v{vb[tt]}, v{cg[i]+r}, v{G+r}')
                for r in range(4): S(f'v_fma_f32 v{U+r}, v{vb[tt]}, v{cu[i]+r}, v{U+r}')
                for r in range(4): S(f'v_mul_f32 v{G+r}, v{G+r}, v{va[tt]}')
                for r in range(4): S(f'v_mul_f32 v{tz+r}, v{G+r}, v{G+r}')
                for r in range(4): S(f'v_fma_f32 v{tz+r}, v{tz+r}, s{sK2}, v{vk1}')
                for r in range(4): S(f'v_mul_f32 v{tz+r}, v{tz+r}, v{G+r}')
                for r in range(4): S(f'v_exp_f32 v{tz+r}, v{tz+r}')
                for r in range(4): S(f'v_mul_f32 v{U+r}, v{U+r}, v{G+r}')
                for r in range(4): S(f'v_fma_f32 v{tz+r}, v{tz+r}, v{vsd[tt]}, v{vsd[tt]}')
                for r in range(4): S(f'v_rcp_f32 v{tz+r}, v{tz+r}')
                S('s_nop 0')
                for r in range(4): S(f'v_mul_f32 v{U+r}, v{U+r}, v{tz+r}')
                S(f'v_cvt_pk_bf16_f32 v{H}, v{U}, v{U+1}')
                S(f'v_cvt_pk_bf16_f32 v{H+1}, v{U+2}, v{U+3}')
            if act32:
                S(f's_lshl_b32 s{sT}, s{sTb}, 2\ns_lshl_b32 s{sT2}, s{sTh}, 1\ns_add_u32 s{sT}, s{sT}, s{sT2}\ns_mul_i32 s{sT}, s{sT}, {144*1024}')
                S(f's_lshl_b32 s{sT2}, s{sC}, 3\ns_lshl_b32 s{sT3}, s{sFq}, 1\ns_add_u32 s{sT2}, s{sT2}, s{sT3}\ns_lshl_b32 s{sT2}, s{sT2}, 10\ns_add_u32 s{sT}, s{sT}, s{sT2}')
                S(f's_add_u32 s{sT}, s{sT}, {ACT_OFF}')
                vH = [v.alloc(4, 4) for _ in range(2)]
                ND = ndefer if (fused and defer) else 0
                assert ND in (0, 1)
                blocks = [(p, i) for p in range(2) for i in range(2)]
                for n, (p, i) in enumerate(blocks):
                    last = ND and n == 3
                    H = HCARRY + 12 if last else vH[n & 1]
                    if 'q' not in xp: gelu(i, 2*p, H); gelu(i, 2*p + 1, H + 2)
                    S(f'v_permlane16_swap_b32 v{H}, v{H+2}\nv_permlane16_swap_b32 v{H+1}, v{H+3}')
                    if last: S(f's_add_u32 s{sHaddr}, s{sT}, {i*1024}')
                    else: S(f'buffer_store_dwordx4 {vr(H,4)}, v{vOff}, s[{sWS}:{sWS+3}], s{sT} offen offset:{i*1024}{SC}', tag='h')
                    if n == 1: S(f's_add_u32 s{sT}, s{sT}, {144*1024}')
                    if fused and n == PUB_AT: publish(sFQ, 'qk', f'{L}_pq')
            else:
                S(f's_lshl_b32 s{sT}, s{sTb}, 3\ns_lshl_b32 s{sT2}, s{sTh}, 2\ns_add_u32 s{sT}, s{sT}, s{sT2}\ns_mul_i32 s{sT}, s{sT}, {72*1024}')
                S(f's_lshl_b32 s{sT2}, s{sC}, 2\ns_add_u32 s{sT2}, s{sT2}, s{sFq}\ns_lshl_b32 s{sT2}, s{sT2}, 10\ns_add_u32 s{sT}, s{sT}, s{sT2}')
                S(f's_add_u32 s{sT}, s{sT}, {ACT_OFF}')
                vH = [v.alloc(4, 4) for _ in range(2)]
                ND = ndefer if (fused and defer) else 0
                for tt in range(4):
                    H = vH[tt % 2] if tt < 4 - ND else HCARRY + 4*tt
                    if ND and tt == 4 - ND: S(f's_mov_b32 s{sHaddr}, s{sT}')
                    for i in range(2): gelu(i, tt, H + 2*i)
                    if tt < 4 - ND:
                        S(f'buffer_store_dwordx4 {vr(H,4)}, v{vOff}, s[{sWS}:{sWS+3}], s{sT} offen{SC}', tag='h')
                        if tt < 3: S(f's_add_u32 s{sT}, s{sT}, {72*1024}')
                    if fused and tt == PUB_AT: publish(sFQ, 'qk', f'{L}_pq')
            if fused and not defer: publish(sFH, 'h', f'{L}_ph')
        else:
            ra = [v.alloc(4, 4) for _ in range(4)]; rb = [v.alloc(4, 4) for _ in range(4)]
            S(f's_lshl_b32 s{sT}, s{sTh}, 8')
            S(f'v_lshlrev_b32 v{t2}, 4, v{vG}')
            S(f'v_add_u32 v{t2}, s{sT}, v{t2}')
            S(f'v_add_u32 v{t2}, {ST_SUM}, v{t2}')
            for tt in range(4):
                S(f'ds_read_b128 {vr(ra[tt],4)}, v{t2} offset:{tt*64}')
                S(f'ds_read_b128 {vr(rb[tt],4)}, v{t2} offset:{512 + tt*64}')
            cv = [v.alloc() for _ in range(4)]
            S(f's_mul_i32 s{sT}, s{sFq}, 320')
            S(f'v_lshlrev_b32 v{t3}, 2, v{vN}')
            S(f'v_add_u32 v{t3}, s{sT}, v{t3}')
            S(f'v_add_u32 v{t3}, {ST_CS}, v{t3}')
            for i in range(4):
                S(f'ds_read_b32 v{cv[i]}, v{t3} offset:{(1+i)*64}')
                if not CSS: S(f'ds_read_b32 v{vCs[1+i]}, v{t3} offset:{(1+i)*64 + 1280}')
            if not CSS:
                for i in range(4): S(f'v_add_f32 v{cv[i]}, v{cv[i]}, v{vCs[1+i]}')
            S(f's_sub_u32 s{sT}, s{sC}, 14\ns_lshl_b32 s{sT}, s{sT}, 4\ns_lshl_b32 s{sT2}, s{sFq}, 2\ns_add_u32 s{sT}, s{sT}, s{sT2}\ns_lshl_b32 s{sT}, s{sT}, 16')
            S(f's_lshl_b32 s{sT2}, s{sTb}, 2\ns_lshl_b32 s{sT3}, s{sTh}, 1\ns_add_u32 s{sT2}, s{sT2}, s{sT3}\ns_lshl_b32 s{sT2}, s{sT2}, 10')
            S(f's_add_u32 s{sT}, s{sT}, s{sT2}\ns_add_u32 s{sT}, s{sT}, {V_OFF}')
            vH = [v.alloc(4, 4) for _ in range(2)]
            n = 0
            for i in range(4):
                for p in range(2):
                    H = vH[n & 1]; n += 1
                    for u in range(2):
                        tt = 2*p + u; D = acc[1+i][tt]
                        for r in range(4): S(f'v_fma_f32 v{D+r}, v{rb[tt]+r}, v{cv[i]}, v{D+r}')
                        for r in range(4): S(f'v_mul_f32 v{D+r}, v{D+r}, v{ra[tt]+r}')
                        S(f'v_cvt_pk_bf16_f32 v{H+2*u}, v{D}, v{D+1}')
                        S(f'v_cvt_pk_bf16_f32 v{H+2*u+1}, v{D+2}, v{D+3}')
                    S(f'v_permlane32_swap_b32 v{H}, v{H+2}')
                    S(f'v_permlane32_swap_b32 v{H+1}, v{H+3}')
                    S(f'buffer_store_dwordx4 {vr(H,4)}, v{vOff}, s[{sWS}:{sWS+3}], s{sT} offen offset:{p*1024}{SC}', tag='v')
                if i < 3: S(f's_add_u32 s{sT}, s{sT}, 65536')
            if fused: publish(sFQ, 'v', f'{L}_pv')

    S(f's_cmp_eq_u32 s{sIsB}, 1\ns_cbranch_scc1 {L}_typeB')
    if not CSS: S(f's_cmp_eq_u32 s{sDuty}, 1\ns_cbranch_scc1 {L}_A1')
    procs = Processor().run(S)
    import copy
    outs = []
    def tail(typeB):
        if fused and PROT == 2:
            lb = f'{L}_clrok' + ('B' if typeB else 'A')
            S('s_mov_b64 exec, 3')
            S(f'v_cmp_ne_u32 vcc, 0x01010101, v{vT[5]}')
            S('s_mov_b64 exec, -1')
            S(f's_cmp_eq_u64 vcc, 0\ns_cbranch_scc1 {lb}')
            R = Stream(); poll(R, sDbg, vT[4], vT[5], sMc, '0x01010101', 2)
            S.raw_text(Processor().run(R).text())
            S.label(lb)
        if steptrace:
            S('s_waitcnt lgkmcnt(0)\nv_writelane_b32 v254, s72, 30\nv_writelane_b32 v254, s74, 31\ns_memtime s[72:73]\ns_waitcnt lgkmcnt(0)\nv_writelane_b32 v254, s72, 32')
            S(f'v_lshlrev_b32 v253, 2, v{vLane}\ns_lshl_b32 s{sT}, s2, 3\ns_add_u32 s{sT}, s{sT}, s{sW}\ns_lshl_b32 s{sT}, s{sT}, 8\ns_add_u32 s{sT}, s{sT}, {STAMP_OFF}')
            S(f'buffer_store_dword v254, v253, s[{sWS}:{sWS+3}], s{sT} offen', tag='nocount')
        if dbg: dbg_stamp(S, 84, 2, 0, 0, 0)
        reduce_stats(typeB)
        if stamps: S(f's_memtime s[{sSt+12}:{sSt+13}]')
        epilogue(typeB)
        if stamps:
            S(f's_memtime s[{sSt+16}:{sSt+17}]')
            S('s_waitcnt vmcnt(0)')
            S(f's_memtime s[{sSt+6}:{sSt+7}]\ns_memrealtime s[{sSt+8}:{sSt+9}]\ns_waitcnt lgkmcnt(0)')
            S(f's_sub_u32 s{sSt+2}, s{sSt+2}, s{sSt}\ns_sub_u32 s{sSt+4}, s{sSt+4}, s{sSt}\ns_sub_u32 s{sSt+6}, s{sSt+6}, s{sSt}\ns_sub_u32 s{sSt+8}, s{sSt+8}, s{sSt+10}')
            P = A[0][0]
            S(f'v_mov_b32 v{P}, s{sSt+2}\nv_mov_b32 v{P+1}, s{sSt+4}\nv_mov_b32 v{P+2}, s{sSt+6}\nv_mov_b32 v{P+3}, s{sSt+8}')
            S(f's_lshl_b32 s{sT}, s2, 3\ns_add_u32 s{sT}, s{sT}, s{sW}\ns_lshl_b32 s{sT}, s{sT}, 4\ns_add_u32 s{sT}, s{sT}, {STAMP_OFF}')
            S(f'v_mov_b32 v{t0}, 0')
            S(f'buffer_store_dwordx4 {vr(P,4)}, v{t0}, s[{sWS}:{sWS+3}], s{sT} offen')
            for a in (12, 14, 16): S(f's_sub_u32 s{sSt+a}, s{sSt+a}, s{sSt}')
            P = A[0][1]
            S(f's_sub_u32 s{sSt+18}, s{sSt+18}, s{sSt+10}\ns_sub_u32 s{sSt+20}, s{sSt+20}, s{sSt+10}\ns_lshl_b32 s{sSt+20}, s{sSt+20}, 16\ns_or_b32 s{sSt+18}, s{sSt+18}, s{sSt+20}')
            S(f'v_mov_b32 v{P}, s{sSt+12}\nv_mov_b32 v{P+1}, s{sSt+14}\nv_mov_b32 v{P+2}, s{sSt+16}\nv_mov_b32 v{P+3}, s{sSt+18}')
            S(f's_add_u32 s{sT}, s{sT}, {1 << 20}')
            S(f'buffer_store_dwordx4 {vr(P,4)}, v{t0}, s[{sWS}:{sWS+3}], s{sT} offen')
        if dbg:
            if fused: dbg_stamp(S, 84, 3, 0, 0, 0); S('s_waitcnt lgkmcnt(0)')
            else: dbg_final(S, 84, acc[0][0], sT, 0, sWS)
        if fused: S(f's_mov_b32 s{sIsBk}, {1 if typeB else 0}\ns_branch {L}_p2')
        else: S('s_endpgm')
    for typeB in (False, True):
        tn = 'B' if typeB else 'A'
        S.ins = []
        if CSS:
            if typeB: S.label(f'{L}_typeB')
            mainloop(typeB, 0)
            S('s_nop 7')
            tail(typeB)
            p = copy.deepcopy(procs); n0 = len(p.out); p.run(S); outs.append('\n'.join(p.out[n0:])); last = p
            continue
        if typeB:
            S.label(f'{L}_typeB')
            S(f's_cmp_eq_u32 s{sDuty}, 1\ns_cbranch_scc1 {L}_B1')
        mainloop(typeB, 0)
        S(f's_branch {L}_{tn}tail')
        p0 = copy.deepcopy(procs); n0 = len(p0.out); p0.run(S); outs.append('\n'.join(p0.out[n0:]))
        S.ins = []
        S.label(f'{L}_{tn}1')
        mainloop(typeB, 1)
        S.label(f'{L}_{tn}tail')
        S('s_nop 7')
        tail(typeB)
        p = copy.deepcopy(procs); n0 = len(p.out); p.run(S); outs.append('\n'.join(p.out[n0:])); last = p
    if fused: return procs.text() + '\n' + '\n'.join(outs), last, v.hi
    text = procs.text() + '\n' + '\n'.join(outs) + f'\n{L}_end:\ns_endpgm\n'
    return kernel_text(name, text, v.hi), last, v.hi

if __name__ == '__main__':
    import sys
    t, p, hi = gen_gemm1()
    print(t)
    from collections import Counter
    print('vgprs', hi, 'nops', p.nops_inserted, Counter(w.split(' (')[0] for w, n, _ in p.nop_log), file=sys.stderr)
```

```python
from common import *
from diag import *

LDS2 = 163840
GRING = 131072

def gen_p2(S, L, fused=True, stamps=False, dbg=False, xp='', G_R=2, aprio=1, pollmod='sc1', pollsleep=2, setmod='atomic', defer=True, hpos='late', kvmode='G', ndefer=1, outmod='', UN=8, align=0, pad=0, act32=True, WPF=0, PROT=2):
    sWS, sWD, sWO, sX, sOut, sDbg = 8, 12, 16, 20, 24, 28
    sW, sHead, sQb, sT, sT2, sT3, sCnt, sTb, sFb, sLds = 32, 33, 34, 35, 36, 37, 38, 39, 40, 41
    sWo, sAo, sWo2, sAo2, sMask, sKoff, sPoll, sG = 42, 43, 44, 45, 46, 48, 49, 50
    sSt = 64
    v = VAlloc(256, 'v', 1)
    vLane = v.alloc(); vOff = v.alloc(); t0, t1, t2, t3 = [v.alloc() for _ in range(4)]
    base_mark = v.mark()
    S(f's_load_dwordx4 s[52:55], s[0:1], {KA_X}')
    S(f's_load_dwordx2 s[56:57], s[0:1], {KA_WO}')
    S(f's_load_dwordx4 s[60:63], s[0:1], {KA_WD}')
    S(f's_load_dwordx4 s[4:7], s[0:1], {KA_DBG}')
    S(f'v_and_b32 v{vLane}, 63, v0')
    S(f'v_lshrrev_b32 v{t0}, 6, v0')
    S(f'v_lshlrev_b32 v{vOff}, 4, v{vLane}')
    S(f'v_readfirstlane_b32 s{sW}, v{t0}')
    S(f's_and_b32 s{sHead}, s2, 7\ns_lshl_b32 s{sHead}, s{sHead}, 2\ns_lshr_b32 s{sT}, s2, 6\ns_add_u32 s{sHead}, s{sHead}, s{sT}')
    S(f's_lshr_b32 s{sQb}, s2, 3\ns_and_b32 s{sQb}, s{sQb}, 7')
    S('s_waitcnt lgkmcnt(0)')
    srd_ws(S, sWS, 6); srd(S, sDbg, 4, 256)
    srd(S, sX, 52, 2048 * 512 * 2); srd(S, sWO, 56, 512 * 512 * 2)
    srd(S, sWD, 60, 1792 * 512 * 2); srd(S, sOut, 62, 2048 * 512 * 2)
    if stamps: S(f's_memtime s[{sSt}:{sSt+1}]\ns_memrealtime s[{sSt+10}:{sSt+11}]')
    if fused and 'F' not in xp:
        if PROT != 2:
            S(f'v_lshlrev_b32 v{t0}, 2, v{vLane}')
            poll(S, sDbg, t0, t1, sPoll, '0x01010101', 64)
        S(f's_lshr_b32 s{sT}, s{sHead}, 2\ns_lshl_b32 s{sT}, s{sT}, 11')
        S(f's_lshr_b32 s{sT2}, s{sHead}, 4\ns_add_u32 s{sT2}, s{sT2}, 14\ns_lshl_b32 s{sT2}, s{sT2}, 11')
        S(f'v_and_b32 v{t0}, 15, v{vLane}\nv_lshlrev_b32 v{t0}, 7, v{t0}')
        S(f's_add_u32 s{sT3}, s{sT}, {8 << 11}')
        S(f'v_mov_b32 v{t1}, s{sT3}\nv_mov_b32 v{t2}, s{sT2}')
        S(f'v_cmp_gt_u32 vcc, 16, v{vLane}')
        S(f'v_cndmask_b32 v{t1}, v{t2}, v{t1}, vcc')
        S(f's_lshl_b32 s{sT2}, s{sQb}, 8\ns_add_u32 s{sT}, s{sT}, s{sT2}')
        S(f'v_mov_b32 v{t2}, s{sT}')
        S(f'v_cmp_gt_u32 vcc, 32, v{vLane}')
        S(f'v_cndmask_b32 v{t1}, v{t2}, v{t1}, vcc')
        S(f'v_add_u32 v{t0}, v{t0}, v{t1}')
        S(f's_mov_b32 s{sT3}, {FQ_OFF}')
        poll(S, sWS, t0, t1, sPoll, 1, 34, soff=sT3)
    if dbg: dbg_stamp(S, 64, 0, 0, 0, 0)
    S(f's_lshl_b32 s{sKoff}, s{sHead}, 16\ns_lshl_b32 s{sT3}, s{sW}, 10\ns_add_u32 s{sKoff}, s{sKoff}, s{sT3}')
    SC = ' sc1' if fused else ''
    def dma(i, tag):
        S(f's_add_u32 m0, s{sT3}, {i*8192}')
        S(f's_add_u32 s{sT2}, s{sKoff}, {K_OFF + i*8192}')
        S(f'buffer_load_dwordx4 v{vOff}, s[{sWS}:{sWS+3}], s{sT2} offen{SC} lds', tag=tag)
        S(f's_add_u32 m0, s{sT3}, {65536 + i*8192}')
        S(f's_add_u32 s{sT2}, s{sKoff}, {V_OFF + i*8192}')
        S(f'buffer_load_dwordx4 v{vOff}, s[{sWS}:{sWS+3}], s{sT2} offen{SC} lds', tag=tag)
    dma(0, 'kv0')
    S(f's_cmp_ge_u32 s{sW}, 4\ns_cbranch_scc1 {L}_G')
    import copy
    pre = Processor().run(S)
    SA = Stream(); S_ = SA
    v.release(base_mark)
    vKa = v.alloc(); vVa = v.alloc(); vM = v.alloc(); vOv = v.alloc()
    sOad = 77
    Q = [v.alloc(4, 4) for _ in range(2)]; Kf = [v.alloc(4, 4) for _ in range(2)]
    Vf = [[v.alloc(4, 4) for _ in range(2)] for _ in range(2)]
    P = [v.alloc(8, 4) for _ in range(2)]; Sx = [v.alloc(16, 4) for _ in range(2)]
    O = [v.alloc(16, 4) for _ in range(2)]; Cm = [v.alloc(16, 4) for _ in range(2)]
    hiA = v.hi
    def dmaS(St, i, tag):
        St(f's_add_u32 m0, s{sT3}, {i*8192}')
        St(f's_add_u32 s{sT2}, s{sKoff}, {K_OFF + i*8192}')
        St(f'buffer_load_dwordx4 v{vOff}, s[{sWS}:{sWS+3}], s{sT2} offen{SC} lds', tag=tag)
        St(f's_add_u32 m0, s{sT3}, {65536 + i*8192}')
        St(f's_add_u32 s{sT2}, s{sKoff}, {V_OFF + i*8192}')
        St(f'buffer_load_dwordx4 v{vOff}, s[{sWS}:{sWS+3}], s{sT2} offen{SC} lds', tag=tag)
    A_ = SA
    HC = 240; sFH, sHaddr, sIsBk = 95, 100, 101
    assert not (act32 and fused and defer and ndefer != 1)
    def hstores(St, lb):
        if not (fused and defer): return
        St(f's_cmp_eq_u32 s{sIsBk}, 1\ns_cbranch_scc1 {lb}')
        for tt in range(4 - ndefer, 4):
            St(f'buffer_store_dwordx4 {vr(HC+4*tt,4)}, v{vOff}, s[{sWS}:{sWS+3}], s{sHaddr} offen sc1', tag='nocount')
            if tt < 3: St(f's_add_u32 s{sHaddr}, s{sHaddr}, {72*1024}')
        St.label(lb)
    A_(f's_lshl_b32 s{sT}, s{sHead}, 16\ns_lshl_b32 s{sT2}, s{sQb}, 13\ns_add_u32 s{sT}, s{sT}, s{sT2}\ns_lshl_b32 s{sT2}, s{sW}, 11\ns_add_u32 s{sT}, s{sT}, s{sT2}')
    if Q_OFF: A_(f's_add_u32 s{sT}, s{sT}, {Q_OFF}')
    for a in range(2):
        A_(f'buffer_load_dwordx4 {vr(Q[a],4)}, v{vOff}, s[{sWS}:{sWS+3}], s{sT} offen offset:{a*1024}{SC}', tag='q')
    if kvmode != 'G':
        for i in range(1, 8): dmaS(A_, i, 'kvrest')
    if hpos == 'after': hstores(A_, f'{L}_hsA')
    A_(f'v_mov_b32 v{vKa}, v{vOff}')
    A_(f'v_lshrrev_b32 v{t0}, 5, v{vLane}\nv_lshlrev_b32 v{t0}, 8, v{t0}\nv_and_b32 v{t1}, 15, v{vLane}\nv_lshlrev_b32 v{t1}, 4, v{t1}')
    A_(f'v_add_u32 v{vVa}, v{t0}, v{t1}\nv_add_u32 v{vVa}, 0x10000, v{vVa}')
    A_(f's_mov_b32 s{sMask}, 0x0000ffff\ns_mov_b32 s{sMask+1}, 0x0000ffff')
    A_(f'v_and_b32 v{t0}, 27, v{vLane}\nv_cmp_eq_u32 vcc, 16, v{t0}\nv_mov_b32 v{t1}, 0x3f803f80\nv_cndmask_b32 v{t1}, 0, v{t1}, vcc')
    for a in Vf:
        for b in a:
            for i in range(4): A_(f'v_mov_b32 v{b+i}, v{t1}')
    A_(f's_lshl_b32 s{sT}, s{sQb}, 2\ns_add_u32 s{sTb}, s{sT}, s{sW}')
    if act32:
        A_(f's_mul_i32 s{sT}, s{sTb}, {2*144*1024}\ns_lshl_b32 s{sT2}, s{sHead}, 10\ns_add_u32 s{sT}, s{sT}, s{sT2}\ns_add_u32 s{sT}, s{sT}, {ACT_OFF + 112*1024}')
        OSTEP = 144*1024
        A_(f's_mov_b32 s{sOad}, s{sT}')
    else:
        A_(f's_mul_i32 s{sT}, s{sTb}, {4*72*1024}')
        A_(f's_lshr_b32 s{sT2}, s{sHead}, 1\ns_lshl_b32 s{sT2}, s{sT2}, 10\ns_add_u32 s{sT}, s{sT}, s{sT2}')
        A_(f's_and_b32 s{sT2}, s{sHead}, 1\ns_lshl_b32 s{sT2}, s{sT2}, 9\ns_add_u32 s{sT}, s{sT}, s{sT2}\ns_add_u32 s{sT}, s{sT}, {ACT_OFF + 56*1024}')
        A_(f'v_bfe_u32 v{t0}, v{vLane}, 4, 1\nv_mul_u32_u24 v{t0}, {72*1024}, v{t0}\nv_lshrrev_b32 v{t1}, 5, v{vLane}\nv_lshl_add_u32 v{t0}, v{t1}, 8, v{t0}')
        A_(f'v_and_b32 v{t1}, 15, v{vLane}\nv_lshl_add_u32 v{t0}, v{t1}, 4, v{t0}')
        OSTEP = 2*72*1024
        A_(f's_mov_b32 s{sOad}, s{sT}\nv_mov_b32 v{vOv}, v{t0}')
    if aprio: A_(f's_setprio {aprio}')
    A_.wait_vm('kv0'); A_('s_barrier')
    if hpos == 'late': hstores(A_, f'{L}_hsA')
    if stamps: A_(f's_memtime s[{sSt+2}:{sSt+3}]')
    if dbg: dbg_stamp(A_, 64, 1, 0, 0, 0)
    M32 = 'v_mfma_f32_32x32x16_bf16'
    A_(f'ds_read_b128 {vr(Kf[0],4)}, v{vKa}\nds_read_b128 {vr(Kf[1],4)}, v{vKa} offset:1024')
    DELTA = 64.0
    for a in range(2):
        A_(f'{M32} {vr(Sx[0],16)}, {vr(Kf[0],4)}, {vr(Q[a],4)}, 0')
        A_(f'{M32} {vr(Sx[1],16)}, {vr(Kf[1],4)}, {vr(Q[a],4)}, 0')
        A_(f'v_max3_f32 v{vM}, v{Sx[0]}, v{Sx[0]+1}, v{Sx[0]+2}')
        for i in range(3, 15, 2): A_(f'v_max3_f32 v{vM}, v{vM}, v{Sx[0]+i}, v{Sx[0]+i+1}')
        A_(f'v_max3_f32 v{vM}, v{vM}, v{Sx[0]+15}, v{Sx[1]}')
        for i in range(1, 15, 2): A_(f'v_max3_f32 v{vM}, v{vM}, v{Sx[1]+i}, v{Sx[1]+i+1}')
        A_(f'v_max_f32 v{vM}, v{vM}, v{Sx[1]+15}')
        A_(f'v_mov_b32 v{t0}, v{vM}\nv_permlane32_swap_b32 v{vM}, v{t0}\nv_max_f32 v{vM}, v{vM}, v{t0}')
        A_(f'v_add_f32 v{vM}, {fhex(DELTA)}, v{vM}')
        for i in range(16): A_(f'v_sub_f32 v{Cm[a]+i}, 0, v{vM}')
    def rdK(off, buf):
        if off < 64: A_(f'ds_read_b128 {vr(Kf[buf],4)}, v{vKa} offset:{off*1024}')
    def rdV(off, buf):
        if off >= 64: return
        A_(f's_mov_b64 exec, s[{sMask}:{sMask+1}]')
        A_(f'ds_read_b128 {vr(Vf[buf][0],4)}, v{vVa} offset:{off*1024}')
        A_(f'ds_read_b128 {vr(Vf[buf][1],4)}, v{vVa} offset:{off*1024+512}')
        A_(f's_mov_b64 exec, -1')
    def qk(a, kb): A_(f'{M32} {vr(Sx[a],16)}, {vr(Kf[kb],4)}, {vr(Q[a],4)}, {vr(Cm[a],16)}')
    def pv(a, u, vb, zero=False): A_(f'{M32} {vr(O[a],16)}, {vr(Vf[vb][u],4)}, {vr(P[a]+4*u,4)}, ' + ('0' if zero else vr(O[a],16)))
    rdV(0, 0)
    qk(0, 0)
    def tile(t, off, first=False, last=False):
        b = t & 1; nb = b ^ 1
        e = lambda a, i: A_(f'v_exp_f32 v{Sx[a]+i}, v{Sx[a]+i}')
        c = lambda a, i: A_(f'v_cvt_pk_bf16_f32 v{P[a]+i}, v{Sx[a]+2*i}, v{Sx[a]+2*i+1}')
        def phase(a, m_pre, m_mid):
            e(a,0); e(a,1); e(a,2); c(a,0); e(a,3); e(a,4); c(a,1); e(a,5)
            m_pre()
            e(a,6); c(a,2); e(a,7); e(a,8); c(a,3); e(a,9); e(a,10)
            m_mid()
            c(a,4); e(a,11); e(a,12); c(a,5); e(a,13); e(a,14); e(a,15); c(a,6); c(a,7)
        qk(1, b)
        rdK(off + 1, nb)
        def pre_a():
            if not first: pv(1, 1, nb)
            rdV(off + 1, nb)
        phase(0, pre_a, lambda: pv(0, 0, b, zero=first))
        A_('s_waitcnt lgkmcnt(0)')
        qk(0, nb)
        if last:
            A_(f'v_add_u32 v{vKa}, {UN*1024}, v{vKa}\nv_add_u32 v{vVa}, {UN*1024}, v{vVa}\ns_sub_u32 s{sCnt}, s{sCnt}, 1')
        phase(1, lambda: pv(0, 1, b), lambda: pv(1, 0, b, zero=first))
    def block(first):
        for t in range(UN):
            if first and t == 7:
                A_.wait_vm('kvrest'); A_('s_waitcnt vmcnt(0)')
                if dbg and 'B' in xp: dbg_stamp(A_, 64, 0, 0, 0, 0)
                A_('s_barrier')
                if dbg and 'B' not in xp: dbg_stamp(A_, 64, 0, 0, 0, 0)
            tile(t, t, first=(first and t == 0), last=(t == UN - 1))
    A_(f's_mov_b32 s{sCnt}, {64 // UN}')
    block(True)
    if 64 // UN > 1:
        if align: A_(f'.p2align {align}')
        for _ in range(pad): A_('s_nop 0')
        A_.label(f'{L}_aloop')
        block(False)
        A_(f's_cmp_lg_u32 s{sCnt}, 0\ns_cbranch_scc1 {L}_aloop')
    pv(1, 1, 1)
    A_('s_waitcnt lgkmcnt(0)')
    if stamps: A_(f's_memtime s[{sSt+4}:{sSt+5}]')
    if dbg: dbg_stamp(A_, 64, 2, 0, 0, 0)
    if 'b' not in xp: A_('s_barrier')
    A_('s_nop 7\ns_nop 3')
    A_(f'v_mov_b32 v{t1}, 0x7f800000\nv_mov_b32 v{t2}, {fhex(2.0**110)}')
    A_(f's_mov_b64 s[4:5], -1')
    for a in range(2):
        A_(f'v_add_f32 v{t0}, |v{O[a]}|, |v{O[a]+1}|')
        for i in range(2, 8): A_(f'v_add_f32 v{t0}, v{t0}, |v{O[a]+i}|')
        A_(f'v_cmp_lt_f32 vcc, v{t0}, v{t1}')
        A_(f's_and_b64 s[4:5], s[4:5], vcc')
        A_(f'v_cmp_lt_f32 vcc, v{O[a]+8}, v{t2}')
        A_(f's_and_b64 s[4:5], s[4:5], vcc')
    A_(f's_cmp_eq_u64 s[4:5], -1\ns_cbranch_scc1 {L}_afin')
    for a in range(2):
        A_(f'v_mov_b32 v{vKa}, v{vOff}')
        A_(f'v_lshrrev_b32 v{t0}, 5, v{vLane}\nv_lshlrev_b32 v{t0}, 8, v{t0}\nv_and_b32 v{t1}, 15, v{vLane}\nv_lshlrev_b32 v{t1}, 4, v{t1}')
        A_(f'v_add_u32 v{vVa}, v{t0}, v{t1}\nv_add_u32 v{vVa}, 0x10000, v{vVa}')
        A_(f'v_mov_b32 v{vM}, 0xff800000')
        for i in range(16): A_(f'v_mov_b32 v{O[a]+i}, 0')
        A_(f's_mov_b32 s{sCnt}, 64')
        A_.label(f'{L}_slow{a}')
        rdK(0, 0); rdV(0, 0)
        A_('s_waitcnt lgkmcnt(0)')
        X = Sx[0]
        A_(f'{M32} {vr(X,16)}, {vr(Kf[0],4)}, {vr(Q[a],4)}, 0')
        A_(f'v_max3_f32 v{t0}, v{X}, v{X+1}, v{X+2}')
        for i in range(3, 15, 2): A_(f'v_max3_f32 v{t0}, v{t0}, v{X+i}, v{X+i+1}')
        A_(f'v_max3_f32 v{t0}, v{t0}, v{X+15}, v{vM}')
        A_(f'v_mov_b32 v{t1}, v{t0}\nv_permlane32_swap_b32 v{t0}, v{t1}\nv_max_f32 v{t0}, v{t0}, v{t1}')
        A_(f'v_sub_f32 v{t1}, v{vM}, v{t0}\nv_exp_f32 v{t1}, v{t1}\nv_mov_b32 v{vM}, v{t0}')
        for i in range(16): A_(f'v_mul_f32 v{O[a]+i}, v{O[a]+i}, v{t1}')
        for i in range(16): A_(f'v_sub_f32 v{X+i}, v{X+i}, v{vM}')
        for i in range(16): A_(f'v_exp_f32 v{X+i}, v{X+i}')
        for i in range(8): A_(f'v_cvt_pk_bf16_f32 v{P[a]+i}, v{X+2*i}, v{X+2*i+1}')
        pv(a, 0, 0); pv(a, 1, 0)
        A_(f'v_add_u32 v{vKa}, 1024, v{vKa}\nv_add_u32 v{vVa}, 1024, v{vVa}')
        A_(f's_sub_u32 s{sCnt}, s{sCnt}, 1\ns_cmp_lg_u32 s{sCnt}, 0\ns_nop 7\ns_nop 7')
        A_(f's_cbranch_scc1 {L}_slow{a}')
    A_.label(f'{L}_afin')
    A_('s_nop 7\ns_nop 3')
    A_(f's_mov_b32 s{sT}, s{sOad}')
    if act32: A_(f'v_mov_b32 v{t0}, v{vOff}')
    else: A_(f'v_mov_b32 v{t0}, v{vOv}')
    for a in range(2):
        A_(f'v_rcp_f32 v{t2}, v{O[a]+8}')
        A_('s_nop 0')
        for i in range(8): A_(f'v_mul_f32 v{O[a]+i}, v{O[a]+i}, v{t2}')
        for i in range(4): A_(f'v_cvt_pk_bf16_f32 v{P[a]+i}, v{O[a]+2*i}, v{O[a]+2*i+1}')
        A_(f'buffer_store_dwordx4 {vr(P[a],4)}, v{t0}, s[{sWS}:{sWS+3}], s{sT} offen sc1')
        if a == 0: A_(f's_add_u32 s{sT}, s{sT}, {OSTEP}')
    if True:
        A_(f's_lshl_b32 s{sT}, s{sTb}, 12\ns_lshl_b32 s{sT2}, s{sHead}, 7\ns_add_u32 s{sT}, s{sT}, s{sT2}\ns_add_u32 s{sT}, s{sT}, {FO_OFF}')
        A_(f'v_mov_b32 v{t0}, 0\nv_mov_b32 v{t1}, 1')
        A_('s_waitcnt vmcnt(0)')
        A_('s_mov_b64 exec, 1')
        if setmod == 'store': A_(f'buffer_store_dword v{t1}, v{t0}, s[{sWS}:{sWS+3}], s{sT} offen sc1')
        elif setmod == 'store2': A_(f'buffer_store_dword v{t1}, v{t0}, s[{sWS}:{sWS+3}], s{sT} offen sc0 sc1')
        else: A_(f'buffer_atomic_add v{t1}, v{t0}, s[{sWS}:{sWS+3}], s{sT} offen sc1')
        A_('s_mov_b64 exec, -1')
    if stamps:
        A_('s_waitcnt vmcnt(0)')
        A_(f's_memtime s[{sSt+6}:{sSt+7}]\ns_memrealtime s[{sSt+8}:{sSt+9}]\ns_waitcnt lgkmcnt(0)')
        A_(f's_sub_u32 s{sSt+2}, s{sSt+2}, s{sSt}\ns_sub_u32 s{sSt+4}, s{sSt+4}, s{sSt}\ns_sub_u32 s{sSt+6}, s{sSt+6}, s{sSt}\ns_sub_u32 s{sSt+8}, s{sSt+8}, s{sSt+10}')
        X = Sx[0]
        A_(f'v_mov_b32 v{X}, s{sSt+2}\nv_mov_b32 v{X+1}, s{sSt+4}\nv_mov_b32 v{X+2}, s{sSt+6}\nv_mov_b32 v{X+3}, s{sSt+8}')
        A_(f's_lshl_b32 s{sT}, s2, 3\ns_add_u32 s{sT}, s{sT}, s{sW}\ns_lshl_b32 s{sT}, s{sT}, 4\ns_add_u32 s{sT}, s{sT}, {STAMP_OFF}')
        A_(f'v_mov_b32 v{t0}, 0\nbuffer_store_dwordx4 {vr(X,4)}, v{t0}, s[{sWS}:{sWS+3}], s{sT} offen')
        X = Sx[1]
        A_(f's_add_u32 s{sSt+8}, s{sSt+8}, s{sSt+10}')
        A_(f'v_mov_b32 v{X}, s{sSt+10}\nv_mov_b32 v{X+1}, s{sSt+8}\nv_mov_b32 v{X+2}, 0\nv_mov_b32 v{X+3}, 0')
        A_(f's_add_u32 s{sT}, s{sT}, {2 << 20}\nbuffer_store_dwordx4 {vr(X,4)}, v{t0}, s[{sWS}:{sWS+3}], s{sT} offen')
    if dbg: dbg_final(A_, 64, Sx[0], sT, 1, sWS); (fused and dbg_store(A_, 84, Sx[0], sT, 0, sWS))
    A_('s_endpgm')
    pA = copy.deepcopy(pre); n0 = len(pA.out); pA.run(SA); textA = '\n'.join(pA.out[n0:])

    SG = Stream(); G_ = SG
    v.release(base_mark)
    vN = v.alloc(); vG = v.alloc(); vDw = v.alloc(); vXo = v.alloc()
    vAh = [v.alloc() for _ in range(4)]; vAo = [v.alloc() for _ in range(4)]
    vXr = [v.alloc(2, 2) for _ in range(4)]
    Af = [[v.alloc(4, 4) for _ in range(4)] for _ in range(4)]
    Bf = [[v.alloc(4, 4) for _ in range(4)] for _ in range(4)]
    acc = [[v.alloc(4, 4) for _ in range(4)] for _ in range(4)]
    hiG = v.hi
    G_.label(f'{L}_G')
    def kvrest_G():
        G_(f's_sub_u32 s{sT}, s{sW}, 4\ns_lshl_b32 s{sT3}, s{sT}, 11\ns_lshl_b32 s{sKoff}, s{sHead}, 16\ns_add_u32 s{sKoff}, s{sKoff}, s{sT3}')
        for i in range(1, 8):
            for j in range(2):
                for base, lb_ in ((K_OFF, 0), (V_OFF, 65536)):
                    G_(f's_add_u32 m0, s{sT3}, {lb_ + i*8192 + j*1024}')
                    G_(f's_add_u32 s{sT2}, s{sKoff}, {base + i*8192 + j*1024}')
                    G_(f'buffer_load_dwordx4 v{vOff}, s[{sWS}:{sWS+3}], s{sT2} offen{SC} lds', tag='kvrest')
    if kvmode != 'G':
        for i in range(1, 8): dmaS(G_, i, 'kvrest')
    if hpos == 'after': hstores(G_, f'{L}_hsG')
    G_(f's_sub_u32 s{sG}, s{sW}, 4')
    G_(f'v_and_b32 v{vN}, 15, v0\nv_bfe_u32 v{vG}, v0, 4, 2')
    G_(f's_and_b32 s{sT}, s2, 7\ns_lshl_b32 s{sT}, s{sT}, 2\ns_lshr_b32 s{sT2}, s2, 3\ns_and_b32 s{sT2}, s{sT2}, 3\ns_add_u32 s{sTb}, s{sT}, s{sT2}')
    G_(f's_lshr_b32 s{sFb}, s2, 5')
    G_(f'v_lshrrev_b32 v{t0}, 3, v{vLane}\nv_lshlrev_b32 v{t0}, 10, v{t0}\nv_and_b32 v{t1}, 7, v{vLane}')
    if act32: G_(f'v_and_b32 v{t2}, 1, v{vG}\nv_lshlrev_b32 v{t2}, 2, v{t2}')
    else: G_(f'v_lshlrev_b32 v{t2}, 1, v{vG}')
    G_(f'v_xor_b32 v{t1}, v{t1}, v{t2}\nv_lshl_add_u32 v{vDw}, v{t1}, 4, v{t0}')
    G_(f's_lshl_b32 s{sLds}, s{sG}, 13\ns_add_u32 s{sLds}, s{sLds}, {GRING}')
    NH, NO = 14, 4
    G_(f's_mul_i32 s{sWo}, s{sG}, {32*NH*1024}\ns_lshl_b32 s{sT}, s{sFb}, 7\ns_add_u32 s{sWo}, s{sWo}, s{sT}')
    if act32:
        G_(f's_mul_i32 s{sAo}, s{sTb}, {2*144*1024}\ns_mul_i32 s{sT}, s{sG}, {2*NH*1024}\ns_add_u32 s{sAo}, s{sAo}, s{sT}\ns_add_u32 s{sAo}, s{sAo}, {ACT_OFF}')
    else:
        G_(f's_mul_i32 s{sAo}, s{sTb}, {4*72*1024}\ns_mul_i32 s{sT}, s{sG}, {NH*1024}\ns_add_u32 s{sAo}, s{sAo}, s{sT}\ns_add_u32 s{sAo}, s{sAo}, {ACT_OFF}')
    G_(f's_mul_i32 s{sWo2}, s{sG}, {32*NO*1024}\ns_lshl_b32 s{sT}, s{sFb}, 7\ns_add_u32 s{sWo2}, s{sWo2}, s{sT}')
    if act32:
        G_(f's_mul_i32 s{sAo2}, s{sTb}, {2*144*1024}\ns_mul_i32 s{sT}, s{sG}, {2*NO*1024}\ns_add_u32 s{sAo2}, s{sAo2}, s{sT}\ns_add_u32 s{sAo2}, s{sAo2}, {ACT_OFF + 112*1024}')
    else:
        G_(f's_mul_i32 s{sAo2}, s{sTb}, {4*72*1024}\ns_mul_i32 s{sT}, s{sG}, {NO*1024}\ns_add_u32 s{sAo2}, s{sAo2}, s{sT}\ns_add_u32 s{sAo2}, s{sAo2}, {ACT_OFF + 56*1024}')
    vR, vCq = t2, t3
    G_(f'v_lshrrev_b32 v{vR}, 2, v{vN}\nv_and_b32 v{vCq}, 3, v{vN}')
    if act32:
        G_(f'v_and_b32 v{t0}, 1, v{vG}\nv_lshlrev_b32 v{t0}, 1, v{t0}\nv_lshrrev_b32 v{t1}, 1, v{vCq}\nv_add_u32 v{t0}, v{t0}, v{t1}')
        G_(f'v_lshrrev_b32 v{t1}, 1, v{vR}\nv_lshlrev_b32 v{t1}, 2, v{t1}\nv_xor_b32 v{t0}, v{t0}, v{t1}\nv_lshlrev_b32 v{t0}, 4, v{t0}')
        G_(f'v_and_b32 v{t1}, 1, v{vCq}\nv_lshl_add_u32 v{t0}, v{t1}, 3, v{t0}')
        G_(f'v_lshrrev_b32 v{vCq}, 1, v{vG}')
        G_(f'v_lshl_add_u32 v{t1}, v{vCq}, 3, v{vR}\nv_lshl_add_u32 v{vAh[0]}, v{t1}, 7, v{t0}')
        G_(f'v_lshl_add_u32 v{t1}, v{vCq}, 2, v{vR}\nv_lshl_add_u32 v{vAo[0]}, v{t1}, 7, v{t0}')
        G_(f's_and_b32 s{sT}, s{sG}, 1\ns_lshl_b32 s{sT}, s{sT}, 6')
        G_(f'v_xor_b32 v{vAh[0]}, s{sT}, v{vAh[0]}\nv_xor_b32 v{vAo[0]}, s{sT}, v{vAo[0]}')
        G_(f'v_xor_b32 v{vAh[1]}, 64, v{vAh[0]}\nv_xor_b32 v{vAo[1]}, 64, v{vAo[0]}')
        for k in range(2):
            G_(f'v_add_u32 v{vAh[k]}, s{sLds}, v{vAh[k]}\nv_add_u32 v{vAo[k]}, s{sLds}, v{vAo[k]}')
    else:
        G_(f'v_and_b32 v{t0}, 1, v{vG}\nv_lshlrev_b32 v{t0}, 1, v{t0}\nv_lshrrev_b32 v{t1}, 1, v{vR}\nv_add_u32 v{t0}, v{t0}, v{t1}')
        G_(f'v_lshlrev_b32 v{t0}, 1, v{t0}\nv_lshrrev_b32 v{t1}, 1, v{vCq}\nv_xor_b32 v{t0}, v{t0}, v{t1}\nv_lshlrev_b32 v{t0}, 4, v{t0}')
        G_(f'v_and_b32 v{t1}, 1, v{vCq}\nv_lshl_add_u32 v{t0}, v{t1}, 3, v{t0}')
        G_(f'v_lshl_add_u32 v{t1}, v{vG}, 2, v{vR}\nv_lshl_add_u32 v{vAh[0]}, v{t1}, 7, v{t0}')
        G_(f'v_lshrrev_b32 v{t1}, 1, v{vG}\nv_lshlrev_b32 v{t1}, 4, v{t1}\nv_add_u32 v{t1}, v{t1}, v{vR}')
        G_(f'v_and_b32 v{vCq}, 1, v{vG}\nv_lshl_add_u32 v{t1}, v{vCq}, 2, v{t1}\nv_lshl_add_u32 v{vAo[0]}, v{t1}, 7, v{t0}')
        for tau in range(1, 4):
            G_(f'v_xor_b32 v{vAh[tau]}, {32*tau}, v{vAh[0]}\nv_xor_b32 v{vAo[tau]}, {32*tau}, v{vAo[0]}')
        for tau in range(4):
            G_(f'v_add_u32 v{vAh[tau]}, s{sLds}, v{vAh[tau]}\nv_add_u32 v{vAo[tau]}, s{sLds}, v{vAo[tau]}')
    def wdma(s):
        if s >= NH + NO: return
        h = s < NH; slot = (s % 2) * 4096
        srdw = sWD if h else sWO; wo, i0 = (sWo, s) if h else (sWo2, s - NH)
        for i in range(4):
            G_(f's_add_u32 m0, s{sLds}, {slot + i*1024}')
            G_(f's_add_u32 s{sT}, s{wo}, {(32*i0 + 8*i)*1024}')
            G_(f'buffer_load_dwordx4 v{vDw}, s[{srdw}:{srdw+3}], s{sT} offen lds', tag=('w', s))
    sRot = [51, 58, 59, 79]
    if act32:
        for tt in range(2):
            G_(f's_lshr_b32 s{sT}, s{sG}, 1\ns_xor_b32 s{sT}, s{sT}, {tt}\ns_mul_i32 s{sRot[tt]}, s{sT}, {144*1024}')
    else:
        for tt in range(4):
            G_(f's_add_u32 s{sT}, s{sG}, {tt}\ns_and_b32 s{sT}, s{sT}, 3\ns_mul_i32 s{sRot[tt]}, s{sT}, {72*1024}')
    def bload(s, dst):
        h = s < NH; ao, i0 = (sAo, s) if h else (sAo2, s - NH)
        mod = SC if h else ' sc1'
        if act32:
            for tt in range(2):
                G_(f's_add_u32 s{sT}, s{ao}, s{sRot[tt]}')
                if i0 >= 2: G_(f's_add_u32 s{sT}, s{sT}, {2*i0*1024}')
                for ks in range(2):
                    off = ks*1024 + (2*i0*1024 if i0 < 2 else 0)
                    G_(f'buffer_load_dwordx4 {vr(dst[2*ks + tt],4)}, v{vOff}, s[{sWS}:{sWS+3}], s{sT} offen offset:{off}{mod}', tag=('b', s))
            return
        for tt in range(4):
            G_(f's_add_u32 s{sT}, s{ao}, s{sRot[tt]}')
            if i0 >= 4: G_(f's_add_u32 s{sT}, s{sT}, {i0*1024}')
            G_(f'buffer_load_dwordx4 {vr(dst[tt],4)}, v{vOff}, s[{sWS}:{sWS+3}], s{sT} offen offset:{i0*1024 if i0 < 4 else 0}{mod}', tag=('b', s))
    def areads(s, dst):
        h = s < NH; slot = (s % 2) * 4096
        if act32:
            for ks in range(2):
                for ph in range(2):
                    for rd in range(2):
                        a = vAh[ph] if h else vAo[ph]
                        G_(f'ds_read_b64_tr_b16 {vr(dst[2*ks + ph]+2*rd,2)}, v{a} offset:{slot + ks*2048 + rd*(512 if h else 1024)}')
            return
        for tau in range(4):
            for rd in range(2):
                a = vAh[tau] if h else vAo[tau]
                G_(f'ds_read_b64_tr_b16 {vr(dst[tau]+2*rd,2)}, v{a} offset:{slot + rd*(2048 if h else 1024)}')
    if kvmode != 'G': wdma(0); wdma(1)
    G_.wait_vm('kv0'); G_('s_barrier')
    if hpos == 'late': hstores(G_, f'{L}_hsG')
    if kvmode == 'G':
        kvrest_G(); wdma(0); wdma(1)
    G_.wait_vm('kvrest'); G_('s_barrier')
    if fused and defer:
        G_(f's_cmp_lg_u32 s{sW}, 4\ns_cbranch_scc1 {L}_nofh\ns_cmp_eq_u32 s{sIsBk}, 1\ns_cbranch_scc1 {L}_nofh')
        G_(f'v_mov_b32 v{t0}, 0\nv_mov_b32 v{t1}, 1\ns_mov_b64 exec, 1')
        G_(f'buffer_atomic_add v{t1}, v{t0}, s[{sWS}:{sWS+3}], s{sFH} offen sc1', tag='nocount')
        G_('s_mov_b64 exec, -1')
        G_.label(f'{L}_nofh')
    if WPF:
        G_(f'v_lshlrev_b32 v{t2}, 10, v{vLane}')
        for i in range(7):
            G_(f's_add_u32 s{sT}, s{sWo}, {i*64*1024}')
            G_(f'buffer_load_dword v{Bf[3][0] + i}, v{t2}, s[{sWD}:{sWD+3}], s{sT} offen', tag='wpf')
        for i in range(2):
            G_(f's_add_u32 s{sT}, s{sWo2}, {i*64*1024}')
            G_(f'buffer_load_dword v{Bf[3][0] + 8 + i}, v{t2}, s[{sWO}:{sWO+3}], s{sT} offen', tag='wpf')
    if 'g' in xp: G_('s_waitcnt vmcnt(0)\ns_endpgm')
    if fused and 'F' not in xp:
        G_(f'v_lshlrev_b32 v{t0}, 7, v{vLane}')
        G_(f's_lshr_b32 s{sT}, s{sTb}, 1\ns_lshl_b32 s{sT}, s{sT}, 11\ns_add_u32 s{sT}, s{sT}, {FH_OFF}')
        poll(G_, sWS, t0, t1, sPoll, 1, 14, soff=sT)
    if 'Q' in xp:
        accs = [Af[0][0] + 16*i for i in range(4)] + [Bf[0][0] + 16*i for i in range(3)]
        fr = [acc[0][0] + 4*i for i in range(8)]; bx = [acc[0][0] + 32 + 4*i for i in range(4)]; csacc = acc[0][0] + 48
        for st_ in range(16):
            for i in range(2):
                G_(f's_add_u32 m0, s{sLds}, {(st_ & 1)*4096 + i*1024}')
                G_(f's_add_u32 s{sT}, s{sWo}, {((st_*2 + i) % 56)*8*1024}')
                G_(f'buffer_load_dwordx4 v{vDw}, s[{sWD}:{sWD+3}], s{sT} offen lds', tag=('q', st_))
            for ks in range(2):
                G_(f's_add_u32 s{sT}, s{sAo}, {(st_*2 + ks)*1024}')
                G_(f'buffer_load_dwordx4 {vr(bx[2*(st_&1) + ks],4)}, v{vOff}, s[{sWS}:{sWS+3}], s{sT} offen', tag=('qb', st_))
            if st_ > 0: G_.wait_vm(('qb', st_ - 1))
            G_(f'ds_add_u32 v{vAh[0]}, v{t0}\nds_read_b32 v{t1}, v{vAh[0]}\ns_waitcnt lgkmcnt(0)\nv_readfirstlane_b32 s{sT2}, v{t1}')
            for ks in range(2):
                for p_ in range(7):
                    f_ = fr[p_ % 8]
                    G_(f'ds_read_b64_tr_b16 {vr(f_,2)}, v{vAh[p_ & 1]} offset:{(p_*128) % 2048}\nds_read_b64_tr_b16 {vr(f_+2,2)}, v{vAh[p_ & 1]} offset:{(p_*128 + 512) % 2048}')
                G_('s_waitcnt lgkmcnt(0)')
                b_ = bx[2*((st_+1)&1) + ks]
                for p_ in range(7): G_(f'v_mfma_f32_32x32x16_bf16 {vr(accs[p_],16)}, {vr(fr[p_],4)}, {vr(b_,4)}, {vr(accs[p_],16)}')
                for p_ in range(2): G_(f'v_mfma_f32_32x32x16_bf16 {vr(csacc,16)}, {vr(fr[p_],4)}, {vr(fr[7],4)}, {vr(csacc,16)}')
        G_('s_nop 7\ns_nop 7')
        for e_ in range(56):
            r_ = accs[e_ % 7] + (e_ // 7)
            G_(f'v_fma_f32 v{r_}, v{t2}, v{t3}, v{r_}\nv_fma_f32 v{r_+8}, v{t2}, v{t3}, v{r_+8}\nv_mul_f32 v{r_}, v{r_}, v{t2}\nv_mul_f32 v{t0}, v{r_}, v{r_}')
            G_(f'v_fma_f32 v{t0}, v{t0}, v{t2}, v{t3}\nv_mul_f32 v{t0}, v{t0}, v{r_}\nv_exp_f32 v{t0}, v{t0}\nv_mul_f32 v{r_+8}, v{r_+8}, v{r_}')
            G_(f'v_fma_f32 v{t0}, v{t0}, v{t2}, v{t2}\nv_rcp_f32 v{t0}, v{t0}\nv_mov_b32 v{t1}, v{t2}\nv_mul_f32 v{r_+8}, v{r_+8}, v{t0}')
            if e_ % 2: G_(f'v_cvt_pk_bf16_f32 v{t1}, v{r_+8}, v{r_+7}')
        for p_ in range(7):
            G_(f's_add_u32 s{sT}, s{sAo}, {p_*1024 + (3 << 20)}')
            G_(f'buffer_store_dwordx4 {vr(accs[p_],4)}, v{vOff}, s[{sWS}:{sWS+3}], s{sT} offen sc1')
        G_('s_waitcnt vmcnt(0)')
        G_(f'v_mov_b32 v{t0}, 0\nv_mov_b32 v{t1}, 0\ns_lshl_b32 s{sT}, s2, 2\ns_add_u32 s{sT}, s{sT}, s{sG}\ns_lshl_b32 s{sT}, s{sT}, 7\ns_add_u32 s{sT}, s{sT}, {STATS_OFF}\ns_mov_b64 exec, 1')
        for _ in range(3):
            G_(f'buffer_atomic_add v{t1}, v{t0}, s[{sWS}:{sWS+3}], s{sT} offen sc0 sc1\ns_waitcnt vmcnt(0)')
        G_('s_mov_b64 exec, -1')
        wdma(0); wdma(1);
    bload(0, Bf[0]); bload(1, Bf[1])
    acc32 = [[acc[0][0] + 16*(ph + 2*tt) for tt in range(2)] for ph in range(2)]
    def mfmas(s, A, B):
        if act32:
            for ks in range(2):
                for tt in range(2):
                    for ph in range(2):
                        c = '0' if (s == 0 and ks == 0) else vr(acc32[ph][tt], 16)
                        G_(f'v_mfma_f32_32x32x16_bf16 {vr(acc32[ph][tt],16)}, {vr(A[2*ks + ph],4)}, {vr(B[2*ks + tt],4)}, {c}')
            return
        for tt in range(4):
            for tau in range(4):
                c = '0' if s == 0 else vr(acc[tau][tt], 4)
                G_(f'v_mfma_f32_16x16x32_bf16 {vr(acc[tau][tt],4)}, {vr(A[tau],4)}, {vr(B[tt],4)}, {c}')
    for s in range(NH):
        G_.wait_vm(('w', s))
        if 'r' not in xp: areads(s, Af[s & 1])
        G_('s_waitcnt lgkmcnt(0)')
        if 'l' not in xp or s + 2 >= NH:
            wdma(s + 2)
            if s + 2 < NH: bload(s + 2, Bf[(s + 2) % 3])
        if 'm' not in xp or s == 0: mfmas(s, Af[s & 1], Bf[s % 3])
    for i in range(NO):
        s = NH + i
        G_.wait_vm(('w', s))
        areads(s, Af[i])
        G_('s_waitcnt lgkmcnt(0)')
        wdma(s + 2)
    if act32:
        G_(f's_lshl_b32 s{sT}, s{sTb}, 6\ns_lshr_b32 s{sT2}, s{sG}, 1\ns_lshl_b32 s{sT2}, s{sT2}, 5\ns_add_u32 s{sT}, s{sT}, s{sT2}')
        G_(f'v_and_b32 v{t0}, 31, v{vLane}\nv_add_u32 v{t0}, s{sT}, v{t0}\nv_lshlrev_b32 v{t0}, 10, v{t0}')
        G_(f's_lshl_b32 s{sT}, s{sFb}, 7\ns_and_b32 s{sT2}, s{sG}, 1\ns_lshl_b32 s{sT2}, s{sT2}, 6\ns_add_u32 s{sT}, s{sT}, s{sT2}\nv_add_u32 v{t0}, s{sT}, v{t0}')
        G_(f'v_lshrrev_b32 v{t1}, 5, v{vLane}\nv_lshl_add_u32 v{vXo}, v{t1}, 3, v{t0}')
        for q in range(4):
            G_(f'buffer_load_dwordx2 {vr(vXr[q],2)}, v{vXo}, s[{sX}:{sX+3}], 0 offen offset:{16*q}', tag='x')
        G_(f'v_lshl_add_u32 v{vXo}, v{t1}, 4, v{t0}')
    else:
        G_(f's_lshl_b32 s{sT}, s{sTb}, 6\ns_lshl_b32 s{sT2}, s{sG}, 4\ns_add_u32 s{sT}, s{sT}, s{sT2}')
        G_(f'v_add_u32 v{t0}, s{sT}, v{vN}\nv_lshlrev_b32 v{t0}, 10, v{t0}\ns_lshl_b32 s{sT}, s{sFb}, 7\nv_add_u32 v{t0}, s{sT}, v{t0}')
        G_(f'v_lshl_add_u32 v{vXo}, v{vG}, 3, v{t0}')
        for tau in range(4):
            G_(f'buffer_load_dwordx2 {vr(vXr[tau],2)}, v{vXo}, s[{sX}:{sX+3}], 0 offen offset:{32*tau}', tag='x')
        G_(f'v_and_b32 v{t1}, 1, v{vG}\nv_lshl_add_u32 v{t0}, v{t1}, 5, v{t0}\nv_lshrrev_b32 v{t1}, 1, v{vG}\nv_lshl_add_u32 v{vXo}, v{t1}, 4, v{t0}')
    if stamps: G_(f's_memtime s[{sSt+2}:{sSt+3}]')
    if dbg: dbg_stamp(G_, 64, 1, 0, 0, 0)
    if 'b' not in xp: G_('s_barrier')
    if 'O' not in xp:
        G_(f'v_lshlrev_b32 v{t0}, 7, v{vLane}')
        G_(f's_lshl_b32 s{sT}, s{sTb}, 12\ns_lshl_b32 s{sT2}, s{sG}, 10\ns_add_u32 s{sT}, s{sT}, s{sT2}\ns_add_u32 s{sT}, s{sT}, {FO_OFF}')
        poll(G_, sWS, t0, t1, sPoll, 1, 8, soff=sT, mod=pollmod, sleep=pollsleep)
    if stamps: G_(f's_memtime s[{sSt+4}:{sSt+5}]')
    if dbg: dbg_stamp(G_, 64, 2, 0, 0, 0)
    for i in range(NO): bload(NH + i, Bf[i])
    for i in range(NO): mfmas(NH + i, Af[i], Bf[i])
    if stamps: G_(f's_nop 7\ns_memtime s[88:89]')
    G_('s_barrier')
    if stamps: G_(f's_memtime s[90:91]')
    if act32:
        G_('s_nop 7')
        for sg in range(1, 4):
            G_(f's_xor_b32 s{sT}, s{sG}, {sg}\ns_mul_i32 s{sT}, s{sT}, 12288\nv_add_u32 v{t1}, s{sT}, v{vOff}')
            D = acc32[sg & 1][sg >> 1]
            for q in range(4):
                G_(f'ds_write_b128 v{t1}, {vr(D+4*q,4)} offset:{((sg-1)*4 + q)*1024}')
        G_('s_waitcnt lgkmcnt(0)\ns_barrier')
        if stamps: G_(f's_memtime s[92:93]')
        G_(f's_mul_i32 s{sT}, s{sG}, 12288\nv_add_u32 v{t0}, s{sT}, v{vOff}')
        red = [[Bf[j][q] for q in range(4)] for j in range(3)]
        for q in range(4):
            for j in range(3):
                G_(f'ds_read_b128 {vr(red[j][q],4)}, v{t0} offset:{(j*4 + q)*1024}')
        Pk = Af[0][0]; D0 = acc32[0][0]
        for q in range(4):
            d = D0 + 4*q
            G_(f'v_lshlrev_b32 v{t1}, 16, v{vXr[q]}\nv_and_b32 v{t2}, 0xffff0000, v{vXr[q]}\nv_add_f32 v{d}, v{d}, v{t1}\nv_add_f32 v{d+1}, v{d+1}, v{t2}')
            G_(f'v_lshlrev_b32 v{t1}, 16, v{vXr[q]+1}\nv_and_b32 v{t2}, 0xffff0000, v{vXr[q]+1}\nv_add_f32 v{d+2}, v{d+2}, v{t1}\nv_add_f32 v{d+3}, v{d+3}, v{t2}')
        for q in range(4):
            d = D0 + 4*q
            for r in range(4): G_(f'v_add_f32 v{red[0][q]+r}, v{red[0][q]+r}, v{red[1][q]+r}')
            for r in range(4): G_(f'v_add_f32 v{d+r}, v{d+r}, v{red[2][q]+r}')
            for r in range(4): G_(f'v_add_f32 v{d+r}, v{d+r}, v{red[0][q]+r}')
            G_(f'v_cvt_pk_bf16_f32 v{Pk+2*q}, v{d}, v{d+1}\nv_cvt_pk_bf16_f32 v{Pk+2*q+1}, v{d+2}, v{d+3}')
        for p in range(2):
            x, y = Pk + 4*p, Pk + 4*p + 2
            G_(f'v_permlane32_swap_b32 v{x}, v{y}\nv_permlane32_swap_b32 v{x+1}, v{y+1}')
            G_(f'buffer_store_dwordx4 {vr(x,4)}, v{vXo}, s[{sOut}:{sOut+3}], 0 offen offset:{32*p} {outmod}')
    else:
        for tt in range(1, 4):
            G_(f's_add_u32 s{sT}, s{sG}, {tt}\ns_and_b32 s{sT}, s{sT}, 3\ns_mul_i32 s{sT}, s{sT}, 12288\nv_add_u32 v{t1}, s{sT}, v{vOff}')
            for tau in range(4):
                G_(f'ds_write_b128 v{t1}, {vr(acc[tau][tt],4)} offset:{((tt-1)*4 + tau)*1024}')
        G_('s_waitcnt lgkmcnt(0)\ns_barrier')
        if stamps: G_(f's_memtime s[92:93]')
        G_(f's_mul_i32 s{sT}, s{sG}, 12288\nv_add_u32 v{t0}, s{sT}, v{vOff}')
        red = [[Bf[j][tau] for tau in range(4)] for j in range(3)]
        for tau in range(4):
            for j in range(3):
                G_(f'ds_read_b128 {vr(red[j][tau],4)}, v{t0} offset:{(j*4 + tau)*1024}')
        Pk = Af[0][0]
        for tau in range(4):
            d = acc[tau][0]
            G_(f'v_lshlrev_b32 v{t1}, 16, v{vXr[tau]}\nv_and_b32 v{t2}, 0xffff0000, v{vXr[tau]}\nv_add_f32 v{d}, v{d}, v{t1}\nv_add_f32 v{d+1}, v{d+1}, v{t2}')
            G_(f'v_lshlrev_b32 v{t1}, 16, v{vXr[tau]+1}\nv_and_b32 v{t2}, 0xffff0000, v{vXr[tau]+1}\nv_add_f32 v{d+2}, v{d+2}, v{t1}\nv_add_f32 v{d+3}, v{d+3}, v{t2}')
        for tau in range(4):
            d = acc[tau][0]
            for r in range(4): G_(f'v_add_f32 v{red[0][tau]+r}, v{red[0][tau]+r}, v{red[1][tau]+r}')
            for r in range(4): G_(f'v_add_f32 v{d+r}, v{d+r}, v{red[2][tau]+r}')
            for r in range(4): G_(f'v_add_f32 v{d+r}, v{d+r}, v{red[0][tau]+r}')
            G_(f'v_cvt_pk_bf16_f32 v{Pk+2*tau}, v{d}, v{d+1}\nv_cvt_pk_bf16_f32 v{Pk+2*tau+1}, v{d+2}, v{d+3}')
        for p in range(2):
            x, y = Pk + 4*p, Pk + 4*p + 2
            G_(f'v_permlane16_swap_b32 v{x}, v{y}\nv_permlane16_swap_b32 v{x+1}, v{y+1}')
            G_(f'buffer_store_dwordx4 {vr(x,4)}, v{vXo}, s[{sOut}:{sOut+3}], 0 offen offset:{64*p} {outmod}')
    if stamps:
        G_('s_waitcnt vmcnt(0)')
        G_(f's_memtime s[{sSt+6}:{sSt+7}]\ns_memrealtime s[{sSt+8}:{sSt+9}]\ns_waitcnt lgkmcnt(0)')
        G_(f's_sub_u32 s{sSt+2}, s{sSt+2}, s{sSt}\ns_sub_u32 s{sSt+4}, s{sSt+4}, s{sSt}\ns_sub_u32 s{sSt+6}, s{sSt+6}, s{sSt}\ns_sub_u32 s{sSt+8}, s{sSt+8}, s{sSt+10}')
        X = acc[0][0]
        G_(f'v_mov_b32 v{X}, s{sSt+2}\nv_mov_b32 v{X+1}, s{sSt+4}\nv_mov_b32 v{X+2}, s{sSt+6}\nv_mov_b32 v{X+3}, s{sSt+8}')
        G_(f's_lshl_b32 s{sT}, s2, 3\ns_add_u32 s{sT}, s{sT}, s{sW}\ns_lshl_b32 s{sT}, s{sT}, 4\ns_add_u32 s{sT}, s{sT}, {STAMP_OFF}')
        G_(f'v_mov_b32 v{t0}, 0\nbuffer_store_dwordx4 {vr(X,4)}, v{t0}, s[{sWS}:{sWS+3}], s{sT} offen')
        X = acc[0][1]
        G_(f's_sub_u32 s88, s88, s{sSt}\ns_sub_u32 s90, s90, s{sSt}\ns_sub_u32 s92, s92, s{sSt}')
        G_(f'v_mov_b32 v{X}, s88\nv_mov_b32 v{X+1}, s90\nv_mov_b32 v{X+2}, s92\nv_mov_b32 v{X+3}, s{sPoll}')
        G_(f's_add_u32 s{sT}, s{sT}, {1 << 20}\nbuffer_store_dwordx4 {vr(X,4)}, v{t0}, s[{sWS}:{sWS+3}], s{sT} offen')
        X = acc[0][2]
        G_(f's_add_u32 s{sSt+8}, s{sSt+8}, s{sSt+10}')
        G_(f'v_mov_b32 v{X}, s{sSt+10}\nv_mov_b32 v{X+1}, s{sSt+8}\nv_mov_b32 v{X+2}, 0\nv_mov_b32 v{X+3}, 0')
        G_(f's_add_u32 s{sT}, s{sT}, {1 << 20}\nbuffer_store_dwordx4 {vr(X,4)}, v{t0}, s[{sWS}:{sWS+3}], s{sT} offen')
    if dbg: dbg_final(G_, 64, acc[0][0], sT, 1, sWS); (fused and dbg_store(G_, 84, acc[0][0], sT, 0, sWS))
    G_('s_endpgm')
    pG = copy.deepcopy(pre); n0 = len(pG.out); pG.run(SG); textG = '\n'.join(pG.out[n0:])
    return pre.text() + '\n' + textA + '\n' + textG, max(hiA, hiG), (pA, pG)

def gen_p2_standalone(name='p2_kernel', **kw):
    S = Stream()
    S(f's_cmp_ge_u32 s2, 256\ns_cbranch_scc1 {name}_end')
    t, hi, ps = gen_p2(S, name, fused=False, **kw)
    return kernel_text(name, t + f'\n{name}_end:\ns_endpgm\n', hi), hi, ps
if __name__ == '__main__':
    import sys
    t, hi, ps = gen_p2_standalone()
    print(t)
    from collections import Counter
    for p in ps: print('vgprs', hi, 'nops', p.nops_inserted, Counter(w.split(' (')[0] for w, n, _ in p.nop_log), file=sys.stderr)
```

```python
import sys, os
sys.path.insert(0, 'gen')
from common import *
from k_fused import gen_fused, LDS2
NAME = 'parallel_sum__mha_block__geglu_ffn__prompt'
HEADER = open(f'cdna_kernels/{NAME}.s.ref').read().split('; Override launch geometry')[0]
DOC = """; One persistent launch, 256 workgroups x 8 waves (one workgroup per CU), generated by hand-written scripts.
"""
def build(opts=None, path=None):
    opts = opts or {}
    WS_BASE[0] = opts.get('wsbase', 0)
    k, hi = gen_fused(NAME + '_kernel', g1=opts.get('g1'), p2=opts.get('p2'))
    txt = HEADER
    txt += DOC
    txt += f'; @launch grid=(256,1,1) block=(512,1,1) lds={LDS2}\n'
    txt += '.amdgcn_target "amdgcn-amd-amdhsa--gfx950"\n' + k
    if path: open(path, 'w').write(txt)
    return txt
if __name__ == '__main__':
    build(path=f'cdna_kernels/{NAME}.s')
```

```python
from common import *
STAMP2 = 28 << 20
def dbg_setup(S, sD, sTmp):
    pass
def dbg_stamp(S, sD, idx, vA, vB, sT, invert=False, kidx=None, srd_ws=None, sW=None):
    S(f's_memrealtime s[{sD+2*idx}:{sD+2*idx+1}]')
def dbg_final(S, sD, vA, sT, kidx, srd_ws):
    S('s_waitcnt vmcnt(0)')
    S(f's_memrealtime s[{sD+6}:{sD+7}]')
    S('s_waitcnt lgkmcnt(0)')
    for i in range(4): S(f'v_mov_b32 v{vA+i}, s{sD+2*i}')
    S(f'v_lshrrev_b32 v{vA+4}, 6, v0')
    S(f'v_lshlrev_b32 v{vA+4}, 4, v{vA+4}')
    S(f's_lshl_b32 s{sT}, s2, 8')
    S(f's_add_u32 s{sT}, s{sT}, {STAMP2 + kidx*65536}')
    S(f'buffer_store_dwordx4 {vr(vA,4)}, v{vA+4}, s[{srd_ws}:{srd_ws+3}], s{sT} offen')
    S('s_waitcnt vmcnt(0)')
def dbg_store(S, sD, vA, sT, kidx, srd_ws):
    for i in range(4): S(f'v_mov_b32 v{vA+i}, s{sD+2*i}')
    S(f'v_lshrrev_b32 v{vA+4}, 6, v0')
    S(f'v_lshlrev_b32 v{vA+4}, 4, v{vA+4}')
    S(f's_lshl_b32 s{sT}, s2, 8')
    S(f's_add_u32 s{sT}, s{sT}, {STAMP2 + kidx*65536}')
    S(f'buffer_store_dwordx4 {vr(vA,4)}, v{vA+4}, s[{srd_ws}:{srd_ws+3}], s{sT} offen')
    S('s_waitcnt vmcnt(0)')
def collect_kernel(n, waves):
    S = Stream()
    S(f's_cmp_ge_u32 s2, 1\ns_cbranch_scc1 collect_kernel_end')
    S(f's_load_dwordx2 s[4:5], s[0:1], {KA_WS}')
    S(f's_load_dwordx2 s[6:7], s[0:1], {KA_DBG}')
    S('s_waitcnt lgkmcnt(0)')
    srd(S, 8, 4, WS_SIZE); srd(S, 12, 6, 256)
    S('v_lshlrev_b32 v1, 8, v0')
    S('v_mov_b32 v30, 0')
    res = []
    for k in range(n):
        S('v_mov_b32 v10, -1\nv_mov_b32 v11, 0\nv_mov_b32 v12, 0\nv_mov_b32 v13, 0\nv_mov_b32 v14, 0')
        for w in range(waves[k]):
            S(f's_mov_b32 s20, {STAMP2 + k*65536 + w*16}')
            S('buffer_load_dwordx4 v[4:7], v1, s[8:11], s20 offen sc1')
            S('s_waitcnt vmcnt(0)')
            S('v_min_u32 v10, v10, v4\nv_max_u32 v11, v11, v4\nv_max_u32 v12, v12, v5\nv_max_u32 v13, v13, v6\nv_max_u32 v14, v14, v7')
        S(f'v_mov_b32 v20, {k*32}')
        if k == 0:
            pass
        for i, op in enumerate(('ds_min_u32', 'ds_max_u32', 'ds_max_u32', 'ds_max_u32', 'ds_max_u32')):
            S(f'{op} v20, v{10+i} offset:{4*i}')
    return S
def collect_kernel(entries):
    n = len(entries)
    S = Stream()
    S(f's_cmp_ge_u32 s2, 1\ns_cbranch_scc1 collect_kernel_end')
    S(f's_load_dwordx2 s[4:5], s[0:1], {KA_WS}')
    S(f's_load_dwordx2 s[6:7], s[0:1], {KA_DBG}')
    S('s_waitcnt lgkmcnt(0)')
    srd(S, 8, 4, WS_SIZE); srd(S, 12, 6, 256)
    S('v_lshlrev_b32 v2, 2, v0')
    S('v_mov_b32 v3, 0')
    S('ds_write_b32 v2, v3')
    S('s_waitcnt lgkmcnt(0)\ns_barrier')
    S('v_mov_b32 v3, -1\nv_mov_b32 v20, 0')
    for k in range(n): S(f'ds_write_b32 v20, v3 offset:{k*20}')
    S('s_waitcnt lgkmcnt(0)\ns_barrier')
    S('v_lshlrev_b32 v1, 8, v0')
    for e, (k, w0, w1) in enumerate(entries):
        S('v_mov_b32 v10, -1\nv_mov_b32 v11, 0\nv_mov_b32 v12, 0\nv_mov_b32 v13, 0\nv_mov_b32 v14, 0')
        for w in range(w0, w1):
            S(f's_mov_b32 s20, {STAMP2 + k*65536 + w*16}')
            S('buffer_load_dwordx4 v[4:7], v1, s[8:11], s20 offen sc1')
            S('s_waitcnt vmcnt(0)')
            S('v_min_u32 v10, v10, v4\nv_max_u32 v11, v11, v4\nv_max_u32 v12, v12, v5\nv_max_u32 v13, v13, v6\nv_max_u32 v14, v14, v7')
        for i, op in enumerate(('ds_min_u32', 'ds_max_u32', 'ds_max_u32', 'ds_max_u32', 'ds_max_u32')):
            S(f'{op} v20, v{10+i} offset:{e*20 + 4*i}')
    S('s_waitcnt lgkmcnt(0)\ns_barrier')
    S('ds_read_b32 v4, v2')
    S('ds_read_b32 v5, v20')
    S('s_waitcnt lgkmcnt(0)')
    S('v_sub_u32 v4, v4, v5')
    S(f'v_cmp_gt_u32 vcc, {5*n}, v0\ns_and_saveexec_b64 s[16:17], vcc')
    S('s_cbranch_execz collect_kernel_end')
    S('buffer_store_dword v4, v2, s[12:15], 0 offen')
    S('s_waitcnt vmcnt(0)')
    S.label('collect_kernel_end')
    S('s_endpgm')
    p = Processor().run(S)
    return kernel_text('collect_kernel', p.text(), 32)

TRV = 239
def trace(S, idx):
    S('s_memrealtime s[72:73]')
    S('s_waitcnt lgkmcnt(0)')
    S(f'v_writelane_b32 v{TRV}, s72, {idx}')
def trace_init(S):
    S(f'v_mov_b32 v{TRV}, 0\ns_mov_b32 s74, 63\ns_mov_b32 s72, 0')
def trace_flush(S, srd_ws, sT, vT):
    S(f'v_and_b32 v{vT}, 63, v0\nv_lshlrev_b32 v{vT}, 2, v{vT}\nv_lshrrev_b32 v{vT+1}, 6, v0\nv_lshl_add_u32 v{vT}, v{vT+1}, 8, v{vT}')
    S(f's_lshl_b32 s{sT}, s2, 11\ns_add_u32 s{sT}, s{sT}, {STAMP_OFF}')
    S(f'buffer_store_dword v{TRV}, v{vT}, s[{srd_ws}:{srd_ws+3}], s{sT} offen')
    S('s_waitcnt vmcnt(0)')
```

```python
from common import *
from diag import *

BIG = 0; BIGSZ = 24576; NBIG = 3
MB = BIG + NBIG * BIGSZ; MSZ = 16384
def lds_map(NM):
    STAT = MB + NM * MSZ
    return STAT, STAT, STAT + 512, STAT + 1024, STAT + 1536, STAT + 1536 + 2 * 320 * 4
STAT, ST_SUM, ST_SQ, ST_SD, ST_CS, LDS1 = lds_map(4)
QSCALE = 0.25 * LOG2E
HCARRY = 240

def gen_gemm1(name='gemm1_kernel', stamps=False, xp='', dbg=False, DMA_FIRST=2, fused=False, PUB_AT=2, setmod='atomic', defer=True, ndefer=1, ROT=False, PF=1, PFSTEP=0, act32=True, PRO=2, TS=False, CSS=False, CSL=11, LPF=0, NM=5, steptrace=False, SCHED=1, SIG=14, PROT=2, tr=False, PK=1, HD=True):
    STAT, ST_SUM, ST_SQ, ST_SD, ST_CS, LDS1 = lds_map(NM)
    assert LDS1 <= 163840 and (NM == 4 or fused)
    assert not (PROT == 2 and (TS or CSS))
    TS = TS and fused
    CSS = CSS and fused
    CSB = LDS1; CT = [232 + 4*f for f in range(5)]
    assert (not CSS) or CSB + 20480 <= 163840
    S = Stream(); L = name
    v = VAlloc(256, 'v', 1)
    sX, sQK, sM0, sM1, sWS = 8, 12, 16, 20, 24
    sW, sTb, sC, sTh, sFq, sT, sT2, sRS = 28, 29, 30, 31, 32, 33, 34, 35
    sXo, sQo, sM0o, sM1o, sLx, sLq, sLm = 36, 37, 38, 39, 40, 41, 42
    sIsB, sScale, sT3, sStepM, sDuty, sMaskHi = 43, 44, 45, 46, 58, 59
    sSt = 60
    sDbg, sFQ, sFH, sHaddr, sIsBk = 96, 94, 95, 100, 101
    sKcB, sKrM, sXc, sMc = 80, 81, 82, 83
    sPc = 78
    sTok = 77
    vLane = v.alloc(); vN = v.alloc(); vG = v.alloc()
    vT = [v.alloc() for _ in range(6)]
    vDx = [v.alloc() for _ in range(2)]; vDq = v.alloc(); vDm = v.alloc()
    vXa = [v.alloc() for _ in range(2)]; vQa = v.alloc(); vMa = [v.alloc() for _ in range(4)]
    vMb = [v.alloc() for _ in range(4)] if NM > 4 else None
    vSum = [v.alloc() for _ in range(2)]; vSq = [v.alloc() for _ in range(2)]; vLo = v.alloc(); vHi = v.alloc()
    vXs = [v.alloc() for _ in range(2)]
    vOnes = v.alloc(4, 4)
    A = [[v.alloc(4, 4) for _ in range(5)] for _ in range(2)]
    B = [[v.alloc(4, 4) for _ in range(4)] for _ in range(2)]
    Bs = [v.alloc(4, 4) for _ in range(2)]
    acc = [[v.alloc(4, 4) for _ in range(4)] for _ in range(5)]
    vCs = [v.alloc(4, 4) for _ in range(5)]
    vEp = v.alloc(16, 4)

    S(f's_cmp_ge_u32 s2, 256'); S(f's_cbranch_scc1 {L}_end')
    if stamps: S(f's_memtime s[{sSt}:{sSt+1}]\ns_memrealtime s[{sSt+10}:{sSt+11}]')
    if dbg: dbg_stamp(S, 84, 0, 0, 0, 0)
    if tr: trace_init(S); trace(S, 0)
    if PF:
        S(f's_getpc_b64 s[{sPc}:{sPc+1}]')
        S.label(f'{L}_pc')
    S(f's_load_dwordx4 s[48:51], s[0:1], {KA_X}')
    S(f's_load_dwordx4 s[52:55], s[0:1], {KA_WG}')
    S(f's_load_dwordx2 s[56:57], s[0:1], {KA_WS}')
    if fused: S(f's_load_dwordx2 s[92:93], s[0:1], {KA_DBG}')
    S(f'v_and_b32 v{vLane}, 63, v0')
    S(f'v_lshrrev_b32 v{vT[0]}, 6, v0')
    S(f'v_and_b32 v{vN}, 15, v0')
    S(f'v_readfirstlane_b32 s{sW}, v{vT[0]}')
    S(f'v_bfe_u32 v{vG}, v0, 4, 2')
    S(f's_and_b32 s{sT}, s2, 1\ns_lshl_b32 s{sT}, s{sT}, 3')
    S(f's_lshr_b32 s{sT2}, s2, 3\ns_and_b32 s{sT2}, s{sT2}, 7\ns_add_u32 s{sTb}, s{sT}, s{sT2}')
    S(f's_lshr_b32 s{sT}, s2, 1\ns_and_b32 s{sT}, s{sT}, 3\ns_lshl_b32 s{sT}, s{sT}, 2')
    S(f's_lshr_b32 s{sT2}, s2, 6\ns_add_u32 s{sC}, s{sT}, s{sT2}')
    S(f's_and_b32 s{sTh}, s{sW}, 1\ns_lshr_b32 s{sFq}, s{sW}, 1')
    S(f's_cmp_ge_u32 s{sC}, 14\ns_cselect_b32 s{sIsB}, 1, 0')
    S(f's_lshr_b32 s{sDuty}, s{sFq}, 1\ns_xor_b32 s{sDuty}, s{sDuty}, s{sTh}')
    S(f's_cmp_eq_u32 s{sIsB}, 1')
    S(f's_mov_b32 s{sRS}, 3584\ns_cmov_b32 s{sRS}, 3072')
    S(f's_lshl_b32 s{sXo}, s{sTb}, 17')
    S(f's_lshl_b32 s{sQo}, s{sC}, 7')
    S(f's_lshl_b32 s{sM0o}, s{sC}, 8')
    S(f's_sub_u32 s{sT}, s{sC}, 14\ns_lshl_b32 s{sT}, s{sT}, 9\ns_add_u32 s{sT}, s{sT}, 2048')
    S(f's_cmp_eq_u32 s{sIsB}, 1')
    S(f's_cselect_b32 s{sM0o}, s{sT}, s{sM0o}')
    S(f's_cselect_b32 s{sT}, 256, 0')
    S(f's_add_u32 s{sM1o}, s{sM0o}, s{sT}')
    S(f's_lshl_b32 s{sStepM}, s{sRS}, 5')
    if ROT:
        S(f's_lshl_b32 s{sKcB}, s{sC}, 1\ns_add_u32 s{sKcB}, s{sKcB}, s{sTb}\ns_and_b32 s{sKcB}, s{sKcB}, 7\ns_lshl_b32 s{sKrM}, s{sKcB}, 1')
    else:
        S(f's_mov_b32 s{sKcB}, 0\ns_mov_b32 s{sKrM}, 0')
    t0, t1, t2, t3, t4, t5 = vT
    S(f'v_lshrrev_b32 v{t3}, 3, v{vLane}')
    S(f'v_and_b32 v{t4}, 7, v{vLane}')
    S(f's_lshl_b32 s{sT}, s{sW}, 4')
    S(f'v_add_u32 v{t0}, s{sT}, v{t3}\nv_lshlrev_b32 v{t0}, 10, v{t0}\nv_xor_b32 v{t1}, v{t4}, v{vG}')
    S(f'v_lshl_add_u32 v{vDx[0]}, v{t1}, 4, v{t0}')
    S(f'v_xor_b32 v{vDx[1]}, 64, v{vDx[0]}\nv_add_u32 v{vDx[1]}, 8192, v{vDx[1]}')
    S(f'v_bfe_u32 v{t2}, v{vLane}, 4, 1')
    S(f's_and_b32 s{sT}, s{sW}, 1\ns_lshl_b32 s{sT}, s{sT}, 1')
    S(f'v_or_b32 v{t2}, s{sT}, v{t2}\nv_lshlrev_b32 v{t2}, 1, v{t2}\nv_xor_b32 v{t1}, v{t4}, v{t2}')
    S(f's_lshl_b32 s{sT}, s{sW}, 3')
    S(f'v_add_u32 v{t0}, s{sT}, v{t3}\nv_mul_u32_u24 v{t0}, 3072, v{t0}\nv_lshl_add_u32 v{vDq}, v{t1}, 4, v{t0}')
    S(f's_lshr_b32 s{sT}, s{sW}, 1\ns_and_b32 s{sT}, s{sT}, 1\ns_lshl_b32 s{sT}, s{sT}, 2')
    S(f'v_or_b32 v{t2}, s{sT}, v{vG}\nv_lshlrev_b32 v{t2}, 1, v{t2}\nv_xor_b32 v{t1}, v{vN}, v{t2}')
    S(f's_lshl_b32 s{sT}, s{sW}, 2')
    S(f'v_add_u32 v{t0}, s{sT}, v{vG}\nv_mul_lo_u32 v{t0}, v{t0}, s{sRS}\nv_lshl_add_u32 v{vDm}, v{t1}, 4, v{t0}')
    S(f's_lshl_b32 s{sLx}, s{sW}, 11')
    S(f's_lshl_b32 s{sLq}, s{sW}, 10\ns_add_u32 s{sLq}, s{sLq}, 16384')
    S(f's_lshl_b32 s{sLm}, s{sW}, 10\ns_add_u32 s{sLm}, s{sLm}, {MB}')
    if dbg and 'k' in xp: dbg_stamp(S, 84, 1, 0, 0, 0)
    S('s_waitcnt lgkmcnt(0)')
    if dbg and 'K' in xp: dbg_stamp(S, 84, 1, 0, 0, 0); S('s_waitcnt lgkmcnt(0)')
    srd(S, sX, 48, 2048 * 512 * 2)
    srd(S, sQK, 50, 512 * 1536 * 2)
    def ab_from(vs, vq, va, vb, vsd):
        S(f'v_mul_f32 v{vs}, {fhex(1/512)}, v{vs}')
        S(f'v_mul_f32 v{vq}, {fhex(1/512)}, v{vq}')
        S(f'v_fma_f32 v{vq}, -v{vs}, v{vs}, v{vq}')
        S(f'v_max_f32 v{vq}, 0, v{vq}')
        S(f'v_add_f32 v{vq}, {fhex(1e-5)}, v{vq}')
        S(f'v_rsq_f32 v{va}, v{vq}')
        S(f'v_sqrt_f32 v{vsd}, v{vq}')
        S(f'v_sub_f32 v{vb}, 0, v{vs}')

    XS = Bs[0]
    def dma_big_groups(j):
        slot = (j % NBIG) * BIGSZ + BIG; g = []
        g.append([(f's_lshl_b32 s{sXc}, s{sKcB}, 7', None), (f's_add_u32 m0, s{sLx}, {slot}', None), (f's_add_u32 s{sXc}, s{sXc}, s{sXo}', None),
                  (f'buffer_load_dwordx4 v{vDx[0]}, s[{sX}:{sX+3}], s{sXc} offen lds', ('big', j))])
        g.append([(f's_add_u32 m0, s{sLx}, {slot + 1024}', None), (f's_mul_i32 s{sT}, s{sKcB}, {64*3072}', None),
                  (f'buffer_load_dwordx4 v{vDx[1]}, s[{sX}:{sX+3}], s{sXc} offen lds', ('big', j))])
        g.append([(f's_add_u32 m0, s{sLq}, {slot}', None), (f's_mul_i32 s{sT}, s{sKcB}, {64*3072}', None), (f's_add_u32 s{sT}, s{sT}, s{sQo}', None),
                  (f'buffer_load_dwordx4 v{vDq}, s[{sQK}:{sQK+3}], s{sT} offen lds', ('big', j)),
                  (f's_add_u32 s{sKcB}, s{sKcB}, 1', None), (f's_and_b32 s{sKcB}, s{sKcB}, 7', None)])
        g[1] = [g[1][0], (f's_nop 0', None), g[1][2]]
        return g
    def dma_m_groups(s):
        slot = (s % NM) * MSZ
        return [[(f's_mul_i32 s{sMc}, s{sKrM}, s{sStepM}', None), (f's_add_u32 m0, s{sLm}, {slot}', None), (f's_add_u32 s{sT}, s{sMc}, s{sM0o}', None),
                 (f'buffer_load_dwordx4 v{vDm}, s[{sM0}:{sM0+3}], s{sT} offen lds', ('m', s))],
                [(f's_add_u32 m0, s{sLm}, {slot + 8192}', None), (f's_add_u32 s{sT}, s{sMc}, s{sM1o}', None),
                 (f'buffer_load_dwordx4 v{vDm}, s[{sM1}:{sM1+3}], s{sT} offen lds', ('m', s)),
                 (f's_add_u32 s{sKrM}, s{sKrM}, 1', None), (f's_and_b32 s{sKrM}, s{sKrM}, 15', None)]]
    def emit_group(g):
        for t, tag in g: S(t, tag=tag)
    def dma_big(j):
        for g in dma_big_groups(j): emit_group(g)
    def dma_m(s):
        for g in dma_m_groups(s): emit_group(g)
    dma_big(0)
    S(f's_cmp_eq_u32 s{sIsB}, 1')
    for d, p in ((sM0, 52), (sM1, 54)):
        S(f's_cselect_b32 s{d}, s50, s{p}')
        S(f's_cselect_b32 s{d+1}, s51, s{p+1}')
        S(f's_mov_b32 s{d+2}, {512*1792*2}\ns_cmov_b32 s{d+2}, {512*1536*2}')
        S(f's_mov_b32 s{d+3}, 0x20000')
    S(f's_and_b32 s{sM0+1}, s{sM0+1}, 0xffff\ns_and_b32 s{sM1+1}, s{sM1+1}, 0xffff')
    dma_m(0); dma_m(1)
    late = []
    if PRO >= 1: dma_big(1)
    else: late += [('big', 1)]
    if PRO >= 2: dma_m(2)
    else: late += [('m', 2)]
    if PRO >= 3: dma_m(3)
    else: late += [('m', 3)]
    if PRO >= 4: dma_big(2)
    else: late += [('big', 2)]
    for k in range(4, NM): late += [('m', k)]
    if dbg and 'j' in xp: dbg_stamp(S, 84, 1, 0, 0, 0)
    vDq2 = 252
    if LPF:
        dmy = 253
        S(f's_and_b32 s{sT}, s{sTb}, 7\ns_lshl_b32 s{sT}, s{sT}, 6\ns_lshl_b32 s{sT2}, s{sW}, 3\ns_add_u32 s{sT}, s{sT}, s{sT2}')
        S(f'v_add_u32 v{t0}, s{sT}, v{vLane}')
        S(f'v_mul_u32_u24 v{t1}, 3072, v{t0}\nv_mul_lo_u32 v{t2}, v{t0}, s{sRS}')
        S(f's_mov_b64 exec, 0xff')
        S(f'buffer_load_dword v{244}, v{t1}, s[{sQK}:{sQK+3}], s{sQo} offen', tag='lpf')
        for k, off in enumerate((0, 128)):
            S(f'buffer_load_dword v{245 + 2*k}, v{t2}, s[{sM0}:{sM0+3}], s{sM0o} offen offset:{off}', tag='lpf')
            S(f'buffer_load_dword v{246 + 2*k}, v{t2}, s[{sM1}:{sM1+3}], s{sM1o} offen offset:{off}', tag='lpf')
        S(f's_mov_b64 exec, -1')
        S(f's_and_b32 s{sT}, s{sC}, 3\ns_lshl_b32 s{sT}, s{sT}, 5\ns_lshl_b32 s{sT2}, s{sW}, 2\ns_add_u32 s{sT}, s{sT}, s{sT2}')
        S(f'v_lshrrev_b32 v{t0}, 3, v{vLane}\nv_add_u32 v{t0}, s{sT}, v{t0}\nv_lshlrev_b32 v{t0}, 10, v{t0}\nv_and_b32 v{t1}, 7, v{vLane}\nv_lshl_add_u32 v{t0}, v{t1}, 7, v{t0}')
        S(f's_mov_b32 exec_hi, 0')
        S(f'buffer_load_dword v{249}, v{t0}, s[{sX}:{sX+3}], s{sXo} offen', tag='lpf')
        S(f's_mov_b32 exec_hi, -1')
    if CSS:
        S(f'v_lshrrev_b32 v{t0}, 3, v{vLane}\ns_lshl_b32 s{sT}, s{sW}, 2\nv_add_u32 v{t0}, s{sT}, v{t0}\nv_mul_u32_u24 v{t0}, 3072, v{t0}')
        S(f's_lshr_b32 s{sT}, s{sW}, 1\ns_and_b32 s{sT}, s{sT}, 1\ns_lshl_b32 s{sT}, s{sT}, 1')
        S(f'v_bfe_u32 v{t1}, v{vLane}, 4, 1\nv_or_b32 v{t1}, s{sT}, v{t1}\nv_lshlrev_b32 v{t1}, 1, v{t1}\nv_and_b32 v{t2}, 7, v{vLane}\nv_xor_b32 v{t1}, v{t1}, v{t2}')
        S(f'v_lshl_add_u32 v{vDq2}, v{t1}, 4, v{t0}')
    def cs_groups():
        return [[(f's_mul_i32 s{sXc}, s{sTb}, s{sStepM}', None), (f's_lshl_b32 s{sT2}, s{sW}, 10', None), (f's_add_u32 m0, s{sT2}, {CSB}', None), (f's_add_u32 s{sT}, s{sXc}, s{sM0o}', None),
                 (f'buffer_load_dwordx4 v{vDm}, s[{sM0}:{sM0+3}], s{sT} offen lds', 'cs')],
                [(f's_mul_i32 s{sXc}, s{sTb}, s{sStepM}', None), (f's_lshl_b32 s{sT2}, s{sW}, 10', None), (f's_add_u32 m0, s{sT2}, {CSB + 8192}', None), (f's_add_u32 s{sT}, s{sXc}, s{sM1o}', None),
                 (f'buffer_load_dwordx4 v{vDm}, s[{sM1}:{sM1+3}], s{sT} offen lds', 'cs')],
                [(f's_lshl_b32 s{sT2}, s{sW}, 9', None), (f's_add_u32 m0, s{sT2}, {CSB + 16384}', None), (f's_mul_i32 s{sT}, s{sTb}, {32*3072}', None), (f's_add_u32 s{sT}, s{sT}, s{sQo}', None),
                 (f's_mov_b32 exec_hi, 0', None), (f'buffer_load_dwordx4 v{vDq2}, s[{sQK}:{sQK+3}], s{sT} offen lds', 'cs'), (f's_mov_b32 exec_hi, -1', None)]]
    if TS:
        S(f's_lshl_b32 s{sTok}, s{sTb}, 7\ns_lshl_b32 s{sT}, s{sC}, 3\ns_add_u32 s{sTok}, s{sTok}, s{sT}\ns_add_u32 s{sTok}, s{sTok}, s{sW}')
        S(f's_lshl_b32 s{sT}, s{sTok}, 10\nv_lshlrev_b32 v{t5}, 4, v{vLane}')
        S(f'buffer_load_dwordx4 {vr(XS,4)}, v{t5}, s[{sX}:{sX+3}], s{sT} offen', tag='tsx')
    srd_ws(S, sWS, 56)
    if fused:
        srd(S, sDbg, 92, 256)
        S(f's_lshl_b32 s{sT}, s{sC}, 11\ns_lshl_b32 s{sT2}, s{sTb}, 7\ns_add_u32 s{sFQ}, s{sT}, s{sT2}\ns_add_u32 s{sFQ}, s{sFQ}, {FQ_OFF}')
        S(f's_lshl_b32 s{sT}, s{sTb}, 13\ns_lshl_b32 s{sT2}, s{sC}, 9\ns_add_u32 s{sFH}, s{sT}, s{sT2}\ns_add_u32 s{sFH}, s{sFH}, {FH_OFF}')
        if PROT == 2:
            S(f's_cmp_ge_u32 s2, 8\ns_cbranch_scc1 {L}_noclr')
            X = acc[0][0]
            for i in range(4): S(f'v_mov_b32 v{X+i}, 0')
            S(f's_mul_i32 s{sT}, s2, 40960\ns_mul_i32 s{sT2}, s{sW}, 5120\ns_add_u32 s{sT}, s{sT}, s{sT2}\ns_add_u32 s{sT}, s{sT}, {FLAG_OFF}')
            S(f'v_lshlrev_b32 v{vT[1]}, 4, v{vLane}')
            for k in range(5):
                S(f'buffer_store_dwordx4 {vr(X,4)}, v{vT[1]}, s[{sWS}:{sWS+3}], s{sT} offen offset:{(k % 4)*1024} sc1', tag='nocount')
                if k == 3: S(f's_add_u32 s{sT}, s{sT}, 4096')
        else:
            S(f's_cmp_lg_u32 s{sW}, 7\ns_cbranch_scc1 {L}_noclr')
            S(f's_and_b32 s{sT}, s2, 7\ns_lshl_b32 s{sT}, s{sT}, 2\ns_lshr_b32 s{sT2}, s2, 6\ns_add_u32 s{sT}, s{sT}, s{sT2}\ns_lshl_b32 s{sT}, s{sT}, 7')
            S(f's_lshr_b32 s{sT2}, s2, 3\ns_and_b32 s{sT2}, s{sT2}, 7\ns_lshl_b32 s{sT2}, s{sT2}, 14\ns_add_u32 s{sT}, s{sT}, s{sT2}\ns_add_u32 s{sT}, s{sT}, {FO_OFF}')
            S(f'v_lshlrev_b32 v{vT[1]}, 12, v{vLane}')
            S(f'v_add_u32 v{vT[1]}, s{sT}, v{vT[1]}')
            S(f'v_mov_b32 v{vT[2]}, s{sFQ}\nv_cmp_eq_u32 vcc, 4, v{vLane}\nv_cndmask_b32 v{vT[1]}, v{vT[1]}, v{vT[2]}, vcc')
            S(f'v_mov_b32 v{vT[2]}, s{sFH}\nv_cmp_eq_u32 vcc, 5, v{vLane}\nv_cndmask_b32 v{vT[1]}, v{vT[1]}, v{vT[2]}, vcc')
            S(f'v_mov_b32 v{vT[2]}, 0')
            S(f's_mov_b64 exec, 63')
            S(f'buffer_store_dword v{vT[2]}, v{vT[1]}, s[{sWS}:{sWS+3}], 0 offen sc1', tag='nocount')
            S(f's_mov_b64 exec, -1')
        S.label(f'{L}_noclr')
    S(f's_lshl_b32 s{sT}, s{sTh}, 6')
    S(f'v_add_u32 v{t0}, s{sT}, v{vN}')
    S(f'v_lshlrev_b32 v{t0}, 7, v{t0}')
    S(f'v_lshrrev_b32 v{t1}, 1, v{vN}')
    S(f'v_xor_b32 v{t1}, v{t1}, v{vG}')
    S(f'v_lshl_add_u32 v{vXa[0]}, v{t1}, 4, v{t0}')
    S(f'v_xor_b32 v{vXa[1]}, 64, v{vXa[0]}')
    S(f's_lshl_b32 s{sT}, s{sFq}, 11')
    S(f'v_add_u32 v{vXs[0]}, s{sT}, v{vXa[0]}')
    S(f'v_add_u32 v{vXs[1]}, s{sT}, v{vXa[1]}')
    vR, vCq = t4, t5
    S(f'v_lshrrev_b32 v{vR}, 2, v{vN}')
    S(f'v_and_b32 v{vCq}, 3, v{vN}')
    S(f'v_lshl_add_u32 v{t0}, v{vG}, 3, v{vR}')
    S(f'v_lshrrev_b32 v{t1}, 1, v{vR}')
    S(f'v_and_b32 v{t2}, 1, v{vG}')
    S(f'v_lshl_or_b32 v{t1}, v{t2}, 1, v{t1}')
    S(f'v_xor_b32 v{t1}, s{sFq}, v{t1}')
    S(f'v_lshlrev_b32 v{t1}, 1, v{t1}')
    S(f'v_lshrrev_b32 v{t2}, 1, v{vCq}')
    S(f'v_add_u32 v{t1}, v{t1}, v{t2}')
    S(f'v_lshlrev_b32 v{t1}, 4, v{t1}')
    S(f'v_and_b32 v{t2}, 1, v{vCq}')
    S(f'v_lshl_add_u32 v{t1}, v{t2}, 3, v{t1}')
    S(f'v_lshl_add_u32 v{vQa}, v{t0}, 7, v{t1}')
    S(f'v_add_u32 v{vQa}, 16384, v{vQa}')
    S(f'v_and_b32 v{t2}, 1, v{vG}')
    S(f'v_lshl_or_b32 v{t1}, v{t2}, 2, v{vR}')
    S(f'v_lshlrev_b32 v{t1}, 1, v{t1}')
    S(f'v_lshrrev_b32 v{t2}, 1, v{vCq}')
    S(f'v_xor_b32 v{t1}, v{t1}, v{t2}')
    S(f'v_lshlrev_b32 v{t1}, 4, v{t1}')
    S(f'v_and_b32 v{t2}, 1, v{vCq}')
    S(f'v_lshl_add_u32 v{t1}, v{t2}, 3, v{t1}')
    S(f'v_lshl_add_u32 v{t1}, v{t0}, 8, v{t1}')
    for i in range(4):
        S(f's_lshl_b32 s{sT}, s{sFq}, 1\ns_add_u32 s{sT}, s{sT}, {i & 1}\ns_lshl_b32 s{sT}, s{sT}, 5')
        S(f's_add_u32 s{sT}, s{sT}, {(i >> 1) * 8192}')
        S(f's_and_b32 s{sT2}, s{sFq}, 1\ns_lshl_b32 s{sT2}, s{sT2}, 2\ns_add_u32 s{sT2}, s{sT2}, {i}\ns_lshl_b32 s{sT2}, s{sT2}, 5')
        S(f's_lshr_b32 s{sT3}, s{sFq}, 1\ns_lshl_b32 s{sT3}, s{sT3}, 13\ns_add_u32 s{sT2}, s{sT2}, s{sT3}')
        S(f's_cmp_eq_u32 s{sIsB}, 1\ns_cselect_b32 s{sT}, s{sT2}, s{sT}')
        S(f'v_xor_b32 v{vMa[i]}, s{sT}, v{t1}')
        S(f'v_add_u32 v{vMa[i]}, {MB}, v{vMa[i]}')
        if NM > 4: S(f'v_add_u32 v{vMb[i]}, {2*MSZ}, v{vMa[i]}')
    if 'q' in xp:
        for f in range(2, 5):
            for tt in range(4):
                for r in range(4): S(f'v_mov_b32 v{acc[f][tt]+r}, 0')
        for f in range(5):
            for r in range(4): S(f'v_mov_b32 v{vCs[f]+r}, 0')
    for r in vSum + vSq: S(f'v_mov_b32 v{r}, 0')
    if 'O' in xp:
        for i in range(4): S(f'v_mov_b32 v{vOnes+i}, 0x3f803f80')
    else:
        S(f'v_cmp_eq_u32 vcc, 0, v{vN}')
        S(f'v_mov_b32 v{t0}, 0x3f803f80')
        S(f'v_cndmask_b32 v{vOnes}, 0, v{t0}, vcc')
        for i in range(1, 4): S(f'v_mov_b32 v{vOnes+i}, v{vOnes}')
    S(f's_mov_b32 s{sMaskHi}, 0xffff0000')

    def reads(s):
        b = s & 1; sp = s & 1; j = s // 2
        bs = (j % NBIG) * BIGSZ + BIG; ms = (s % NM) * MSZ
        out = []
        for tt in range(4):
            out.append(f'ds_read_b128 {vr(B[b][tt],4)}, v{vXa[sp]} offset:{bs + tt*2048}')
        for rd in range(2):
            out.append(f'ds_read_b64_tr_b16 {vr(A[b][0]+2*rd,2)}, v{vQa} offset:{bs + (32*sp + 4*rd)*128}')
        if 'S' not in xp and not TS: out.append(f'ds_read_b128 {vr(Bs[b],4)}, v{vXs[sp]} offset:{bs}')
        for i in range(4):
            for rd in range(2):
                if ms >= 2*MSZ and NM > 4: out.append(f'ds_read_b64_tr_b16 {vr(A[b][1+i]+2*rd,2)}, v{vMb[i]} offset:{ms - 2*MSZ + rd*1024}')
                else: out.append(f'ds_read_b64_tr_b16 {vr(A[b][1+i]+2*rd,2)}, v{vMa[i]} offset:{ms + rd*1024}')
        return out
    def mfmas(s, typeB):
        b = s & 1; out = []
        for f in range(5):
            for tt in range(4):
                c = '0' if s == 0 else vr(acc[f][tt], 4)
                a_, b_ = vr(A[b][f], 4), vr(B[b][tt], 4)
                if typeB and f > 0: a_, b_ = b_, a_
                out.append(f'v_mfma_f32_16x16x32_bf16 {vr(acc[f][tt],4)}, {a_}, {b_}, {c}')
        return out
    def stats(s):
        b = s & 1; out = []
        for r in range(4):
            p = Bs[b] + r
            out.append(f'v_lshlrev_b32 v{vLo}, 16, v{p}')
            out.append(f'v_and_b32 v{vHi}, s{sMaskHi}, v{p}')
            out.append(f'v_add_f32 v{vSum[0]}, v{vSum[0]}, v{vLo}')
            out.append(f'v_add_f32 v{vSum[1]}, v{vSum[1]}, v{vHi}')
            out.append(f'v_fma_f32 v{vSq[0]}, v{vLo}, v{vLo}, v{vSq[0]}')
            out.append(f'v_fma_f32 v{vSq[1]}, v{vHi}, v{vHi}, v{vSq[1]}')
        return out
    def ts_ops():
        a_, b_, lo, hi = Bs[1], Bs[1] + 1, Bs[1] + 2, Bs[1] + 3
        ra_, rb_, rs_, ro_ = vSum[0], vSum[1], vSq[0], vSq[1]
        o = [f'v_mov_b32 v{a_}, 0', f'v_mov_b32 v{b_}, 0']
        for r in range(4):
            o += [f'v_lshlrev_b32 v{lo}, 16, v{XS+r}', f'v_and_b32 v{hi}, s{sMaskHi}, v{XS+r}',
                  f'v_add_f32 v{a_}, v{a_}, v{lo}', f'v_fma_f32 v{b_}, v{lo}, v{lo}, v{b_}',
                  f'v_add_f32 v{a_}, v{a_}, v{hi}', f'v_fma_f32 v{b_}, v{hi}, v{hi}, v{b_}']
        for sh in (1, 2, 4, 8):
            for r in (a_, b_): o.append(f'v_add_f32_dpp v{r}, v{r}, v{r} row_shr:{sh} row_mask:0xf bank_mask:0xf bound_ctrl:0')
        for r in (a_, b_): o.append(f'v_add_f32_dpp v{r}, v{r}, v{r} row_bcast:15 row_mask:0xa bank_mask:0xf')
        for r in (a_, b_): o.append(f'v_add_f32_dpp v{r}, v{r}, v{r} row_bcast:31 row_mask:0xc bank_mask:0xf')
        o += [f'v_mul_f32 v{a_}, {fhex(1/512)}, v{a_}', f'v_mul_f32 v{b_}, {fhex(1/512)}, v{b_}', f'v_fma_f32 v{b_}, -v{a_}, v{a_}, v{b_}',
              f'v_max_f32 v{b_}, 0, v{b_}', f'v_add_f32 v{b_}, {fhex(1e-5)}, v{b_}', f'v_rsq_f32 v{ra_}, v{b_}', f'v_sqrt_f32 v{rs_}, v{b_}', f'v_sub_f32 v{rb_}, 0, v{a_}']
        return o
    def ts_store():
        ra_, rb_, rs_, ro_ = vSum[0], vSum[1], vSq[0], vSq[1]
        S(f's_lshl_b32 s{sT}, s{sTok}, 2\nv_mov_b32 v{ro_}, s{sT}\ns_mov_b32 s{sT2}, {STATS_OFF}')
        S(f's_mov_b32 exec_lo, 0\ns_mov_b32 exec_hi, 0x80000000')
        for k, r in enumerate((ra_, rb_, rs_)):
            S(f'buffer_store_dword v{r}, v{ro_}, s[{sWS}:{sWS+3}], s{sT2} offen sc1', tag='tss')
            if k < 2: S(f's_add_u32 s{sT2}, s{sT2}, 8192')
        S('s_mov_b64 exec, -1')
    def csmfmas(s, typeB, first):
        b = s & 1; out = []
        for f in range(5):
            c = '0' if first else vr(vCs[f], 4)
            a_, b_ = vr(A[b][f], 4), vr(vOnes, 4)
            if typeB and f > 0: a_, b_ = b_, a_
            out.append(f'v_mfma_f32_16x16x32_bf16 {vr(vCs[f],4)}, {a_}, {b_}, {c}')
        return out

    def mainloop(typeB, duty):
        tag = ('B' if typeB else 'A') + str(duty)
        S.wait_vm(('big', 0)); S.wait_vm(('m', 0))
        S('s_waitcnt lgkmcnt(0)')
        S('s_barrier')
        if stamps: S(f's_memtime s[{sSt+2}:{sSt+3}]\ns_memrealtime s[{sSt+18}:{sSt+19}]')
        if dbg and 'K' not in xp and 'k' not in xp and 'j' not in xp: dbg_stamp(S, 84, 1, 0, 0, 0)
        if tr: trace(S, 1)
        for r in reads(0): S(r)
        for s in range(16):
            S('s_waitcnt lgkmcnt(0)')
            if s + 1 < 16:
                S.wait_vm(('m', s + 1)); S.wait_vm(('big', (s + 1) // 2))
            if CSS and s == 2: S.wait_vm('cs')
            if CSS and s == 15: S.wait_vm('csg')
            if steptrace:
                if s > 0: S(f'v_writelane_b32 v254, s72, {2*s-2}\nv_writelane_b32 v254, s74, {2*s-1}')
                S('s_memtime s[72:73]')
            S('s_barrier')
            if steptrace: S('s_memtime s[74:75]')
            if fused and PROT == 2 and s == 10:
                S(f'v_lshlrev_b32 v{vT[4]}, 2, v{vLane}\ns_mov_b64 exec, 3')
                S(f'buffer_load_dword v{vT[5]}, v{vT[4]}, s[{sDbg}:{sDbg+3}], 0 offen sc1', tag='clrchk')
                S('s_mov_b64 exec, -1')
            if fused and s == (4 if PROT == 2 else 7 if CSS else 5 if TS else SIG):
                lb = f'{L}_{tag}_sig'
                if PROT == 2: S(f's_cmp_ge_u32 s2, 8\ns_cbranch_scc1 {lb}')
                S(f's_cmp_lg_u32 s{sW}, 7\ns_cbranch_scc1 {lb}')
                S(f'v_mov_b32 v{vT[0]}, s2\nv_mov_b32 v{vT[1]}, 1\ns_mov_b64 exec, 1')
                S(f'buffer_store_byte v{vT[1]}, v{vT[0]}, s[{sDbg}:{sDbg+3}], 0 offen sc1', tag='nocount')
                S('s_mov_b64 exec, -1')
                S.label(lb)
            if CSS and s == 4:
                lb = f'{L}_{tag}_css'
                S(f's_cmp_lg_u32 s{sTh}, 0\ns_cbranch_scc1 {lb}')
                S(f's_lshl_b32 s{sT}, s{sC}, 4\ns_add_u32 s{sT}, s{sT}, s{sTb}\ns_mul_i32 s{sT}, s{sT}, 1280\ns_mul_i32 s{sT2}, s{sFq}, 320\ns_add_u32 s{sT}, s{sT}, s{sT2}\ns_add_u32 s{sT}, s{sT}, {CSP_OFF}')
                S(f'v_lshlrev_b32 v{vT[2]}, 4, v{vG}\nv_lshlrev_b32 v{vT[3]}, 2, v{vN}')
                S(f's_mov_b32 s4, 0x00010001\ns_mov_b32 s5, 0x00010001\ns_mov_b64 exec, s[4:5]')
                for f in range(5):
                    if not (typeB and f > 0): S(f'buffer_store_dwordx4 {vr(vCs[f],4)}, v{vT[2]}, s[{sWS}:{sWS+3}], s{sT} offen offset:{f*64} sc1', tag='nocount')
                if typeB:
                    S('s_mov_b64 exec, 0xffff')
                    for f in range(1, 5): S(f'buffer_store_dword v{vCs[f]}, v{vT[3]}, s[{sWS}:{sWS+3}], s{sT} offen offset:{f*64} sc1', tag='nocount')
                S('s_mov_b64 exec, -1')
                S.label(lb)
            if CSS and s == CSL:
                S(f'v_lshlrev_b32 v{vT[4]}, 2, v{vLane}')
                S(f'buffer_load_dword v{vT[5]}, v{vT[4]}, s[{sDbg}:{sDbg+3}], 0 offen sc1', tag='dbgchk')
            if CSS and s == CSL + 2:
                lb = f'{L}_{tag}_csc'
                S(f'v_cmp_ne_u32 vcc, 0x01010101, v{vT[5]}')
                S(f's_cmp_eq_u64 vcc, 0\ns_cbranch_scc1 {lb}')
                if 'Z' in xp: S(f's_branch {lb}')
                R = Stream(); poll(R, sDbg, vT[4], vT[5], sMc, '0x01010101', 64)
                S.raw_text(Processor().run(R).text())
                S.label(lb)
                S(f'v_lshlrev_b32 v{vT[4]}, 4, v{vLane}\ns_mul_i32 s{sT3}, s{sC}, 20480\ns_add_u32 s{sT3}, s{sT3}, {CSP_OFF}')
                for k in range(3):
                    S(f's_mul_i32 s{sT}, s{sW}, 3\ns_add_u32 s{sT}, s{sT}, {k}\ns_min_u32 s{sT}, s{sT}, 19\ns_lshl_b32 s{sT}, s{sT}, 10')
                    S(f's_add_u32 m0, s{sT}, {CSB}\ns_add_u32 s{sT}, s{sT}, s{sT3}')
                    S(f'buffer_load_dwordx4 v{vT[4]}, s[{sWS}:{sWS+3}], s{sT} offen sc1 lds', tag='csg')
            if TS and s == 9:
                S(f'v_lshlrev_b32 v{vLo}, 2, v{vLane}')
                S(f'buffer_load_dword v{vHi}, v{vLo}, s[{sDbg}:{sDbg+3}], 0 offen sc1', tag='dbgchk')
            if TS and s == 11:
                lb = f'{L}_{tag}_ts'
                S(f'v_cmp_ne_u32 vcc, 0x01010101, v{vHi}')
                S(f's_cmp_eq_u64 vcc, 0\ns_cbranch_scc1 {lb}')
                R = Stream(); poll(R, sDbg, vLo, vHi, sMc, '0x01010101', 64)
                S.raw_text(Processor().run(R).text())
                S.label(lb)
            if TS and s == 12:
                S(f's_min_u32 s{sT}, s{sW}, 5\ns_cmp_eq_u32 s{sW}, 6\ns_cselect_b32 s{sT}, 4, s{sT}')
                S(f's_lshr_b32 s{sT2}, s{sT}, 1\ns_and_b32 s{sT}, s{sT}, 1')
                S(f's_lshl_b32 s{sT3}, s{sT2}, 9\ns_lshl_b32 s{sMc}, s{sT}, 8\ns_add_u32 s{sT3}, s{sT3}, s{sMc}\ns_add_u32 m0, s{sT3}, {ST_SUM}')
                S(f's_lshl_b32 s{sT2}, s{sT2}, 13\ns_lshl_b32 s{sT3}, s{sTb}, 9\ns_add_u32 s{sT2}, s{sT2}, s{sT3}\ns_add_u32 s{sT2}, s{sT2}, s{sMc}\ns_add_u32 s{sT2}, s{sT2}, {STATS_OFF}')
                S(f'v_lshlrev_b32 v{vLo}, 2, v{vLane}')
                S(f'buffer_load_dword v{vLo}, s[{sWS}:{sWS+3}], s{sT2} offen sc1 lds', tag='ts')
            if PF and s == PFSTEP:
                S(f's_lshl_b32 s{sT}, s{sW}, 13')
                S(f'v_lshlrev_b32 v{vT[0]}, 7, v{vLane}\nv_add_u32 v{vT[0]}, s{sT}, v{vT[0]}')
                S(f's_mov_b32 s{sT}, {L}_end-{L}_pc-4')
                S(f'v_min_u32 v{vT[0]}, s{sT}, v{vT[0]}')
                for k in range(PF):
                    S(f'global_load_dword v{vEp+15}, v{vT[0]}, s[{sPc}:{sPc+1}]', tag='pf')
            groups = []
            if SCHED and NM == 5 and PRO == 2:
                table = {0: [('m', 3), ('big', 2)], 1: [('m', 4), ('m', 5)], 2: [('m', 6), ('big', 3)], 3: [('m', 7), ('m', 8)], 4: [('m', 9), ('big', 4)],
                         5: [('m', 10)], 6: [('m', 11), ('big', 5)], 7: [('m', 12)], 8: [('m', 13), ('big', 6)], 9: [('m', 14)], 10: [('m', 15), ('big', 7)]}
                for kind, idx in table.get(s, []): groups += (dma_big_groups(idx) if kind == 'big' else dma_m_groups(idx))
            else:
                if s == 0:
                    for kind, idx in late: groups += (dma_big_groups(idx) if kind == 'big' else dma_m_groups(idx))
                if s + NM < 16 and 'D' not in xp: groups += (dma_m_groups(s + NM) if 'q' not in xp else dma_m_groups(s + NM)[:1] if s % 2 == 0 else [])
                if s % 2 == 1 and (s - 1) // 2 + 3 < 8 and 'D' not in xp: groups += dma_big_groups((s - 1) // 2 + 3)
            if CSS and s == 0: groups += cs_groups()
            mm = mfmas(s, typeB)
            if 'q' in xp:
                mm = mm[:4] + mm[4:9]
            if 'q' not in xp and not CSS and s % 2 == duty and 'S' not in xp:
                cm = csmfmas(s, typeB, s < 2)
                mm = [x for f in range(5) for x in mm[4*f:4*f+4] + [cm[f]]]
            if CSS and s == 3:
                cm = []
                for f in range(5):
                    a_, b_ = vr(CT[f], 4), vr(vOnes, 4)
                    if typeB and f > 0: a_, b_ = b_, a_
                    cm.append(f'v_mfma_f32_16x16x32_bf16 {vr(vCs[f],4)}, {a_}, {b_}, 0')
                mm = [x for f in range(5) for x in mm[4*f:4*f+4] + [cm[f]]]
            rr = reads(s + 1) if s + 1 < 16 else []
            if 'q' in xp: rr = rr[:11]
            if CSS and s == 2:
                rr = list(rr)
                rr += [f'v_add_u32 v{vT[2]}, {CSB + 16384 - 16384}, v{vQa}',
                       f'ds_read_b64_tr_b16 {vr(CT[0],2)}, v{vT[2]} offset:0', f'ds_read_b64_tr_b16 {vr(CT[0]+2,2)}, v{vT[2]} offset:512']
                for i in range(4):
                    tv = vT[3 + (i & 1)]
                    rr += [f'v_add_u32 v{tv}, {CSB - MB}, v{vMa[i]}',
                           f'ds_read_b64_tr_b16 {vr(CT[1+i],2)}, v{tv} offset:0', f'ds_read_b64_tr_b16 {vr(CT[1+i]+2,2)}, v{tv} offset:1024']
            if CSS and s == 15:
                rr = [f'v_min_u32 v{vT[2]}, 319, v0', f'v_lshlrev_b32 v{vT[2]}, 2, v{vT[2]}', f'v_add_u32 v{vT[3]}, {CSB}, v{vT[2]}']
                rr += [f'ds_read_b32 v{232 + j}, v{vT[3]} offset:{j*1280}' for j in range(16)]
            if 'R' in xp: rr = []
            st = stats(s) if ('S' not in xp and not TS) else (ts_ops() if (TS and s == 1) else [])
            n = len(mm)
            dpos = {}
            if groups:
                first = DMA_FIRST; stride = max(1, (n - first) // len(groups))
                for i, g in enumerate(groups): dpos[min(n - 1, first + i * stride)] = dpos.get(min(n - 1, first + i * stride), []) + [g]
            k = 0; q = 0
            for i, m in enumerate(mm):
                S(m)
                nr = max(1, (len(rr) + n - 1) // n) if len(rr) > n else 1
                for _ in range(nr):
                    if k < len(rr): S(rr[k]); k += 1
                nq = (len(st) * (i + 1) + n - 1) // n
                while q < nq: S(st[q]); q += 1
                for g in dpos.get(i, []): emit_group(g)
            if TS and s == 1: ts_store()
        if stamps: S(f's_memtime s[{sSt+4}:{sSt+5}]\ns_memrealtime s[{sSt+20}:{sSt+21}]')

    def greduce(r):
        S(f'v_mov_b32 v{t0}, v{r}')
        S(f'v_permlane32_swap_b32 v{r}, v{t0}')
        S(f'v_add_f32 v{r}, v{r}, v{t0}')
        S(f'v_mov_b32 v{t0}, v{r}')
        S(f'v_permlane16_swap_b32 v{r}, v{t0}')
        S(f'v_add_f32 v{r}, v{r}, v{t0}')
    def reduce_stats(typeB):
        if not TS:
            S(f'v_add_f32 v{vSum[0]}, v{vSum[0]}, v{vSum[1]}')
            S(f'v_add_f32 v{vSq[0]}, v{vSq[0]}, v{vSq[1]}')
            for r in [vSum[0], vSq[0]]: greduce(r)
            ab_from(vSum[0], vSq[0], vSum[1], vSq[1], vLo)
            S(f's_lshl_b32 s{sT}, s{sTh}, 6\ns_lshl_b32 s{sT2}, s{sFq}, 4\ns_add_u32 s{sT}, s{sT}, s{sT2}')
            S(f'v_add_u32 v{t0}, s{sT}, v{vN}')
            S(f'v_lshlrev_b32 v{t0}, 2, v{t0}')
            S(f'v_add_u32 v{t0}, {ST_SUM}, v{t0}')
            S(f'ds_write_b32 v{t0}, v{vSum[1]}')
            S(f'ds_write_b32 v{t0}, v{vSq[1]} offset:512')
            S(f'ds_write_b32 v{t0}, v{vLo} offset:1024')
        else:
            S.wait_vm('ts')
        if CSS:
            for st_ in (1, 2, 4, 8):
                for j in range(0, 16, 2*st_): S(f'v_add_f32 v{232+j}, v{232+j}, v{232+j+st_}')
            S(f'v_add_u32 v{vT[2]}, {ST_CS}, v{vT[2]}')
            S(f'ds_write_b32 v{vT[2]}, v232')
        else:
            S(f's_mul_i32 s{sT}, s{sFq}, 320\ns_mul_i32 s{sT2}, s{sDuty}, 1280\ns_add_u32 s{sT}, s{sT}, s{sT2}\ns_add_u32 s{sT}, s{sT}, {ST_CS}')
            S(f'v_lshlrev_b32 v{t1}, 4, v{vG}')
            S(f'v_add_u32 v{t1}, s{sT}, v{t1}')
            S(f'v_lshlrev_b32 v{t2}, 2, v{vN}')
            S(f'v_add_u32 v{t2}, s{sT}, v{t2}')
            S('s_nop 7')
            S(f's_mov_b32 s4, 0x00010001\ns_mov_b32 s5, 0x00010001\ns_mov_b64 exec, s[4:5]')
            for f in range(5):
                if not (typeB and f > 0): S(f'ds_write_b128 v{t1}, {vr(vCs[f],4)} offset:{f*64}')
            if typeB:
                S(f's_mov_b64 exec, 0xffff')
                for f in range(1, 5): S(f'ds_write_b32 v{t2}, v{vCs[f]} offset:{f*64}')
            S('s_mov_b64 exec, -1')
        S('s_waitcnt lgkmcnt(0)')
        S('s_barrier')

    SC = ' sc1' if fused else ''
    def publish(sflag, tag, lb):
        if tr: trace(S, 5)
        S.wait_vm(tag)
        S('s_barrier')
        if tr: trace(S, 6)
        S(f's_cmp_lg_u32 s{sW}, 0\ns_cbranch_scc1 {lb}')
        S(f'v_mov_b32 v{t4}, 0\nv_mov_b32 v{t5}, 1\ns_mov_b64 exec, 1')
        if setmod == 'atomic': S(f'buffer_atomic_add v{t5}, v{t4}, s[{sWS}:{sWS+3}], s{sflag} offen sc1', tag='nocount')
        else: S(f'buffer_store_dword v{t5}, v{t4}, s[{sWS}:{sWS+3}], s{sflag} offen sc1', tag='nocount')
        S('s_mov_b64 exec, -1')
        S.label(lb)
    def epilogue(typeB):
        v = VAlloc(Bs[1] + 4, 'v', A[0][0])
        vP = v.alloc(8, 4); vcsr = v.alloc(4, 4)
        va = [vEp + i for i in range(4)]; vb = [vEp + 4 + i for i in range(4)]
        tq = [vEp + 8 + i for i in range(4)]
        vOff = vEp + 12; vAq = vEp + 13; vBq = vEp + 14
        vsd = [v.alloc() for _ in range(4)]
        def pk(op, d, srcs):
            txt = []; lo = []; hi = []
            for x in srcs:
                if x[0] == 'p': txt.append(vr(x[1], 2)); lo.append(0); hi.append(1)
                elif x[0] == 'b': txt.append(f'v[{x[1] & ~1}:{(x[1] & ~1) + 1}]'); lo.append(x[1] & 1); hi.append(x[1] & 1)
                else: txt.append(f's[{x[1]}:{x[1]+1}]'); lo.append(x[2]); hi.append(x[2])
            S(f'{op} {vr(d,2)}, ' + ', '.join(txt) + f' op_sel:[{",".join(map(str, lo))}] op_sel_hi:[{",".join(map(str, hi))}]')
        S(f'v_lshlrev_b32 v{vOff}, 4, v{vLane}')
        S(f's_lshl_b32 s{sT}, s{sTh}, 6')
        S(f'v_add_u32 v{t0}, s{sT}, v{vN}')
        S(f'v_lshlrev_b32 v{t0}, 2, v{t0}')
        S(f'v_add_u32 v{t0}, {ST_SUM}, v{t0}')
        for tt in range(4):
            S(f'ds_read_b32 v{va[tt]}, v{t0} offset:{tt*64}')
            S(f'ds_read_b32 v{vb[tt]}, v{t0} offset:{512 + tt*64}')
            if not typeB: S(f'ds_read_b32 v{vsd[tt]}, v{t0} offset:{1024 + tt*64}')
        S(f's_mul_i32 s{sT}, s{sFq}, 320')
        S(f'v_lshlrev_b32 v{t1}, 4, v{vG}')
        S(f'v_add_u32 v{t1}, s{sT}, v{t1}')
        S(f'v_add_u32 v{t1}, {ST_CS}, v{t1}')
        def rd_cs_row(dst, f):
            tmp = vCs[f]
            S(f'ds_read_b128 {vr(dst,4)}, v{t1} offset:{f*64}')
            if CSS: return []
            S(f'ds_read_b128 {vr(tmp,4)}, v{t1} offset:{f*64 + 1280}')
            return [f'v_add_f32 v{dst+r}, v{dst+r}, v{tmp+r}' for r in range(4)]
        for x in rd_cs_row(vcsr, 0): S(x)
        S(f's_cmp_lt_u32 s{sC}, 8\ns_cselect_b32 s{sScale}, {fhex(QSCALE)}, 1.0')
        for tt in range(4):
            S(f'v_mul_f32 v{vAq}, s{sScale}, v{va[tt]}')
            if PK:
                for r in (0, 2): pk('v_pk_fma_f32', acc[0][tt]+r, [('b', vb[tt]), ('p', vcsr+r), ('p', acc[0][tt]+r)])
                for r in (0, 2): pk('v_pk_mul_f32', acc[0][tt]+r, [('p', acc[0][tt]+r), ('b', vAq)])
            else:
                for r in range(4):
                    S(f'v_fma_f32 v{acc[0][tt]+r}, v{vb[tt]}, v{vcsr+r}, v{acc[0][tt]+r}')
                for r in range(4):
                    S(f'v_mul_f32 v{acc[0][tt]+r}, v{acc[0][tt]+r}, v{vAq}')
            S(f'v_cvt_pk_bf16_f32 v{vP+2*tt}, v{acc[0][tt]}, v{acc[0][tt]+1}')
            S(f'v_cvt_pk_bf16_f32 v{vP+2*tt+1}, v{acc[0][tt]+2}, v{acc[0][tt]+3}')
        S(f's_and_b32 s{sT}, s{sC}, 7\ns_lshl_b32 s{sT}, s{sT}, 2\ns_add_u32 s{sT}, s{sT}, s{sFq}\ns_lshl_b32 s{sT}, s{sT}, 16')
        S(f's_cmp_lt_u32 s{sC}, 8\ns_cselect_b32 s{sT2}, 0, {K_OFF - Q_OFF}\ns_add_u32 s{sT}, s{sT}, s{sT2}')
        S(f's_lshl_b32 s{sT2}, s{sTb}, 2\ns_lshl_b32 s{sT3}, s{sTh}, 1\ns_add_u32 s{sT2}, s{sT2}, s{sT3}\ns_lshl_b32 s{sT2}, s{sT2}, 10')
        S(f's_add_u32 s{sT}, s{sT}, s{sT2}')
        for p in range(2):
            x, y = vP + 4*p, vP + 4*p + 2
            S(f'v_permlane16_swap_b32 v{x}, v{y}')
            S(f'v_permlane16_swap_b32 v{x+1}, v{y+1}')
            S(f'buffer_store_dwordx4 {vr(x,4)}, v{vOff}, s[{sWS}:{sWS+3}], s{sT} offen offset:{p*1024}{SC}', tag='qk')
        if stamps: S(f's_memtime s[{sSt+14}:{sSt+15}]')
        if tr: trace(S, 4)
        if not typeB:
            cg = [v.alloc(4, 4) for _ in range(2)]; cu = [v.alloc(4, 4) for _ in range(2)]
            adds = []
            for i in range(2):
                adds += rd_cs_row(cg[i], 1+i); adds += rd_cs_row(cu[i], 3+i)
            for x in adds: S(x)
            K1 = -2 * LOG2E * 0.7978845608028654; K2 = K1 * 0.044715
            sK1, sK2 = 46, 47
            S(f's_mov_b32 s{sK1}, {fhex(K1)}\ns_mov_b32 s{sK2}, {fhex(K2)}')
            vk1 = v.alloc(); S(f'v_mov_b32 v{vk1}, s{sK1}')
            tg = v.alloc(4, 4); tu = v.alloc(4, 4); tz = v.alloc(4, 4)
            def gelu(i, tt, H):
                G, U = acc[1+i][tt], acc[3+i][tt]
                if PK:
                    R2 = (0, 2)
                    for r in R2: pk('v_pk_fma_f32', G+r, [('b', vb[tt]), ('p', cg[i]+r), ('p', G+r)])
                    for r in R2: pk('v_pk_fma_f32', U+r, [('b', vb[tt]), ('p', cu[i]+r), ('p', U+r)])
                    for r in R2: pk('v_pk_mul_f32', G+r, [('p', G+r), ('b', va[tt])])
                    for r in R2: pk('v_pk_mul_f32', tz+r, [('p', G+r), ('p', G+r)])
                    for r in R2: pk('v_pk_fma_f32', tz+r, [('p', tz+r), ('s', sK1, 1), ('s', sK1, 0)])
                    for r in R2: pk('v_pk_mul_f32', tz+r, [('p', tz+r), ('p', G+r)])
                    for r in range(4): S(f'v_exp_f32 v{tz+r}, v{tz+r}')
                    for r in R2: pk('v_pk_mul_f32', U+r, [('p', U+r), ('p', G+r)])
                    for r in R2: pk('v_pk_fma_f32', tz+r, [('p', tz+r), ('b', vsd[tt]), ('b', vsd[tt])])
                    for r in range(4): S(f'v_rcp_f32 v{tz+r}, v{tz+r}')
                    S('s_nop 0')
                    for r in R2: pk('v_pk_mul_f32', U+r, [('p', U+r), ('p', tz+r)])
                    S(f'v_cvt_pk_bf16_f32 v{H}, v{U}, v{U+1}')
                    S(f'v_cvt_pk_bf16_f32 v{H+1}, v{U+2}, v{U+3}')
                    return
                for r in range(4): S(f'v_fma_f32 v{G+r}, v{vb[tt]}, v{cg[i]+r}, v{G+r}')
                for r in range(4): S(f'v_fma_f32 v{U+r}, v{vb[tt]}, v{cu[i]+r}, v{U+r}')
                for r in range(4): S(f'v_mul_f32 v{G+r}, v{G+r}, v{va[tt]}')
                for r in range(4): S(f'v_mul_f32 v{tz+r}, v{G+r}, v{G+r}')
                for r in range(4): S(f'v_fma_f32 v{tz+r}, v{tz+r}, s{sK2}, v{vk1}')
                for r in range(4): S(f'v_mul_f32 v{tz+r}, v{tz+r}, v{G+r}')
                for r in range(4): S(f'v_exp_f32 v{tz+r}, v{tz+r}')
                for r in range(4): S(f'v_mul_f32 v{U+r}, v{U+r}, v{G+r}')
                for r in range(4): S(f'v_fma_f32 v{tz+r}, v{tz+r}, v{vsd[tt]}, v{vsd[tt]}')
                for r in range(4): S(f'v_rcp_f32 v{tz+r}, v{tz+r}')
                S('s_nop 0')
                for r in range(4): S(f'v_mul_f32 v{U+r}, v{U+r}, v{tz+r}')
                S(f'v_cvt_pk_bf16_f32 v{H}, v{U}, v{U+1}')
                S(f'v_cvt_pk_bf16_f32 v{H+1}, v{U+2}, v{U+3}')
            if act32:
                S(f's_lshl_b32 s{sT}, s{sTb}, 2\ns_lshl_b32 s{sT2}, s{sTh}, 1\ns_add_u32 s{sT}, s{sT}, s{sT2}\ns_mul_i32 s{sT}, s{sT}, {144*1024}')
                S(f's_lshl_b32 s{sT2}, s{sC}, 3\ns_lshl_b32 s{sT3}, s{sFq}, 1\ns_add_u32 s{sT2}, s{sT2}, s{sT3}\ns_lshl_b32 s{sT2}, s{sT2}, 10\ns_add_u32 s{sT}, s{sT}, s{sT2}')
                S(f's_add_u32 s{sT}, s{sT}, {ACT_OFF}')
                vH = [v.alloc(4, 4) for _ in range(2)]
                ND = ndefer if (fused and defer) else 0
                assert ND in (0, 1)
                blocks = [(p, i) for p in range(2) for i in range(2)]
                if fused and HD: S(f's_mov_b32 s{sHaddr}, s{sT}')
                for n, (p, i) in enumerate(blocks):
                    last = ND and n == 3
                    H = HCARRY + 12 if last else vH[n & 1]
                    if fused and HD: H = HCARRY + 4*n
                    if 'q' not in xp: gelu(i, 2*p, H); gelu(i, 2*p + 1, H + 2)
                    S(f'v_permlane16_swap_b32 v{H}, v{H+2}\nv_permlane16_swap_b32 v{H+1}, v{H+3}')
                    if not (fused and HD):
                        if last: S(f's_add_u32 s{sHaddr}, s{sT}, {i*1024}')
                        else: S(f'buffer_store_dwordx4 {vr(H,4)}, v{vOff}, s[{sWS}:{sWS+3}], s{sT} offen offset:{i*1024}{SC}', tag='h')
                        if n == 1: S(f's_add_u32 s{sT}, s{sT}, {144*1024}')
                    if fused and n == PUB_AT: publish(sFQ, 'qk', f'{L}_pq')
                if fused and HD:
                    S(f's_cmp_ge_u32 s{sW}, 4\ns_cbranch_scc1 {L}_hpass')
                    S(f's_lshl_b32 s{sT2}, s{sW}, 13\ns_add_u32 s{sT2}, s{sT2}, 131072\nv_add_u32 v{t0}, s{sT2}, v{vOff}')
                    for n in range(4): S(f'ds_write_b128 v{t0}, {vr(HCARRY + 4*n, 4)} offset:{n*1024}')
                    S('s_waitcnt lgkmcnt(0)')
                    S.label(f'{L}_hpass')
            else:
                S(f's_lshl_b32 s{sT}, s{sTb}, 3\ns_lshl_b32 s{sT2}, s{sTh}, 2\ns_add_u32 s{sT}, s{sT}, s{sT2}\ns_mul_i32 s{sT}, s{sT}, {72*1024}')
                S(f's_lshl_b32 s{sT2}, s{sC}, 2\ns_add_u32 s{sT2}, s{sT2}, s{sFq}\ns_lshl_b32 s{sT2}, s{sT2}, 10\ns_add_u32 s{sT}, s{sT}, s{sT2}')
                S(f's_add_u32 s{sT}, s{sT}, {ACT_OFF}')
                vH = [v.alloc(4, 4) for _ in range(2)]
                ND = ndefer if (fused and defer) else 0
                for tt in range(4):
                    H = vH[tt % 2] if tt < 4 - ND else HCARRY + 4*tt
                    if ND and tt == 4 - ND: S(f's_mov_b32 s{sHaddr}, s{sT}')
                    for i in range(2): gelu(i, tt, H + 2*i)
                    if tt < 4 - ND:
                        S(f'buffer_store_dwordx4 {vr(H,4)}, v{vOff}, s[{sWS}:{sWS+3}], s{sT} offen{SC}', tag='h')
                        if tt < 3: S(f's_add_u32 s{sT}, s{sT}, {72*1024}')
                    if fused and tt == PUB_AT: publish(sFQ, 'qk', f'{L}_pq')
            if fused and not defer: publish(sFH, 'h', f'{L}_ph')
        else:
            ra = [v.alloc(4, 4) for _ in range(4)]; rb = [v.alloc(4, 4) for _ in range(4)]
            S(f's_lshl_b32 s{sT}, s{sTh}, 8')
            S(f'v_lshlrev_b32 v{t2}, 4, v{vG}')
            S(f'v_add_u32 v{t2}, s{sT}, v{t2}')
            S(f'v_add_u32 v{t2}, {ST_SUM}, v{t2}')
            for tt in range(4):
                S(f'ds_read_b128 {vr(ra[tt],4)}, v{t2} offset:{tt*64}')
                S(f'ds_read_b128 {vr(rb[tt],4)}, v{t2} offset:{512 + tt*64}')
            cv = [v.alloc() for _ in range(4)]
            S(f's_mul_i32 s{sT}, s{sFq}, 320')
            S(f'v_lshlrev_b32 v{t3}, 2, v{vN}')
            S(f'v_add_u32 v{t3}, s{sT}, v{t3}')
            S(f'v_add_u32 v{t3}, {ST_CS}, v{t3}')
            for i in range(4):
                S(f'ds_read_b32 v{cv[i]}, v{t3} offset:{(1+i)*64}')
                if not CSS: S(f'ds_read_b32 v{vCs[1+i]}, v{t3} offset:{(1+i)*64 + 1280}')
            if not CSS:
                for i in range(4): S(f'v_add_f32 v{cv[i]}, v{cv[i]}, v{vCs[1+i]}')
            S(f's_sub_u32 s{sT}, s{sC}, 14\ns_lshl_b32 s{sT}, s{sT}, 4\ns_lshl_b32 s{sT2}, s{sFq}, 2\ns_add_u32 s{sT}, s{sT}, s{sT2}\ns_lshl_b32 s{sT}, s{sT}, 16')
            S(f's_lshl_b32 s{sT2}, s{sTb}, 2\ns_lshl_b32 s{sT3}, s{sTh}, 1\ns_add_u32 s{sT2}, s{sT2}, s{sT3}\ns_lshl_b32 s{sT2}, s{sT2}, 10')
            S(f's_add_u32 s{sT}, s{sT}, s{sT2}\ns_add_u32 s{sT}, s{sT}, {V_OFF}')
            vH = [v.alloc(4, 4) for _ in range(2)]
            n = 0
            for i in range(4):
                for p in range(2):
                    H = vH[n & 1]; n += 1
                    for u in range(2):
                        tt = 2*p + u; D = acc[1+i][tt]
                        if PK:
                            for r in (0, 2): pk('v_pk_fma_f32', D+r, [('p', rb[tt]+r), ('b', cv[i]), ('p', D+r)])
                            for r in (0, 2): pk('v_pk_mul_f32', D+r, [('p', D+r), ('p', ra[tt]+r)])
                        else:
                            for r in range(4): S(f'v_fma_f32 v{D+r}, v{rb[tt]+r}, v{cv[i]}, v{D+r}')
                            for r in range(4): S(f'v_mul_f32 v{D+r}, v{D+r}, v{ra[tt]+r}')
                        S(f'v_cvt_pk_bf16_f32 v{H+2*u}, v{D}, v{D+1}')
                        S(f'v_cvt_pk_bf16_f32 v{H+2*u+1}, v{D+2}, v{D+3}')
                    S(f'v_permlane32_swap_b32 v{H}, v{H+2}')
                    S(f'v_permlane32_swap_b32 v{H+1}, v{H+3}')
                    S(f'buffer_store_dwordx4 {vr(H,4)}, v{vOff}, s[{sWS}:{sWS+3}], s{sT} offen offset:{p*1024}{SC}', tag='v')
                if i < 3: S(f's_add_u32 s{sT}, s{sT}, 65536')
            if fused: publish(sFQ, 'v', f'{L}_pv')

    S(f's_cmp_eq_u32 s{sIsB}, 1\ns_cbranch_scc1 {L}_typeB')
    if not CSS: S(f's_cmp_eq_u32 s{sDuty}, 1\ns_cbranch_scc1 {L}_A1')
    procs = Processor().run(S)
    import copy
    outs = []
    def tail(typeB):
        if fused and PROT == 2:
            lb = f'{L}_clrok' + ('B' if typeB else 'A')
            S('s_mov_b64 exec, 3')
            S(f'v_cmp_ne_u32 vcc, 0x01010101, v{vT[5]}')
            S('s_mov_b64 exec, -1')
            S(f's_cmp_eq_u64 vcc, 0\ns_cbranch_scc1 {lb}')
            R = Stream(); poll(R, sDbg, vT[4], vT[5], sMc, '0x01010101', 2)
            S.raw_text(Processor().run(R).text())
            S.label(lb)
        if steptrace:
            S('s_waitcnt lgkmcnt(0)\nv_writelane_b32 v254, s72, 30\nv_writelane_b32 v254, s74, 31\ns_memtime s[72:73]\ns_waitcnt lgkmcnt(0)\nv_writelane_b32 v254, s72, 32')
            S(f'v_lshlrev_b32 v253, 2, v{vLane}\ns_lshl_b32 s{sT}, s2, 3\ns_add_u32 s{sT}, s{sT}, s{sW}\ns_lshl_b32 s{sT}, s{sT}, 8\ns_add_u32 s{sT}, s{sT}, {STAMP_OFF}')
            S(f'buffer_store_dword v254, v253, s[{sWS}:{sWS+3}], s{sT} offen', tag='nocount')
        if dbg: dbg_stamp(S, 84, 2, 0, 0, 0)
        if tr: trace(S, 2)
        reduce_stats(typeB)
        if tr: trace(S, 3)
        if stamps: S(f's_memtime s[{sSt+12}:{sSt+13}]')
        epilogue(typeB)
        if stamps:
            S(f's_memtime s[{sSt+16}:{sSt+17}]')
            S('s_waitcnt vmcnt(0)')
            S(f's_memtime s[{sSt+6}:{sSt+7}]\ns_memrealtime s[{sSt+8}:{sSt+9}]\ns_waitcnt lgkmcnt(0)')
            S(f's_sub_u32 s{sSt+2}, s{sSt+2}, s{sSt}\ns_sub_u32 s{sSt+4}, s{sSt+4}, s{sSt}\ns_sub_u32 s{sSt+6}, s{sSt+6}, s{sSt}\ns_sub_u32 s{sSt+8}, s{sSt+8}, s{sSt+10}')
            P = A[0][0]
            S(f'v_mov_b32 v{P}, s{sSt+2}\nv_mov_b32 v{P+1}, s{sSt+4}\nv_mov_b32 v{P+2}, s{sSt+6}\nv_mov_b32 v{P+3}, s{sSt+8}')
            S(f's_lshl_b32 s{sT}, s2, 3\ns_add_u32 s{sT}, s{sT}, s{sW}\ns_lshl_b32 s{sT}, s{sT}, 4\ns_add_u32 s{sT}, s{sT}, {STAMP_OFF}')
            S(f'v_mov_b32 v{t0}, 0')
            S(f'buffer_store_dwordx4 {vr(P,4)}, v{t0}, s[{sWS}:{sWS+3}], s{sT} offen')
            for a in (12, 14, 16): S(f's_sub_u32 s{sSt+a}, s{sSt+a}, s{sSt}')
            P = A[0][1]
            S(f's_sub_u32 s{sSt+18}, s{sSt+18}, s{sSt+10}\ns_sub_u32 s{sSt+20}, s{sSt+20}, s{sSt+10}\ns_lshl_b32 s{sSt+20}, s{sSt+20}, 16\ns_or_b32 s{sSt+18}, s{sSt+18}, s{sSt+20}')
            S(f'v_mov_b32 v{P}, s{sSt+12}\nv_mov_b32 v{P+1}, s{sSt+14}\nv_mov_b32 v{P+2}, s{sSt+16}\nv_mov_b32 v{P+3}, s{sSt+18}')
            S(f's_add_u32 s{sT}, s{sT}, {1 << 20}')
            S(f'buffer_store_dwordx4 {vr(P,4)}, v{t0}, s[{sWS}:{sWS+3}], s{sT} offen')
        if dbg:
            if fused: dbg_stamp(S, 84, 3, 0, 0, 0); S('s_waitcnt lgkmcnt(0)')
            else: dbg_final(S, 84, acc[0][0], sT, 0, sWS)
        if tr: trace(S, 7)
        if fused: S(f's_mov_b32 s{sIsBk}, {1 if typeB else 0}\ns_branch {L}_p2')
        else: S('s_endpgm')
    for typeB in (False, True):
        tn = 'B' if typeB else 'A'
        S.ins = []
        if CSS:
            if typeB: S.label(f'{L}_typeB')
            mainloop(typeB, 0)
            S('s_nop 7')
            tail(typeB)
            p = copy.deepcopy(procs); n0 = len(p.out); p.run(S); outs.append('\n'.join(p.out[n0:])); last = p
            continue
        if typeB:
            S.label(f'{L}_typeB')
            S(f's_cmp_eq_u32 s{sDuty}, 1\ns_cbranch_scc1 {L}_B1')
        mainloop(typeB, 0)
        S(f's_branch {L}_{tn}tail')
        p0 = copy.deepcopy(procs); n0 = len(p0.out); p0.run(S); outs.append('\n'.join(p0.out[n0:]))
        S.ins = []
        S.label(f'{L}_{tn}1')
        mainloop(typeB, 1)
        S.label(f'{L}_{tn}tail')
        S('s_nop 7')
        tail(typeB)
        p = copy.deepcopy(procs); n0 = len(p.out); p.run(S); outs.append('\n'.join(p.out[n0:])); last = p
    if fused: return procs.text() + '\n' + '\n'.join(outs), last, v.hi
    text = procs.text() + '\n' + '\n'.join(outs) + f'\n{L}_end:\ns_endpgm\n'
    return kernel_text(name, text, v.hi), last, v.hi

if __name__ == '__main__':
    import sys
    t, p, hi = gen_gemm1()
    print(t)
    from collections import Counter
    print('vgprs', hi, 'nops', p.nops_inserted, Counter(w.split(' (')[0] for w, n, _ in p.nop_log), file=sys.stderr)
```

```python
from common import *
from diag import *

LDS2 = 163840
GRING = 131072

def gen_p2(S, L, fused=True, stamps=False, dbg=False, xp='', G_R=2, aprio=1, pollmod='sc1', pollsleep=2, setmod='atomic', defer=True, hpos='late', kvmode='G', ndefer=1, outmod='', UN=8, align=0, pad=0, act32=True, WPF=0, PROT=2, tr=False, HD=True, POLL1=1, fqsleep=2):
    sWS, sWD, sWO, sX, sOut, sDbg = 8, 12, 16, 20, 24, 28
    sW, sHead, sQb, sT, sT2, sT3, sCnt, sTb, sFb, sLds = 32, 33, 34, 35, 36, 37, 38, 39, 40, 41
    sWo, sAo, sWo2, sAo2, sMask, sKoff, sPoll, sG = 42, 43, 44, 45, 46, 48, 49, 50
    sSt = 64
    v = VAlloc(256, 'v', 1)
    vLane = v.alloc(); vOff = v.alloc(); t0, t1, t2, t3 = [v.alloc() for _ in range(4)]
    base_mark = v.mark()
    S(f's_load_dwordx4 s[52:55], s[0:1], {KA_X}')
    S(f's_load_dwordx2 s[56:57], s[0:1], {KA_WO}')
    S(f's_load_dwordx4 s[60:63], s[0:1], {KA_WD}')
    S(f's_load_dwordx4 s[4:7], s[0:1], {KA_DBG}')
    S(f'v_and_b32 v{vLane}, 63, v0')
    S(f'v_lshrrev_b32 v{t0}, 6, v0')
    S(f'v_lshlrev_b32 v{vOff}, 4, v{vLane}')
    S(f'v_readfirstlane_b32 s{sW}, v{t0}')
    S(f's_and_b32 s{sHead}, s2, 7\ns_lshl_b32 s{sHead}, s{sHead}, 2\ns_lshr_b32 s{sT}, s2, 6\ns_add_u32 s{sHead}, s{sHead}, s{sT}')
    S(f's_lshr_b32 s{sQb}, s2, 3\ns_and_b32 s{sQb}, s{sQb}, 7')
    S('s_waitcnt lgkmcnt(0)')
    srd_ws(S, sWS, 6); srd(S, sDbg, 4, 256)
    srd(S, sX, 52, 2048 * 512 * 2); srd(S, sWO, 56, 512 * 512 * 2)
    srd(S, sWD, 60, 1792 * 512 * 2); srd(S, sOut, 62, 2048 * 512 * 2)
    if stamps: S(f's_memtime s[{sSt}:{sSt+1}]\ns_memrealtime s[{sSt+10}:{sSt+11}]')
    if tr: trace(S, 8)
    if fused and 'F' not in xp:
        if PROT != 2:
            S(f'v_lshlrev_b32 v{t0}, 2, v{vLane}')
            poll(S, sDbg, t0, t1, sPoll, '0x01010101', 64)
        S(f's_lshr_b32 s{sT}, s{sHead}, 2\ns_lshl_b32 s{sT}, s{sT}, 11')
        S(f's_lshr_b32 s{sT2}, s{sHead}, 4\ns_add_u32 s{sT2}, s{sT2}, 14\ns_lshl_b32 s{sT2}, s{sT2}, 11')
        S(f'v_and_b32 v{t0}, 15, v{vLane}\nv_lshlrev_b32 v{t0}, 7, v{t0}')
        S(f's_add_u32 s{sT3}, s{sT}, {8 << 11}')
        S(f'v_mov_b32 v{t1}, s{sT3}\nv_mov_b32 v{t2}, s{sT2}')
        S(f'v_cmp_gt_u32 vcc, 16, v{vLane}')
        S(f'v_cndmask_b32 v{t1}, v{t2}, v{t1}, vcc')
        S(f's_lshl_b32 s{sT2}, s{sQb}, 8\ns_add_u32 s{sT}, s{sT}, s{sT2}')
        S(f'v_mov_b32 v{t2}, s{sT}')
        S(f'v_cmp_gt_u32 vcc, 32, v{vLane}')
        S(f'v_cndmask_b32 v{t1}, v{t2}, v{t1}, vcc')
        S(f'v_add_u32 v{t0}, v{t0}, v{t1}')
        S(f's_mov_b32 s{sT3}, {FQ_OFF}')
        if POLL1:
            S(f's_cmp_lg_u32 s{sW}, 0\ns_cbranch_scc1 {L}_nopoll')
            R = Stream(); poll(R, sWS, t0, t1, sPoll, 1, 34, soff=sT3, sleep=fqsleep)
            S.raw_text(Processor().run(R).text())
            S.label(f'{L}_nopoll')
            S('s_barrier')
        else:
            poll(S, sWS, t0, t1, sPoll, 1, 34, soff=sT3, sleep=fqsleep)
    if dbg: dbg_stamp(S, 64, 0, 0, 0, 0)
    if tr: trace(S, 9)
    S(f's_lshl_b32 s{sKoff}, s{sHead}, 16\ns_lshl_b32 s{sT3}, s{sW}, 10\ns_add_u32 s{sKoff}, s{sKoff}, s{sT3}')
    SC = ' sc1' if fused else ''
    def dma(i, tag):
        S(f's_add_u32 m0, s{sT3}, {i*8192}')
        S(f's_add_u32 s{sT2}, s{sKoff}, {K_OFF + i*8192}')
        S(f'buffer_load_dwordx4 v{vOff}, s[{sWS}:{sWS+3}], s{sT2} offen{SC} lds', tag=tag)
        S(f's_add_u32 m0, s{sT3}, {65536 + i*8192}')
        S(f's_add_u32 s{sT2}, s{sKoff}, {V_OFF + i*8192}')
        S(f'buffer_load_dwordx4 v{vOff}, s[{sWS}:{sWS+3}], s{sT2} offen{SC} lds', tag=tag)
    dma(0, 'kv0')
    S(f's_cmp_ge_u32 s{sW}, 4\ns_cbranch_scc1 {L}_G')
    import copy
    pre = Processor().run(S)
    SA = Stream(); S_ = SA
    v.release(base_mark)
    vKa = v.alloc(); vVa = v.alloc(); vM = v.alloc(); vOv = v.alloc()
    sOad = 77
    Q = [v.alloc(4, 4) for _ in range(2)]; Kf = [v.alloc(4, 4) for _ in range(2)]
    Vf = [[v.alloc(4, 4) for _ in range(2)] for _ in range(2)]
    P = [v.alloc(8, 4) for _ in range(2)]; Sx = [v.alloc(16, 4) for _ in range(2)]
    O = [v.alloc(16, 4) for _ in range(2)]; Cm = [v.alloc(16, 4) for _ in range(2)]
    hiA = v.hi
    def dmaS(St, i, tag):
        St(f's_add_u32 m0, s{sT3}, {i*8192}')
        St(f's_add_u32 s{sT2}, s{sKoff}, {K_OFF + i*8192}')
        St(f'buffer_load_dwordx4 v{vOff}, s[{sWS}:{sWS+3}], s{sT2} offen{SC} lds', tag=tag)
        St(f's_add_u32 m0, s{sT3}, {65536 + i*8192}')
        St(f's_add_u32 s{sT2}, s{sKoff}, {V_OFF + i*8192}')
        St(f'buffer_load_dwordx4 v{vOff}, s[{sWS}:{sWS+3}], s{sT2} offen{SC} lds', tag=tag)
    A_ = SA
    HC = 240; sFH, sHaddr, sIsBk = 95, 100, 101
    assert not (act32 and fused and defer and ndefer != 1)
    def hstores(St, lb):
        if not (fused and defer) or HD: return
        St(f's_cmp_eq_u32 s{sIsBk}, 1\ns_cbranch_scc1 {lb}')
        for tt in range(4 - ndefer, 4):
            St(f'buffer_store_dwordx4 {vr(HC+4*tt,4)}, v{vOff}, s[{sWS}:{sWS+3}], s{sHaddr} offen sc1', tag='nocount')
            if tt < 3: St(f's_add_u32 s{sHaddr}, s{sHaddr}, {72*1024}')
        St.label(lb)
    A_(f's_lshl_b32 s{sT}, s{sHead}, 16\ns_lshl_b32 s{sT2}, s{sQb}, 13\ns_add_u32 s{sT}, s{sT}, s{sT2}\ns_lshl_b32 s{sT2}, s{sW}, 11\ns_add_u32 s{sT}, s{sT}, s{sT2}')
    if Q_OFF: A_(f's_add_u32 s{sT}, s{sT}, {Q_OFF}')
    for a in range(2):
        A_(f'buffer_load_dwordx4 {vr(Q[a],4)}, v{vOff}, s[{sWS}:{sWS+3}], s{sT} offen offset:{a*1024}{SC}', tag='q')
    if kvmode != 'G':
        for i in range(1, 8): dmaS(A_, i, 'kvrest')
    if hpos == 'after': hstores(A_, f'{L}_hsA')
    A_(f'v_mov_b32 v{vKa}, v{vOff}')
    A_(f'v_lshrrev_b32 v{t0}, 5, v{vLane}\nv_lshlrev_b32 v{t0}, 8, v{t0}\nv_and_b32 v{t1}, 15, v{vLane}\nv_lshlrev_b32 v{t1}, 4, v{t1}')
    A_(f'v_add_u32 v{vVa}, v{t0}, v{t1}\nv_add_u32 v{vVa}, 0x10000, v{vVa}')
    A_(f's_mov_b32 s{sMask}, 0x0000ffff\ns_mov_b32 s{sMask+1}, 0x0000ffff')
    A_(f'v_and_b32 v{t0}, 27, v{vLane}\nv_cmp_eq_u32 vcc, 16, v{t0}\nv_mov_b32 v{t1}, 0x3f803f80\nv_cndmask_b32 v{t1}, 0, v{t1}, vcc')
    for a in Vf:
        for b in a:
            for i in range(4): A_(f'v_mov_b32 v{b+i}, v{t1}')
    A_(f's_lshl_b32 s{sT}, s{sQb}, 2\ns_add_u32 s{sTb}, s{sT}, s{sW}')
    if act32:
        A_(f's_mul_i32 s{sT}, s{sTb}, {2*144*1024}\ns_lshl_b32 s{sT2}, s{sHead}, 10\ns_add_u32 s{sT}, s{sT}, s{sT2}\ns_add_u32 s{sT}, s{sT}, {ACT_OFF + 112*1024}')
        OSTEP = 144*1024
        A_(f's_mov_b32 s{sOad}, s{sT}')
    else:
        A_(f's_mul_i32 s{sT}, s{sTb}, {4*72*1024}')
        A_(f's_lshr_b32 s{sT2}, s{sHead}, 1\ns_lshl_b32 s{sT2}, s{sT2}, 10\ns_add_u32 s{sT}, s{sT}, s{sT2}')
        A_(f's_and_b32 s{sT2}, s{sHead}, 1\ns_lshl_b32 s{sT2}, s{sT2}, 9\ns_add_u32 s{sT}, s{sT}, s{sT2}\ns_add_u32 s{sT}, s{sT}, {ACT_OFF + 56*1024}')
        A_(f'v_bfe_u32 v{t0}, v{vLane}, 4, 1\nv_mul_u32_u24 v{t0}, {72*1024}, v{t0}\nv_lshrrev_b32 v{t1}, 5, v{vLane}\nv_lshl_add_u32 v{t0}, v{t1}, 8, v{t0}')
        A_(f'v_and_b32 v{t1}, 15, v{vLane}\nv_lshl_add_u32 v{t0}, v{t1}, 4, v{t0}')
        OSTEP = 2*72*1024
        A_(f's_mov_b32 s{sOad}, s{sT}\nv_mov_b32 v{vOv}, v{t0}')
    if aprio: A_(f's_setprio {aprio}')
    if tr: trace(A_, 10)
    A_.wait_vm('kv0'); A_('s_barrier')
    if tr: trace(A_, 11)
    if hpos == 'late': hstores(A_, f'{L}_hsA')
    if stamps: A_(f's_memtime s[{sSt+2}:{sSt+3}]')
    if dbg: dbg_stamp(A_, 64, 1, 0, 0, 0)
    M32 = 'v_mfma_f32_32x32x16_bf16'
    A_(f'ds_read_b128 {vr(Kf[0],4)}, v{vKa}\nds_read_b128 {vr(Kf[1],4)}, v{vKa} offset:1024')
    DELTA = 64.0
    for a in range(2):
        A_(f'{M32} {vr(Sx[0],16)}, {vr(Kf[0],4)}, {vr(Q[a],4)}, 0')
        A_(f'{M32} {vr(Sx[1],16)}, {vr(Kf[1],4)}, {vr(Q[a],4)}, 0')
        A_(f'v_max3_f32 v{vM}, v{Sx[0]}, v{Sx[0]+1}, v{Sx[0]+2}')
        for i in range(3, 15, 2): A_(f'v_max3_f32 v{vM}, v{vM}, v{Sx[0]+i}, v{Sx[0]+i+1}')
        A_(f'v_max3_f32 v{vM}, v{vM}, v{Sx[0]+15}, v{Sx[1]}')
        for i in range(1, 15, 2): A_(f'v_max3_f32 v{vM}, v{vM}, v{Sx[1]+i}, v{Sx[1]+i+1}')
        A_(f'v_max_f32 v{vM}, v{vM}, v{Sx[1]+15}')
        A_(f'v_mov_b32 v{t0}, v{vM}\nv_permlane32_swap_b32 v{vM}, v{t0}\nv_max_f32 v{vM}, v{vM}, v{t0}')
        A_(f'v_add_f32 v{vM}, {fhex(DELTA)}, v{vM}')
        for i in range(16): A_(f'v_sub_f32 v{Cm[a]+i}, 0, v{vM}')
    def rdK(off, buf):
        if off < 64: A_(f'ds_read_b128 {vr(Kf[buf],4)}, v{vKa} offset:{off*1024}')
    def rdV(off, buf):
        if off >= 64: return
        A_(f's_mov_b64 exec, s[{sMask}:{sMask+1}]')
        A_(f'ds_read_b128 {vr(Vf[buf][0],4)}, v{vVa} offset:{off*1024}')
        A_(f'ds_read_b128 {vr(Vf[buf][1],4)}, v{vVa} offset:{off*1024+512}')
        A_(f's_mov_b64 exec, -1')
    def qk(a, kb): A_(f'{M32} {vr(Sx[a],16)}, {vr(Kf[kb],4)}, {vr(Q[a],4)}, {vr(Cm[a],16)}')
    def pv(a, u, vb, zero=False): A_(f'{M32} {vr(O[a],16)}, {vr(Vf[vb][u],4)}, {vr(P[a]+4*u,4)}, ' + ('0' if zero else vr(O[a],16)))
    rdV(0, 0)
    if tr: trace(A_, 12)
    qk(0, 0)
    def tile(t, off, first=False, last=False):
        b = t & 1; nb = b ^ 1
        e = lambda a, i: A_(f'v_exp_f32 v{Sx[a]+i}, v{Sx[a]+i}')
        c = lambda a, i: A_(f'v_cvt_pk_bf16_f32 v{P[a]+i}, v{Sx[a]+2*i}, v{Sx[a]+2*i+1}')
        def phase(a, m_pre, m_mid):
            e(a,0); e(a,1); e(a,2); c(a,0); e(a,3); e(a,4); c(a,1); e(a,5)
            m_pre()
            e(a,6); c(a,2); e(a,7); e(a,8); c(a,3); e(a,9); e(a,10)
            m_mid()
            c(a,4); e(a,11); e(a,12); c(a,5); e(a,13); e(a,14); e(a,15); c(a,6); c(a,7)
        qk(1, b)
        rdK(off + 1, nb)
        def pre_a():
            if not first: pv(1, 1, nb)
            rdV(off + 1, nb)
        phase(0, pre_a, lambda: pv(0, 0, b, zero=first))
        A_('s_waitcnt lgkmcnt(0)')
        qk(0, nb)
        if last:
            A_(f'v_add_u32 v{vKa}, {UN*1024}, v{vKa}\nv_add_u32 v{vVa}, {UN*1024}, v{vVa}\ns_sub_u32 s{sCnt}, s{sCnt}, 1')
        phase(1, lambda: pv(0, 1, b), lambda: pv(1, 0, b, zero=first))
    def block(first):
        for t in range(UN):
            if first and t == 7:
                A_.wait_vm('kvrest'); A_('s_waitcnt vmcnt(0)')
                if dbg and 'B' in xp: dbg_stamp(A_, 64, 0, 0, 0, 0)
                if tr: trace(A_, 13)
                A_('s_barrier')
                if tr: trace(A_, 14)
                if dbg and 'B' not in xp: dbg_stamp(A_, 64, 0, 0, 0, 0)
            tile(t, t, first=(first and t == 0), last=(t == UN - 1))
    A_(f's_mov_b32 s{sCnt}, {64 // UN}')
    block(True)
    if 64 // UN > 1:
        if align: A_(f'.p2align {align}')
        for _ in range(pad): A_('s_nop 0')
        A_.label(f'{L}_aloop')
        block(False)
        A_(f's_cmp_lg_u32 s{sCnt}, 0\ns_cbranch_scc1 {L}_aloop')
    pv(1, 1, 1)
    A_('s_waitcnt lgkmcnt(0)')
    if stamps: A_(f's_memtime s[{sSt+4}:{sSt+5}]')
    if dbg: dbg_stamp(A_, 64, 2, 0, 0, 0)
    if tr: trace(A_, 15)
    if 'b' not in xp: A_('s_barrier')
    if tr: trace(A_, 16)
    A_('s_nop 7\ns_nop 3')
    A_(f'v_mov_b32 v{t1}, 0x7f800000\nv_mov_b32 v{t2}, {fhex(2.0**110)}')
    A_(f's_mov_b64 s[4:5], -1')
    for a in range(2):
        A_(f'v_add_f32 v{t0}, |v{O[a]}|, |v{O[a]+1}|')
        for i in range(2, 8): A_(f'v_add_f32 v{t0}, v{t0}, |v{O[a]+i}|')
        A_(f'v_cmp_lt_f32 vcc, v{t0}, v{t1}')
        A_(f's_and_b64 s[4:5], s[4:5], vcc')
        A_(f'v_cmp_lt_f32 vcc, v{O[a]+8}, v{t2}')
        A_(f's_and_b64 s[4:5], s[4:5], vcc')
    A_(f's_cmp_eq_u64 s[4:5], -1\ns_cbranch_scc1 {L}_afin')
    for a in range(2):
        A_(f'v_mov_b32 v{vKa}, v{vOff}')
        A_(f'v_lshrrev_b32 v{t0}, 5, v{vLane}\nv_lshlrev_b32 v{t0}, 8, v{t0}\nv_and_b32 v{t1}, 15, v{vLane}\nv_lshlrev_b32 v{t1}, 4, v{t1}')
        A_(f'v_add_u32 v{vVa}, v{t0}, v{t1}\nv_add_u32 v{vVa}, 0x10000, v{vVa}')
        A_(f'v_mov_b32 v{vM}, 0xff800000')
        for i in range(16): A_(f'v_mov_b32 v{O[a]+i}, 0')
        A_(f's_mov_b32 s{sCnt}, 64')
        A_.label(f'{L}_slow{a}')
        rdK(0, 0); rdV(0, 0)
        A_('s_waitcnt lgkmcnt(0)')
        X = Sx[0]
        A_(f'{M32} {vr(X,16)}, {vr(Kf[0],4)}, {vr(Q[a],4)}, 0')
        A_(f'v_max3_f32 v{t0}, v{X}, v{X+1}, v{X+2}')
        for i in range(3, 15, 2): A_(f'v_max3_f32 v{t0}, v{t0}, v{X+i}, v{X+i+1}')
        A_(f'v_max3_f32 v{t0}, v{t0}, v{X+15}, v{vM}')
        A_(f'v_mov_b32 v{t1}, v{t0}\nv_permlane32_swap_b32 v{t0}, v{t1}\nv_max_f32 v{t0}, v{t0}, v{t1}')
        A_(f'v_sub_f32 v{t1}, v{vM}, v{t0}\nv_exp_f32 v{t1}, v{t1}\nv_mov_b32 v{vM}, v{t0}')
        for i in range(16): A_(f'v_mul_f32 v{O[a]+i}, v{O[a]+i}, v{t1}')
        for i in range(16): A_(f'v_sub_f32 v{X+i}, v{X+i}, v{vM}')
        for i in range(16): A_(f'v_exp_f32 v{X+i}, v{X+i}')
        for i in range(8): A_(f'v_cvt_pk_bf16_f32 v{P[a]+i}, v{X+2*i}, v{X+2*i+1}')
        pv(a, 0, 0); pv(a, 1, 0)
        A_(f'v_add_u32 v{vKa}, 1024, v{vKa}\nv_add_u32 v{vVa}, 1024, v{vVa}')
        A_(f's_sub_u32 s{sCnt}, s{sCnt}, 1\ns_cmp_lg_u32 s{sCnt}, 0\ns_nop 7\ns_nop 7')
        A_(f's_cbranch_scc1 {L}_slow{a}')
    A_.label(f'{L}_afin')
    A_('s_nop 7\ns_nop 3')
    A_(f's_mov_b32 s{sT}, s{sOad}')
    if act32: A_(f'v_mov_b32 v{t0}, v{vOff}')
    else: A_(f'v_mov_b32 v{t0}, v{vOv}')
    for a in range(2):
        A_(f'v_rcp_f32 v{t2}, v{O[a]+8}')
        A_('s_nop 0')
        for i in range(8): A_(f'v_mul_f32 v{O[a]+i}, v{O[a]+i}, v{t2}')
        for i in range(4): A_(f'v_cvt_pk_bf16_f32 v{P[a]+i}, v{O[a]+2*i}, v{O[a]+2*i+1}')
        A_(f'buffer_store_dwordx4 {vr(P[a],4)}, v{t0}, s[{sWS}:{sWS+3}], s{sT} offen sc1')
        if a == 0: A_(f's_add_u32 s{sT}, s{sT}, {OSTEP}')
    if True:
        A_(f's_lshl_b32 s{sT}, s{sTb}, 12\ns_lshl_b32 s{sT2}, s{sHead}, 7\ns_add_u32 s{sT}, s{sT}, s{sT2}\ns_add_u32 s{sT}, s{sT}, {FO_OFF}')
        A_(f'v_mov_b32 v{t0}, 0\nv_mov_b32 v{t1}, 1')
        if tr: trace(A_, 17)
        A_('s_waitcnt vmcnt(0)')
        if tr: trace(A_, 18)
        A_('s_mov_b64 exec, 1')
        if setmod == 'store': A_(f'buffer_store_dword v{t1}, v{t0}, s[{sWS}:{sWS+3}], s{sT} offen sc1')
        elif setmod == 'store2': A_(f'buffer_store_dword v{t1}, v{t0}, s[{sWS}:{sWS+3}], s{sT} offen sc0 sc1')
        else: A_(f'buffer_atomic_add v{t1}, v{t0}, s[{sWS}:{sWS+3}], s{sT} offen sc1')
        A_('s_mov_b64 exec, -1')
    if stamps:
        A_('s_waitcnt vmcnt(0)')
        A_(f's_memtime s[{sSt+6}:{sSt+7}]\ns_memrealtime s[{sSt+8}:{sSt+9}]\ns_waitcnt lgkmcnt(0)')
        A_(f's_sub_u32 s{sSt+2}, s{sSt+2}, s{sSt}\ns_sub_u32 s{sSt+4}, s{sSt+4}, s{sSt}\ns_sub_u32 s{sSt+6}, s{sSt+6}, s{sSt}\ns_sub_u32 s{sSt+8}, s{sSt+8}, s{sSt+10}')
        X = Sx[0]
        A_(f'v_mov_b32 v{X}, s{sSt+2}\nv_mov_b32 v{X+1}, s{sSt+4}\nv_mov_b32 v{X+2}, s{sSt+6}\nv_mov_b32 v{X+3}, s{sSt+8}')
        A_(f's_lshl_b32 s{sT}, s2, 3\ns_add_u32 s{sT}, s{sT}, s{sW}\ns_lshl_b32 s{sT}, s{sT}, 4\ns_add_u32 s{sT}, s{sT}, {STAMP_OFF}')
        A_(f'v_mov_b32 v{t0}, 0\nbuffer_store_dwordx4 {vr(X,4)}, v{t0}, s[{sWS}:{sWS+3}], s{sT} offen')
        X = Sx[1]
        A_(f's_add_u32 s{sSt+8}, s{sSt+8}, s{sSt+10}')
        A_(f'v_mov_b32 v{X}, s{sSt+10}\nv_mov_b32 v{X+1}, s{sSt+8}\nv_mov_b32 v{X+2}, 0\nv_mov_b32 v{X+3}, 0')
        A_(f's_add_u32 s{sT}, s{sT}, {2 << 20}\nbuffer_store_dwordx4 {vr(X,4)}, v{t0}, s[{sWS}:{sWS+3}], s{sT} offen')
    if tr: trace(A_, 19); trace_flush(A_, sWS, sT, t0)
    if dbg: dbg_final(A_, 64, Sx[0], sT, 1, sWS); (fused and dbg_store(A_, 84, Sx[0], sT, 0, sWS))
    A_('s_endpgm')
    pA = copy.deepcopy(pre); n0 = len(pA.out); pA.run(SA); textA = '\n'.join(pA.out[n0:])

    SG = Stream(); G_ = SG
    v.release(base_mark)
    vN = v.alloc(); vG = v.alloc(); vDw = v.alloc(); vXo = v.alloc()
    vAh = [v.alloc() for _ in range(4)]; vAo = [v.alloc() for _ in range(4)]
    vXr = [v.alloc(2, 2) for _ in range(4)]
    Af = [[v.alloc(4, 4) for _ in range(4)] for _ in range(4)]
    Bf = [[v.alloc(4, 4) for _ in range(4)] for _ in range(4)]
    acc = [[v.alloc(4, 4) for _ in range(4)] for _ in range(4)]
    hiG = v.hi
    G_.label(f'{L}_G')
    def kvrest_G():
        G_(f's_sub_u32 s{sT}, s{sW}, 4\ns_lshl_b32 s{sT3}, s{sT}, 11\ns_lshl_b32 s{sKoff}, s{sHead}, 16\ns_add_u32 s{sKoff}, s{sKoff}, s{sT3}')
        for i in range(1, 8):
            for j in range(2):
                for base, lb_ in ((K_OFF, 0), (V_OFF, 65536)):
                    G_(f's_add_u32 m0, s{sT3}, {lb_ + i*8192 + j*1024}')
                    G_(f's_add_u32 s{sT2}, s{sKoff}, {base + i*8192 + j*1024}')
                    G_(f'buffer_load_dwordx4 v{vOff}, s[{sWS}:{sWS+3}], s{sT2} offen{SC} lds', tag='kvrest')
    if kvmode != 'G':
        for i in range(1, 8): dmaS(G_, i, 'kvrest')
    if hpos == 'after': hstores(G_, f'{L}_hsG')
    G_(f's_sub_u32 s{sG}, s{sW}, 4')
    G_(f'v_and_b32 v{vN}, 15, v0\nv_bfe_u32 v{vG}, v0, 4, 2')
    G_(f's_and_b32 s{sT}, s2, 7\ns_lshl_b32 s{sT}, s{sT}, 2\ns_lshr_b32 s{sT2}, s2, 3\ns_and_b32 s{sT2}, s{sT2}, 3\ns_add_u32 s{sTb}, s{sT}, s{sT2}')
    G_(f's_lshr_b32 s{sFb}, s2, 5')
    G_(f'v_lshrrev_b32 v{t0}, 3, v{vLane}\nv_lshlrev_b32 v{t0}, 10, v{t0}\nv_and_b32 v{t1}, 7, v{vLane}')
    if act32: G_(f'v_and_b32 v{t2}, 1, v{vG}\nv_lshlrev_b32 v{t2}, 2, v{t2}')
    else: G_(f'v_lshlrev_b32 v{t2}, 1, v{vG}')
    G_(f'v_xor_b32 v{t1}, v{t1}, v{t2}\nv_lshl_add_u32 v{vDw}, v{t1}, 4, v{t0}')
    G_(f's_lshl_b32 s{sLds}, s{sG}, 13\ns_add_u32 s{sLds}, s{sLds}, {GRING}')
    NH, NO = 14, 4
    G_(f's_mul_i32 s{sWo}, s{sG}, {32*NH*1024}\ns_lshl_b32 s{sT}, s{sFb}, 7\ns_add_u32 s{sWo}, s{sWo}, s{sT}')
    if act32:
        G_(f's_mul_i32 s{sAo}, s{sTb}, {2*144*1024}\ns_mul_i32 s{sT}, s{sG}, {2*NH*1024}\ns_add_u32 s{sAo}, s{sAo}, s{sT}\ns_add_u32 s{sAo}, s{sAo}, {ACT_OFF}')
    else:
        G_(f's_mul_i32 s{sAo}, s{sTb}, {4*72*1024}\ns_mul_i32 s{sT}, s{sG}, {NH*1024}\ns_add_u32 s{sAo}, s{sAo}, s{sT}\ns_add_u32 s{sAo}, s{sAo}, {ACT_OFF}')
    G_(f's_mul_i32 s{sWo2}, s{sG}, {32*NO*1024}\ns_lshl_b32 s{sT}, s{sFb}, 7\ns_add_u32 s{sWo2}, s{sWo2}, s{sT}')
    if act32:
        G_(f's_mul_i32 s{sAo2}, s{sTb}, {2*144*1024}\ns_mul_i32 s{sT}, s{sG}, {2*NO*1024}\ns_add_u32 s{sAo2}, s{sAo2}, s{sT}\ns_add_u32 s{sAo2}, s{sAo2}, {ACT_OFF + 112*1024}')
    else:
        G_(f's_mul_i32 s{sAo2}, s{sTb}, {4*72*1024}\ns_mul_i32 s{sT}, s{sG}, {NO*1024}\ns_add_u32 s{sAo2}, s{sAo2}, s{sT}\ns_add_u32 s{sAo2}, s{sAo2}, {ACT_OFF + 56*1024}')
    vR, vCq = t2, t3
    G_(f'v_lshrrev_b32 v{vR}, 2, v{vN}\nv_and_b32 v{vCq}, 3, v{vN}')
    if act32:
        G_(f'v_and_b32 v{t0}, 1, v{vG}\nv_lshlrev_b32 v{t0}, 1, v{t0}\nv_lshrrev_b32 v{t1}, 1, v{vCq}\nv_add_u32 v{t0}, v{t0}, v{t1}')
        G_(f'v_lshrrev_b32 v{t1}, 1, v{vR}\nv_lshlrev_b32 v{t1}, 2, v{t1}\nv_xor_b32 v{t0}, v{t0}, v{t1}\nv_lshlrev_b32 v{t0}, 4, v{t0}')
        G_(f'v_and_b32 v{t1}, 1, v{vCq}\nv_lshl_add_u32 v{t0}, v{t1}, 3, v{t0}')
        G_(f'v_lshrrev_b32 v{vCq}, 1, v{vG}')
        G_(f'v_lshl_add_u32 v{t1}, v{vCq}, 3, v{vR}\nv_lshl_add_u32 v{vAh[0]}, v{t1}, 7, v{t0}')
        G_(f'v_lshl_add_u32 v{t1}, v{vCq}, 2, v{vR}\nv_lshl_add_u32 v{vAo[0]}, v{t1}, 7, v{t0}')
        G_(f's_and_b32 s{sT}, s{sG}, 1\ns_lshl_b32 s{sT}, s{sT}, 6')
        G_(f'v_xor_b32 v{vAh[0]}, s{sT}, v{vAh[0]}\nv_xor_b32 v{vAo[0]}, s{sT}, v{vAo[0]}')
        G_(f'v_xor_b32 v{vAh[1]}, 64, v{vAh[0]}\nv_xor_b32 v{vAo[1]}, 64, v{vAo[0]}')
        for k in range(2):
            G_(f'v_add_u32 v{vAh[k]}, s{sLds}, v{vAh[k]}\nv_add_u32 v{vAo[k]}, s{sLds}, v{vAo[k]}')
    else:
        G_(f'v_and_b32 v{t0}, 1, v{vG}\nv_lshlrev_b32 v{t0}, 1, v{t0}\nv_lshrrev_b32 v{t1}, 1, v{vR}\nv_add_u32 v{t0}, v{t0}, v{t1}')
        G_(f'v_lshlrev_b32 v{t0}, 1, v{t0}\nv_lshrrev_b32 v{t1}, 1, v{vCq}\nv_xor_b32 v{t0}, v{t0}, v{t1}\nv_lshlrev_b32 v{t0}, 4, v{t0}')
        G_(f'v_and_b32 v{t1}, 1, v{vCq}\nv_lshl_add_u32 v{t0}, v{t1}, 3, v{t0}')
        G_(f'v_lshl_add_u32 v{t1}, v{vG}, 2, v{vR}\nv_lshl_add_u32 v{vAh[0]}, v{t1}, 7, v{t0}')
        G_(f'v_lshrrev_b32 v{t1}, 1, v{vG}\nv_lshlrev_b32 v{t1}, 4, v{t1}\nv_add_u32 v{t1}, v{t1}, v{vR}')
        G_(f'v_and_b32 v{vCq}, 1, v{vG}\nv_lshl_add_u32 v{t1}, v{vCq}, 2, v{t1}\nv_lshl_add_u32 v{vAo[0]}, v{t1}, 7, v{t0}')
        for tau in range(1, 4):
            G_(f'v_xor_b32 v{vAh[tau]}, {32*tau}, v{vAh[0]}\nv_xor_b32 v{vAo[tau]}, {32*tau}, v{vAo[0]}')
        for tau in range(4):
            G_(f'v_add_u32 v{vAh[tau]}, s{sLds}, v{vAh[tau]}\nv_add_u32 v{vAo[tau]}, s{sLds}, v{vAo[tau]}')
    def wdma(s):
        if s >= NH + NO: return
        h = s < NH; slot = (s % 2) * 4096
        srdw = sWD if h else sWO; wo, i0 = (sWo, s) if h else (sWo2, s - NH)
        for i in range(4):
            G_(f's_add_u32 m0, s{sLds}, {slot + i*1024}')
            G_(f's_add_u32 s{sT}, s{wo}, {(32*i0 + 8*i)*1024}')
            G_(f'buffer_load_dwordx4 v{vDw}, s[{srdw}:{srdw+3}], s{sT} offen lds', tag=('w', s))
    sRot = [51, 58, 59, 79]
    if act32:
        for tt in range(2):
            G_(f's_lshr_b32 s{sT}, s{sG}, 1\ns_xor_b32 s{sT}, s{sT}, {tt}\ns_mul_i32 s{sRot[tt]}, s{sT}, {144*1024}')
    else:
        for tt in range(4):
            G_(f's_add_u32 s{sT}, s{sG}, {tt}\ns_and_b32 s{sT}, s{sT}, 3\ns_mul_i32 s{sRot[tt]}, s{sT}, {72*1024}')
    def bload(s, dst):
        h = s < NH; ao, i0 = (sAo, s) if h else (sAo2, s - NH)
        mod = SC if h else ' sc1'
        if act32:
            for tt in range(2):
                G_(f's_add_u32 s{sT}, s{ao}, s{sRot[tt]}')
                if i0 >= 2: G_(f's_add_u32 s{sT}, s{sT}, {2*i0*1024}')
                for ks in range(2):
                    off = ks*1024 + (2*i0*1024 if i0 < 2 else 0)
                    G_(f'buffer_load_dwordx4 {vr(dst[2*ks + tt],4)}, v{vOff}, s[{sWS}:{sWS+3}], s{sT} offen offset:{off}{mod}', tag=('b', s))
            return
        for tt in range(4):
            G_(f's_add_u32 s{sT}, s{ao}, s{sRot[tt]}')
            if i0 >= 4: G_(f's_add_u32 s{sT}, s{sT}, {i0*1024}')
            G_(f'buffer_load_dwordx4 {vr(dst[tt],4)}, v{vOff}, s[{sWS}:{sWS+3}], s{sT} offen offset:{i0*1024 if i0 < 4 else 0}{mod}', tag=('b', s))
    def areads(s, dst):
        h = s < NH; slot = (s % 2) * 4096
        if act32:
            for ks in range(2):
                for ph in range(2):
                    for rd in range(2):
                        a = vAh[ph] if h else vAo[ph]
                        G_(f'ds_read_b64_tr_b16 {vr(dst[2*ks + ph]+2*rd,2)}, v{a} offset:{slot + ks*2048 + rd*(512 if h else 1024)}')
            return
        for tau in range(4):
            for rd in range(2):
                a = vAh[tau] if h else vAo[tau]
                G_(f'ds_read_b64_tr_b16 {vr(dst[tau]+2*rd,2)}, v{a} offset:{slot + rd*(2048 if h else 1024)}')
    if kvmode != 'G': wdma(0); wdma(1)
    if tr: trace(G_, 10)
    G_.wait_vm('kv0'); G_('s_barrier')
    if tr: trace(G_, 11)
    if hpos == 'late': hstores(G_, f'{L}_hsG')
    if fused and HD:
        G_(f's_cmp_eq_u32 s{sIsBk}, 1\ns_cbranch_scc1 {L}_nohp')
        G_(f'v_add_u32 v{t0}, s{sLds}, v{vOff}')
        for n in range(4): G_.raw_text(f'ds_read_b128 {vr(Bf[3][n],4)}, v{t0} offset:{n*1024}')
        G_.raw_text('s_waitcnt lgkmcnt(0)')
        G_.label(f'{L}_nohp')
    if kvmode == 'G':
        kvrest_G(); wdma(0); wdma(1)
    if tr: trace(G_, 12)
    G_.wait_vm('kvrest'); G_('s_barrier')
    if tr: trace(G_, 13)
    if fused and HD:
        G_(f's_cmp_eq_u32 s{sIsBk}, 1\ns_cbranch_scc1 {L}_nofh')
        for who, regs, adj in (('own', [HC + 4*n for n in range(4)], 0), ('partner', [Bf[3][n] for n in range(4)], -4096)):
            for n in range(4):
                off = (n >> 1) * 144*1024 + adj
                G_.raw_text(f's_add_u32 s{sT}, s{sHaddr}, {off & 0xffffffff}\nbuffer_store_dwordx4 {vr(regs[n],4)}, v{vOff}, s[{sWS}:{sWS+3}], s{sT} offen offset:{(n & 1)*1024} sc1')
        G_.raw_text(f's_lshl_b32 s{sT}, s{sG}, 7\ns_add_u32 s{sT}, s{sT}, s{sFH}\nv_mov_b32 v{t0}, 0\nv_mov_b32 v{t1}, 1\ns_waitcnt vmcnt(0)\ns_mov_b64 exec, 1')
        G_.raw_text(f'buffer_atomic_add v{t1}, v{t0}, s[{sWS}:{sWS+3}], s{sT} offen sc1\ns_mov_b64 exec, -1')
        G_.label(f'{L}_nofh')
    elif fused and defer:
        G_(f's_cmp_lg_u32 s{sW}, 4\ns_cbranch_scc1 {L}_nofh\ns_cmp_eq_u32 s{sIsBk}, 1\ns_cbranch_scc1 {L}_nofh')
        G_(f'v_mov_b32 v{t0}, 0\nv_mov_b32 v{t1}, 1\ns_mov_b64 exec, 1')
        G_(f'buffer_atomic_add v{t1}, v{t0}, s[{sWS}:{sWS+3}], s{sFH} offen sc1', tag='nocount')
        G_('s_mov_b64 exec, -1')
        G_.label(f'{L}_nofh')
    if WPF:
        G_(f'v_lshlrev_b32 v{t2}, 10, v{vLane}')
        for i in range(7):
            G_(f's_add_u32 s{sT}, s{sWo}, {i*64*1024}')
            G_(f'buffer_load_dword v{Bf[3][0] + i}, v{t2}, s[{sWD}:{sWD+3}], s{sT} offen', tag='wpf')
        for i in range(2):
            G_(f's_add_u32 s{sT}, s{sWo2}, {i*64*1024}')
            G_(f'buffer_load_dword v{Bf[3][0] + 8 + i}, v{t2}, s[{sWO}:{sWO+3}], s{sT} offen', tag='wpf')
    if 'g' in xp: G_('s_waitcnt vmcnt(0)\ns_endpgm')
    if fused and 'F' not in xp:
        if HD:
            G_(f'v_lshlrev_b32 v{t0}, 7, v{vLane}')
            G_(f's_lshr_b32 s{sT}, s{sTb}, 1\ns_lshl_b32 s{sT}, s{sT}, 13\ns_add_u32 s{sT}, s{sT}, {FH_OFF}')
            poll(G_, sWS, t0, t1, sPoll, 1, 56, soff=sT)
        else:
            G_(f'v_lshlrev_b32 v{t0}, 9, v{vLane}')
            G_(f's_lshr_b32 s{sT}, s{sTb}, 1\ns_lshl_b32 s{sT}, s{sT}, 13\ns_add_u32 s{sT}, s{sT}, {FH_OFF}')
            poll(G_, sWS, t0, t1, sPoll, 1, 14, soff=sT)
    if 'Q' in xp:
        accs = [Af[0][0] + 16*i for i in range(4)] + [Bf[0][0] + 16*i for i in range(3)]
        fr = [acc[0][0] + 4*i for i in range(8)]; bx = [acc[0][0] + 32 + 4*i for i in range(4)]; csacc = acc[0][0] + 48
        for st_ in range(16):
            for i in range(2):
                G_(f's_add_u32 m0, s{sLds}, {(st_ & 1)*4096 + i*1024}')
                G_(f's_add_u32 s{sT}, s{sWo}, {((st_*2 + i) % 56)*8*1024}')
                G_(f'buffer_load_dwordx4 v{vDw}, s[{sWD}:{sWD+3}], s{sT} offen lds', tag=('q', st_))
            for ks in range(2):
                G_(f's_add_u32 s{sT}, s{sAo}, {(st_*2 + ks)*1024}')
                G_(f'buffer_load_dwordx4 {vr(bx[2*(st_&1) + ks],4)}, v{vOff}, s[{sWS}:{sWS+3}], s{sT} offen', tag=('qb', st_))
            if st_ > 0: G_.wait_vm(('qb', st_ - 1))
            G_(f'ds_add_u32 v{vAh[0]}, v{t0}\nds_read_b32 v{t1}, v{vAh[0]}\ns_waitcnt lgkmcnt(0)\nv_readfirstlane_b32 s{sT2}, v{t1}')
            for ks in range(2):
                for p_ in range(7):
                    f_ = fr[p_ % 8]
                    G_(f'ds_read_b64_tr_b16 {vr(f_,2)}, v{vAh[p_ & 1]} offset:{(p_*128) % 2048}\nds_read_b64_tr_b16 {vr(f_+2,2)}, v{vAh[p_ & 1]} offset:{(p_*128 + 512) % 2048}')
                G_('s_waitcnt lgkmcnt(0)')
                b_ = bx[2*((st_+1)&1) + ks]
                for p_ in range(7): G_(f'v_mfma_f32_32x32x16_bf16 {vr(accs[p_],16)}, {vr(fr[p_],4)}, {vr(b_,4)}, {vr(accs[p_],16)}')
                for p_ in range(2): G_(f'v_mfma_f32_32x32x16_bf16 {vr(csacc,16)}, {vr(fr[p_],4)}, {vr(fr[7],4)}, {vr(csacc,16)}')
        G_('s_nop 7\ns_nop 7')
        for e_ in range(56):
            r_ = accs[e_ % 7] + (e_ // 7)
            G_(f'v_fma_f32 v{r_}, v{t2}, v{t3}, v{r_}\nv_fma_f32 v{r_+8}, v{t2}, v{t3}, v{r_+8}\nv_mul_f32 v{r_}, v{r_}, v{t2}\nv_mul_f32 v{t0}, v{r_}, v{r_}')
            G_(f'v_fma_f32 v{t0}, v{t0}, v{t2}, v{t3}\nv_mul_f32 v{t0}, v{t0}, v{r_}\nv_exp_f32 v{t0}, v{t0}\nv_mul_f32 v{r_+8}, v{r_+8}, v{r_}')
            G_(f'v_fma_f32 v{t0}, v{t0}, v{t2}, v{t2}\nv_rcp_f32 v{t0}, v{t0}\nv_mov_b32 v{t1}, v{t2}\nv_mul_f32 v{r_+8}, v{r_+8}, v{t0}')
            if e_ % 2: G_(f'v_cvt_pk_bf16_f32 v{t1}, v{r_+8}, v{r_+7}')
        for p_ in range(7):
            G_(f's_add_u32 s{sT}, s{sAo}, {p_*1024 + (3 << 20)}')
            G_(f'buffer_store_dwordx4 {vr(accs[p_],4)}, v{vOff}, s[{sWS}:{sWS+3}], s{sT} offen sc1')
        G_('s_waitcnt vmcnt(0)')
        G_(f'v_mov_b32 v{t0}, 0\nv_mov_b32 v{t1}, 0\ns_lshl_b32 s{sT}, s2, 2\ns_add_u32 s{sT}, s{sT}, s{sG}\ns_lshl_b32 s{sT}, s{sT}, 7\ns_add_u32 s{sT}, s{sT}, {STATS_OFF}\ns_mov_b64 exec, 1')
        for _ in range(3):
            G_(f'buffer_atomic_add v{t1}, v{t0}, s[{sWS}:{sWS+3}], s{sT} offen sc0 sc1\ns_waitcnt vmcnt(0)')
        G_('s_mov_b64 exec, -1')
        wdma(0); wdma(1);
    if tr: trace(G_, 14)
    bload(0, Bf[0]); bload(1, Bf[1])
    acc32 = [[acc[0][0] + 16*(ph + 2*tt) for tt in range(2)] for ph in range(2)]
    def mfmas(s, A, B):
        if act32:
            for ks in range(2):
                for tt in range(2):
                    for ph in range(2):
                        c = '0' if (s == 0 and ks == 0) else vr(acc32[ph][tt], 16)
                        G_(f'v_mfma_f32_32x32x16_bf16 {vr(acc32[ph][tt],16)}, {vr(A[2*ks + ph],4)}, {vr(B[2*ks + tt],4)}, {c}')
            return
        for tt in range(4):
            for tau in range(4):
                c = '0' if s == 0 else vr(acc[tau][tt], 4)
                G_(f'v_mfma_f32_16x16x32_bf16 {vr(acc[tau][tt],4)}, {vr(A[tau],4)}, {vr(B[tt],4)}, {c}')
    for s in range(NH):
        G_.wait_vm(('w', s))
        if 'r' not in xp: areads(s, Af[s & 1])
        G_('s_waitcnt lgkmcnt(0)')
        if 'l' not in xp or s + 2 >= NH:
            wdma(s + 2)
            if s + 2 < NH: bload(s + 2, Bf[(s + 2) % 3])
        if 'm' not in xp or s == 0: mfmas(s, Af[s & 1], Bf[s % 3])
    for i in range(NO):
        s = NH + i
        G_.wait_vm(('w', s))
        areads(s, Af[i])
        G_('s_waitcnt lgkmcnt(0)')
        wdma(s + 2)
    if act32:
        G_(f's_lshl_b32 s{sT}, s{sTb}, 6\ns_lshr_b32 s{sT2}, s{sG}, 1\ns_lshl_b32 s{sT2}, s{sT2}, 5\ns_add_u32 s{sT}, s{sT}, s{sT2}')
        G_(f'v_and_b32 v{t0}, 31, v{vLane}\nv_add_u32 v{t0}, s{sT}, v{t0}\nv_lshlrev_b32 v{t0}, 10, v{t0}')
        G_(f's_lshl_b32 s{sT}, s{sFb}, 7\ns_and_b32 s{sT2}, s{sG}, 1\ns_lshl_b32 s{sT2}, s{sT2}, 6\ns_add_u32 s{sT}, s{sT}, s{sT2}\nv_add_u32 v{t0}, s{sT}, v{t0}')
        G_(f'v_lshrrev_b32 v{t1}, 5, v{vLane}\nv_lshl_add_u32 v{vXo}, v{t1}, 3, v{t0}')
        for q in range(4):
            G_(f'buffer_load_dwordx2 {vr(vXr[q],2)}, v{vXo}, s[{sX}:{sX+3}], 0 offen offset:{16*q}', tag='x')
        G_(f'v_lshl_add_u32 v{vXo}, v{t1}, 4, v{t0}')
    else:
        G_(f's_lshl_b32 s{sT}, s{sTb}, 6\ns_lshl_b32 s{sT2}, s{sG}, 4\ns_add_u32 s{sT}, s{sT}, s{sT2}')
        G_(f'v_add_u32 v{t0}, s{sT}, v{vN}\nv_lshlrev_b32 v{t0}, 10, v{t0}\ns_lshl_b32 s{sT}, s{sFb}, 7\nv_add_u32 v{t0}, s{sT}, v{t0}')
        G_(f'v_lshl_add_u32 v{vXo}, v{vG}, 3, v{t0}')
        for tau in range(4):
            G_(f'buffer_load_dwordx2 {vr(vXr[tau],2)}, v{vXo}, s[{sX}:{sX+3}], 0 offen offset:{32*tau}', tag='x')
        G_(f'v_and_b32 v{t1}, 1, v{vG}\nv_lshl_add_u32 v{t0}, v{t1}, 5, v{t0}\nv_lshrrev_b32 v{t1}, 1, v{vG}\nv_lshl_add_u32 v{vXo}, v{t1}, 4, v{t0}')
    if stamps: G_(f's_memtime s[{sSt+2}:{sSt+3}]')
    if dbg: dbg_stamp(G_, 64, 1, 0, 0, 0)
    if tr: trace(G_, 15)
    if 'b' not in xp: G_('s_barrier')
    if tr: trace(G_, 16)
    if 'O' not in xp:
        G_(f'v_lshlrev_b32 v{t0}, 7, v{vLane}')
        G_(f's_lshl_b32 s{sT}, s{sTb}, 12\ns_lshl_b32 s{sT2}, s{sG}, 10\ns_add_u32 s{sT}, s{sT}, s{sT2}\ns_add_u32 s{sT}, s{sT}, {FO_OFF}')
        poll(G_, sWS, t0, t1, sPoll, 1, 8, soff=sT, mod=pollmod, sleep=pollsleep)
    if stamps: G_(f's_memtime s[{sSt+4}:{sSt+5}]')
    if dbg: dbg_stamp(G_, 64, 2, 0, 0, 0)
    if tr: trace(G_, 17)
    for i in range(NO): bload(NH + i, Bf[i])
    for i in range(NO):
        mfmas(NH + i, Af[i], Bf[i])
        if tr and i == 0: trace(G_, 18)
    if tr: trace(G_, 19)
    if stamps: G_(f's_nop 7\ns_memtime s[88:89]')
    G_('s_barrier')
    if tr: trace(G_, 20)
    if stamps: G_(f's_memtime s[90:91]')
    if act32:
        G_('s_nop 7')
        for sg in range(1, 4):
            G_(f's_xor_b32 s{sT}, s{sG}, {sg}\ns_mul_i32 s{sT}, s{sT}, 12288\nv_add_u32 v{t1}, s{sT}, v{vOff}')
            D = acc32[sg & 1][sg >> 1]
            for q in range(4):
                G_(f'ds_write_b128 v{t1}, {vr(D+4*q,4)} offset:{((sg-1)*4 + q)*1024}')
        G_('s_waitcnt lgkmcnt(0)\ns_barrier')
        if tr: trace(G_, 21)
        if stamps: G_(f's_memtime s[92:93]')
        G_(f's_mul_i32 s{sT}, s{sG}, 12288\nv_add_u32 v{t0}, s{sT}, v{vOff}')
        red = [[Bf[j][q] for q in range(4)] for j in range(3)]
        for q in range(4):
            for j in range(3):
                G_(f'ds_read_b128 {vr(red[j][q],4)}, v{t0} offset:{(j*4 + q)*1024}')
        Pk = Af[0][0]; D0 = acc32[0][0]
        for q in range(4):
            d = D0 + 4*q
            G_(f'v_lshlrev_b32 v{t1}, 16, v{vXr[q]}\nv_and_b32 v{t2}, 0xffff0000, v{vXr[q]}\nv_add_f32 v{d}, v{d}, v{t1}\nv_add_f32 v{d+1}, v{d+1}, v{t2}')
            G_(f'v_lshlrev_b32 v{t1}, 16, v{vXr[q]+1}\nv_and_b32 v{t2}, 0xffff0000, v{vXr[q]+1}\nv_add_f32 v{d+2}, v{d+2}, v{t1}\nv_add_f32 v{d+3}, v{d+3}, v{t2}')
        for q in range(4):
            d = D0 + 4*q
            for r in range(4): G_(f'v_add_f32 v{red[0][q]+r}, v{red[0][q]+r}, v{red[1][q]+r}')
            for r in range(4): G_(f'v_add_f32 v{d+r}, v{d+r}, v{red[2][q]+r}')
            for r in range(4): G_(f'v_add_f32 v{d+r}, v{d+r}, v{red[0][q]+r}')
            G_(f'v_cvt_pk_bf16_f32 v{Pk+2*q}, v{d}, v{d+1}\nv_cvt_pk_bf16_f32 v{Pk+2*q+1}, v{d+2}, v{d+3}')
        for p in range(2):
            x, y = Pk + 4*p, Pk + 4*p + 2
            G_(f'v_permlane32_swap_b32 v{x}, v{y}\nv_permlane32_swap_b32 v{x+1}, v{y+1}')
            G_(f'buffer_store_dwordx4 {vr(x,4)}, v{vXo}, s[{sOut}:{sOut+3}], 0 offen offset:{32*p} {outmod}')
    else:
        for tt in range(1, 4):
            G_(f's_add_u32 s{sT}, s{sG}, {tt}\ns_and_b32 s{sT}, s{sT}, 3\ns_mul_i32 s{sT}, s{sT}, 12288\nv_add_u32 v{t1}, s{sT}, v{vOff}')
            for tau in range(4):
                G_(f'ds_write_b128 v{t1}, {vr(acc[tau][tt],4)} offset:{((tt-1)*4 + tau)*1024}')
        G_('s_waitcnt lgkmcnt(0)\ns_barrier')
        if stamps: G_(f's_memtime s[92:93]')
        G_(f's_mul_i32 s{sT}, s{sG}, 12288\nv_add_u32 v{t0}, s{sT}, v{vOff}')
        red = [[Bf[j][tau] for tau in range(4)] for j in range(3)]
        for tau in range(4):
            for j in range(3):
                G_(f'ds_read_b128 {vr(red[j][tau],4)}, v{t0} offset:{(j*4 + tau)*1024}')
        Pk = Af[0][0]
        for tau in range(4):
            d = acc[tau][0]
            G_(f'v_lshlrev_b32 v{t1}, 16, v{vXr[tau]}\nv_and_b32 v{t2}, 0xffff0000, v{vXr[tau]}\nv_add_f32 v{d}, v{d}, v{t1}\nv_add_f32 v{d+1}, v{d+1}, v{t2}')
            G_(f'v_lshlrev_b32 v{t1}, 16, v{vXr[tau]+1}\nv_and_b32 v{t2}, 0xffff0000, v{vXr[tau]+1}\nv_add_f32 v{d+2}, v{d+2}, v{t1}\nv_add_f32 v{d+3}, v{d+3}, v{t2}')
        for tau in range(4):
            d = acc[tau][0]
            for r in range(4): G_(f'v_add_f32 v{red[0][tau]+r}, v{red[0][tau]+r}, v{red[1][tau]+r}')
            for r in range(4): G_(f'v_add_f32 v{d+r}, v{d+r}, v{red[2][tau]+r}')
            for r in range(4): G_(f'v_add_f32 v{d+r}, v{d+r}, v{red[0][tau]+r}')
            G_(f'v_cvt_pk_bf16_f32 v{Pk+2*tau}, v{d}, v{d+1}\nv_cvt_pk_bf16_f32 v{Pk+2*tau+1}, v{d+2}, v{d+3}')
        for p in range(2):
            x, y = Pk + 4*p, Pk + 4*p + 2
            G_(f'v_permlane16_swap_b32 v{x}, v{y}\nv_permlane16_swap_b32 v{x+1}, v{y+1}')
            G_(f'buffer_store_dwordx4 {vr(x,4)}, v{vXo}, s[{sOut}:{sOut+3}], 0 offen offset:{64*p} {outmod}')
    if stamps:
        G_('s_waitcnt vmcnt(0)')
        G_(f's_memtime s[{sSt+6}:{sSt+7}]\ns_memrealtime s[{sSt+8}:{sSt+9}]\ns_waitcnt lgkmcnt(0)')
        G_(f's_sub_u32 s{sSt+2}, s{sSt+2}, s{sSt}\ns_sub_u32 s{sSt+4}, s{sSt+4}, s{sSt}\ns_sub_u32 s{sSt+6}, s{sSt+6}, s{sSt}\ns_sub_u32 s{sSt+8}, s{sSt+8}, s{sSt+10}')
        X = acc[0][0]
        G_(f'v_mov_b32 v{X}, s{sSt+2}\nv_mov_b32 v{X+1}, s{sSt+4}\nv_mov_b32 v{X+2}, s{sSt+6}\nv_mov_b32 v{X+3}, s{sSt+8}')
        G_(f's_lshl_b32 s{sT}, s2, 3\ns_add_u32 s{sT}, s{sT}, s{sW}\ns_lshl_b32 s{sT}, s{sT}, 4\ns_add_u32 s{sT}, s{sT}, {STAMP_OFF}')
        G_(f'v_mov_b32 v{t0}, 0\nbuffer_store_dwordx4 {vr(X,4)}, v{t0}, s[{sWS}:{sWS+3}], s{sT} offen')
        X = acc[0][1]
        G_(f's_sub_u32 s88, s88, s{sSt}\ns_sub_u32 s90, s90, s{sSt}\ns_sub_u32 s92, s92, s{sSt}')
        G_(f'v_mov_b32 v{X}, s88\nv_mov_b32 v{X+1}, s90\nv_mov_b32 v{X+2}, s92\nv_mov_b32 v{X+3}, s{sPoll}')
        G_(f's_add_u32 s{sT}, s{sT}, {1 << 20}\nbuffer_store_dwordx4 {vr(X,4)}, v{t0}, s[{sWS}:{sWS+3}], s{sT} offen')
        X = acc[0][2]
        G_(f's_add_u32 s{sSt+8}, s{sSt+8}, s{sSt+10}')
        G_(f'v_mov_b32 v{X}, s{sSt+10}\nv_mov_b32 v{X+1}, s{sSt+8}\nv_mov_b32 v{X+2}, 0\nv_mov_b32 v{X+3}, 0')
        G_(f's_add_u32 s{sT}, s{sT}, {1 << 20}\nbuffer_store_dwordx4 {vr(X,4)}, v{t0}, s[{sWS}:{sWS+3}], s{sT} offen')
    if tr:
        trace(G_, 22); G_('s_waitcnt vmcnt(0)'); trace(G_, 23); trace_flush(G_, sWS, sT, t0)
    if dbg: dbg_final(G_, 64, acc[0][0], sT, 1, sWS); (fused and dbg_store(G_, 84, acc[0][0], sT, 0, sWS))
    G_('s_endpgm')
    pG = copy.deepcopy(pre); n0 = len(pG.out); pG.run(SG); textG = '\n'.join(pG.out[n0:])
    return pre.text() + '\n' + textA + '\n' + textG, max(hiA, hiG), (pA, pG)

def gen_p2_standalone(name='p2_kernel', **kw):
    S = Stream()
    S(f's_cmp_ge_u32 s2, 256\ns_cbranch_scc1 {name}_end')
    t, hi, ps = gen_p2(S, name, fused=False, **kw)
    return kernel_text(name, t + f'\n{name}_end:\ns_endpgm\n', hi), hi, ps
if __name__ == '__main__':
    import sys
    t, hi, ps = gen_p2_standalone()
    print(t)
    from collections import Counter
    for p in ps: print('vgprs', hi, 'nops', p.nops_inserted, Counter(w.split(' (')[0] for w, n, _ in p.nop_log), file=sys.stderr)
```

```python
from runlib import *
import runlib, sys
if ON_GPU:
    from runlib import _check, _hip
from k_fused import gen_fused, LDS2
if not ON_GPU:
    t, hi = gen_fused('f_kernel'); build([('f_kernel', t, hi)], 't_rob'); raise SystemExit(0)
m = Mod('t_rob.co'); f = m.fn('f_kernel')
env = Env(0)
names = ["A_x", "A_wqkv", "A_wo", "B_x", "B_w_gate", "B_w_up", "B_w_down"]
def upload(inp):
    for n, b in zip(names, env.bufs):
        a = np.ascontiguousarray(inp[n].view(torch.int16).numpy())
        _check(_hip.hipMemcpy(b._ptr, a.ctypes.data_as(ctypes.c_void_p), a.nbytes, 1))
def run(extra=0):
    _check(_hip.hipMemset(env.out._ptr, 0xff, 2048*512*2)); env.zero_dbg(); sync()
    env.launch(f, 256 + extra, 512, LDS2); sync()
    return from_bits(env.out_read())
def exact(inp):
    env.inp = inp
    r = env.ref_fp32()
    o = attn_ref(r['q'] * (0.25 * LOG2E), r['k'], r['v']).reshape(2048, 512)
    return r['x'] + o @ r['wo'] + r['h'] @ r['wd']
def own_attn_check(tag):
    q = from_bits(unfrag_nat(env.ws_read(Q_OFF, (32, 64, 64, 8), np.uint16))).cuda()
    k = from_bits(unfrag_nat(env.ws_read(K_OFF, (32, 64, 64, 8), np.uint16))).cuda()
    v = from_bits(unfrag_v(env.ws_read(V_OFF, (32, 64, 64, 8), np.uint16))).cuda()
    act = env.ws_read(ACT_OFF, (64, 144, 64, 8), np.uint16)
    o = from_bits(unfrag_tok(act[:, 112:])).cuda().reshape(2048, 512)
    cmp(tag + ' o vs attn(own q,k,v)', o, attn_ref(q, k, v).reshape(2048, 512))
inps = []
for seed in (0, 1, 2):
    np.random.seed(seed); torch.manual_seed(seed); inps.append(env.m.setup_inputs())
refs = [exact(i) for i in inps]
bad = 0
for it in range(300):
    k = it % 3
    upload(inps[k]); out = run(it % 5).cuda()
    d = (out - refs[k]).norm() / refs[k].norm()
    if not (d < 0.012): bad += 1; print('  iter', it, 'relnorm', d.item())
print('alternating inputs: bad =', bad)
upload(inps[1]); env.zero_dbg(); sync()
outs = []
for it in range(20):
    env.zero_dbg(); env.launch(f, 256, 512, LDS2)
sync(); cmp('b2b replay', from_bits(env.out_read()).cuda(), refs[1])
i2 = dict(inps[0]); i2["A_wqkv"] = (inps[0]["A_wqkv"].float() * 4).to(torch.bfloat16)
upload(i2); out = run(); own_attn_check('fallback x4'); print('  finite:', torch.isfinite(out).all().item())
i2 = dict(inps[0]); i2["A_wqkv"] = (inps[0]["A_wqkv"].float() * 1.6).to(torch.bfloat16)
upload(i2); out = run(); own_attn_check('partial fallback x1.6'); cmp('  out', out.cuda(), exact(i2))
for nm, xx in (('mean 3', inps[0]["A_x"].float() + 3.0 * 0.05 * 20), ('scale 100', inps[0]["A_x"].float() * 100), ('tiny', inps[0]["A_x"].float() * 1e-3)):
    i3 = dict(inps[0]); i3["A_x"] = xx.to(torch.bfloat16)
    upload(i3); out = run(); cmp(nm, out.cuda(), exact(i3))
    cmp(nm + ' (bf16 reference vs exact)', env.m.reference(**i3)[0].float().cuda(), exact(i3))
```

```python
from common import *
from diag import *

LDS2 = 163840
GRING = 131072

def gen_p2(S, L, fused=True, stamps=False, dbg=False, xp='', G_R=2, aprio=1, pollmod='sc1', pollsleep=2, setmod='atomic', defer=True, hpos='late', kvmode='G', ndefer=1, outmod='', UN=8, align=0, pad=0, act32=True, WPF=0, PROT=2, tr=False, HD=True, POLL1=1, fqsleep=2, ND=4, B3LATE=0):
    sWS, sWD, sWO, sX, sOut, sDbg = 8, 12, 16, 20, 24, 28
    sW, sHead, sQb, sT, sT2, sT3, sCnt, sTb, sFb, sLds = 32, 33, 34, 35, 36, 37, 38, 39, 40, 41
    sWo, sAo, sWo2, sAo2, sMask, sKoff, sPoll, sG = 42, 43, 44, 45, 46, 48, 49, 50
    sSt = 64
    v = VAlloc(256, 'v', 1)
    vLane = v.alloc(); vOff = v.alloc(); t0, t1, t2, t3 = [v.alloc() for _ in range(4)]
    base_mark = v.mark()
    S(f's_load_dwordx4 s[52:55], s[0:1], {KA_X}')
    S(f's_load_dwordx2 s[56:57], s[0:1], {KA_WO}')
    S(f's_load_dwordx4 s[60:63], s[0:1], {KA_WD}')
    S(f's_load_dwordx4 s[4:7], s[0:1], {KA_DBG}')
    S(f'v_and_b32 v{vLane}, 63, v0')
    S(f'v_lshrrev_b32 v{t0}, 6, v0')
    S(f'v_lshlrev_b32 v{vOff}, 4, v{vLane}')
    S(f'v_readfirstlane_b32 s{sW}, v{t0}')
    S(f's_and_b32 s{sHead}, s2, 7\ns_lshl_b32 s{sHead}, s{sHead}, 2\ns_lshr_b32 s{sT}, s2, 6\ns_add_u32 s{sHead}, s{sHead}, s{sT}')
    S(f's_lshr_b32 s{sQb}, s2, 3\ns_and_b32 s{sQb}, s{sQb}, 7')
    S('s_waitcnt lgkmcnt(0)')
    srd_ws(S, sWS, 6); srd(S, sDbg, 4, 256)
    srd(S, sX, 52, 2048 * 512 * 2); srd(S, sWO, 56, 512 * 512 * 2)
    srd(S, sWD, 60, 1792 * 512 * 2); srd(S, sOut, 62, 2048 * 512 * 2)
    if stamps: S(f's_memtime s[{sSt}:{sSt+1}]\ns_memrealtime s[{sSt+10}:{sSt+11}]')
    if tr: trace(S, 8)
    if fused and 'F' not in xp:
        if PROT != 2:
            S(f'v_lshlrev_b32 v{t0}, 2, v{vLane}')
            poll(S, sDbg, t0, t1, sPoll, '0x01010101', 64)
        S(f's_lshr_b32 s{sT}, s{sHead}, 2\ns_lshl_b32 s{sT}, s{sT}, 11')
        S(f's_lshr_b32 s{sT2}, s{sHead}, 4\ns_add_u32 s{sT2}, s{sT2}, 14\ns_lshl_b32 s{sT2}, s{sT2}, 11')
        S(f'v_and_b32 v{t0}, 15, v{vLane}\nv_lshlrev_b32 v{t0}, 7, v{t0}')
        S(f's_add_u32 s{sT3}, s{sT}, {8 << 11}')
        S(f'v_mov_b32 v{t1}, s{sT3}\nv_mov_b32 v{t2}, s{sT2}')
        S(f'v_cmp_gt_u32 vcc, 16, v{vLane}')
        S(f'v_cndmask_b32 v{t1}, v{t2}, v{t1}, vcc')
        S(f's_lshl_b32 s{sT2}, s{sQb}, 8\ns_add_u32 s{sT}, s{sT}, s{sT2}')
        S(f'v_mov_b32 v{t2}, s{sT}')
        S(f'v_cmp_gt_u32 vcc, 32, v{vLane}')
        S(f'v_cndmask_b32 v{t1}, v{t2}, v{t1}, vcc')
        S(f'v_add_u32 v{t0}, v{t0}, v{t1}')
        S(f's_mov_b32 s{sT3}, {FQ_OFF}')
        if POLL1:
            S(f's_cmp_lg_u32 s{sW}, 0\ns_cbranch_scc1 {L}_nopoll')
            R = Stream(); poll(R, sWS, t0, t1, sPoll, 1, 34, soff=sT3, sleep=fqsleep)
            S.raw_text(Processor().run(R).text())
            S.label(f'{L}_nopoll')
            S('s_barrier')
        else:
            poll(S, sWS, t0, t1, sPoll, 1, 34, soff=sT3, sleep=fqsleep)
    if dbg: dbg_stamp(S, 64, 0, 0, 0, 0)
    if tr: trace(S, 9)
    S(f's_lshl_b32 s{sKoff}, s{sHead}, 16\ns_lshl_b32 s{sT3}, s{sW}, 10\ns_add_u32 s{sKoff}, s{sKoff}, s{sT3}')
    SC = ' sc1' if fused else ''
    def dma(i, tag):
        S(f's_add_u32 m0, s{sT3}, {i*8192}')
        S(f's_add_u32 s{sT2}, s{sKoff}, {K_OFF + i*8192}')
        S(f'buffer_load_dwordx4 v{vOff}, s[{sWS}:{sWS+3}], s{sT2} offen{SC} lds', tag=tag)
        S(f's_add_u32 m0, s{sT3}, {65536 + i*8192}')
        S(f's_add_u32 s{sT2}, s{sKoff}, {V_OFF + i*8192}')
        S(f'buffer_load_dwordx4 v{vOff}, s[{sWS}:{sWS+3}], s{sT2} offen{SC} lds', tag=tag)
    dma(0, 'kv0')
    S(f's_cmp_ge_u32 s{sW}, 4\ns_cbranch_scc1 {L}_G')
    import copy
    pre = Processor().run(S)
    SA = Stream(); S_ = SA
    v.release(base_mark)
    vKa = v.alloc(); vVa = v.alloc(); vM = v.alloc(); vOv = v.alloc()
    sOad = 77
    Q = [v.alloc(4, 4) for _ in range(2)]; Kf = [v.alloc(4, 4) for _ in range(2)]
    Vf = [[v.alloc(4, 4) for _ in range(2)] for _ in range(2)]
    P = [v.alloc(8, 4) for _ in range(2)]; Sx = [v.alloc(16, 4) for _ in range(2)]
    O = [v.alloc(16, 4) for _ in range(2)]; Cm = [v.alloc(16, 4) for _ in range(2)]
    hiA = v.hi
    def dmaS(St, i, tag):
        St(f's_add_u32 m0, s{sT3}, {i*8192}')
        St(f's_add_u32 s{sT2}, s{sKoff}, {K_OFF + i*8192}')
        St(f'buffer_load_dwordx4 v{vOff}, s[{sWS}:{sWS+3}], s{sT2} offen{SC} lds', tag=tag)
        St(f's_add_u32 m0, s{sT3}, {65536 + i*8192}')
        St(f's_add_u32 s{sT2}, s{sKoff}, {V_OFF + i*8192}')
        St(f'buffer_load_dwordx4 v{vOff}, s[{sWS}:{sWS+3}], s{sT2} offen{SC} lds', tag=tag)
    A_ = SA
    HC = 240; sFH, sHaddr, sIsBk = 95, 100, 101
    assert not (act32 and fused and defer and ndefer != 1)
    def hstores(St, lb):
        if not (fused and defer) or HD: return
        St(f's_cmp_eq_u32 s{sIsBk}, 1\ns_cbranch_scc1 {lb}')
        for tt in range(4 - ndefer, 4):
            St(f'buffer_store_dwordx4 {vr(HC+4*tt,4)}, v{vOff}, s[{sWS}:{sWS+3}], s{sHaddr} offen sc1', tag='nocount')
            if tt < 3: St(f's_add_u32 s{sHaddr}, s{sHaddr}, {72*1024}')
        St.label(lb)
    A_(f's_lshl_b32 s{sT}, s{sHead}, 16\ns_lshl_b32 s{sT2}, s{sQb}, 13\ns_add_u32 s{sT}, s{sT}, s{sT2}\ns_lshl_b32 s{sT2}, s{sW}, 11\ns_add_u32 s{sT}, s{sT}, s{sT2}')
    if Q_OFF: A_(f's_add_u32 s{sT}, s{sT}, {Q_OFF}')
    for a in range(2):
        A_(f'buffer_load_dwordx4 {vr(Q[a],4)}, v{vOff}, s[{sWS}:{sWS+3}], s{sT} offen offset:{a*1024}{SC}', tag='q')
    if kvmode != 'G':
        for i in range(1, 8): dmaS(A_, i, 'kvrest')
    if hpos == 'after': hstores(A_, f'{L}_hsA')
    A_(f'v_mov_b32 v{vKa}, v{vOff}')
    A_(f'v_lshrrev_b32 v{t0}, 5, v{vLane}\nv_lshlrev_b32 v{t0}, 8, v{t0}\nv_and_b32 v{t1}, 15, v{vLane}\nv_lshlrev_b32 v{t1}, 4, v{t1}')
    A_(f'v_add_u32 v{vVa}, v{t0}, v{t1}\nv_add_u32 v{vVa}, 0x10000, v{vVa}')
    A_(f's_mov_b32 s{sMask}, 0x0000ffff\ns_mov_b32 s{sMask+1}, 0x0000ffff')
    A_(f'v_and_b32 v{t0}, 27, v{vLane}\nv_cmp_eq_u32 vcc, 16, v{t0}\nv_mov_b32 v{t1}, 0x3f803f80\nv_cndmask_b32 v{t1}, 0, v{t1}, vcc')
    for a in Vf:
        for b in a:
            for i in range(4): A_(f'v_mov_b32 v{b+i}, v{t1}')
    A_(f's_lshl_b32 s{sT}, s{sQb}, 2\ns_add_u32 s{sTb}, s{sT}, s{sW}')
    if act32:
        A_(f's_mul_i32 s{sT}, s{sTb}, {2*144*1024}\ns_lshl_b32 s{sT2}, s{sHead}, 10\ns_add_u32 s{sT}, s{sT}, s{sT2}\ns_add_u32 s{sT}, s{sT}, {ACT_OFF + 112*1024}')
        OSTEP = 144*1024
        A_(f's_mov_b32 s{sOad}, s{sT}')
    else:
        A_(f's_mul_i32 s{sT}, s{sTb}, {4*72*1024}')
        A_(f's_lshr_b32 s{sT2}, s{sHead}, 1\ns_lshl_b32 s{sT2}, s{sT2}, 10\ns_add_u32 s{sT}, s{sT}, s{sT2}')
        A_(f's_and_b32 s{sT2}, s{sHead}, 1\ns_lshl_b32 s{sT2}, s{sT2}, 9\ns_add_u32 s{sT}, s{sT}, s{sT2}\ns_add_u32 s{sT}, s{sT}, {ACT_OFF + 56*1024}')
        A_(f'v_bfe_u32 v{t0}, v{vLane}, 4, 1\nv_mul_u32_u24 v{t0}, {72*1024}, v{t0}\nv_lshrrev_b32 v{t1}, 5, v{vLane}\nv_lshl_add_u32 v{t0}, v{t1}, 8, v{t0}')
        A_(f'v_and_b32 v{t1}, 15, v{vLane}\nv_lshl_add_u32 v{t0}, v{t1}, 4, v{t0}')
        OSTEP = 2*72*1024
        A_(f's_mov_b32 s{sOad}, s{sT}\nv_mov_b32 v{vOv}, v{t0}')
    if aprio: A_(f's_setprio {aprio}')
    if tr: trace(A_, 10)
    A_.wait_vm('kv0'); A_('s_barrier')
    if tr: trace(A_, 11)
    if hpos == 'late': hstores(A_, f'{L}_hsA')
    if stamps: A_(f's_memtime s[{sSt+2}:{sSt+3}]')
    if dbg: dbg_stamp(A_, 64, 1, 0, 0, 0)
    M32 = 'v_mfma_f32_32x32x16_bf16'
    A_(f'ds_read_b128 {vr(Kf[0],4)}, v{vKa}\nds_read_b128 {vr(Kf[1],4)}, v{vKa} offset:1024')
    DELTA = 64.0
    for a in range(2):
        A_(f'{M32} {vr(Sx[0],16)}, {vr(Kf[0],4)}, {vr(Q[a],4)}, 0')
        A_(f'{M32} {vr(Sx[1],16)}, {vr(Kf[1],4)}, {vr(Q[a],4)}, 0')
        A_(f'v_max3_f32 v{vM}, v{Sx[0]}, v{Sx[0]+1}, v{Sx[0]+2}')
        for i in range(3, 15, 2): A_(f'v_max3_f32 v{vM}, v{vM}, v{Sx[0]+i}, v{Sx[0]+i+1}')
        A_(f'v_max3_f32 v{vM}, v{vM}, v{Sx[0]+15}, v{Sx[1]}')
        for i in range(1, 15, 2): A_(f'v_max3_f32 v{vM}, v{vM}, v{Sx[1]+i}, v{Sx[1]+i+1}')
        A_(f'v_max_f32 v{vM}, v{vM}, v{Sx[1]+15}')
        A_(f'v_mov_b32 v{t0}, v{vM}\nv_permlane32_swap_b32 v{vM}, v{t0}\nv_max_f32 v{vM}, v{vM}, v{t0}')
        A_(f'v_add_f32 v{vM}, {fhex(DELTA)}, v{vM}')
        for i in range(16): A_(f'v_sub_f32 v{Cm[a]+i}, 0, v{vM}')
    def rdK(off, buf):
        if off < 64: A_(f'ds_read_b128 {vr(Kf[buf],4)}, v{vKa} offset:{off*1024}')
    def rdV(off, buf):
        if off >= 64: return
        A_(f's_mov_b64 exec, s[{sMask}:{sMask+1}]')
        A_(f'ds_read_b128 {vr(Vf[buf][0],4)}, v{vVa} offset:{off*1024}')
        A_(f'ds_read_b128 {vr(Vf[buf][1],4)}, v{vVa} offset:{off*1024+512}')
        A_(f's_mov_b64 exec, -1')
    def qk(a, kb): A_(f'{M32} {vr(Sx[a],16)}, {vr(Kf[kb],4)}, {vr(Q[a],4)}, {vr(Cm[a],16)}')
    def pv(a, u, vb, zero=False): A_(f'{M32} {vr(O[a],16)}, {vr(Vf[vb][u],4)}, {vr(P[a]+4*u,4)}, ' + ('0' if zero else vr(O[a],16)))
    rdV(0, 0)
    if tr: trace(A_, 12)
    qk(0, 0)
    def tile(t, off, first=False, last=False):
        b = t & 1; nb = b ^ 1
        e = lambda a, i: A_(f'v_exp_f32 v{Sx[a]+i}, v{Sx[a]+i}')
        c = lambda a, i: A_(f'v_cvt_pk_bf16_f32 v{P[a]+i}, v{Sx[a]+2*i}, v{Sx[a]+2*i+1}')
        def phase(a, m_pre, m_mid):
            e(a,0); e(a,1); e(a,2); c(a,0); e(a,3); e(a,4); c(a,1); e(a,5)
            m_pre()
            e(a,6); c(a,2); e(a,7); e(a,8); c(a,3); e(a,9); e(a,10)
            m_mid()
            c(a,4); e(a,11); e(a,12); c(a,5); e(a,13); e(a,14); e(a,15); c(a,6); c(a,7)
        qk(1, b)
        rdK(off + 1, nb)
        def pre_a():
            if not first: pv(1, 1, nb)
            rdV(off + 1, nb)
        phase(0, pre_a, lambda: pv(0, 0, b, zero=first))
        A_('s_waitcnt lgkmcnt(0)')
        qk(0, nb)
        if last:
            A_(f'v_add_u32 v{vKa}, {UN*1024}, v{vKa}\nv_add_u32 v{vVa}, {UN*1024}, v{vVa}\ns_sub_u32 s{sCnt}, s{sCnt}, 1')
        phase(1, lambda: pv(0, 1, b), lambda: pv(1, 0, b, zero=first))
    def block(first):
        for t in range(UN):
            if first and t == 7:
                A_.wait_vm('kvrest'); A_('s_waitcnt vmcnt(0)')
                if dbg and 'B' in xp: dbg_stamp(A_, 64, 0, 0, 0, 0)
                if tr: trace(A_, 13)
                A_('s_barrier')
                if tr: trace(A_, 14)
                if dbg and 'B' not in xp: dbg_stamp(A_, 64, 0, 0, 0, 0)
            tile(t, t, first=(first and t == 0), last=(t == UN - 1))
    A_(f's_mov_b32 s{sCnt}, {64 // UN}')
    block(True)
    if 64 // UN > 1:
        if align: A_(f'.p2align {align}')
        for _ in range(pad): A_('s_nop 0')
        A_.label(f'{L}_aloop')
        if tr and 'T' in xp:
            A_(f's_memrealtime s[72:73]\ns_waitcnt lgkmcnt(0)\ns_sub_u32 m0, 32, s{sCnt}\nv_mov_b32 v{t3}, s72\nv_readfirstlane_b32 s73, v{t3}\nv_writelane_b32 v239, s73, m0')
        block(False)
        A_(f's_cmp_lg_u32 s{sCnt}, 0\ns_cbranch_scc1 {L}_aloop')
    pv(1, 1, 1)
    A_('s_waitcnt lgkmcnt(0)')
    if stamps: A_(f's_memtime s[{sSt+4}:{sSt+5}]')
    if dbg: dbg_stamp(A_, 64, 2, 0, 0, 0)
    if tr: trace(A_, 15)
    if 'b' not in xp and not B3LATE: A_('s_barrier')
    if tr: trace(A_, 16)
    A_('s_nop 7\ns_nop 3')
    A_(f'v_mov_b32 v{t1}, 0x7f800000\nv_mov_b32 v{t2}, {fhex(2.0**110)}')
    A_(f's_mov_b64 s[4:5], -1')
    for a in range(2):
        A_(f'v_add_f32 v{t0}, |v{O[a]}|, |v{O[a]+1}|')
        for i in range(2, 8): A_(f'v_add_f32 v{t0}, v{t0}, |v{O[a]+i}|')
        A_(f'v_cmp_lt_f32 vcc, v{t0}, v{t1}')
        A_(f's_and_b64 s[4:5], s[4:5], vcc')
        A_(f'v_cmp_lt_f32 vcc, v{O[a]+8}, v{t2}')
        A_(f's_and_b64 s[4:5], s[4:5], vcc')
    A_(f's_cmp_eq_u64 s[4:5], -1\ns_cbranch_scc1 {L}_afin')
    for a in range(2):
        A_(f'v_mov_b32 v{vKa}, v{vOff}')
        A_(f'v_lshrrev_b32 v{t0}, 5, v{vLane}\nv_lshlrev_b32 v{t0}, 8, v{t0}\nv_and_b32 v{t1}, 15, v{vLane}\nv_lshlrev_b32 v{t1}, 4, v{t1}')
        A_(f'v_add_u32 v{vVa}, v{t0}, v{t1}\nv_add_u32 v{vVa}, 0x10000, v{vVa}')
        A_(f'v_mov_b32 v{vM}, 0xff800000')
        for i in range(16): A_(f'v_mov_b32 v{O[a]+i}, 0')
        A_(f's_mov_b32 s{sCnt}, 64')
        A_.label(f'{L}_slow{a}')
        rdK(0, 0); rdV(0, 0)
        A_('s_waitcnt lgkmcnt(0)')
        X = Sx[0]
        A_(f'{M32} {vr(X,16)}, {vr(Kf[0],4)}, {vr(Q[a],4)}, 0')
        A_(f'v_max3_f32 v{t0}, v{X}, v{X+1}, v{X+2}')
        for i in range(3, 15, 2): A_(f'v_max3_f32 v{t0}, v{t0}, v{X+i}, v{X+i+1}')
        A_(f'v_max3_f32 v{t0}, v{t0}, v{X+15}, v{vM}')
        A_(f'v_mov_b32 v{t1}, v{t0}\nv_permlane32_swap_b32 v{t0}, v{t1}\nv_max_f32 v{t0}, v{t0}, v{t1}')
        A_(f'v_sub_f32 v{t1}, v{vM}, v{t0}\nv_exp_f32 v{t1}, v{t1}\nv_mov_b32 v{vM}, v{t0}')
        for i in range(16): A_(f'v_mul_f32 v{O[a]+i}, v{O[a]+i}, v{t1}')
        for i in range(16): A_(f'v_sub_f32 v{X+i}, v{X+i}, v{vM}')
        for i in range(16): A_(f'v_exp_f32 v{X+i}, v{X+i}')
        for i in range(8): A_(f'v_cvt_pk_bf16_f32 v{P[a]+i}, v{X+2*i}, v{X+2*i+1}')
        pv(a, 0, 0); pv(a, 1, 0)
        A_(f'v_add_u32 v{vKa}, 1024, v{vKa}\nv_add_u32 v{vVa}, 1024, v{vVa}')
        A_(f's_sub_u32 s{sCnt}, s{sCnt}, 1\ns_cmp_lg_u32 s{sCnt}, 0\ns_nop 7\ns_nop 7')
        A_(f's_cbranch_scc1 {L}_slow{a}')
    A_.label(f'{L}_afin')
    A_('s_nop 7\ns_nop 3')
    A_(f's_mov_b32 s{sT}, s{sOad}')
    if act32: A_(f'v_mov_b32 v{t0}, v{vOff}')
    else: A_(f'v_mov_b32 v{t0}, v{vOv}')
    for a in range(2):
        A_(f'v_rcp_f32 v{t2}, v{O[a]+8}')
        A_('s_nop 0')
        for i in range(8): A_(f'v_mul_f32 v{O[a]+i}, v{O[a]+i}, v{t2}')
        for i in range(4): A_(f'v_cvt_pk_bf16_f32 v{P[a]+i}, v{O[a]+2*i}, v{O[a]+2*i+1}')
        A_(f'buffer_store_dwordx4 {vr(P[a],4)}, v{t0}, s[{sWS}:{sWS+3}], s{sT} offen sc1')
        if a == 0: A_(f's_add_u32 s{sT}, s{sT}, {OSTEP}')
    if True:
        A_(f's_lshl_b32 s{sT}, s{sTb}, 12\ns_lshl_b32 s{sT2}, s{sHead}, 7\ns_add_u32 s{sT}, s{sT}, s{sT2}\ns_add_u32 s{sT}, s{sT}, {FO_OFF}')
        A_(f'v_mov_b32 v{t0}, 0\nv_mov_b32 v{t1}, 1')
        if 'b' not in xp and B3LATE: A_('s_barrier')
        if tr: trace(A_, 17)
        A_('s_waitcnt vmcnt(0)')
        if tr: trace(A_, 18)
        A_('s_mov_b64 exec, 1')
        if setmod == 'store': A_(f'buffer_store_dword v{t1}, v{t0}, s[{sWS}:{sWS+3}], s{sT} offen sc1')
        elif setmod == 'store2': A_(f'buffer_store_dword v{t1}, v{t0}, s[{sWS}:{sWS+3}], s{sT} offen sc0 sc1')
        else: A_(f'buffer_atomic_add v{t1}, v{t0}, s[{sWS}:{sWS+3}], s{sT} offen sc1')
        A_('s_mov_b64 exec, -1')
    if stamps:
        A_('s_waitcnt vmcnt(0)')
        A_(f's_memtime s[{sSt+6}:{sSt+7}]\ns_memrealtime s[{sSt+8}:{sSt+9}]\ns_waitcnt lgkmcnt(0)')
        A_(f's_sub_u32 s{sSt+2}, s{sSt+2}, s{sSt}\ns_sub_u32 s{sSt+4}, s{sSt+4}, s{sSt}\ns_sub_u32 s{sSt+6}, s{sSt+6}, s{sSt}\ns_sub_u32 s{sSt+8}, s{sSt+8}, s{sSt+10}')
        X = Sx[0]
        A_(f'v_mov_b32 v{X}, s{sSt+2}\nv_mov_b32 v{X+1}, s{sSt+4}\nv_mov_b32 v{X+2}, s{sSt+6}\nv_mov_b32 v{X+3}, s{sSt+8}')
        A_(f's_lshl_b32 s{sT}, s2, 3\ns_add_u32 s{sT}, s{sT}, s{sW}\ns_lshl_b32 s{sT}, s{sT}, 4\ns_add_u32 s{sT}, s{sT}, {STAMP_OFF}')
        A_(f'v_mov_b32 v{t0}, 0\nbuffer_store_dwordx4 {vr(X,4)}, v{t0}, s[{sWS}:{sWS+3}], s{sT} offen')
        X = Sx[1]
        A_(f's_add_u32 s{sSt+8}, s{sSt+8}, s{sSt+10}')
        A_(f'v_mov_b32 v{X}, s{sSt+10}\nv_mov_b32 v{X+1}, s{sSt+8}\nv_mov_b32 v{X+2}, 0\nv_mov_b32 v{X+3}, 0')
        A_(f's_add_u32 s{sT}, s{sT}, {2 << 20}\nbuffer_store_dwordx4 {vr(X,4)}, v{t0}, s[{sWS}:{sWS+3}], s{sT} offen')
    if tr: trace(A_, 19); trace_flush(A_, sWS, sT, t0)
    if dbg: dbg_final(A_, 64, Sx[0], sT, 1, sWS); (fused and dbg_store(A_, 84, Sx[0], sT, 0, sWS))
    A_('s_endpgm')
    pA = copy.deepcopy(pre); n0 = len(pA.out); pA.run(SA); textA = '\n'.join(pA.out[n0:])

    SG = Stream(); G_ = SG
    v.release(base_mark)
    vN = v.alloc(); vG = v.alloc(); vDw = v.alloc(); vXo = v.alloc()
    vAh = [v.alloc() for _ in range(4)]; vAo = [v.alloc() for _ in range(4)]
    vXr = [v.alloc(2, 2) for _ in range(4)]
    Af = [[v.alloc(4, 4) for _ in range(4)] for _ in range(4)]
    Bf = [[v.alloc(4, 4) for _ in range(4)] for _ in range(4)]
    acc = [[v.alloc(4, 4) for _ in range(4)] for _ in range(4)]
    Ae = [v.alloc(4, 4) for _ in range(4)] if ND else None
    hiG = v.hi
    assert hiG <= 239
    G_.label(f'{L}_G')
    def kvrest_G():
        G_(f's_sub_u32 s{sT}, s{sW}, 4\ns_lshl_b32 s{sT3}, s{sT}, 11\ns_lshl_b32 s{sKoff}, s{sHead}, 16\ns_add_u32 s{sKoff}, s{sKoff}, s{sT3}')
        for i in range(1, 8):
            for j in range(2):
                for base, lb_ in ((K_OFF, 0), (V_OFF, 65536)):
                    G_(f's_add_u32 m0, s{sT3}, {lb_ + i*8192 + j*1024}')
                    G_(f's_add_u32 s{sT2}, s{sKoff}, {base + i*8192 + j*1024}')
                    G_(f'buffer_load_dwordx4 v{vOff}, s[{sWS}:{sWS+3}], s{sT2} offen{SC} lds', tag='kvrest')
    if kvmode != 'G':
        for i in range(1, 8): dmaS(G_, i, 'kvrest')
    if hpos == 'after': hstores(G_, f'{L}_hsG')
    G_(f's_sub_u32 s{sG}, s{sW}, 4')
    G_(f'v_and_b32 v{vN}, 15, v0\nv_bfe_u32 v{vG}, v0, 4, 2')
    G_(f's_and_b32 s{sT}, s2, 7\ns_lshl_b32 s{sT}, s{sT}, 2\ns_lshr_b32 s{sT2}, s2, 3\ns_and_b32 s{sT2}, s{sT2}, 3\ns_add_u32 s{sTb}, s{sT}, s{sT2}')
    G_(f's_lshr_b32 s{sFb}, s2, 5')
    G_(f'v_lshrrev_b32 v{t0}, 3, v{vLane}\nv_lshlrev_b32 v{t0}, 10, v{t0}\nv_and_b32 v{t1}, 7, v{vLane}')
    if act32: G_(f'v_and_b32 v{t2}, 1, v{vG}\nv_lshlrev_b32 v{t2}, 2, v{t2}')
    else: G_(f'v_lshlrev_b32 v{t2}, 1, v{vG}')
    G_(f'v_xor_b32 v{t1}, v{t1}, v{t2}\nv_lshl_add_u32 v{vDw}, v{t1}, 4, v{t0}')
    G_(f's_lshl_b32 s{sLds}, s{sG}, 13\ns_add_u32 s{sLds}, s{sLds}, {GRING}')
    NH, NO = 14, 4
    G_(f's_mul_i32 s{sWo}, s{sG}, {32*NH*1024}\ns_lshl_b32 s{sT}, s{sFb}, 7\ns_add_u32 s{sWo}, s{sWo}, s{sT}')
    if act32:
        G_(f's_mul_i32 s{sAo}, s{sTb}, {2*144*1024}\ns_mul_i32 s{sT}, s{sG}, {2*NH*1024}\ns_add_u32 s{sAo}, s{sAo}, s{sT}\ns_add_u32 s{sAo}, s{sAo}, {ACT_OFF}')
    else:
        G_(f's_mul_i32 s{sAo}, s{sTb}, {4*72*1024}\ns_mul_i32 s{sT}, s{sG}, {NH*1024}\ns_add_u32 s{sAo}, s{sAo}, s{sT}\ns_add_u32 s{sAo}, s{sAo}, {ACT_OFF}')
    G_(f's_mul_i32 s{sWo2}, s{sG}, {32*NO*1024}\ns_lshl_b32 s{sT}, s{sFb}, 7\ns_add_u32 s{sWo2}, s{sWo2}, s{sT}')
    if act32:
        G_(f's_mul_i32 s{sAo2}, s{sTb}, {2*144*1024}\ns_mul_i32 s{sT}, s{sG}, {2*NO*1024}\ns_add_u32 s{sAo2}, s{sAo2}, s{sT}\ns_add_u32 s{sAo2}, s{sAo2}, {ACT_OFF + 112*1024}')
    else:
        G_(f's_mul_i32 s{sAo2}, s{sTb}, {4*72*1024}\ns_mul_i32 s{sT}, s{sG}, {NO*1024}\ns_add_u32 s{sAo2}, s{sAo2}, s{sT}\ns_add_u32 s{sAo2}, s{sAo2}, {ACT_OFF + 56*1024}')
    vR, vCq = t2, t3
    G_(f'v_lshrrev_b32 v{vR}, 2, v{vN}\nv_and_b32 v{vCq}, 3, v{vN}')
    if act32:
        G_(f'v_and_b32 v{t0}, 1, v{vG}\nv_lshlrev_b32 v{t0}, 1, v{t0}\nv_lshrrev_b32 v{t1}, 1, v{vCq}\nv_add_u32 v{t0}, v{t0}, v{t1}')
        G_(f'v_lshrrev_b32 v{t1}, 1, v{vR}\nv_lshlrev_b32 v{t1}, 2, v{t1}\nv_xor_b32 v{t0}, v{t0}, v{t1}\nv_lshlrev_b32 v{t0}, 4, v{t0}')
        G_(f'v_and_b32 v{t1}, 1, v{vCq}\nv_lshl_add_u32 v{t0}, v{t1}, 3, v{t0}')
        G_(f'v_lshrrev_b32 v{vCq}, 1, v{vG}')
        G_(f'v_lshl_add_u32 v{t1}, v{vCq}, 3, v{vR}\nv_lshl_add_u32 v{vAh[0]}, v{t1}, 7, v{t0}')
        G_(f'v_lshl_add_u32 v{t1}, v{vCq}, 2, v{vR}\nv_lshl_add_u32 v{vAo[0]}, v{t1}, 7, v{t0}')
        G_(f's_and_b32 s{sT}, s{sG}, 1\ns_lshl_b32 s{sT}, s{sT}, 6')
        G_(f'v_xor_b32 v{vAh[0]}, s{sT}, v{vAh[0]}\nv_xor_b32 v{vAo[0]}, s{sT}, v{vAo[0]}')
        G_(f'v_xor_b32 v{vAh[1]}, 64, v{vAh[0]}\nv_xor_b32 v{vAo[1]}, 64, v{vAo[0]}')
        for k in range(2):
            G_(f'v_add_u32 v{vAh[k]}, s{sLds}, v{vAh[k]}\nv_add_u32 v{vAo[k]}, s{sLds}, v{vAo[k]}')
    else:
        G_(f'v_and_b32 v{t0}, 1, v{vG}\nv_lshlrev_b32 v{t0}, 1, v{t0}\nv_lshrrev_b32 v{t1}, 1, v{vR}\nv_add_u32 v{t0}, v{t0}, v{t1}')
        G_(f'v_lshlrev_b32 v{t0}, 1, v{t0}\nv_lshrrev_b32 v{t1}, 1, v{vCq}\nv_xor_b32 v{t0}, v{t0}, v{t1}\nv_lshlrev_b32 v{t0}, 4, v{t0}')
        G_(f'v_and_b32 v{t1}, 1, v{vCq}\nv_lshl_add_u32 v{t0}, v{t1}, 3, v{t0}')
        G_(f'v_lshl_add_u32 v{t1}, v{vG}, 2, v{vR}\nv_lshl_add_u32 v{vAh[0]}, v{t1}, 7, v{t0}')
        G_(f'v_lshrrev_b32 v{t1}, 1, v{vG}\nv_lshlrev_b32 v{t1}, 4, v{t1}\nv_add_u32 v{t1}, v{t1}, v{vR}')
        G_(f'v_and_b32 v{vCq}, 1, v{vG}\nv_lshl_add_u32 v{t1}, v{vCq}, 2, v{t1}\nv_lshl_add_u32 v{vAo[0]}, v{t1}, 7, v{t0}')
        for tau in range(1, 4):
            G_(f'v_xor_b32 v{vAh[tau]}, {32*tau}, v{vAh[0]}\nv_xor_b32 v{vAo[tau]}, {32*tau}, v{vAo[0]}')
        for tau in range(4):
            G_(f'v_add_u32 v{vAh[tau]}, s{sLds}, v{vAh[tau]}\nv_add_u32 v{vAo[tau]}, s{sLds}, v{vAo[tau]}')
    seq = list(range(NH - ND)) + list(range(NH, NH + NO)) + list(range(NH - ND, NH))
    pos = {x: i for i, x in enumerate(seq)}
    def wnext(s):
        i = pos[s] + 2
        if i < len(seq): wdma(seq[i])
    def wdma(s):
        if s >= NH + NO: return
        h = s < NH; slot = (pos[s] % 2) * 4096
        srdw = sWD if h else sWO; wo, i0 = (sWo, s) if h else (sWo2, s - NH)
        for i in range(4):
            G_(f's_add_u32 m0, s{sLds}, {slot + i*1024}')
            G_(f's_add_u32 s{sT}, s{wo}, {(32*i0 + 8*i)*1024}')
            G_(f'buffer_load_dwordx4 v{vDw}, s[{srdw}:{srdw+3}], s{sT} offen lds', tag=('w', s))
    sRot = [51, 58, 59, 79]
    if act32:
        for tt in range(2):
            G_(f's_lshr_b32 s{sT}, s{sG}, 1\ns_xor_b32 s{sT}, s{sT}, {tt}\ns_mul_i32 s{sRot[tt]}, s{sT}, {144*1024}')
    else:
        for tt in range(4):
            G_(f's_add_u32 s{sT}, s{sG}, {tt}\ns_and_b32 s{sT}, s{sT}, 3\ns_mul_i32 s{sRot[tt]}, s{sT}, {72*1024}')
    def bload(s, dst):
        h = s < NH; ao, i0 = (sAo, s) if h else (sAo2, s - NH)
        mod = SC if h else ' sc1'
        if act32:
            for tt in range(2):
                G_(f's_add_u32 s{sT}, s{ao}, s{sRot[tt]}')
                if i0 >= 2: G_(f's_add_u32 s{sT}, s{sT}, {2*i0*1024}')
                for ks in range(2):
                    off = ks*1024 + (2*i0*1024 if i0 < 2 else 0)
                    G_(f'buffer_load_dwordx4 {vr(dst[2*ks + tt],4)}, v{vOff}, s[{sWS}:{sWS+3}], s{sT} offen offset:{off}{mod}', tag=('b', s))
            return
        for tt in range(4):
            G_(f's_add_u32 s{sT}, s{ao}, s{sRot[tt]}')
            if i0 >= 4: G_(f's_add_u32 s{sT}, s{sT}, {i0*1024}')
            G_(f'buffer_load_dwordx4 {vr(dst[tt],4)}, v{vOff}, s[{sWS}:{sWS+3}], s{sT} offen offset:{i0*1024 if i0 < 4 else 0}{mod}', tag=('b', s))
    def areads(s, dst):
        h = s < NH; slot = (pos[s] % 2) * 4096
        if act32:
            for ks in range(2):
                for ph in range(2):
                    for rd in range(2):
                        a = vAh[ph] if h else vAo[ph]
                        G_(f'ds_read_b64_tr_b16 {vr(dst[2*ks + ph]+2*rd,2)}, v{a} offset:{slot + ks*2048 + rd*(512 if h else 1024)}')
            return
        for tau in range(4):
            for rd in range(2):
                a = vAh[tau] if h else vAo[tau]
                G_(f'ds_read_b64_tr_b16 {vr(dst[tau]+2*rd,2)}, v{a} offset:{slot + rd*(2048 if h else 1024)}')
    if kvmode != 'G': wdma(0); wdma(1)
    if tr: trace(G_, 10)
    G_.wait_vm('kv0'); G_('s_barrier')
    if tr: trace(G_, 11)
    if hpos == 'late': hstores(G_, f'{L}_hsG')
    if fused and HD:
        G_(f's_cmp_eq_u32 s{sIsBk}, 1\ns_cbranch_scc1 {L}_nohp')
        G_(f'v_add_u32 v{t0}, s{sLds}, v{vOff}')
        for n in range(4): G_.raw_text(f'ds_read_b128 {vr(Bf[3][n],4)}, v{t0} offset:{n*1024}')
        G_.raw_text('s_waitcnt lgkmcnt(0)')
        G_.label(f'{L}_nohp')
    if kvmode == 'G':
        kvrest_G(); wdma(0); wdma(1)
    if tr: trace(G_, 12)
    G_.wait_vm('kvrest'); G_('s_barrier')
    if tr: trace(G_, 13)
    if fused and HD:
        G_(f's_cmp_eq_u32 s{sIsBk}, 1\ns_cbranch_scc1 {L}_nofh')
        for who, regs, adj in (('own', [HC + 4*n for n in range(4)], 0), ('partner', [Bf[3][n] for n in range(4)], -4096)):
            for n in range(4):
                off = (n >> 1) * 144*1024 + adj
                G_.raw_text(f's_add_u32 s{sT}, s{sHaddr}, {off & 0xffffffff}\nbuffer_store_dwordx4 {vr(regs[n],4)}, v{vOff}, s[{sWS}:{sWS+3}], s{sT} offen offset:{(n & 1)*1024} sc1')
        G_.raw_text(f's_lshl_b32 s{sT}, s{sG}, 7\ns_add_u32 s{sT}, s{sT}, s{sFH}\nv_mov_b32 v{t0}, 0\nv_mov_b32 v{t1}, 1\ns_waitcnt vmcnt(0)\ns_mov_b64 exec, 1')
        G_.raw_text(f'buffer_atomic_add v{t1}, v{t0}, s[{sWS}:{sWS+3}], s{sT} offen sc1\ns_mov_b64 exec, -1')
        G_.label(f'{L}_nofh')
    elif fused and defer:
        G_(f's_cmp_lg_u32 s{sW}, 4\ns_cbranch_scc1 {L}_nofh\ns_cmp_eq_u32 s{sIsBk}, 1\ns_cbranch_scc1 {L}_nofh')
        G_(f'v_mov_b32 v{t0}, 0\nv_mov_b32 v{t1}, 1\ns_mov_b64 exec, 1')
        G_(f'buffer_atomic_add v{t1}, v{t0}, s[{sWS}:{sWS+3}], s{sFH} offen sc1', tag='nocount')
        G_('s_mov_b64 exec, -1')
        G_.label(f'{L}_nofh')
    if WPF:
        G_(f'v_lshlrev_b32 v{t2}, 10, v{vLane}')
        for i in range(7):
            G_(f's_add_u32 s{sT}, s{sWo}, {i*64*1024}')
            G_(f'buffer_load_dword v{Bf[3][0] + i}, v{t2}, s[{sWD}:{sWD+3}], s{sT} offen', tag='wpf')
        for i in range(2):
            G_(f's_add_u32 s{sT}, s{sWo2}, {i*64*1024}')
            G_(f'buffer_load_dword v{Bf[3][0] + 8 + i}, v{t2}, s[{sWO}:{sWO+3}], s{sT} offen', tag='wpf')
    if 'g' in xp: G_('s_waitcnt vmcnt(0)\ns_endpgm')
    if fused and 'F' not in xp:
        if HD:
            G_(f'v_lshlrev_b32 v{t0}, 7, v{vLane}')
            G_(f's_lshr_b32 s{sT}, s{sTb}, 1\ns_lshl_b32 s{sT}, s{sT}, 13\ns_add_u32 s{sT}, s{sT}, {FH_OFF}')
            poll(G_, sWS, t0, t1, sPoll, 1, 56, soff=sT)
        else:
            G_(f'v_lshlrev_b32 v{t0}, 9, v{vLane}')
            G_(f's_lshr_b32 s{sT}, s{sTb}, 1\ns_lshl_b32 s{sT}, s{sT}, 13\ns_add_u32 s{sT}, s{sT}, {FH_OFF}')
            poll(G_, sWS, t0, t1, sPoll, 1, 14, soff=sT)
    if 'Q' in xp:
        accs = [Af[0][0] + 16*i for i in range(4)] + [Bf[0][0] + 16*i for i in range(3)]
        fr = [acc[0][0] + 4*i for i in range(8)]; bx = [acc[0][0] + 32 + 4*i for i in range(4)]; csacc = acc[0][0] + 48
        for st_ in range(16):
            for i in range(2):
                G_(f's_add_u32 m0, s{sLds}, {(st_ & 1)*4096 + i*1024}')
                G_(f's_add_u32 s{sT}, s{sWo}, {((st_*2 + i) % 56)*8*1024}')
                G_(f'buffer_load_dwordx4 v{vDw}, s[{sWD}:{sWD+3}], s{sT} offen lds', tag=('q', st_))
            for ks in range(2):
                G_(f's_add_u32 s{sT}, s{sAo}, {(st_*2 + ks)*1024}')
                G_(f'buffer_load_dwordx4 {vr(bx[2*(st_&1) + ks],4)}, v{vOff}, s[{sWS}:{sWS+3}], s{sT} offen', tag=('qb', st_))
            if st_ > 0: G_.wait_vm(('qb', st_ - 1))
            G_(f'ds_add_u32 v{vAh[0]}, v{t0}\nds_read_b32 v{t1}, v{vAh[0]}\ns_waitcnt lgkmcnt(0)\nv_readfirstlane_b32 s{sT2}, v{t1}')
            for ks in range(2):
                for p_ in range(7):
                    f_ = fr[p_ % 8]
                    G_(f'ds_read_b64_tr_b16 {vr(f_,2)}, v{vAh[p_ & 1]} offset:{(p_*128) % 2048}\nds_read_b64_tr_b16 {vr(f_+2,2)}, v{vAh[p_ & 1]} offset:{(p_*128 + 512) % 2048}')
                G_('s_waitcnt lgkmcnt(0)')
                b_ = bx[2*((st_+1)&1) + ks]
                for p_ in range(7): G_(f'v_mfma_f32_32x32x16_bf16 {vr(accs[p_],16)}, {vr(fr[p_],4)}, {vr(b_,4)}, {vr(accs[p_],16)}')
                for p_ in range(2): G_(f'v_mfma_f32_32x32x16_bf16 {vr(csacc,16)}, {vr(fr[p_],4)}, {vr(fr[7],4)}, {vr(csacc,16)}')
        G_('s_nop 7\ns_nop 7')
        for e_ in range(56):
            r_ = accs[e_ % 7] + (e_ // 7)
            G_(f'v_fma_f32 v{r_}, v{t2}, v{t3}, v{r_}\nv_fma_f32 v{r_+8}, v{t2}, v{t3}, v{r_+8}\nv_mul_f32 v{r_}, v{r_}, v{t2}\nv_mul_f32 v{t0}, v{r_}, v{r_}')
            G_(f'v_fma_f32 v{t0}, v{t0}, v{t2}, v{t3}\nv_mul_f32 v{t0}, v{t0}, v{r_}\nv_exp_f32 v{t0}, v{t0}\nv_mul_f32 v{r_+8}, v{r_+8}, v{r_}')
            G_(f'v_fma_f32 v{t0}, v{t0}, v{t2}, v{t2}\nv_rcp_f32 v{t0}, v{t0}\nv_mov_b32 v{t1}, v{t2}\nv_mul_f32 v{r_+8}, v{r_+8}, v{t0}')
            if e_ % 2: G_(f'v_cvt_pk_bf16_f32 v{t1}, v{r_+8}, v{r_+7}')
        for p_ in range(7):
            G_(f's_add_u32 s{sT}, s{sAo}, {p_*1024 + (3 << 20)}')
            G_(f'buffer_store_dwordx4 {vr(accs[p_],4)}, v{vOff}, s[{sWS}:{sWS+3}], s{sT} offen sc1')
        G_('s_waitcnt vmcnt(0)')
        G_(f'v_mov_b32 v{t0}, 0\nv_mov_b32 v{t1}, 0\ns_lshl_b32 s{sT}, s2, 2\ns_add_u32 s{sT}, s{sT}, s{sG}\ns_lshl_b32 s{sT}, s{sT}, 7\ns_add_u32 s{sT}, s{sT}, {STATS_OFF}\ns_mov_b64 exec, 1')
        for _ in range(3):
            G_(f'buffer_atomic_add v{t1}, v{t0}, s[{sWS}:{sWS+3}], s{sT} offen sc0 sc1\ns_waitcnt vmcnt(0)')
        G_('s_mov_b64 exec, -1')
        wdma(0); wdma(1);
    if tr: trace(G_, 14)
    bload(0, Bf[0]); bload(1, Bf[1])
    acc32 = [[acc[0][0] + 16*(ph + 2*tt) for tt in range(2)] for ph in range(2)]
    def mfmas(s, A, B):
        if act32:
            for ks in range(2):
                for tt in range(2):
                    for ph in range(2):
                        c = '0' if (s == 0 and ks == 0) else vr(acc32[ph][tt], 16)
                        G_(f'v_mfma_f32_32x32x16_bf16 {vr(acc32[ph][tt],16)}, {vr(A[2*ks + ph],4)}, {vr(B[2*ks + tt],4)}, {c}')
            return
        for tt in range(4):
            for tau in range(4):
                c = '0' if s == 0 else vr(acc[tau][tt], 4)
                G_(f'v_mfma_f32_16x16x32_bf16 {vr(acc[tau][tt],4)}, {vr(A[tau],4)}, {vr(B[tt],4)}, {c}')
    def estep(s, A):
        G_.wait_vm(('w', s))
        if 'r' not in xp: areads(s, A)
        G_('s_waitcnt lgkmcnt(0)')
        if 'l' not in xp or s + 2 >= NH:
            wnext(s)
            if s + 2 < NH: bload(s + 2, Bf[(s + 2) % 3])
        if 'm' not in xp or s == 0: mfmas(s, A, Bf[s % 3])
    for s in range(NH - ND): estep(s, Af[s & 1])
    for i in range(NO):
        s = NH + i
        G_.wait_vm(('w', s))
        areads(s, Af[i])
        G_('s_waitcnt lgkmcnt(0)')
        wnext(s)
    if act32:
        G_(f's_lshl_b32 s{sT}, s{sTb}, 6\ns_lshr_b32 s{sT2}, s{sG}, 1\ns_lshl_b32 s{sT2}, s{sT2}, 5\ns_add_u32 s{sT}, s{sT}, s{sT2}')
        G_(f'v_and_b32 v{t0}, 31, v{vLane}\nv_add_u32 v{t0}, s{sT}, v{t0}\nv_lshlrev_b32 v{t0}, 10, v{t0}')
        G_(f's_lshl_b32 s{sT}, s{sFb}, 7\ns_and_b32 s{sT2}, s{sG}, 1\ns_lshl_b32 s{sT2}, s{sT2}, 6\ns_add_u32 s{sT}, s{sT}, s{sT2}\nv_add_u32 v{t0}, s{sT}, v{t0}')
        G_(f'v_lshrrev_b32 v{t1}, 5, v{vLane}\nv_lshl_add_u32 v{vXo}, v{t1}, 3, v{t0}')
        for q in range(4):
            G_(f'buffer_load_dwordx2 {vr(vXr[q],2)}, v{vXo}, s[{sX}:{sX+3}], 0 offen offset:{16*q}', tag='x')
        G_(f'v_lshl_add_u32 v{vXo}, v{t1}, 4, v{t0}')
    else:
        G_(f's_lshl_b32 s{sT}, s{sTb}, 6\ns_lshl_b32 s{sT2}, s{sG}, 4\ns_add_u32 s{sT}, s{sT}, s{sT2}')
        G_(f'v_add_u32 v{t0}, s{sT}, v{vN}\nv_lshlrev_b32 v{t0}, 10, v{t0}\ns_lshl_b32 s{sT}, s{sFb}, 7\nv_add_u32 v{t0}, s{sT}, v{t0}')
        G_(f'v_lshl_add_u32 v{vXo}, v{vG}, 3, v{t0}')
        for tau in range(4):
            G_(f'buffer_load_dwordx2 {vr(vXr[tau],2)}, v{vXo}, s[{sX}:{sX+3}], 0 offen offset:{32*tau}', tag='x')
        G_(f'v_and_b32 v{t1}, 1, v{vG}\nv_lshl_add_u32 v{t0}, v{t1}, 5, v{t0}\nv_lshrrev_b32 v{t1}, 1, v{vG}\nv_lshl_add_u32 v{vXo}, v{t1}, 4, v{t0}')
    if stamps: G_(f's_memtime s[{sSt+2}:{sSt+3}]')
    if dbg: dbg_stamp(G_, 64, 1, 0, 0, 0)
    if tr: trace(G_, 15)
    if 'b' not in xp: G_('s_barrier')
    if tr: trace(G_, 16)
    for s in range(NH - ND, NH): estep(s, Ae)
    if 'O' not in xp:
        G_(f'v_lshlrev_b32 v{t0}, 7, v{vLane}')
        G_(f's_lshl_b32 s{sT}, s{sTb}, 12\ns_lshl_b32 s{sT2}, s{sG}, 10\ns_add_u32 s{sT}, s{sT}, s{sT2}\ns_add_u32 s{sT}, s{sT}, {FO_OFF}')
        poll(G_, sWS, t0, t1, sPoll, 1, 8, soff=sT, mod=pollmod, sleep=pollsleep)
    if stamps: G_(f's_memtime s[{sSt+4}:{sSt+5}]')
    if dbg: dbg_stamp(G_, 64, 2, 0, 0, 0)
    if tr: trace(G_, 17)
    for i in range(NO): bload(NH + i, Bf[i])
    for i in range(NO):
        mfmas(NH + i, Af[i], Bf[i])
        if tr and i == 0: trace(G_, 18)
    if tr: trace(G_, 19)
    if stamps: G_(f's_nop 7\ns_memtime s[88:89]')
    G_('s_barrier')
    if tr: trace(G_, 20)
    if stamps: G_(f's_memtime s[90:91]')
    if act32:
        G_('s_nop 7')
        for sg in range(1, 4):
            G_(f's_xor_b32 s{sT}, s{sG}, {sg}\ns_mul_i32 s{sT}, s{sT}, 12288\nv_add_u32 v{t1}, s{sT}, v{vOff}')
            D = acc32[sg & 1][sg >> 1]
            for q in range(4):
                G_(f'ds_write_b128 v{t1}, {vr(D+4*q,4)} offset:{((sg-1)*4 + q)*1024}')
        G_('s_waitcnt lgkmcnt(0)\ns_barrier')
        if tr: trace(G_, 21)
        if stamps: G_(f's_memtime s[92:93]')
        G_(f's_mul_i32 s{sT}, s{sG}, 12288\nv_add_u32 v{t0}, s{sT}, v{vOff}')
        red = [[Bf[j][q] for q in range(4)] for j in range(3)]
        for q in range(4):
            for j in range(3):
                G_(f'ds_read_b128 {vr(red[j][q],4)}, v{t0} offset:{(j*4 + q)*1024}')
        Pk = Af[0][0]; D0 = acc32[0][0]
        for q in range(4):
            d = D0 + 4*q
            G_(f'v_lshlrev_b32 v{t1}, 16, v{vXr[q]}\nv_and_b32 v{t2}, 0xffff0000, v{vXr[q]}\nv_add_f32 v{d}, v{d}, v{t1}\nv_add_f32 v{d+1}, v{d+1}, v{t2}')
            G_(f'v_lshlrev_b32 v{t1}, 16, v{vXr[q]+1}\nv_and_b32 v{t2}, 0xffff0000, v{vXr[q]+1}\nv_add_f32 v{d+2}, v{d+2}, v{t1}\nv_add_f32 v{d+3}, v{d+3}, v{t2}')
        for q in range(4):
            d = D0 + 4*q
            for r in range(4): G_(f'v_add_f32 v{red[0][q]+r}, v{red[0][q]+r}, v{red[1][q]+r}')
            for r in range(4): G_(f'v_add_f32 v{d+r}, v{d+r}, v{red[2][q]+r}')
            for r in range(4): G_(f'v_add_f32 v{d+r}, v{d+r}, v{red[0][q]+r}')
            G_(f'v_cvt_pk_bf16_f32 v{Pk+2*q}, v{d}, v{d+1}\nv_cvt_pk_bf16_f32 v{Pk+2*q+1}, v{d+2}, v{d+3}')
        for p in range(2):
            x, y = Pk + 4*p, Pk + 4*p + 2
            G_(f'v_permlane32_swap_b32 v{x}, v{y}\nv_permlane32_swap_b32 v{x+1}, v{y+1}')
            G_(f'buffer_store_dwordx4 {vr(x,4)}, v{vXo}, s[{sOut}:{sOut+3}], 0 offen offset:{32*p} {outmod}')
    else:
        for tt in range(1, 4):
            G_(f's_add_u32 s{sT}, s{sG}, {tt}\ns_and_b32 s{sT}, s{sT}, 3\ns_mul_i32 s{sT}, s{sT}, 12288\nv_add_u32 v{t1}, s{sT}, v{vOff}')
            for tau in range(4):
                G_(f'ds_write_b128 v{t1}, {vr(acc[tau][tt],4)} offset:{((tt-1)*4 + tau)*1024}')
        G_('s_waitcnt lgkmcnt(0)\ns_barrier')
        if stamps: G_(f's_memtime s[92:93]')
        G_(f's_mul_i32 s{sT}, s{sG}, 12288\nv_add_u32 v{t0}, s{sT}, v{vOff}')
        red = [[Bf[j][tau] for tau in range(4)] for j in range(3)]
        for tau in range(4):
            for j in range(3):
                G_(f'ds_read_b128 {vr(red[j][tau],4)}, v{t0} offset:{(j*4 + tau)*1024}')
        Pk = Af[0][0]
        for tau in range(4):
            d = acc[tau][0]
            G_(f'v_lshlrev_b32 v{t1}, 16, v{vXr[tau]}\nv_and_b32 v{t2}, 0xffff0000, v{vXr[tau]}\nv_add_f32 v{d}, v{d}, v{t1}\nv_add_f32 v{d+1}, v{d+1}, v{t2}')
            G_(f'v_lshlrev_b32 v{t1}, 16, v{vXr[tau]+1}\nv_and_b32 v{t2}, 0xffff0000, v{vXr[tau]+1}\nv_add_f32 v{d+2}, v{d+2}, v{t1}\nv_add_f32 v{d+3}, v{d+3}, v{t2}')
        for tau in range(4):
            d = acc[tau][0]
            for r in range(4): G_(f'v_add_f32 v{red[0][tau]+r}, v{red[0][tau]+r}, v{red[1][tau]+r}')
            for r in range(4): G_(f'v_add_f32 v{d+r}, v{d+r}, v{red[2][tau]+r}')
            for r in range(4): G_(f'v_add_f32 v{d+r}, v{d+r}, v{red[0][tau]+r}')
            G_(f'v_cvt_pk_bf16_f32 v{Pk+2*tau}, v{d}, v{d+1}\nv_cvt_pk_bf16_f32 v{Pk+2*tau+1}, v{d+2}, v{d+3}')
        for p in range(2):
            x, y = Pk + 4*p, Pk + 4*p + 2
            G_(f'v_permlane16_swap_b32 v{x}, v{y}\nv_permlane16_swap_b32 v{x+1}, v{y+1}')
            G_(f'buffer_store_dwordx4 {vr(x,4)}, v{vXo}, s[{sOut}:{sOut+3}], 0 offen offset:{64*p} {outmod}')
    if stamps:
        G_('s_waitcnt vmcnt(0)')
        G_(f's_memtime s[{sSt+6}:{sSt+7}]\ns_memrealtime s[{sSt+8}:{sSt+9}]\ns_waitcnt lgkmcnt(0)')
        G_(f's_sub_u32 s{sSt+2}, s{sSt+2}, s{sSt}\ns_sub_u32 s{sSt+4}, s{sSt+4}, s{sSt}\ns_sub_u32 s{sSt+6}, s{sSt+6}, s{sSt}\ns_sub_u32 s{sSt+8}, s{sSt+8}, s{sSt+10}')
        X = acc[0][0]
        G_(f'v_mov_b32 v{X}, s{sSt+2}\nv_mov_b32 v{X+1}, s{sSt+4}\nv_mov_b32 v{X+2}, s{sSt+6}\nv_mov_b32 v{X+3}, s{sSt+8}')
        G_(f's_lshl_b32 s{sT}, s2, 3\ns_add_u32 s{sT}, s{sT}, s{sW}\ns_lshl_b32 s{sT}, s{sT}, 4\ns_add_u32 s{sT}, s{sT}, {STAMP_OFF}')
        G_(f'v_mov_b32 v{t0}, 0\nbuffer_store_dwordx4 {vr(X,4)}, v{t0}, s[{sWS}:{sWS+3}], s{sT} offen')
        X = acc[0][1]
        G_(f's_sub_u32 s88, s88, s{sSt}\ns_sub_u32 s90, s90, s{sSt}\ns_sub_u32 s92, s92, s{sSt}')
        G_(f'v_mov_b32 v{X}, s88\nv_mov_b32 v{X+1}, s90\nv_mov_b32 v{X+2}, s92\nv_mov_b32 v{X+3}, s{sPoll}')
        G_(f's_add_u32 s{sT}, s{sT}, {1 << 20}\nbuffer_store_dwordx4 {vr(X,4)}, v{t0}, s[{sWS}:{sWS+3}], s{sT} offen')
        X = acc[0][2]
        G_(f's_add_u32 s{sSt+8}, s{sSt+8}, s{sSt+10}')
        G_(f'v_mov_b32 v{X}, s{sSt+10}\nv_mov_b32 v{X+1}, s{sSt+8}\nv_mov_b32 v{X+2}, 0\nv_mov_b32 v{X+3}, 0')
        G_(f's_add_u32 s{sT}, s{sT}, {1 << 20}\nbuffer_store_dwordx4 {vr(X,4)}, v{t0}, s[{sWS}:{sWS+3}], s{sT} offen')
    if tr:
        trace(G_, 22); G_('s_waitcnt vmcnt(0)'); trace(G_, 23); trace_flush(G_, sWS, sT, t0)
    if dbg: dbg_final(G_, 64, acc[0][0], sT, 1, sWS); (fused and dbg_store(G_, 84, acc[0][0], sT, 0, sWS))
    G_('s_endpgm')
    pG = copy.deepcopy(pre); n0 = len(pG.out); pG.run(SG); textG = '\n'.join(pG.out[n0:])
    return pre.text() + '\n' + textA + '\n' + textG, max(hiA, hiG), (pA, pG)

def gen_p2_standalone(name='p2_kernel', **kw):
    S = Stream()
    S(f's_cmp_ge_u32 s2, 256\ns_cbranch_scc1 {name}_end')
    t, hi, ps = gen_p2(S, name, fused=False, **kw)
    return kernel_text(name, t + f'\n{name}_end:\ns_endpgm\n', hi), hi, ps
if __name__ == '__main__':
    import sys
    t, hi, ps = gen_p2_standalone()
    print(t)
    from collections import Counter
    for p in ps: print('vgprs', hi, 'nops', p.nops_inserted, Counter(w.split(' (')[0] for w, n, _ in p.nop_log), file=sys.stderr)
```

```python
from common import *
from diag import *

BIG = 0; BIGSZ = 24576; NBIG = 3
MB = BIG + NBIG * BIGSZ; MSZ = 16384
def lds_map(NM):
    STAT = MB + NM * MSZ
    return STAT, STAT, STAT + 512, STAT + 1024, STAT + 1536, STAT + 1536 + 2 * 320 * 4
STAT, ST_SUM, ST_SQ, ST_SD, ST_CS, LDS1 = lds_map(4)
QSCALE = 0.25 * LOG2E
HCARRY = 240

def gen_gemm1(name='gemm1_kernel', stamps=False, xp='', dbg=False, DMA_FIRST=2, fused=False, PUB_AT=2, setmod='atomic', defer=True, ndefer=1, ROT=False, PF=1, PFSTEP=0, act32=True, PRO=2, TS=False, CSS=False, CSL=11, LPF=0, NM=5, steptrace=False, SCHED=1, SIG=14, PROT=2, tr=False, PK=1, HD=True, STATIC=1):
    STAT, ST_SUM, ST_SQ, ST_SD, ST_CS, LDS1 = lds_map(NM)
    assert LDS1 <= 163840 and (NM == 4 or fused)
    assert not (PROT == 2 and (TS or CSS))
    TS = TS and fused
    CSS = CSS and fused
    CSB = LDS1; CT = [232 + 4*f for f in range(5)]
    assert (not CSS) or CSB + 20480 <= 163840
    S = Stream(); L = name
    v = VAlloc(256, 'v', 1)
    sX, sQK, sM0, sM1, sWS = 8, 12, 16, 20, 24
    sW, sTb, sC, sTh, sFq, sT, sT2, sRS = 28, 29, 30, 31, 32, 33, 34, 35
    sXo, sQo, sM0o, sM1o, sLx, sLq, sLm = 36, 37, 38, 39, 40, 41, 42
    sIsB, sScale, sT3, sStepM, sDuty, sMaskHi = 43, 44, 45, 46, 58, 59
    sSt = 60
    sDbg, sFQ, sFH, sHaddr, sIsBk = 96, 94, 95, 100, 101
    sKcB, sKrM, sXc, sMc = 80, 81, 82, 83
    sPc = 78
    sTok = 77
    sMr0, sMr1 = 75, 76
    vLane = v.alloc(); vN = v.alloc(); vG = v.alloc()
    vT = [v.alloc() for _ in range(6)]
    vDx = [v.alloc() for _ in range(2)]; vDq = v.alloc(); vDm = v.alloc()
    vXa = [v.alloc() for _ in range(2)]; vQa = v.alloc(); vMa = [v.alloc() for _ in range(4)]
    vMb = [v.alloc() for _ in range(4)] if NM > 4 else None
    vSum = [v.alloc() for _ in range(2)]; vSq = [v.alloc() for _ in range(2)]; vLo = v.alloc(); vHi = v.alloc()
    vXs = [v.alloc() for _ in range(2)]
    vOnes = v.alloc(4, 4)
    A = [[v.alloc(4, 4) for _ in range(5)] for _ in range(2)]
    B = [[v.alloc(4, 4) for _ in range(4)] for _ in range(2)]
    Bs = [v.alloc(4, 4) for _ in range(2)]
    acc = [[v.alloc(4, 4) for _ in range(4)] for _ in range(5)]
    vCs = [v.alloc(4, 4) for _ in range(5)]
    vEp = v.alloc(16, 4)

    S(f's_cmp_ge_u32 s2, 256'); S(f's_cbranch_scc1 {L}_end')
    if stamps: S(f's_memtime s[{sSt}:{sSt+1}]\ns_memrealtime s[{sSt+10}:{sSt+11}]')
    if dbg: dbg_stamp(S, 84, 0, 0, 0, 0)
    if tr: trace_init(S); trace(S, 0)
    if PF:
        S(f's_getpc_b64 s[{sPc}:{sPc+1}]')
        S.label(f'{L}_pc')
    S(f's_load_dwordx4 s[48:51], s[0:1], {KA_X}')
    S(f's_load_dwordx4 s[52:55], s[0:1], {KA_WG}')
    S(f's_load_dwordx2 s[56:57], s[0:1], {KA_WS}')
    if fused: S(f's_load_dwordx2 s[92:93], s[0:1], {KA_DBG}')
    S(f'v_and_b32 v{vLane}, 63, v0')
    S(f'v_lshrrev_b32 v{vT[0]}, 6, v0')
    S(f'v_and_b32 v{vN}, 15, v0')
    S(f'v_readfirstlane_b32 s{sW}, v{vT[0]}')
    S(f'v_bfe_u32 v{vG}, v0, 4, 2')
    S(f's_and_b32 s{sT}, s2, 1\ns_lshl_b32 s{sT}, s{sT}, 3')
    S(f's_lshr_b32 s{sT2}, s2, 3\ns_and_b32 s{sT2}, s{sT2}, 7\ns_add_u32 s{sTb}, s{sT}, s{sT2}')
    S(f's_lshr_b32 s{sT}, s2, 1\ns_and_b32 s{sT}, s{sT}, 3\ns_lshl_b32 s{sT}, s{sT}, 2')
    S(f's_lshr_b32 s{sT2}, s2, 6\ns_add_u32 s{sC}, s{sT}, s{sT2}')
    S(f's_and_b32 s{sTh}, s{sW}, 1\ns_lshr_b32 s{sFq}, s{sW}, 1')
    S(f's_cmp_ge_u32 s{sC}, 14\ns_cselect_b32 s{sIsB}, 1, 0')
    S(f's_lshr_b32 s{sDuty}, s{sFq}, 1\ns_xor_b32 s{sDuty}, s{sDuty}, s{sTh}')
    S(f's_cmp_eq_u32 s{sIsB}, 1')
    S(f's_mov_b32 s{sRS}, 3584\ns_cmov_b32 s{sRS}, 3072')
    S(f's_lshl_b32 s{sXo}, s{sTb}, 17')
    S(f's_lshl_b32 s{sQo}, s{sC}, 7')
    S(f's_lshl_b32 s{sM0o}, s{sC}, 8')
    S(f's_sub_u32 s{sT}, s{sC}, 14\ns_lshl_b32 s{sT}, s{sT}, 9\ns_add_u32 s{sT}, s{sT}, 2048')
    S(f's_cmp_eq_u32 s{sIsB}, 1')
    S(f's_cselect_b32 s{sM0o}, s{sT}, s{sM0o}')
    S(f's_cselect_b32 s{sT}, 256, 0')
    S(f's_add_u32 s{sM1o}, s{sM0o}, s{sT}')
    S(f's_lshl_b32 s{sStepM}, s{sRS}, 5')
    S(f's_sub_u32 s{sMr0}, s{sM0o}, s{sStepM}\ns_sub_u32 s{sMr1}, s{sM1o}, s{sStepM}')
    if ROT:
        S(f's_lshl_b32 s{sKcB}, s{sC}, 1\ns_add_u32 s{sKcB}, s{sKcB}, s{sTb}\ns_and_b32 s{sKcB}, s{sKcB}, 7\ns_lshl_b32 s{sKrM}, s{sKcB}, 1')
    else:
        S(f's_mov_b32 s{sKcB}, 0\ns_mov_b32 s{sKrM}, 0')
    t0, t1, t2, t3, t4, t5 = vT
    S(f'v_lshrrev_b32 v{t3}, 3, v{vLane}')
    S(f'v_and_b32 v{t4}, 7, v{vLane}')
    S(f's_lshl_b32 s{sT}, s{sW}, 4')
    S(f'v_add_u32 v{t0}, s{sT}, v{t3}\nv_lshlrev_b32 v{t0}, 10, v{t0}\nv_xor_b32 v{t1}, v{t4}, v{vG}')
    S(f'v_lshl_add_u32 v{vDx[0]}, v{t1}, 4, v{t0}')
    S(f'v_xor_b32 v{vDx[1]}, 64, v{vDx[0]}\nv_add_u32 v{vDx[1]}, 8192, v{vDx[1]}')
    S(f'v_bfe_u32 v{t2}, v{vLane}, 4, 1')
    S(f's_and_b32 s{sT}, s{sW}, 1\ns_lshl_b32 s{sT}, s{sT}, 1')
    S(f'v_or_b32 v{t2}, s{sT}, v{t2}\nv_lshlrev_b32 v{t2}, 1, v{t2}\nv_xor_b32 v{t1}, v{t4}, v{t2}')
    S(f's_lshl_b32 s{sT}, s{sW}, 3')
    S(f'v_add_u32 v{t0}, s{sT}, v{t3}\nv_mul_u32_u24 v{t0}, 3072, v{t0}\nv_lshl_add_u32 v{vDq}, v{t1}, 4, v{t0}')
    S(f's_lshr_b32 s{sT}, s{sW}, 1\ns_and_b32 s{sT}, s{sT}, 1\ns_lshl_b32 s{sT}, s{sT}, 2')
    S(f'v_or_b32 v{t2}, s{sT}, v{vG}\nv_lshlrev_b32 v{t2}, 1, v{t2}\nv_xor_b32 v{t1}, v{vN}, v{t2}')
    S(f's_lshl_b32 s{sT}, s{sW}, 2')
    S(f'v_add_u32 v{t0}, s{sT}, v{vG}\nv_mul_lo_u32 v{t0}, v{t0}, s{sRS}\nv_lshl_add_u32 v{vDm}, v{t1}, 4, v{t0}')
    S(f's_lshl_b32 s{sLx}, s{sW}, 11')
    S(f's_lshl_b32 s{sLq}, s{sW}, 10\ns_add_u32 s{sLq}, s{sLq}, 16384')
    S(f's_lshl_b32 s{sLm}, s{sW}, 10\ns_add_u32 s{sLm}, s{sLm}, {MB}')
    if dbg and 'k' in xp: dbg_stamp(S, 84, 1, 0, 0, 0)
    S('s_waitcnt lgkmcnt(0)')
    if dbg and 'K' in xp: dbg_stamp(S, 84, 1, 0, 0, 0); S('s_waitcnt lgkmcnt(0)')
    srd(S, sX, 48, 2048 * 512 * 2)
    srd(S, sQK, 50, 512 * 1536 * 2)
    def ab_from(vs, vq, va, vb, vsd):
        S(f'v_mul_f32 v{vs}, {fhex(1/512)}, v{vs}')
        S(f'v_mul_f32 v{vq}, {fhex(1/512)}, v{vq}')
        S(f'v_fma_f32 v{vq}, -v{vs}, v{vs}, v{vq}')
        S(f'v_max_f32 v{vq}, 0, v{vq}')
        S(f'v_add_f32 v{vq}, {fhex(1e-5)}, v{vq}')
        S(f'v_rsq_f32 v{va}, v{vq}')
        S(f'v_sqrt_f32 v{vsd}, v{vq}')
        S(f'v_sub_f32 v{vb}, 0, v{vs}')

    XS = Bs[0]
    def dma_big_groups(j):
        slot = (j % NBIG) * BIGSZ + BIG; g = []
        if not ROT:
            g.append([(f's_add_u32 m0, s{sLx}, {slot}', None), (f's_add_u32 s{sXc}, s{sXo}, {j*128}', None),
                      (f'buffer_load_dwordx4 v{vDx[0]}, s[{sX}:{sX+3}], s{sXc} offen lds', ('big', j))])
            g.append([(f's_add_u32 m0, s{sLx}, {slot + 1024}', None), (f's_add_u32 s{sT}, s{sQo}, {j*64*3072}', None),
                      (f'buffer_load_dwordx4 v{vDx[1]}, s[{sX}:{sX+3}], s{sXc} offen lds', ('big', j)),
                      (f's_add_u32 m0, s{sLq}, {slot}', None), (f's_nop 0', None),
                      (f'buffer_load_dwordx4 v{vDq}, s[{sQK}:{sQK+3}], s{sT} offen lds', ('big', j))])
            return g
        g.append([(f's_lshl_b32 s{sXc}, s{sKcB}, 7', None), (f's_add_u32 m0, s{sLx}, {slot}', None), (f's_add_u32 s{sXc}, s{sXc}, s{sXo}', None),
                  (f'buffer_load_dwordx4 v{vDx[0]}, s[{sX}:{sX+3}], s{sXc} offen lds', ('big', j))])
        g.append([(f's_add_u32 m0, s{sLx}, {slot + 1024}', None), (f's_nop 0', None),
                  (f'buffer_load_dwordx4 v{vDx[1]}, s[{sX}:{sX+3}], s{sXc} offen lds', ('big', j))])
        g.append([(f's_add_u32 m0, s{sLq}, {slot}', None), (f's_mul_i32 s{sT}, s{sKcB}, {64*3072}', None), (f's_add_u32 s{sT}, s{sT}, s{sQo}', None),
                  (f'buffer_load_dwordx4 v{vDq}, s[{sQK}:{sQK+3}], s{sT} offen lds', ('big', j)),
                  (f's_add_u32 s{sKcB}, s{sKcB}, 1', None), (f's_and_b32 s{sKcB}, s{sKcB}, 7', None)])
        return g
    def dma_m_groups(s):
        slot = (s % NM) * MSZ
        if not ROT and STATIC:
            return [[(f's_add_u32 m0, s{sLm}, {slot}', None), (f's_add_u32 s{sMr0}, s{sMr0}, s{sStepM}', None),
                     (f'buffer_load_dwordx4 v{vDm}, s[{sM0}:{sM0+3}], s{sMr0} offen lds', ('m', s))],
                    [(f's_add_u32 m0, s{sLm}, {slot + 8192}', None), (f's_add_u32 s{sMr1}, s{sMr1}, s{sStepM}', None),
                     (f'buffer_load_dwordx4 v{vDm}, s[{sM1}:{sM1+3}], s{sMr1} offen lds', ('m', s))]]
        return [[(f's_mul_i32 s{sMc}, s{sKrM}, s{sStepM}', None), (f's_add_u32 m0, s{sLm}, {slot}', None), (f's_add_u32 s{sT}, s{sMc}, s{sM0o}', None),
                 (f'buffer_load_dwordx4 v{vDm}, s[{sM0}:{sM0+3}], s{sT} offen lds', ('m', s))],
                [(f's_add_u32 m0, s{sLm}, {slot + 8192}', None), (f's_add_u32 s{sT}, s{sMc}, s{sM1o}', None),
                 (f'buffer_load_dwordx4 v{vDm}, s[{sM1}:{sM1+3}], s{sT} offen lds', ('m', s)),
                 (f's_add_u32 s{sKrM}, s{sKrM}, 1', None), (f's_and_b32 s{sKrM}, s{sKrM}, 15', None)]]
    def emit_group(g):
        for t, tag in g: S(t, tag=tag)
    def dma_big(j):
        for g in dma_big_groups(j): emit_group(g)
    def dma_m(s):
        for g in dma_m_groups(s): emit_group(g)
    dma_big(0)
    S(f's_cmp_eq_u32 s{sIsB}, 1')
    for d, p in ((sM0, 52), (sM1, 54)):
        S(f's_cselect_b32 s{d}, s50, s{p}')
        S(f's_cselect_b32 s{d+1}, s51, s{p+1}')
        S(f's_mov_b32 s{d+2}, {512*1792*2}\ns_cmov_b32 s{d+2}, {512*1536*2}')
        S(f's_mov_b32 s{d+3}, 0x20000')
    S(f's_and_b32 s{sM0+1}, s{sM0+1}, 0xffff\ns_and_b32 s{sM1+1}, s{sM1+1}, 0xffff')
    dma_m(0); dma_m(1)
    late = []
    if PRO >= 1: dma_big(1)
    else: late += [('big', 1)]
    if PRO >= 2: dma_m(2)
    else: late += [('m', 2)]
    if PRO >= 3: dma_m(3)
    else: late += [('m', 3)]
    if PRO >= 4: dma_big(2)
    else: late += [('big', 2)]
    for k in range(4, NM): late += [('m', k)]
    if dbg and 'j' in xp: dbg_stamp(S, 84, 1, 0, 0, 0)
    vDq2 = 252
    if LPF:
        dmy = 253
        S(f's_and_b32 s{sT}, s{sTb}, 7\ns_lshl_b32 s{sT}, s{sT}, 6\ns_lshl_b32 s{sT2}, s{sW}, 3\ns_add_u32 s{sT}, s{sT}, s{sT2}')
        S(f'v_add_u32 v{t0}, s{sT}, v{vLane}')
        S(f'v_mul_u32_u24 v{t1}, 3072, v{t0}\nv_mul_lo_u32 v{t2}, v{t0}, s{sRS}')
        S(f's_mov_b64 exec, 0xff')
        S(f'buffer_load_dword v{244}, v{t1}, s[{sQK}:{sQK+3}], s{sQo} offen', tag='lpf')
        for k, off in enumerate((0, 128)):
            S(f'buffer_load_dword v{245 + 2*k}, v{t2}, s[{sM0}:{sM0+3}], s{sM0o} offen offset:{off}', tag='lpf')
            S(f'buffer_load_dword v{246 + 2*k}, v{t2}, s[{sM1}:{sM1+3}], s{sM1o} offen offset:{off}', tag='lpf')
        S(f's_mov_b64 exec, -1')
        S(f's_and_b32 s{sT}, s{sC}, 3\ns_lshl_b32 s{sT}, s{sT}, 5\ns_lshl_b32 s{sT2}, s{sW}, 2\ns_add_u32 s{sT}, s{sT}, s{sT2}')
        S(f'v_lshrrev_b32 v{t0}, 3, v{vLane}\nv_add_u32 v{t0}, s{sT}, v{t0}\nv_lshlrev_b32 v{t0}, 10, v{t0}\nv_and_b32 v{t1}, 7, v{vLane}\nv_lshl_add_u32 v{t0}, v{t1}, 7, v{t0}')
        S(f's_mov_b32 exec_hi, 0')
        S(f'buffer_load_dword v{249}, v{t0}, s[{sX}:{sX+3}], s{sXo} offen', tag='lpf')
        S(f's_mov_b32 exec_hi, -1')
    if CSS:
        S(f'v_lshrrev_b32 v{t0}, 3, v{vLane}\ns_lshl_b32 s{sT}, s{sW}, 2\nv_add_u32 v{t0}, s{sT}, v{t0}\nv_mul_u32_u24 v{t0}, 3072, v{t0}')
        S(f's_lshr_b32 s{sT}, s{sW}, 1\ns_and_b32 s{sT}, s{sT}, 1\ns_lshl_b32 s{sT}, s{sT}, 1')
        S(f'v_bfe_u32 v{t1}, v{vLane}, 4, 1\nv_or_b32 v{t1}, s{sT}, v{t1}\nv_lshlrev_b32 v{t1}, 1, v{t1}\nv_and_b32 v{t2}, 7, v{vLane}\nv_xor_b32 v{t1}, v{t1}, v{t2}')
        S(f'v_lshl_add_u32 v{vDq2}, v{t1}, 4, v{t0}')
    def cs_groups():
        return [[(f's_mul_i32 s{sXc}, s{sTb}, s{sStepM}', None), (f's_lshl_b32 s{sT2}, s{sW}, 10', None), (f's_add_u32 m0, s{sT2}, {CSB}', None), (f's_add_u32 s{sT}, s{sXc}, s{sM0o}', None),
                 (f'buffer_load_dwordx4 v{vDm}, s[{sM0}:{sM0+3}], s{sT} offen lds', 'cs')],
                [(f's_mul_i32 s{sXc}, s{sTb}, s{sStepM}', None), (f's_lshl_b32 s{sT2}, s{sW}, 10', None), (f's_add_u32 m0, s{sT2}, {CSB + 8192}', None), (f's_add_u32 s{sT}, s{sXc}, s{sM1o}', None),
                 (f'buffer_load_dwordx4 v{vDm}, s[{sM1}:{sM1+3}], s{sT} offen lds', 'cs')],
                [(f's_lshl_b32 s{sT2}, s{sW}, 9', None), (f's_add_u32 m0, s{sT2}, {CSB + 16384}', None), (f's_mul_i32 s{sT}, s{sTb}, {32*3072}', None), (f's_add_u32 s{sT}, s{sT}, s{sQo}', None),
                 (f's_mov_b32 exec_hi, 0', None), (f'buffer_load_dwordx4 v{vDq2}, s[{sQK}:{sQK+3}], s{sT} offen lds', 'cs'), (f's_mov_b32 exec_hi, -1', None)]]
    if TS:
        S(f's_lshl_b32 s{sTok}, s{sTb}, 7\ns_lshl_b32 s{sT}, s{sC}, 3\ns_add_u32 s{sTok}, s{sTok}, s{sT}\ns_add_u32 s{sTok}, s{sTok}, s{sW}')
        S(f's_lshl_b32 s{sT}, s{sTok}, 10\nv_lshlrev_b32 v{t5}, 4, v{vLane}')
        S(f'buffer_load_dwordx4 {vr(XS,4)}, v{t5}, s[{sX}:{sX+3}], s{sT} offen', tag='tsx')
    srd_ws(S, sWS, 56)
    if fused:
        srd(S, sDbg, 92, 256)
        S(f's_lshl_b32 s{sT}, s{sC}, 11\ns_lshl_b32 s{sT2}, s{sTb}, 7\ns_add_u32 s{sFQ}, s{sT}, s{sT2}\ns_add_u32 s{sFQ}, s{sFQ}, {FQ_OFF}')
        S(f's_lshl_b32 s{sT}, s{sTb}, 13\ns_lshl_b32 s{sT2}, s{sC}, 9\ns_add_u32 s{sFH}, s{sT}, s{sT2}\ns_add_u32 s{sFH}, s{sFH}, {FH_OFF}')
        if PROT == 2:
            S(f's_cmp_ge_u32 s2, 8\ns_cbranch_scc1 {L}_noclr')
            X = acc[0][0]
            for i in range(4): S(f'v_mov_b32 v{X+i}, 0')
            S(f's_mul_i32 s{sT}, s2, 40960\ns_mul_i32 s{sT2}, s{sW}, 5120\ns_add_u32 s{sT}, s{sT}, s{sT2}\ns_add_u32 s{sT}, s{sT}, {FLAG_OFF}')
            S(f'v_lshlrev_b32 v{vT[1]}, 4, v{vLane}')
            for k in range(5):
                S(f'buffer_store_dwordx4 {vr(X,4)}, v{vT[1]}, s[{sWS}:{sWS+3}], s{sT} offen offset:{(k % 4)*1024} sc1', tag='nocount')
                if k == 3: S(f's_add_u32 s{sT}, s{sT}, 4096')
        else:
            S(f's_cmp_lg_u32 s{sW}, 7\ns_cbranch_scc1 {L}_noclr')
            S(f's_and_b32 s{sT}, s2, 7\ns_lshl_b32 s{sT}, s{sT}, 2\ns_lshr_b32 s{sT2}, s2, 6\ns_add_u32 s{sT}, s{sT}, s{sT2}\ns_lshl_b32 s{sT}, s{sT}, 7')
            S(f's_lshr_b32 s{sT2}, s2, 3\ns_and_b32 s{sT2}, s{sT2}, 7\ns_lshl_b32 s{sT2}, s{sT2}, 14\ns_add_u32 s{sT}, s{sT}, s{sT2}\ns_add_u32 s{sT}, s{sT}, {FO_OFF}')
            S(f'v_lshlrev_b32 v{vT[1]}, 12, v{vLane}')
            S(f'v_add_u32 v{vT[1]}, s{sT}, v{vT[1]}')
            S(f'v_mov_b32 v{vT[2]}, s{sFQ}\nv_cmp_eq_u32 vcc, 4, v{vLane}\nv_cndmask_b32 v{vT[1]}, v{vT[1]}, v{vT[2]}, vcc')
            S(f'v_mov_b32 v{vT[2]}, s{sFH}\nv_cmp_eq_u32 vcc, 5, v{vLane}\nv_cndmask_b32 v{vT[1]}, v{vT[1]}, v{vT[2]}, vcc')
            S(f'v_mov_b32 v{vT[2]}, 0')
            S(f's_mov_b64 exec, 63')
            S(f'buffer_store_dword v{vT[2]}, v{vT[1]}, s[{sWS}:{sWS+3}], 0 offen sc1', tag='nocount')
            S(f's_mov_b64 exec, -1')
        S.label(f'{L}_noclr')
    S(f's_lshl_b32 s{sT}, s{sTh}, 6')
    S(f'v_add_u32 v{t0}, s{sT}, v{vN}')
    S(f'v_lshlrev_b32 v{t0}, 7, v{t0}')
    S(f'v_lshrrev_b32 v{t1}, 1, v{vN}')
    S(f'v_xor_b32 v{t1}, v{t1}, v{vG}')
    S(f'v_lshl_add_u32 v{vXa[0]}, v{t1}, 4, v{t0}')
    S(f'v_xor_b32 v{vXa[1]}, 64, v{vXa[0]}')
    S(f's_lshl_b32 s{sT}, s{sFq}, 11')
    S(f'v_add_u32 v{vXs[0]}, s{sT}, v{vXa[0]}')
    S(f'v_add_u32 v{vXs[1]}, s{sT}, v{vXa[1]}')
    vR, vCq = t4, t5
    S(f'v_lshrrev_b32 v{vR}, 2, v{vN}')
    S(f'v_and_b32 v{vCq}, 3, v{vN}')
    S(f'v_lshl_add_u32 v{t0}, v{vG}, 3, v{vR}')
    S(f'v_lshrrev_b32 v{t1}, 1, v{vR}')
    S(f'v_and_b32 v{t2}, 1, v{vG}')
    S(f'v_lshl_or_b32 v{t1}, v{t2}, 1, v{t1}')
    S(f'v_xor_b32 v{t1}, s{sFq}, v{t1}')
    S(f'v_lshlrev_b32 v{t1}, 1, v{t1}')
    S(f'v_lshrrev_b32 v{t2}, 1, v{vCq}')
    S(f'v_add_u32 v{t1}, v{t1}, v{t2}')
    S(f'v_lshlrev_b32 v{t1}, 4, v{t1}')
    S(f'v_and_b32 v{t2}, 1, v{vCq}')
    S(f'v_lshl_add_u32 v{t1}, v{t2}, 3, v{t1}')
    S(f'v_lshl_add_u32 v{vQa}, v{t0}, 7, v{t1}')
    S(f'v_add_u32 v{vQa}, 16384, v{vQa}')
    S(f'v_and_b32 v{t2}, 1, v{vG}')
    S(f'v_lshl_or_b32 v{t1}, v{t2}, 2, v{vR}')
    S(f'v_lshlrev_b32 v{t1}, 1, v{t1}')
    S(f'v_lshrrev_b32 v{t2}, 1, v{vCq}')
    S(f'v_xor_b32 v{t1}, v{t1}, v{t2}')
    S(f'v_lshlrev_b32 v{t1}, 4, v{t1}')
    S(f'v_and_b32 v{t2}, 1, v{vCq}')
    S(f'v_lshl_add_u32 v{t1}, v{t2}, 3, v{t1}')
    S(f'v_lshl_add_u32 v{t1}, v{t0}, 8, v{t1}')
    for i in range(4):
        S(f's_lshl_b32 s{sT}, s{sFq}, 1\ns_add_u32 s{sT}, s{sT}, {i & 1}\ns_lshl_b32 s{sT}, s{sT}, 5')
        S(f's_add_u32 s{sT}, s{sT}, {(i >> 1) * 8192}')
        S(f's_and_b32 s{sT2}, s{sFq}, 1\ns_lshl_b32 s{sT2}, s{sT2}, 2\ns_add_u32 s{sT2}, s{sT2}, {i}\ns_lshl_b32 s{sT2}, s{sT2}, 5')
        S(f's_lshr_b32 s{sT3}, s{sFq}, 1\ns_lshl_b32 s{sT3}, s{sT3}, 13\ns_add_u32 s{sT2}, s{sT2}, s{sT3}')
        S(f's_cmp_eq_u32 s{sIsB}, 1\ns_cselect_b32 s{sT}, s{sT2}, s{sT}')
        S(f'v_xor_b32 v{vMa[i]}, s{sT}, v{t1}')
        S(f'v_add_u32 v{vMa[i]}, {MB}, v{vMa[i]}')
        if NM > 4: S(f'v_add_u32 v{vMb[i]}, {2*MSZ}, v{vMa[i]}')
    if 'q' in xp:
        for f in range(2, 5):
            for tt in range(4):
                for r in range(4): S(f'v_mov_b32 v{acc[f][tt]+r}, 0')
        for f in range(5):
            for r in range(4): S(f'v_mov_b32 v{vCs[f]+r}, 0')
    for r in vSum + vSq: S(f'v_mov_b32 v{r}, 0')
    if 'O' in xp:
        for i in range(4): S(f'v_mov_b32 v{vOnes+i}, 0x3f803f80')
    else:
        S(f'v_cmp_eq_u32 vcc, 0, v{vN}')
        S(f'v_mov_b32 v{t0}, 0x3f803f80')
        S(f'v_cndmask_b32 v{vOnes}, 0, v{t0}, vcc')
        for i in range(1, 4): S(f'v_mov_b32 v{vOnes+i}, v{vOnes}')
    S(f's_mov_b32 s{sMaskHi}, 0xffff0000')

    def reads(s):
        b = s & 1; sp = s & 1; j = s // 2
        bs = (j % NBIG) * BIGSZ + BIG; ms = (s % NM) * MSZ
        out = []
        for tt in range(4):
            out.append(f'ds_read_b128 {vr(B[b][tt],4)}, v{vXa[sp]} offset:{bs + tt*2048}')
        for rd in range(2):
            out.append(f'ds_read_b64_tr_b16 {vr(A[b][0]+2*rd,2)}, v{vQa} offset:{bs + (32*sp + 4*rd)*128}')
        if 'S' not in xp and not TS: out.append(f'ds_read_b128 {vr(Bs[b],4)}, v{vXs[sp]} offset:{bs}')
        for i in range(4):
            for rd in range(2):
                if ms >= 2*MSZ and NM > 4: out.append(f'ds_read_b64_tr_b16 {vr(A[b][1+i]+2*rd,2)}, v{vMb[i]} offset:{ms - 2*MSZ + rd*1024}')
                else: out.append(f'ds_read_b64_tr_b16 {vr(A[b][1+i]+2*rd,2)}, v{vMa[i]} offset:{ms + rd*1024}')
        return out
    def mfmas(s, typeB):
        b = s & 1; out = []
        for f in range(5):
            for tt in range(4):
                c = '0' if s == 0 else vr(acc[f][tt], 4)
                a_, b_ = vr(A[b][f], 4), vr(B[b][tt], 4)
                if typeB and f > 0: a_, b_ = b_, a_
                out.append(f'v_mfma_f32_16x16x32_bf16 {vr(acc[f][tt],4)}, {a_}, {b_}, {c}')
        return out
    def stats(s):
        b = s & 1; out = []
        for r in range(4):
            p = Bs[b] + r
            out.append(f'v_lshlrev_b32 v{vLo}, 16, v{p}')
            out.append(f'v_and_b32 v{vHi}, s{sMaskHi}, v{p}')
            out.append(f'v_add_f32 v{vSum[0]}, v{vSum[0]}, v{vLo}')
            out.append(f'v_add_f32 v{vSum[1]}, v{vSum[1]}, v{vHi}')
            out.append(f'v_fma_f32 v{vSq[0]}, v{vLo}, v{vLo}, v{vSq[0]}')
            out.append(f'v_fma_f32 v{vSq[1]}, v{vHi}, v{vHi}, v{vSq[1]}')
        return out
    def ts_ops():
        a_, b_, lo, hi = Bs[1], Bs[1] + 1, Bs[1] + 2, Bs[1] + 3
        ra_, rb_, rs_, ro_ = vSum[0], vSum[1], vSq[0], vSq[1]
        o = [f'v_mov_b32 v{a_}, 0', f'v_mov_b32 v{b_}, 0']
        for r in range(4):
            o += [f'v_lshlrev_b32 v{lo}, 16, v{XS+r}', f'v_and_b32 v{hi}, s{sMaskHi}, v{XS+r}',
                  f'v_add_f32 v{a_}, v{a_}, v{lo}', f'v_fma_f32 v{b_}, v{lo}, v{lo}, v{b_}',
                  f'v_add_f32 v{a_}, v{a_}, v{hi}', f'v_fma_f32 v{b_}, v{hi}, v{hi}, v{b_}']
        for sh in (1, 2, 4, 8):
            for r in (a_, b_): o.append(f'v_add_f32_dpp v{r}, v{r}, v{r} row_shr:{sh} row_mask:0xf bank_mask:0xf bound_ctrl:0')
        for r in (a_, b_): o.append(f'v_add_f32_dpp v{r}, v{r}, v{r} row_bcast:15 row_mask:0xa bank_mask:0xf')
        for r in (a_, b_): o.append(f'v_add_f32_dpp v{r}, v{r}, v{r} row_bcast:31 row_mask:0xc bank_mask:0xf')
        o += [f'v_mul_f32 v{a_}, {fhex(1/512)}, v{a_}', f'v_mul_f32 v{b_}, {fhex(1/512)}, v{b_}', f'v_fma_f32 v{b_}, -v{a_}, v{a_}, v{b_}',
              f'v_max_f32 v{b_}, 0, v{b_}', f'v_add_f32 v{b_}, {fhex(1e-5)}, v{b_}', f'v_rsq_f32 v{ra_}, v{b_}', f'v_sqrt_f32 v{rs_}, v{b_}', f'v_sub_f32 v{rb_}, 0, v{a_}']
        return o
    def ts_store():
        ra_, rb_, rs_, ro_ = vSum[0], vSum[1], vSq[0], vSq[1]
        S(f's_lshl_b32 s{sT}, s{sTok}, 2\nv_mov_b32 v{ro_}, s{sT}\ns_mov_b32 s{sT2}, {STATS_OFF}')
        S(f's_mov_b32 exec_lo, 0\ns_mov_b32 exec_hi, 0x80000000')
        for k, r in enumerate((ra_, rb_, rs_)):
            S(f'buffer_store_dword v{r}, v{ro_}, s[{sWS}:{sWS+3}], s{sT2} offen sc1', tag='tss')
            if k < 2: S(f's_add_u32 s{sT2}, s{sT2}, 8192')
        S('s_mov_b64 exec, -1')
    def csmfmas(s, typeB, first):
        b = s & 1; out = []
        for f in range(5):
            c = '0' if first else vr(vCs[f], 4)
            a_, b_ = vr(A[b][f], 4), vr(vOnes, 4)
            if typeB and f > 0: a_, b_ = b_, a_
            out.append(f'v_mfma_f32_16x16x32_bf16 {vr(vCs[f],4)}, {a_}, {b_}, {c}')
        return out

    def mainloop(typeB, duty):
        tag = ('B' if typeB else 'A') + str(duty)
        S.wait_vm(('big', 0)); S.wait_vm(('m', 0))
        S('s_waitcnt lgkmcnt(0)')
        S('s_barrier')
        if stamps: S(f's_memtime s[{sSt+2}:{sSt+3}]\ns_memrealtime s[{sSt+18}:{sSt+19}]')
        if dbg and 'K' not in xp and 'k' not in xp and 'j' not in xp: dbg_stamp(S, 84, 1, 0, 0, 0)
        if tr: trace(S, 1)
        for r in reads(0): S(r)
        for s in range(16):
            S('s_waitcnt lgkmcnt(0)')
            if s + 1 < 16:
                S.wait_vm(('m', s + 1)); S.wait_vm(('big', (s + 1) // 2))
            if CSS and s == 2: S.wait_vm('cs')
            if CSS and s == 15: S.wait_vm('csg')
            if steptrace:
                if s > 0: S(f'v_writelane_b32 v254, s72, {2*s-2}\nv_writelane_b32 v254, s74, {2*s-1}')
                S('s_memtime s[72:73]')
            S('s_barrier')
            if steptrace: S('s_memtime s[74:75]')
            if fused and PROT == 2 and s == 10:
                S(f'v_lshlrev_b32 v{vT[4]}, 2, v{vLane}\ns_mov_b64 exec, 3')
                S(f'buffer_load_dword v{vT[5]}, v{vT[4]}, s[{sDbg}:{sDbg+3}], 0 offen sc1', tag='clrchk')
                S('s_mov_b64 exec, -1')
            if fused and s == (4 if PROT == 2 else 7 if CSS else 5 if TS else SIG):
                lb = f'{L}_{tag}_sig'
                if PROT == 2: S(f's_cmp_ge_u32 s2, 8\ns_cbranch_scc1 {lb}')
                S(f's_cmp_lg_u32 s{sW}, 7\ns_cbranch_scc1 {lb}')
                S(f'v_mov_b32 v{vT[0]}, s2\nv_mov_b32 v{vT[1]}, 1\ns_mov_b64 exec, 1')
                S(f'buffer_store_byte v{vT[1]}, v{vT[0]}, s[{sDbg}:{sDbg+3}], 0 offen sc1', tag='nocount')
                S('s_mov_b64 exec, -1')
                S.label(lb)
            if CSS and s == 4:
                lb = f'{L}_{tag}_css'
                S(f's_cmp_lg_u32 s{sTh}, 0\ns_cbranch_scc1 {lb}')
                S(f's_lshl_b32 s{sT}, s{sC}, 4\ns_add_u32 s{sT}, s{sT}, s{sTb}\ns_mul_i32 s{sT}, s{sT}, 1280\ns_mul_i32 s{sT2}, s{sFq}, 320\ns_add_u32 s{sT}, s{sT}, s{sT2}\ns_add_u32 s{sT}, s{sT}, {CSP_OFF}')
                S(f'v_lshlrev_b32 v{vT[2]}, 4, v{vG}\nv_lshlrev_b32 v{vT[3]}, 2, v{vN}')
                S(f's_mov_b32 s4, 0x00010001\ns_mov_b32 s5, 0x00010001\ns_mov_b64 exec, s[4:5]')
                for f in range(5):
                    if not (typeB and f > 0): S(f'buffer_store_dwordx4 {vr(vCs[f],4)}, v{vT[2]}, s[{sWS}:{sWS+3}], s{sT} offen offset:{f*64} sc1', tag='nocount')
                if typeB:
                    S('s_mov_b64 exec, 0xffff')
                    for f in range(1, 5): S(f'buffer_store_dword v{vCs[f]}, v{vT[3]}, s[{sWS}:{sWS+3}], s{sT} offen offset:{f*64} sc1', tag='nocount')
                S('s_mov_b64 exec, -1')
                S.label(lb)
            if CSS and s == CSL:
                S(f'v_lshlrev_b32 v{vT[4]}, 2, v{vLane}')
                S(f'buffer_load_dword v{vT[5]}, v{vT[4]}, s[{sDbg}:{sDbg+3}], 0 offen sc1', tag='dbgchk')
            if CSS and s == CSL + 2:
                lb = f'{L}_{tag}_csc'
                S(f'v_cmp_ne_u32 vcc, 0x01010101, v{vT[5]}')
                S(f's_cmp_eq_u64 vcc, 0\ns_cbranch_scc1 {lb}')
                if 'Z' in xp: S(f's_branch {lb}')
                R = Stream(); poll(R, sDbg, vT[4], vT[5], sMc, '0x01010101', 64)
                S.raw_text(Processor().run(R).text())
                S.label(lb)
                S(f'v_lshlrev_b32 v{vT[4]}, 4, v{vLane}\ns_mul_i32 s{sT3}, s{sC}, 20480\ns_add_u32 s{sT3}, s{sT3}, {CSP_OFF}')
                for k in range(3):
                    S(f's_mul_i32 s{sT}, s{sW}, 3\ns_add_u32 s{sT}, s{sT}, {k}\ns_min_u32 s{sT}, s{sT}, 19\ns_lshl_b32 s{sT}, s{sT}, 10')
                    S(f's_add_u32 m0, s{sT}, {CSB}\ns_add_u32 s{sT}, s{sT}, s{sT3}')
                    S(f'buffer_load_dwordx4 v{vT[4]}, s[{sWS}:{sWS+3}], s{sT} offen sc1 lds', tag='csg')
            if TS and s == 9:
                S(f'v_lshlrev_b32 v{vLo}, 2, v{vLane}')
                S(f'buffer_load_dword v{vHi}, v{vLo}, s[{sDbg}:{sDbg+3}], 0 offen sc1', tag='dbgchk')
            if TS and s == 11:
                lb = f'{L}_{tag}_ts'
                S(f'v_cmp_ne_u32 vcc, 0x01010101, v{vHi}')
                S(f's_cmp_eq_u64 vcc, 0\ns_cbranch_scc1 {lb}')
                R = Stream(); poll(R, sDbg, vLo, vHi, sMc, '0x01010101', 64)
                S.raw_text(Processor().run(R).text())
                S.label(lb)
            if TS and s == 12:
                S(f's_min_u32 s{sT}, s{sW}, 5\ns_cmp_eq_u32 s{sW}, 6\ns_cselect_b32 s{sT}, 4, s{sT}')
                S(f's_lshr_b32 s{sT2}, s{sT}, 1\ns_and_b32 s{sT}, s{sT}, 1')
                S(f's_lshl_b32 s{sT3}, s{sT2}, 9\ns_lshl_b32 s{sMc}, s{sT}, 8\ns_add_u32 s{sT3}, s{sT3}, s{sMc}\ns_add_u32 m0, s{sT3}, {ST_SUM}')
                S(f's_lshl_b32 s{sT2}, s{sT2}, 13\ns_lshl_b32 s{sT3}, s{sTb}, 9\ns_add_u32 s{sT2}, s{sT2}, s{sT3}\ns_add_u32 s{sT2}, s{sT2}, s{sMc}\ns_add_u32 s{sT2}, s{sT2}, {STATS_OFF}')
                S(f'v_lshlrev_b32 v{vLo}, 2, v{vLane}')
                S(f'buffer_load_dword v{vLo}, s[{sWS}:{sWS+3}], s{sT2} offen sc1 lds', tag='ts')
            if PF and s == PFSTEP:
                S(f's_lshl_b32 s{sT}, s{sW}, 13')
                S(f'v_lshlrev_b32 v{vT[0]}, 7, v{vLane}\nv_add_u32 v{vT[0]}, s{sT}, v{vT[0]}')
                S(f's_mov_b32 s{sT}, {L}_end-{L}_pc-4')
                S(f'v_min_u32 v{vT[0]}, s{sT}, v{vT[0]}')
                for k in range(PF):
                    S(f'global_load_dword v{vEp+15}, v{vT[0]}, s[{sPc}:{sPc+1}]', tag='pf')
            groups = []
            if SCHED and NM == 5 and PRO == 2:
                table = {0: [('m', 3), ('big', 2)], 1: [('m', 4), ('m', 5)], 2: [('m', 6), ('big', 3)], 3: [('m', 7), ('m', 8)], 4: [('m', 9), ('big', 4)],
                         5: [('m', 10)], 6: [('m', 11), ('big', 5)], 7: [('m', 12)], 8: [('m', 13), ('big', 6)], 9: [('m', 14)], 10: [('m', 15), ('big', 7)]}
                for kind, idx in table.get(s, []): groups += (dma_big_groups(idx) if kind == 'big' else dma_m_groups(idx))
            else:
                if s == 0:
                    for kind, idx in late: groups += (dma_big_groups(idx) if kind == 'big' else dma_m_groups(idx))
                if s + NM < 16 and 'D' not in xp: groups += (dma_m_groups(s + NM) if 'q' not in xp else dma_m_groups(s + NM)[:1] if s % 2 == 0 else [])
                if s % 2 == 1 and (s - 1) // 2 + 3 < 8 and 'D' not in xp: groups += dma_big_groups((s - 1) // 2 + 3)
            if CSS and s == 0: groups += cs_groups()
            mm = mfmas(s, typeB)
            if 'q' in xp:
                mm = mm[:4] + mm[4:9]
            if 'q' not in xp and not CSS and s % 2 == duty and 'S' not in xp:
                cm = csmfmas(s, typeB, s < 2)
                mm = [x for f in range(5) for x in mm[4*f:4*f+4] + [cm[f]]]
            if CSS and s == 3:
                cm = []
                for f in range(5):
                    a_, b_ = vr(CT[f], 4), vr(vOnes, 4)
                    if typeB and f > 0: a_, b_ = b_, a_
                    cm.append(f'v_mfma_f32_16x16x32_bf16 {vr(vCs[f],4)}, {a_}, {b_}, 0')
                mm = [x for f in range(5) for x in mm[4*f:4*f+4] + [cm[f]]]
            rr = reads(s + 1) if s + 1 < 16 else []
            if 'q' in xp: rr = rr[:11]
            if CSS and s == 2:
                rr = list(rr)
                rr += [f'v_add_u32 v{vT[2]}, {CSB + 16384 - 16384}, v{vQa}',
                       f'ds_read_b64_tr_b16 {vr(CT[0],2)}, v{vT[2]} offset:0', f'ds_read_b64_tr_b16 {vr(CT[0]+2,2)}, v{vT[2]} offset:512']
                for i in range(4):
                    tv = vT[3 + (i & 1)]
                    rr += [f'v_add_u32 v{tv}, {CSB - MB}, v{vMa[i]}',
                           f'ds_read_b64_tr_b16 {vr(CT[1+i],2)}, v{tv} offset:0', f'ds_read_b64_tr_b16 {vr(CT[1+i]+2,2)}, v{tv} offset:1024']
            if CSS and s == 15:
                rr = [f'v_min_u32 v{vT[2]}, 319, v0', f'v_lshlrev_b32 v{vT[2]}, 2, v{vT[2]}', f'v_add_u32 v{vT[3]}, {CSB}, v{vT[2]}']
                rr += [f'ds_read_b32 v{232 + j}, v{vT[3]} offset:{j*1280}' for j in range(16)]
            if 'R' in xp: rr = []
            st = stats(s) if ('S' not in xp and not TS) else (ts_ops() if (TS and s == 1) else [])
            n = len(mm)
            dpos = {}
            if groups:
                first = DMA_FIRST; stride = max(1, (n - first) // len(groups))
                for i, g in enumerate(groups): dpos[min(n - 1, first + i * stride)] = dpos.get(min(n - 1, first + i * stride), []) + [g]
            k = 0; q = 0
            for i, m in enumerate(mm):
                S(m)
                nr = max(1, (len(rr) + n - 1) // n) if len(rr) > n else 1
                for _ in range(nr):
                    if k < len(rr): S(rr[k]); k += 1
                nq = (len(st) * (i + 1) + n - 1) // n
                while q < nq: S(st[q]); q += 1
                for g in dpos.get(i, []): emit_group(g)
            if TS and s == 1: ts_store()
        if stamps: S(f's_memtime s[{sSt+4}:{sSt+5}]\ns_memrealtime s[{sSt+20}:{sSt+21}]')

    def greduce(r):
        S(f'v_mov_b32 v{t0}, v{r}')
        S(f'v_permlane32_swap_b32 v{r}, v{t0}')
        S(f'v_add_f32 v{r}, v{r}, v{t0}')
        S(f'v_mov_b32 v{t0}, v{r}')
        S(f'v_permlane16_swap_b32 v{r}, v{t0}')
        S(f'v_add_f32 v{r}, v{r}, v{t0}')
    def reduce_stats(typeB):
        if not TS:
            S(f'v_add_f32 v{vSum[0]}, v{vSum[0]}, v{vSum[1]}')
            S(f'v_add_f32 v{vSq[0]}, v{vSq[0]}, v{vSq[1]}')
            for r in [vSum[0], vSq[0]]: greduce(r)
            ab_from(vSum[0], vSq[0], vSum[1], vSq[1], vLo)
            S(f's_lshl_b32 s{sT}, s{sTh}, 6\ns_lshl_b32 s{sT2}, s{sFq}, 4\ns_add_u32 s{sT}, s{sT}, s{sT2}')
            S(f'v_add_u32 v{t0}, s{sT}, v{vN}')
            S(f'v_lshlrev_b32 v{t0}, 2, v{t0}')
            S(f'v_add_u32 v{t0}, {ST_SUM}, v{t0}')
            S(f'ds_write_b32 v{t0}, v{vSum[1]}')
            S(f'ds_write_b32 v{t0}, v{vSq[1]} offset:512')
            S(f'ds_write_b32 v{t0}, v{vLo} offset:1024')
        else:
            S.wait_vm('ts')
        if CSS:
            for st_ in (1, 2, 4, 8):
                for j in range(0, 16, 2*st_): S(f'v_add_f32 v{232+j}, v{232+j}, v{232+j+st_}')
            S(f'v_add_u32 v{vT[2]}, {ST_CS}, v{vT[2]}')
            S(f'ds_write_b32 v{vT[2]}, v232')
        else:
            S(f's_mul_i32 s{sT}, s{sFq}, 320\ns_mul_i32 s{sT2}, s{sDuty}, 1280\ns_add_u32 s{sT}, s{sT}, s{sT2}\ns_add_u32 s{sT}, s{sT}, {ST_CS}')
            S(f'v_lshlrev_b32 v{t1}, 4, v{vG}')
            S(f'v_add_u32 v{t1}, s{sT}, v{t1}')
            S(f'v_lshlrev_b32 v{t2}, 2, v{vN}')
            S(f'v_add_u32 v{t2}, s{sT}, v{t2}')
            S('s_nop 7')
            S(f's_mov_b32 s4, 0x00010001\ns_mov_b32 s5, 0x00010001\ns_mov_b64 exec, s[4:5]')
            for f in range(5):
                if not (typeB and f > 0): S(f'ds_write_b128 v{t1}, {vr(vCs[f],4)} offset:{f*64}')
            if typeB:
                S(f's_mov_b64 exec, 0xffff')
                for f in range(1, 5): S(f'ds_write_b32 v{t2}, v{vCs[f]} offset:{f*64}')
            S('s_mov_b64 exec, -1')
        S('s_waitcnt lgkmcnt(0)')
        S('s_barrier')

    SC = ' sc1' if fused else ''
    def publish(sflag, tag, lb):
        if tr: trace(S, 5)
        S.wait_vm(tag)
        S('s_barrier')
        if tr: trace(S, 6)
        S(f's_cmp_lg_u32 s{sW}, 0\ns_cbranch_scc1 {lb}')
        S(f'v_mov_b32 v{t4}, 0\nv_mov_b32 v{t5}, 1\ns_mov_b64 exec, 1')
        if setmod == 'atomic': S(f'buffer_atomic_add v{t5}, v{t4}, s[{sWS}:{sWS+3}], s{sflag} offen sc1', tag='nocount')
        else: S(f'buffer_store_dword v{t5}, v{t4}, s[{sWS}:{sWS+3}], s{sflag} offen sc1', tag='nocount')
        S('s_mov_b64 exec, -1')
        S.label(lb)
    def epilogue(typeB):
        v = VAlloc(Bs[1] + 4, 'v', A[0][0])
        vP = v.alloc(8, 4); vcsr = v.alloc(4, 4)
        va = [vEp + i for i in range(4)]; vb = [vEp + 4 + i for i in range(4)]
        tq = [vEp + 8 + i for i in range(4)]
        vOff = vEp + 12; vAq = vEp + 13; vBq = vEp + 14
        vsd = [v.alloc() for _ in range(4)]
        def pk(op, d, srcs):
            txt = []; lo = []; hi = []
            for x in srcs:
                if x[0] == 'p': txt.append(vr(x[1], 2)); lo.append(0); hi.append(1)
                elif x[0] == 'b': txt.append(f'v[{x[1] & ~1}:{(x[1] & ~1) + 1}]'); lo.append(x[1] & 1); hi.append(x[1] & 1)
                else: txt.append(f's[{x[1]}:{x[1]+1}]'); lo.append(x[2]); hi.append(x[2])
            S(f'{op} {vr(d,2)}, ' + ', '.join(txt) + f' op_sel:[{",".join(map(str, lo))}] op_sel_hi:[{",".join(map(str, hi))}]')
        S(f'v_lshlrev_b32 v{vOff}, 4, v{vLane}')
        S(f's_lshl_b32 s{sT}, s{sTh}, 6')
        S(f'v_add_u32 v{t0}, s{sT}, v{vN}')
        S(f'v_lshlrev_b32 v{t0}, 2, v{t0}')
        S(f'v_add_u32 v{t0}, {ST_SUM}, v{t0}')
        for tt in range(4):
            S(f'ds_read_b32 v{va[tt]}, v{t0} offset:{tt*64}')
            S(f'ds_read_b32 v{vb[tt]}, v{t0} offset:{512 + tt*64}')
            if not typeB: S(f'ds_read_b32 v{vsd[tt]}, v{t0} offset:{1024 + tt*64}')
        S(f's_mul_i32 s{sT}, s{sFq}, 320')
        S(f'v_lshlrev_b32 v{t1}, 4, v{vG}')
        S(f'v_add_u32 v{t1}, s{sT}, v{t1}')
        S(f'v_add_u32 v{t1}, {ST_CS}, v{t1}')
        def rd_cs_row(dst, f):
            tmp = vCs[f]
            S(f'ds_read_b128 {vr(dst,4)}, v{t1} offset:{f*64}')
            if CSS: return []
            S(f'ds_read_b128 {vr(tmp,4)}, v{t1} offset:{f*64 + 1280}')
            return [f'v_add_f32 v{dst+r}, v{dst+r}, v{tmp+r}' for r in range(4)]
        for x in rd_cs_row(vcsr, 0): S(x)
        S(f's_cmp_lt_u32 s{sC}, 8\ns_cselect_b32 s{sScale}, {fhex(QSCALE)}, 1.0')
        for tt in range(4):
            S(f'v_mul_f32 v{vAq}, s{sScale}, v{va[tt]}')
            if PK:
                for r in (0, 2): pk('v_pk_fma_f32', acc[0][tt]+r, [('b', vb[tt]), ('p', vcsr+r), ('p', acc[0][tt]+r)])
                for r in (0, 2): pk('v_pk_mul_f32', acc[0][tt]+r, [('p', acc[0][tt]+r), ('b', vAq)])
            else:
                for r in range(4):
                    S(f'v_fma_f32 v{acc[0][tt]+r}, v{vb[tt]}, v{vcsr+r}, v{acc[0][tt]+r}')
                for r in range(4):
                    S(f'v_mul_f32 v{acc[0][tt]+r}, v{acc[0][tt]+r}, v{vAq}')
            S(f'v_cvt_pk_bf16_f32 v{vP+2*tt}, v{acc[0][tt]}, v{acc[0][tt]+1}')
            S(f'v_cvt_pk_bf16_f32 v{vP+2*tt+1}, v{acc[0][tt]+2}, v{acc[0][tt]+3}')
        S(f's_and_b32 s{sT}, s{sC}, 7\ns_lshl_b32 s{sT}, s{sT}, 2\ns_add_u32 s{sT}, s{sT}, s{sFq}\ns_lshl_b32 s{sT}, s{sT}, 16')
        S(f's_cmp_lt_u32 s{sC}, 8\ns_cselect_b32 s{sT2}, 0, {K_OFF - Q_OFF}\ns_add_u32 s{sT}, s{sT}, s{sT2}')
        S(f's_lshl_b32 s{sT2}, s{sTb}, 2\ns_lshl_b32 s{sT3}, s{sTh}, 1\ns_add_u32 s{sT2}, s{sT2}, s{sT3}\ns_lshl_b32 s{sT2}, s{sT2}, 10')
        S(f's_add_u32 s{sT}, s{sT}, s{sT2}')
        for p in range(2):
            x, y = vP + 4*p, vP + 4*p + 2
            S(f'v_permlane16_swap_b32 v{x}, v{y}')
            S(f'v_permlane16_swap_b32 v{x+1}, v{y+1}')
            S(f'buffer_store_dwordx4 {vr(x,4)}, v{vOff}, s[{sWS}:{sWS+3}], s{sT} offen offset:{p*1024}{SC}', tag='qk')
        if stamps: S(f's_memtime s[{sSt+14}:{sSt+15}]')
        if tr: trace(S, 4)
        if not typeB:
            cg = [v.alloc(4, 4) for _ in range(2)]; cu = [v.alloc(4, 4) for _ in range(2)]
            adds = []
            for i in range(2):
                adds += rd_cs_row(cg[i], 1+i); adds += rd_cs_row(cu[i], 3+i)
            for x in adds: S(x)
            K1 = -2 * LOG2E * 0.7978845608028654; K2 = K1 * 0.044715
            sK1, sK2 = 46, 47
            S(f's_mov_b32 s{sK1}, {fhex(K1)}\ns_mov_b32 s{sK2}, {fhex(K2)}')
            vk1 = v.alloc(); S(f'v_mov_b32 v{vk1}, s{sK1}')
            tg = v.alloc(4, 4); tu = v.alloc(4, 4); tz = v.alloc(4, 4)
            def gelu(i, tt, H):
                G, U = acc[1+i][tt], acc[3+i][tt]
                if PK:
                    R2 = (0, 2)
                    for r in R2: pk('v_pk_fma_f32', G+r, [('b', vb[tt]), ('p', cg[i]+r), ('p', G+r)])
                    for r in R2: pk('v_pk_fma_f32', U+r, [('b', vb[tt]), ('p', cu[i]+r), ('p', U+r)])
                    for r in R2: pk('v_pk_mul_f32', G+r, [('p', G+r), ('b', va[tt])])
                    for r in R2: pk('v_pk_mul_f32', tz+r, [('p', G+r), ('p', G+r)])
                    for r in R2: pk('v_pk_fma_f32', tz+r, [('p', tz+r), ('s', sK1, 1), ('s', sK1, 0)])
                    for r in R2: pk('v_pk_mul_f32', tz+r, [('p', tz+r), ('p', G+r)])
                    for r in range(4): S(f'v_exp_f32 v{tz+r}, v{tz+r}')
                    for r in R2: pk('v_pk_mul_f32', U+r, [('p', U+r), ('p', G+r)])
                    for r in R2: pk('v_pk_fma_f32', tz+r, [('p', tz+r), ('b', vsd[tt]), ('b', vsd[tt])])
                    for r in range(4): S(f'v_rcp_f32 v{tz+r}, v{tz+r}')
                    S('s_nop 0')
                    for r in R2: pk('v_pk_mul_f32', U+r, [('p', U+r), ('p', tz+r)])
                    S(f'v_cvt_pk_bf16_f32 v{H}, v{U}, v{U+1}')
                    S(f'v_cvt_pk_bf16_f32 v{H+1}, v{U+2}, v{U+3}')
                    return
                for r in range(4): S(f'v_fma_f32 v{G+r}, v{vb[tt]}, v{cg[i]+r}, v{G+r}')
                for r in range(4): S(f'v_fma_f32 v{U+r}, v{vb[tt]}, v{cu[i]+r}, v{U+r}')
                for r in range(4): S(f'v_mul_f32 v{G+r}, v{G+r}, v{va[tt]}')
                for r in range(4): S(f'v_mul_f32 v{tz+r}, v{G+r}, v{G+r}')
                for r in range(4): S(f'v_fma_f32 v{tz+r}, v{tz+r}, s{sK2}, v{vk1}')
                for r in range(4): S(f'v_mul_f32 v{tz+r}, v{tz+r}, v{G+r}')
                for r in range(4): S(f'v_exp_f32 v{tz+r}, v{tz+r}')
                for r in range(4): S(f'v_mul_f32 v{U+r}, v{U+r}, v{G+r}')
                for r in range(4): S(f'v_fma_f32 v{tz+r}, v{tz+r}, v{vsd[tt]}, v{vsd[tt]}')
                for r in range(4): S(f'v_rcp_f32 v{tz+r}, v{tz+r}')
                S('s_nop 0')
                for r in range(4): S(f'v_mul_f32 v{U+r}, v{U+r}, v{tz+r}')
                S(f'v_cvt_pk_bf16_f32 v{H}, v{U}, v{U+1}')
                S(f'v_cvt_pk_bf16_f32 v{H+1}, v{U+2}, v{U+3}')
            if act32:
                S(f's_lshl_b32 s{sT}, s{sTb}, 2\ns_lshl_b32 s{sT2}, s{sTh}, 1\ns_add_u32 s{sT}, s{sT}, s{sT2}\ns_mul_i32 s{sT}, s{sT}, {144*1024}')
                S(f's_lshl_b32 s{sT2}, s{sC}, 3\ns_lshl_b32 s{sT3}, s{sFq}, 1\ns_add_u32 s{sT2}, s{sT2}, s{sT3}\ns_lshl_b32 s{sT2}, s{sT2}, 10\ns_add_u32 s{sT}, s{sT}, s{sT2}')
                S(f's_add_u32 s{sT}, s{sT}, {ACT_OFF}')
                vH = [v.alloc(4, 4) for _ in range(2)]
                ND = ndefer if (fused and defer) else 0
                assert ND in (0, 1)
                blocks = [(p, i) for p in range(2) for i in range(2)]
                if fused and HD: S(f's_mov_b32 s{sHaddr}, s{sT}')
                for n, (p, i) in enumerate(blocks):
                    last = ND and n == 3
                    H = HCARRY + 12 if last else vH[n & 1]
                    if fused and HD: H = HCARRY + 4*n
                    if 'q' not in xp: gelu(i, 2*p, H); gelu(i, 2*p + 1, H + 2)
                    S(f'v_permlane16_swap_b32 v{H}, v{H+2}\nv_permlane16_swap_b32 v{H+1}, v{H+3}')
                    if not (fused and HD):
                        if last: S(f's_add_u32 s{sHaddr}, s{sT}, {i*1024}')
                        else: S(f'buffer_store_dwordx4 {vr(H,4)}, v{vOff}, s[{sWS}:{sWS+3}], s{sT} offen offset:{i*1024}{SC}', tag='h')
                        if n == 1: S(f's_add_u32 s{sT}, s{sT}, {144*1024}')
                    if fused and n == PUB_AT: publish(sFQ, 'qk', f'{L}_pq')
                if fused and HD:
                    S(f's_cmp_ge_u32 s{sW}, 4\ns_cbranch_scc1 {L}_hpass')
                    S(f's_lshl_b32 s{sT2}, s{sW}, 13\ns_add_u32 s{sT2}, s{sT2}, 131072\nv_add_u32 v{t0}, s{sT2}, v{vOff}')
                    for n in range(4): S(f'ds_write_b128 v{t0}, {vr(HCARRY + 4*n, 4)} offset:{n*1024}')
                    S('s_waitcnt lgkmcnt(0)')
                    S.label(f'{L}_hpass')
            else:
                S(f's_lshl_b32 s{sT}, s{sTb}, 3\ns_lshl_b32 s{sT2}, s{sTh}, 2\ns_add_u32 s{sT}, s{sT}, s{sT2}\ns_mul_i32 s{sT}, s{sT}, {72*1024}')
                S(f's_lshl_b32 s{sT2}, s{sC}, 2\ns_add_u32 s{sT2}, s{sT2}, s{sFq}\ns_lshl_b32 s{sT2}, s{sT2}, 10\ns_add_u32 s{sT}, s{sT}, s{sT2}')
                S(f's_add_u32 s{sT}, s{sT}, {ACT_OFF}')
                vH = [v.alloc(4, 4) for _ in range(2)]
                ND = ndefer if (fused and defer) else 0
                for tt in range(4):
                    H = vH[tt % 2] if tt < 4 - ND else HCARRY + 4*tt
                    if ND and tt == 4 - ND: S(f's_mov_b32 s{sHaddr}, s{sT}')
                    for i in range(2): gelu(i, tt, H + 2*i)
                    if tt < 4 - ND:
                        S(f'buffer_store_dwordx4 {vr(H,4)}, v{vOff}, s[{sWS}:{sWS+3}], s{sT} offen{SC}', tag='h')
                        if tt < 3: S(f's_add_u32 s{sT}, s{sT}, {72*1024}')
                    if fused and tt == PUB_AT: publish(sFQ, 'qk', f'{L}_pq')
            if fused and not defer: publish(sFH, 'h', f'{L}_ph')
        else:
            ra = [v.alloc(4, 4) for _ in range(4)]; rb = [v.alloc(4, 4) for _ in range(4)]
            S(f's_lshl_b32 s{sT}, s{sTh}, 8')
            S(f'v_lshlrev_b32 v{t2}, 4, v{vG}')
            S(f'v_add_u32 v{t2}, s{sT}, v{t2}')
            S(f'v_add_u32 v{t2}, {ST_SUM}, v{t2}')
            for tt in range(4):
                S(f'ds_read_b128 {vr(ra[tt],4)}, v{t2} offset:{tt*64}')
                S(f'ds_read_b128 {vr(rb[tt],4)}, v{t2} offset:{512 + tt*64}')
            cv = [v.alloc() for _ in range(4)]
            S(f's_mul_i32 s{sT}, s{sFq}, 320')
            S(f'v_lshlrev_b32 v{t3}, 2, v{vN}')
            S(f'v_add_u32 v{t3}, s{sT}, v{t3}')
            S(f'v_add_u32 v{t3}, {ST_CS}, v{t3}')
            for i in range(4):
                S(f'ds_read_b32 v{cv[i]}, v{t3} offset:{(1+i)*64}')
                if not CSS: S(f'ds_read_b32 v{vCs[1+i]}, v{t3} offset:{(1+i)*64 + 1280}')
            if not CSS:
                for i in range(4): S(f'v_add_f32 v{cv[i]}, v{cv[i]}, v{vCs[1+i]}')
            S(f's_sub_u32 s{sT}, s{sC}, 14\ns_lshl_b32 s{sT}, s{sT}, 4\ns_lshl_b32 s{sT2}, s{sFq}, 2\ns_add_u32 s{sT}, s{sT}, s{sT2}\ns_lshl_b32 s{sT}, s{sT}, 16')
            S(f's_lshl_b32 s{sT2}, s{sTb}, 2\ns_lshl_b32 s{sT3}, s{sTh}, 1\ns_add_u32 s{sT2}, s{sT2}, s{sT3}\ns_lshl_b32 s{sT2}, s{sT2}, 10')
            S(f's_add_u32 s{sT}, s{sT}, s{sT2}\ns_add_u32 s{sT}, s{sT}, {V_OFF}')
            vH = [v.alloc(4, 4) for _ in range(2)]
            n = 0
            for i in range(4):
                for p in range(2):
                    H = vH[n & 1]; n += 1
                    for u in range(2):
                        tt = 2*p + u; D = acc[1+i][tt]
                        if PK:
                            for r in (0, 2): pk('v_pk_fma_f32', D+r, [('p', rb[tt]+r), ('b', cv[i]), ('p', D+r)])
                            for r in (0, 2): pk('v_pk_mul_f32', D+r, [('p', D+r), ('p', ra[tt]+r)])
                        else:
                            for r in range(4): S(f'v_fma_f32 v{D+r}, v{rb[tt]+r}, v{cv[i]}, v{D+r}')
                            for r in range(4): S(f'v_mul_f32 v{D+r}, v{D+r}, v{ra[tt]+r}')
                        S(f'v_cvt_pk_bf16_f32 v{H+2*u}, v{D}, v{D+1}')
                        S(f'v_cvt_pk_bf16_f32 v{H+2*u+1}, v{D+2}, v{D+3}')
                    S(f'v_permlane32_swap_b32 v{H}, v{H+2}')
                    S(f'v_permlane32_swap_b32 v{H+1}, v{H+3}')
                    S(f'buffer_store_dwordx4 {vr(H,4)}, v{vOff}, s[{sWS}:{sWS+3}], s{sT} offen offset:{p*1024}{SC}', tag='v')
                if i < 3: S(f's_add_u32 s{sT}, s{sT}, 65536')
            if fused: publish(sFQ, 'v', f'{L}_pv')

    S(f's_cmp_eq_u32 s{sIsB}, 1\ns_cbranch_scc1 {L}_typeB')
    if not CSS: S(f's_cmp_eq_u32 s{sDuty}, 1\ns_cbranch_scc1 {L}_A1')
    procs = Processor().run(S)
    import copy
    outs = []
    def tail(typeB):
        if fused and PROT == 2:
            lb = f'{L}_clrok' + ('B' if typeB else 'A')
            S('s_mov_b64 exec, 3')
            S(f'v_cmp_ne_u32 vcc, 0x01010101, v{vT[5]}')
            S('s_mov_b64 exec, -1')
            S(f's_cmp_eq_u64 vcc, 0\ns_cbranch_scc1 {lb}')
            R = Stream(); poll(R, sDbg, vT[4], vT[5], sMc, '0x01010101', 2)
            S.raw_text(Processor().run(R).text())
            S.label(lb)
        if steptrace:
            S('s_waitcnt lgkmcnt(0)\nv_writelane_b32 v254, s72, 30\nv_writelane_b32 v254, s74, 31\ns_memtime s[72:73]\ns_waitcnt lgkmcnt(0)\nv_writelane_b32 v254, s72, 32')
            S(f'v_lshlrev_b32 v253, 2, v{vLane}\ns_lshl_b32 s{sT}, s2, 3\ns_add_u32 s{sT}, s{sT}, s{sW}\ns_lshl_b32 s{sT}, s{sT}, 8\ns_add_u32 s{sT}, s{sT}, {STAMP_OFF}')
            S(f'buffer_store_dword v254, v253, s[{sWS}:{sWS+3}], s{sT} offen', tag='nocount')
        if dbg: dbg_stamp(S, 84, 2, 0, 0, 0)
        if tr: trace(S, 2)
        reduce_stats(typeB)
        if tr: trace(S, 3)
        if stamps: S(f's_memtime s[{sSt+12}:{sSt+13}]')
        epilogue(typeB)
        if stamps:
            S(f's_memtime s[{sSt+16}:{sSt+17}]')
            S('s_waitcnt vmcnt(0)')
            S(f's_memtime s[{sSt+6}:{sSt+7}]\ns_memrealtime s[{sSt+8}:{sSt+9}]\ns_waitcnt lgkmcnt(0)')
            S(f's_sub_u32 s{sSt+2}, s{sSt+2}, s{sSt}\ns_sub_u32 s{sSt+4}, s{sSt+4}, s{sSt}\ns_sub_u32 s{sSt+6}, s{sSt+6}, s{sSt}\ns_sub_u32 s{sSt+8}, s{sSt+8}, s{sSt+10}')
            P = A[0][0]
            S(f'v_mov_b32 v{P}, s{sSt+2}\nv_mov_b32 v{P+1}, s{sSt+4}\nv_mov_b32 v{P+2}, s{sSt+6}\nv_mov_b32 v{P+3}, s{sSt+8}')
            S(f's_lshl_b32 s{sT}, s2, 3\ns_add_u32 s{sT}, s{sT}, s{sW}\ns_lshl_b32 s{sT}, s{sT}, 4\ns_add_u32 s{sT}, s{sT}, {STAMP_OFF}')
            S(f'v_mov_b32 v{t0}, 0')
            S(f'buffer_store_dwordx4 {vr(P,4)}, v{t0}, s[{sWS}:{sWS+3}], s{sT} offen')
            for a in (12, 14, 16): S(f's_sub_u32 s{sSt+a}, s{sSt+a}, s{sSt}')
            P = A[0][1]
            S(f's_sub_u32 s{sSt+18}, s{sSt+18}, s{sSt+10}\ns_sub_u32 s{sSt+20}, s{sSt+20}, s{sSt+10}\ns_lshl_b32 s{sSt+20}, s{sSt+20}, 16\ns_or_b32 s{sSt+18}, s{sSt+18}, s{sSt+20}')
            S(f'v_mov_b32 v{P}, s{sSt+12}\nv_mov_b32 v{P+1}, s{sSt+14}\nv_mov_b32 v{P+2}, s{sSt+16}\nv_mov_b32 v{P+3}, s{sSt+18}')
            S(f's_add_u32 s{sT}, s{sT}, {1 << 20}')
            S(f'buffer_store_dwordx4 {vr(P,4)}, v{t0}, s[{sWS}:{sWS+3}], s{sT} offen')
        if dbg:
            if fused: dbg_stamp(S, 84, 3, 0, 0, 0); S('s_waitcnt lgkmcnt(0)')
            else: dbg_final(S, 84, acc[0][0], sT, 0, sWS)
        if tr: trace(S, 7)
        if fused: S(f's_mov_b32 s{sIsBk}, {1 if typeB else 0}\ns_branch {L}_p2')
        else: S('s_endpgm')
    for typeB in (False, True):
        tn = 'B' if typeB else 'A'
        S.ins = []
        if CSS:
            if typeB: S.label(f'{L}_typeB')
            mainloop(typeB, 0)
            S('s_nop 7')
            tail(typeB)
            p = copy.deepcopy(procs); n0 = len(p.out); p.run(S); outs.append('\n'.join(p.out[n0:])); last = p
            continue
        if typeB:
            S.label(f'{L}_typeB')
            S(f's_cmp_eq_u32 s{sDuty}, 1\ns_cbranch_scc1 {L}_B1')
        mainloop(typeB, 0)
        S(f's_branch {L}_{tn}tail')
        p0 = copy.deepcopy(procs); n0 = len(p0.out); p0.run(S); outs.append('\n'.join(p0.out[n0:]))
        S.ins = []
        S.label(f'{L}_{tn}1')
        mainloop(typeB, 1)
        S.label(f'{L}_{tn}tail')
        S('s_nop 7')
        tail(typeB)
        p = copy.deepcopy(procs); n0 = len(p.out); p.run(S); outs.append('\n'.join(p.out[n0:])); last = p
    if fused: return procs.text() + '\n' + '\n'.join(outs), last, v.hi
    text = procs.text() + '\n' + '\n'.join(outs) + f'\n{L}_end:\ns_endpgm\n'
    return kernel_text(name, text, v.hi), last, v.hi

if __name__ == '__main__':
    import sys
    t, p, hi = gen_gemm1()
    print(t)
    from collections import Counter
    print('vgprs', hi, 'nops', p.nops_inserted, Counter(w.split(' (')[0] for w, n, _ in p.nop_log), file=sys.stderr)
```

```python
from common import *
from diag import *

BIG = 0; BIGSZ = 24576; NBIG = 3
MB = BIG + NBIG * BIGSZ; MSZ = 16384
def lds_map(NM):
    STAT = MB + NM * MSZ
    return STAT, STAT, STAT + 512, STAT + 1024, STAT + 1536, STAT + 1536 + 2 * 320 * 4
STAT, ST_SUM, ST_SQ, ST_SD, ST_CS, LDS1 = lds_map(4)
QSCALE = 0.25 * LOG2E
HCARRY = 240

def gen_gemm1(name='gemm1_kernel', stamps=False, xp='', dbg=False, DMA_FIRST=2, fused=False, PUB_AT=2, setmod='atomic', defer=True, ndefer=1, ROT=False, PF=1, PFSTEP=0, act32=True, PRO=2, TS=False, CSS=False, CSL=11, LPF=0, NM=5, steptrace=False, SCHED=1, SIG=14, PROT=2, tr=False, PK=1, HD=True, STATIC=1, STAG=0):
    STAT, ST_SUM, ST_SQ, ST_SD, ST_CS, LDS1 = lds_map(NM)
    assert LDS1 <= 163840 and (NM == 4 or fused)
    assert not (PROT == 2 and (TS or CSS)) or 'Z' in xp
    TS = TS and fused
    CSS = CSS and fused
    CSB = LDS1; CT = [232 + 4*f for f in range(5)]
    assert (not CSS) or CSB + 20480 <= 163840
    S = Stream(); L = name
    v = VAlloc(256, 'v', 1)
    sX, sQK, sM0, sM1, sWS = 8, 12, 16, 20, 24
    sW, sTb, sC, sTh, sFq, sT, sT2, sRS = 28, 29, 30, 31, 32, 33, 34, 35
    sXo, sQo, sM0o, sM1o, sLx, sLq, sLm = 36, 37, 38, 39, 40, 41, 42
    sIsB, sScale, sT3, sStepM, sDuty, sMaskHi = 43, 44, 45, 46, 58, 59
    sSt = 60
    sDbg, sFQ, sFH, sHaddr, sIsBk = 96, 94, 95, 100, 101
    sKcB, sKrM, sXc, sMc = 80, 81, 82, 83
    sPc = 78
    sTok = 77
    sMr0, sMr1 = 75, 76
    vLane = v.alloc(); vN = v.alloc(); vG = v.alloc()
    vT = [v.alloc() for _ in range(6)]
    vDx = [v.alloc() for _ in range(2)]; vDq = v.alloc(); vDm = v.alloc()
    vXa = [v.alloc() for _ in range(2)]; vQa = v.alloc(); vMa = [v.alloc() for _ in range(4)]
    vMb = [v.alloc() for _ in range(4)] if NM > 4 else None
    vSum = [v.alloc() for _ in range(2)]; vSq = [v.alloc() for _ in range(2)]; vLo = v.alloc(); vHi = v.alloc()
    vXs = [v.alloc() for _ in range(2)]
    vOnes = v.alloc(4, 4)
    A = [[v.alloc(4, 4) for _ in range(5)] for _ in range(2)]
    B = [[v.alloc(4, 4) for _ in range(4)] for _ in range(2)]
    Bs = [v.alloc(4, 4) for _ in range(2)]
    acc = [[v.alloc(4, 4) for _ in range(4)] for _ in range(5)]
    vCs = [v.alloc(4, 4) for _ in range(5)]
    vEp = v.alloc(16, 4)

    S(f's_cmp_ge_u32 s2, 256'); S(f's_cbranch_scc1 {L}_end')
    if stamps: S(f's_memtime s[{sSt}:{sSt+1}]\ns_memrealtime s[{sSt+10}:{sSt+11}]')
    if dbg: dbg_stamp(S, 84, 0, 0, 0, 0)
    if tr: trace_init(S); trace(S, 0)
    if PF:
        S(f's_getpc_b64 s[{sPc}:{sPc+1}]')
        S.label(f'{L}_pc')
    S(f's_load_dwordx4 s[48:51], s[0:1], {KA_X}')
    S(f's_load_dwordx4 s[52:55], s[0:1], {KA_WG}')
    S(f's_load_dwordx2 s[56:57], s[0:1], {KA_WS}')
    if fused: S(f's_load_dwordx2 s[92:93], s[0:1], {KA_DBG}')
    S(f'v_and_b32 v{vLane}, 63, v0')
    S(f'v_lshrrev_b32 v{vT[0]}, 6, v0')
    S(f'v_and_b32 v{vN}, 15, v0')
    S(f'v_readfirstlane_b32 s{sW}, v{vT[0]}')
    S(f'v_bfe_u32 v{vG}, v0, 4, 2')
    S(f's_and_b32 s{sT}, s2, 1\ns_lshl_b32 s{sT}, s{sT}, 3')
    S(f's_lshr_b32 s{sT2}, s2, 3\ns_and_b32 s{sT2}, s{sT2}, 7\ns_add_u32 s{sTb}, s{sT}, s{sT2}')
    S(f's_lshr_b32 s{sT}, s2, 1\ns_and_b32 s{sT}, s{sT}, 3\ns_lshl_b32 s{sT}, s{sT}, 2')
    S(f's_lshr_b32 s{sT2}, s2, 6\ns_add_u32 s{sC}, s{sT}, s{sT2}')
    S(f's_and_b32 s{sTh}, s{sW}, 1\ns_lshr_b32 s{sFq}, s{sW}, 1')
    S(f's_cmp_ge_u32 s{sC}, 14\ns_cselect_b32 s{sIsB}, 1, 0')
    S(f's_lshr_b32 s{sDuty}, s{sFq}, 1\ns_xor_b32 s{sDuty}, s{sDuty}, s{sTh}')
    S(f's_cmp_eq_u32 s{sIsB}, 1')
    S(f's_mov_b32 s{sRS}, 3584\ns_cmov_b32 s{sRS}, 3072')
    S(f's_lshl_b32 s{sXo}, s{sTb}, 17')
    S(f's_lshl_b32 s{sQo}, s{sC}, 7')
    S(f's_lshl_b32 s{sM0o}, s{sC}, 8')
    S(f's_sub_u32 s{sT}, s{sC}, 14\ns_lshl_b32 s{sT}, s{sT}, 9\ns_add_u32 s{sT}, s{sT}, 2048')
    S(f's_cmp_eq_u32 s{sIsB}, 1')
    S(f's_cselect_b32 s{sM0o}, s{sT}, s{sM0o}')
    S(f's_cselect_b32 s{sT}, 256, 0')
    S(f's_add_u32 s{sM1o}, s{sM0o}, s{sT}')
    S(f's_lshl_b32 s{sStepM}, s{sRS}, 5')
    S(f's_sub_u32 s{sMr0}, s{sM0o}, s{sStepM}\ns_sub_u32 s{sMr1}, s{sM1o}, s{sStepM}')
    if ROT:
        S(f's_lshl_b32 s{sKcB}, s{sC}, 1\ns_add_u32 s{sKcB}, s{sKcB}, s{sTb}\ns_and_b32 s{sKcB}, s{sKcB}, 7\ns_lshl_b32 s{sKrM}, s{sKcB}, 1')
    else:
        S(f's_mov_b32 s{sKcB}, 0\ns_mov_b32 s{sKrM}, 0')
    t0, t1, t2, t3, t4, t5 = vT
    S(f'v_lshrrev_b32 v{t3}, 3, v{vLane}')
    S(f'v_and_b32 v{t4}, 7, v{vLane}')
    S(f's_lshl_b32 s{sT}, s{sW}, 4')
    S(f'v_add_u32 v{t0}, s{sT}, v{t3}\nv_lshlrev_b32 v{t0}, 10, v{t0}\nv_xor_b32 v{t1}, v{t4}, v{vG}')
    S(f'v_lshl_add_u32 v{vDx[0]}, v{t1}, 4, v{t0}')
    S(f'v_xor_b32 v{vDx[1]}, 64, v{vDx[0]}\nv_add_u32 v{vDx[1]}, 8192, v{vDx[1]}')
    S(f'v_bfe_u32 v{t2}, v{vLane}, 4, 1')
    S(f's_and_b32 s{sT}, s{sW}, 1\ns_lshl_b32 s{sT}, s{sT}, 1')
    S(f'v_or_b32 v{t2}, s{sT}, v{t2}\nv_lshlrev_b32 v{t2}, 1, v{t2}\nv_xor_b32 v{t1}, v{t4}, v{t2}')
    S(f's_lshl_b32 s{sT}, s{sW}, 3')
    S(f'v_add_u32 v{t0}, s{sT}, v{t3}\nv_mul_u32_u24 v{t0}, 3072, v{t0}\nv_lshl_add_u32 v{vDq}, v{t1}, 4, v{t0}')
    S(f's_lshr_b32 s{sT}, s{sW}, 1\ns_and_b32 s{sT}, s{sT}, 1\ns_lshl_b32 s{sT}, s{sT}, 2')
    S(f'v_or_b32 v{t2}, s{sT}, v{vG}\nv_lshlrev_b32 v{t2}, 1, v{t2}\nv_xor_b32 v{t1}, v{vN}, v{t2}')
    S(f's_lshl_b32 s{sT}, s{sW}, 2')
    S(f'v_add_u32 v{t0}, s{sT}, v{vG}\nv_mul_lo_u32 v{t0}, v{t0}, s{sRS}\nv_lshl_add_u32 v{vDm}, v{t1}, 4, v{t0}')
    S(f's_lshl_b32 s{sLx}, s{sW}, 11')
    S(f's_lshl_b32 s{sLq}, s{sW}, 10\ns_add_u32 s{sLq}, s{sLq}, 16384')
    S(f's_lshl_b32 s{sLm}, s{sW}, 10\ns_add_u32 s{sLm}, s{sLm}, {MB}')
    if dbg and 'k' in xp: dbg_stamp(S, 84, 1, 0, 0, 0)
    S('s_waitcnt lgkmcnt(0)')
    if dbg and 'K' in xp: dbg_stamp(S, 84, 1, 0, 0, 0); S('s_waitcnt lgkmcnt(0)')
    srd(S, sX, 48, 2048 * 512 * 2)
    srd(S, sQK, 50, 512 * 1536 * 2)
    def ab_from(vs, vq, va, vb, vsd):
        S(f'v_mul_f32 v{vs}, {fhex(1/512)}, v{vs}')
        S(f'v_mul_f32 v{vq}, {fhex(1/512)}, v{vq}')
        S(f'v_fma_f32 v{vq}, -v{vs}, v{vs}, v{vq}')
        S(f'v_max_f32 v{vq}, 0, v{vq}')
        S(f'v_add_f32 v{vq}, {fhex(1e-5)}, v{vq}')
        S(f'v_rsq_f32 v{va}, v{vq}')
        S(f'v_sqrt_f32 v{vsd}, v{vq}')
        S(f'v_sub_f32 v{vb}, 0, v{vs}')

    XS = Bs[0]
    def dma_big_groups(j):
        slot = (j % NBIG) * BIGSZ + BIG; g = []
        if not ROT:
            g.append([(f's_add_u32 m0, s{sLx}, {slot}', None), (f's_add_u32 s{sXc}, s{sXo}, {j*128}', None),
                      (f'buffer_load_dwordx4 v{vDx[0]}, s[{sX}:{sX+3}], s{sXc} offen lds', ('big', j))])
            g.append([(f's_add_u32 m0, s{sLx}, {slot + 1024}', None), (f's_add_u32 s{sT}, s{sQo}, {j*64*3072}', None),
                      (f'buffer_load_dwordx4 v{vDx[1]}, s[{sX}:{sX+3}], s{sXc} offen lds', ('big', j)),
                      (f's_add_u32 m0, s{sLq}, {slot}', None), (f's_nop 0', None),
                      (f'buffer_load_dwordx4 v{vDq}, s[{sQK}:{sQK+3}], s{sT} offen lds', ('big', j))])
            return g
        g.append([(f's_lshl_b32 s{sXc}, s{sKcB}, 7', None), (f's_add_u32 m0, s{sLx}, {slot}', None), (f's_add_u32 s{sXc}, s{sXc}, s{sXo}', None),
                  (f'buffer_load_dwordx4 v{vDx[0]}, s[{sX}:{sX+3}], s{sXc} offen lds', ('big', j))])
        g.append([(f's_add_u32 m0, s{sLx}, {slot + 1024}', None), (f's_nop 0', None),
                  (f'buffer_load_dwordx4 v{vDx[1]}, s[{sX}:{sX+3}], s{sXc} offen lds', ('big', j))])
        g.append([(f's_add_u32 m0, s{sLq}, {slot}', None), (f's_mul_i32 s{sT}, s{sKcB}, {64*3072}', None), (f's_add_u32 s{sT}, s{sT}, s{sQo}', None),
                  (f'buffer_load_dwordx4 v{vDq}, s[{sQK}:{sQK+3}], s{sT} offen lds', ('big', j)),
                  (f's_add_u32 s{sKcB}, s{sKcB}, 1', None), (f's_and_b32 s{sKcB}, s{sKcB}, 7', None)])
        return g
    def dma_m_groups(s):
        slot = (s % NM) * MSZ
        if not ROT and STATIC:
            return [[(f's_add_u32 m0, s{sLm}, {slot}', None), (f's_add_u32 s{sMr0}, s{sMr0}, s{sStepM}', None),
                     (f'buffer_load_dwordx4 v{vDm}, s[{sM0}:{sM0+3}], s{sMr0} offen lds', ('m', s))],
                    [(f's_add_u32 m0, s{sLm}, {slot + 8192}', None), (f's_add_u32 s{sMr1}, s{sMr1}, s{sStepM}', None),
                     (f'buffer_load_dwordx4 v{vDm}, s[{sM1}:{sM1+3}], s{sMr1} offen lds', ('m', s))]]
        return [[(f's_mul_i32 s{sMc}, s{sKrM}, s{sStepM}', None), (f's_add_u32 m0, s{sLm}, {slot}', None), (f's_add_u32 s{sT}, s{sMc}, s{sM0o}', None),
                 (f'buffer_load_dwordx4 v{vDm}, s[{sM0}:{sM0+3}], s{sT} offen lds', ('m', s))],
                [(f's_add_u32 m0, s{sLm}, {slot + 8192}', None), (f's_add_u32 s{sT}, s{sMc}, s{sM1o}', None),
                 (f'buffer_load_dwordx4 v{vDm}, s[{sM1}:{sM1+3}], s{sT} offen lds', ('m', s)),
                 (f's_add_u32 s{sKrM}, s{sKrM}, 1', None), (f's_and_b32 s{sKrM}, s{sKrM}, 15', None)]]
    def emit_group(g):
        for t, tag in g: S(t, tag=tag)
    def dma_big(j):
        for g in dma_big_groups(j): emit_group(g)
    def dma_m(s):
        for g in dma_m_groups(s): emit_group(g)
    dma_big(0)
    S(f's_cmp_eq_u32 s{sIsB}, 1')
    for d, p in ((sM0, 52), (sM1, 54)):
        S(f's_cselect_b32 s{d}, s50, s{p}')
        S(f's_cselect_b32 s{d+1}, s51, s{p+1}')
        S(f's_mov_b32 s{d+2}, {512*1792*2}\ns_cmov_b32 s{d+2}, {512*1536*2}')
        S(f's_mov_b32 s{d+3}, 0x20000')
    S(f's_and_b32 s{sM0+1}, s{sM0+1}, 0xffff\ns_and_b32 s{sM1+1}, s{sM1+1}, 0xffff')
    dma_m(0); dma_m(1)
    late = []
    if PRO >= 1: dma_big(1)
    else: late += [('big', 1)]
    if PRO >= 2: dma_m(2)
    else: late += [('m', 2)]
    if PRO >= 3: dma_m(3)
    else: late += [('m', 3)]
    if PRO >= 4: dma_big(2)
    else: late += [('big', 2)]
    for k in range(4, NM): late += [('m', k)]
    if dbg and 'j' in xp: dbg_stamp(S, 84, 1, 0, 0, 0)
    vDq2 = 252
    if LPF:
        dmy = 253
        S(f's_and_b32 s{sT}, s{sTb}, 7\ns_lshl_b32 s{sT}, s{sT}, 6\ns_lshl_b32 s{sT2}, s{sW}, 3\ns_add_u32 s{sT}, s{sT}, s{sT2}')
        S(f'v_add_u32 v{t0}, s{sT}, v{vLane}')
        S(f'v_mul_u32_u24 v{t1}, 3072, v{t0}\nv_mul_lo_u32 v{t2}, v{t0}, s{sRS}')
        S(f's_mov_b64 exec, 0xff')
        S(f'buffer_load_dword v{244}, v{t1}, s[{sQK}:{sQK+3}], s{sQo} offen', tag='lpf')
        for k, off in enumerate((0, 128)):
            S(f'buffer_load_dword v{245 + 2*k}, v{t2}, s[{sM0}:{sM0+3}], s{sM0o} offen offset:{off}', tag='lpf')
            S(f'buffer_load_dword v{246 + 2*k}, v{t2}, s[{sM1}:{sM1+3}], s{sM1o} offen offset:{off}', tag='lpf')
        S(f's_mov_b64 exec, -1')
        S(f's_and_b32 s{sT}, s{sC}, 3\ns_lshl_b32 s{sT}, s{sT}, 5\ns_lshl_b32 s{sT2}, s{sW}, 2\ns_add_u32 s{sT}, s{sT}, s{sT2}')
        S(f'v_lshrrev_b32 v{t0}, 3, v{vLane}\nv_add_u32 v{t0}, s{sT}, v{t0}\nv_lshlrev_b32 v{t0}, 10, v{t0}\nv_and_b32 v{t1}, 7, v{vLane}\nv_lshl_add_u32 v{t0}, v{t1}, 7, v{t0}')
        S(f's_mov_b32 exec_hi, 0')
        S(f'buffer_load_dword v{249}, v{t0}, s[{sX}:{sX+3}], s{sXo} offen', tag='lpf')
        S(f's_mov_b32 exec_hi, -1')
    if CSS:
        S(f'v_lshrrev_b32 v{t0}, 3, v{vLane}\ns_lshl_b32 s{sT}, s{sW}, 2\nv_add_u32 v{t0}, s{sT}, v{t0}\nv_mul_u32_u24 v{t0}, 3072, v{t0}')
        S(f's_lshr_b32 s{sT}, s{sW}, 1\ns_and_b32 s{sT}, s{sT}, 1\ns_lshl_b32 s{sT}, s{sT}, 1')
        S(f'v_bfe_u32 v{t1}, v{vLane}, 4, 1\nv_or_b32 v{t1}, s{sT}, v{t1}\nv_lshlrev_b32 v{t1}, 1, v{t1}\nv_and_b32 v{t2}, 7, v{vLane}\nv_xor_b32 v{t1}, v{t1}, v{t2}')
        S(f'v_lshl_add_u32 v{vDq2}, v{t1}, 4, v{t0}')
    def cs_groups():
        return [[(f's_mul_i32 s{sXc}, s{sTb}, s{sStepM}', None), (f's_lshl_b32 s{sT2}, s{sW}, 10', None), (f's_add_u32 m0, s{sT2}, {CSB}', None), (f's_add_u32 s{sT}, s{sXc}, s{sM0o}', None),
                 (f'buffer_load_dwordx4 v{vDm}, s[{sM0}:{sM0+3}], s{sT} offen lds', 'cs')],
                [(f's_mul_i32 s{sXc}, s{sTb}, s{sStepM}', None), (f's_lshl_b32 s{sT2}, s{sW}, 10', None), (f's_add_u32 m0, s{sT2}, {CSB + 8192}', None), (f's_add_u32 s{sT}, s{sXc}, s{sM1o}', None),
                 (f'buffer_load_dwordx4 v{vDm}, s[{sM1}:{sM1+3}], s{sT} offen lds', 'cs')],
                [(f's_lshl_b32 s{sT2}, s{sW}, 9', None), (f's_add_u32 m0, s{sT2}, {CSB + 16384}', None), (f's_mul_i32 s{sT}, s{sTb}, {32*3072}', None), (f's_add_u32 s{sT}, s{sT}, s{sQo}', None),
                 (f's_mov_b32 exec_hi, 0', None), (f'buffer_load_dwordx4 v{vDq2}, s[{sQK}:{sQK+3}], s{sT} offen lds', 'cs'), (f's_mov_b32 exec_hi, -1', None)]]
    if TS:
        S(f's_lshl_b32 s{sTok}, s{sTb}, 7\ns_lshl_b32 s{sT}, s{sC}, 3\ns_add_u32 s{sTok}, s{sTok}, s{sT}\ns_add_u32 s{sTok}, s{sTok}, s{sW}')
        S(f's_lshl_b32 s{sT}, s{sTok}, 10\nv_lshlrev_b32 v{t5}, 4, v{vLane}')
        S(f'buffer_load_dwordx4 {vr(XS,4)}, v{t5}, s[{sX}:{sX+3}], s{sT} offen', tag='tsx')
    srd_ws(S, sWS, 56)
    if fused:
        srd(S, sDbg, 92, 256)
        S(f's_lshl_b32 s{sT}, s{sC}, 11\ns_lshl_b32 s{sT2}, s{sTb}, 7\ns_add_u32 s{sFQ}, s{sT}, s{sT2}\ns_add_u32 s{sFQ}, s{sFQ}, {FQ_OFF}')
        S(f's_lshl_b32 s{sT}, s{sTb}, 13\ns_lshl_b32 s{sT2}, s{sC}, 9\ns_add_u32 s{sFH}, s{sT}, s{sT2}\ns_add_u32 s{sFH}, s{sFH}, {FH_OFF}')
        if PROT == 2:
            S(f's_cmp_ge_u32 s2, 8\ns_cbranch_scc1 {L}_noclr')
            X = acc[0][0]
            for i in range(4): S(f'v_mov_b32 v{X+i}, 0')
            S(f's_mul_i32 s{sT}, s2, 40960\ns_mul_i32 s{sT2}, s{sW}, 5120\ns_add_u32 s{sT}, s{sT}, s{sT2}\ns_add_u32 s{sT}, s{sT}, {FLAG_OFF}')
            S(f'v_lshlrev_b32 v{vT[1]}, 4, v{vLane}')
            for k in range(5):
                S(f'buffer_store_dwordx4 {vr(X,4)}, v{vT[1]}, s[{sWS}:{sWS+3}], s{sT} offen offset:{(k % 4)*1024} sc1', tag='nocount')
                if k == 3: S(f's_add_u32 s{sT}, s{sT}, 4096')
        else:
            S(f's_cmp_lg_u32 s{sW}, 7\ns_cbranch_scc1 {L}_noclr')
            S(f's_and_b32 s{sT}, s2, 7\ns_lshl_b32 s{sT}, s{sT}, 2\ns_lshr_b32 s{sT2}, s2, 6\ns_add_u32 s{sT}, s{sT}, s{sT2}\ns_lshl_b32 s{sT}, s{sT}, 7')
            S(f's_lshr_b32 s{sT2}, s2, 3\ns_and_b32 s{sT2}, s{sT2}, 7\ns_lshl_b32 s{sT2}, s{sT2}, 14\ns_add_u32 s{sT}, s{sT}, s{sT2}\ns_add_u32 s{sT}, s{sT}, {FO_OFF}')
            S(f'v_lshlrev_b32 v{vT[1]}, 12, v{vLane}')
            S(f'v_add_u32 v{vT[1]}, s{sT}, v{vT[1]}')
            S(f'v_mov_b32 v{vT[2]}, s{sFQ}\nv_cmp_eq_u32 vcc, 4, v{vLane}\nv_cndmask_b32 v{vT[1]}, v{vT[1]}, v{vT[2]}, vcc')
            S(f'v_mov_b32 v{vT[2]}, s{sFH}\nv_cmp_eq_u32 vcc, 5, v{vLane}\nv_cndmask_b32 v{vT[1]}, v{vT[1]}, v{vT[2]}, vcc')
            S(f'v_mov_b32 v{vT[2]}, 0')
            S(f's_mov_b64 exec, 63')
            S(f'buffer_store_dword v{vT[2]}, v{vT[1]}, s[{sWS}:{sWS+3}], 0 offen sc1', tag='nocount')
            S(f's_mov_b64 exec, -1')
        S.label(f'{L}_noclr')
    S(f's_lshl_b32 s{sT}, s{sTh}, 6')
    S(f'v_add_u32 v{t0}, s{sT}, v{vN}')
    S(f'v_lshlrev_b32 v{t0}, 7, v{t0}')
    S(f'v_lshrrev_b32 v{t1}, 1, v{vN}')
    S(f'v_xor_b32 v{t1}, v{t1}, v{vG}')
    S(f'v_lshl_add_u32 v{vXa[0]}, v{t1}, 4, v{t0}')
    S(f'v_xor_b32 v{vXa[1]}, 64, v{vXa[0]}')
    S(f's_lshl_b32 s{sT}, s{sFq}, 11')
    S(f'v_add_u32 v{vXs[0]}, s{sT}, v{vXa[0]}')
    S(f'v_add_u32 v{vXs[1]}, s{sT}, v{vXa[1]}')
    vR, vCq = t4, t5
    S(f'v_lshrrev_b32 v{vR}, 2, v{vN}')
    S(f'v_and_b32 v{vCq}, 3, v{vN}')
    S(f'v_lshl_add_u32 v{t0}, v{vG}, 3, v{vR}')
    S(f'v_lshrrev_b32 v{t1}, 1, v{vR}')
    S(f'v_and_b32 v{t2}, 1, v{vG}')
    S(f'v_lshl_or_b32 v{t1}, v{t2}, 1, v{t1}')
    S(f'v_xor_b32 v{t1}, s{sFq}, v{t1}')
    S(f'v_lshlrev_b32 v{t1}, 1, v{t1}')
    S(f'v_lshrrev_b32 v{t2}, 1, v{vCq}')
    S(f'v_add_u32 v{t1}, v{t1}, v{t2}')
    S(f'v_lshlrev_b32 v{t1}, 4, v{t1}')
    S(f'v_and_b32 v{t2}, 1, v{vCq}')
    S(f'v_lshl_add_u32 v{t1}, v{t2}, 3, v{t1}')
    S(f'v_lshl_add_u32 v{vQa}, v{t0}, 7, v{t1}')
    S(f'v_add_u32 v{vQa}, 16384, v{vQa}')
    S(f'v_and_b32 v{t2}, 1, v{vG}')
    S(f'v_lshl_or_b32 v{t1}, v{t2}, 2, v{vR}')
    S(f'v_lshlrev_b32 v{t1}, 1, v{t1}')
    S(f'v_lshrrev_b32 v{t2}, 1, v{vCq}')
    S(f'v_xor_b32 v{t1}, v{t1}, v{t2}')
    S(f'v_lshlrev_b32 v{t1}, 4, v{t1}')
    S(f'v_and_b32 v{t2}, 1, v{vCq}')
    S(f'v_lshl_add_u32 v{t1}, v{t2}, 3, v{t1}')
    S(f'v_lshl_add_u32 v{t1}, v{t0}, 8, v{t1}')
    for i in range(4):
        S(f's_lshl_b32 s{sT}, s{sFq}, 1\ns_add_u32 s{sT}, s{sT}, {i & 1}\ns_lshl_b32 s{sT}, s{sT}, 5')
        S(f's_add_u32 s{sT}, s{sT}, {(i >> 1) * 8192}')
        S(f's_and_b32 s{sT2}, s{sFq}, 1\ns_lshl_b32 s{sT2}, s{sT2}, 2\ns_add_u32 s{sT2}, s{sT2}, {i}\ns_lshl_b32 s{sT2}, s{sT2}, 5')
        S(f's_lshr_b32 s{sT3}, s{sFq}, 1\ns_lshl_b32 s{sT3}, s{sT3}, 13\ns_add_u32 s{sT2}, s{sT2}, s{sT3}')
        S(f's_cmp_eq_u32 s{sIsB}, 1\ns_cselect_b32 s{sT}, s{sT2}, s{sT}')
        S(f'v_xor_b32 v{vMa[i]}, s{sT}, v{t1}')
        S(f'v_add_u32 v{vMa[i]}, {MB}, v{vMa[i]}')
        if NM > 4: S(f'v_add_u32 v{vMb[i]}, {2*MSZ}, v{vMa[i]}')
    if 'q' in xp:
        for f in range(2, 5):
            for tt in range(4):
                for r in range(4): S(f'v_mov_b32 v{acc[f][tt]+r}, 0')
        for f in range(5):
            for r in range(4): S(f'v_mov_b32 v{vCs[f]+r}, 0')
    for r in vSum + vSq: S(f'v_mov_b32 v{r}, 0')
    if 'O' in xp:
        for i in range(4): S(f'v_mov_b32 v{vOnes+i}, 0x3f803f80')
    else:
        S(f'v_cmp_eq_u32 vcc, 0, v{vN}')
        S(f'v_mov_b32 v{t0}, 0x3f803f80')
        S(f'v_cndmask_b32 v{vOnes}, 0, v{t0}, vcc')
        for i in range(1, 4): S(f'v_mov_b32 v{vOnes+i}, v{vOnes}')
    S(f's_mov_b32 s{sMaskHi}, 0xffff0000')

    def reads(s):
        b = s & 1; sp = s & 1; j = s // 2
        bs = (j % NBIG) * BIGSZ + BIG; ms = (s % NM) * MSZ
        out = []
        for tt in range(4):
            out.append(f'ds_read_b128 {vr(B[b][tt],4)}, v{vXa[sp]} offset:{bs + tt*2048}')
        for rd in range(2):
            out.append(f'ds_read_b64_tr_b16 {vr(A[b][0]+2*rd,2)}, v{vQa} offset:{bs + (32*sp + 4*rd)*128}')
        if 'S' not in xp and not TS: out.append(f'ds_read_b128 {vr(Bs[b],4)}, v{vXs[sp]} offset:{bs}')
        for i in range(4):
            for rd in range(2):
                if ms >= 2*MSZ and NM > 4: out.append(f'ds_read_b64_tr_b16 {vr(A[b][1+i]+2*rd,2)}, v{vMb[i]} offset:{ms - 2*MSZ + rd*1024}')
                else: out.append(f'ds_read_b64_tr_b16 {vr(A[b][1+i]+2*rd,2)}, v{vMa[i]} offset:{ms + rd*1024}')
        return out
    def mfmas(s, typeB):
        b = s & 1; out = []
        for f in range(5):
            for tt in range(4):
                c = '0' if s == 0 else vr(acc[f][tt], 4)
                a_, b_ = vr(A[b][f], 4), vr(B[b][tt], 4)
                if typeB and f > 0: a_, b_ = b_, a_
                out.append(f'v_mfma_f32_16x16x32_bf16 {vr(acc[f][tt],4)}, {a_}, {b_}, {c}')
        return out
    def stats(s):
        b = s & 1; out = []
        for r in range(4):
            p = Bs[b] + r
            out.append(f'v_lshlrev_b32 v{vLo}, 16, v{p}')
            out.append(f'v_and_b32 v{vHi}, s{sMaskHi}, v{p}')
            out.append(f'v_add_f32 v{vSum[0]}, v{vSum[0]}, v{vLo}')
            out.append(f'v_add_f32 v{vSum[1]}, v{vSum[1]}, v{vHi}')
            out.append(f'v_fma_f32 v{vSq[0]}, v{vLo}, v{vLo}, v{vSq[0]}')
            out.append(f'v_fma_f32 v{vSq[1]}, v{vHi}, v{vHi}, v{vSq[1]}')
        return out
    def ts_ops():
        a_, b_, lo, hi = Bs[1], Bs[1] + 1, Bs[1] + 2, Bs[1] + 3
        ra_, rb_, rs_, ro_ = vSum[0], vSum[1], vSq[0], vSq[1]
        o = [f'v_mov_b32 v{a_}, 0', f'v_mov_b32 v{b_}, 0']
        for r in range(4):
            o += [f'v_lshlrev_b32 v{lo}, 16, v{XS+r}', f'v_and_b32 v{hi}, s{sMaskHi}, v{XS+r}',
                  f'v_add_f32 v{a_}, v{a_}, v{lo}', f'v_fma_f32 v{b_}, v{lo}, v{lo}, v{b_}',
                  f'v_add_f32 v{a_}, v{a_}, v{hi}', f'v_fma_f32 v{b_}, v{hi}, v{hi}, v{b_}']
        for sh in (1, 2, 4, 8):
            for r in (a_, b_): o.append(f'v_add_f32_dpp v{r}, v{r}, v{r} row_shr:{sh} row_mask:0xf bank_mask:0xf bound_ctrl:0')
        for r in (a_, b_): o.append(f'v_add_f32_dpp v{r}, v{r}, v{r} row_bcast:15 row_mask:0xa bank_mask:0xf')
        for r in (a_, b_): o.append(f'v_add_f32_dpp v{r}, v{r}, v{r} row_bcast:31 row_mask:0xc bank_mask:0xf')
        o += [f'v_mul_f32 v{a_}, {fhex(1/512)}, v{a_}', f'v_mul_f32 v{b_}, {fhex(1/512)}, v{b_}', f'v_fma_f32 v{b_}, -v{a_}, v{a_}, v{b_}',
              f'v_max_f32 v{b_}, 0, v{b_}', f'v_add_f32 v{b_}, {fhex(1e-5)}, v{b_}', f'v_rsq_f32 v{ra_}, v{b_}', f'v_sqrt_f32 v{rs_}, v{b_}', f'v_sub_f32 v{rb_}, 0, v{a_}']
        return o
    def ts_store():
        ra_, rb_, rs_, ro_ = vSum[0], vSum[1], vSq[0], vSq[1]
        S(f's_lshl_b32 s{sT}, s{sTok}, 2\nv_mov_b32 v{ro_}, s{sT}\ns_mov_b32 s{sT2}, {STATS_OFF}')
        S(f's_mov_b32 exec_lo, 0\ns_mov_b32 exec_hi, 0x80000000')
        for k, r in enumerate((ra_, rb_, rs_)):
            S(f'buffer_store_dword v{r}, v{ro_}, s[{sWS}:{sWS+3}], s{sT2} offen sc1', tag='tss')
            if k < 2: S(f's_add_u32 s{sT2}, s{sT2}, 8192')
        S('s_mov_b64 exec, -1')
    def csmfmas(s, typeB, first):
        b = s & 1; out = []
        for f in range(5):
            c = '0' if first else vr(vCs[f], 4)
            a_, b_ = vr(A[b][f], 4), vr(vOnes, 4)
            if typeB and f > 0: a_, b_ = b_, a_
            out.append(f'v_mfma_f32_16x16x32_bf16 {vr(vCs[f],4)}, {a_}, {b_}, {c}')
        return out

    def mainloop(typeB, duty):
        tag = ('B' if typeB else 'A') + str(duty)
        S.wait_vm(('big', 0)); S.wait_vm(('m', 0))
        S('s_waitcnt lgkmcnt(0)')
        S('s_barrier')
        if stamps: S(f's_memtime s[{sSt+2}:{sSt+3}]\ns_memrealtime s[{sSt+18}:{sSt+19}]')
        if dbg and 'K' not in xp and 'k' not in xp and 'j' not in xp: dbg_stamp(S, 84, 1, 0, 0, 0)
        if tr: trace(S, 1)
        for r in reads(0): S(r)
        for s in range(16):
            S('s_waitcnt lgkmcnt(0)')
            if s + 1 < 16:
                S.wait_vm(('m', s + 1)); S.wait_vm(('big', (s + 1) // 2))
            if CSS and s == 2: S.wait_vm('cs')
            if CSS and s == 15: S.wait_vm('csg')
            if steptrace:
                if s > 0: S(f'v_writelane_b32 v254, s72, {2*s-2}\nv_writelane_b32 v254, s74, {2*s-1}')
                S('s_memtime s[72:73]')
            S('s_barrier')
            if steptrace: S('s_memtime s[74:75]')
            if fused and PROT == 2 and s == 10:
                S(f'v_lshlrev_b32 v{vT[4]}, 2, v{vLane}\ns_mov_b64 exec, 3')
                S(f'buffer_load_dword v{vT[5]}, v{vT[4]}, s[{sDbg}:{sDbg+3}], 0 offen sc1', tag='clrchk')
                S('s_mov_b64 exec, -1')
            if fused and s == (4 if PROT == 2 else 7 if CSS else 5 if TS else SIG):
                lb = f'{L}_{tag}_sig'
                if PROT == 2: S(f's_cmp_ge_u32 s2, 8\ns_cbranch_scc1 {lb}')
                S(f's_cmp_lg_u32 s{sW}, 7\ns_cbranch_scc1 {lb}')
                S(f'v_mov_b32 v{vT[0]}, s2\nv_mov_b32 v{vT[1]}, 1\ns_mov_b64 exec, 1')
                S(f'buffer_store_byte v{vT[1]}, v{vT[0]}, s[{sDbg}:{sDbg+3}], 0 offen sc1', tag='nocount')
                S('s_mov_b64 exec, -1')
                S.label(lb)
            if CSS and s == 4:
                lb = f'{L}_{tag}_css'
                S(f's_cmp_lg_u32 s{sTh}, 0\ns_cbranch_scc1 {lb}')
                S(f's_lshl_b32 s{sT}, s{sC}, 4\ns_add_u32 s{sT}, s{sT}, s{sTb}\ns_mul_i32 s{sT}, s{sT}, 1280\ns_mul_i32 s{sT2}, s{sFq}, 320\ns_add_u32 s{sT}, s{sT}, s{sT2}\ns_add_u32 s{sT}, s{sT}, {CSP_OFF}')
                S(f'v_lshlrev_b32 v{vT[2]}, 4, v{vG}\nv_lshlrev_b32 v{vT[3]}, 2, v{vN}')
                S(f's_mov_b32 s4, 0x00010001\ns_mov_b32 s5, 0x00010001\ns_mov_b64 exec, s[4:5]')
                for f in range(5):
                    if not (typeB and f > 0): S(f'buffer_store_dwordx4 {vr(vCs[f],4)}, v{vT[2]}, s[{sWS}:{sWS+3}], s{sT} offen offset:{f*64} sc1', tag='nocount')
                if typeB:
                    S('s_mov_b64 exec, 0xffff')
                    for f in range(1, 5): S(f'buffer_store_dword v{vCs[f]}, v{vT[3]}, s[{sWS}:{sWS+3}], s{sT} offen offset:{f*64} sc1', tag='nocount')
                S('s_mov_b64 exec, -1')
                S.label(lb)
            if CSS and s == CSL and 'Z' not in xp:
                S(f'v_lshlrev_b32 v{vT[4]}, 2, v{vLane}')
                S(f'buffer_load_dword v{vT[5]}, v{vT[4]}, s[{sDbg}:{sDbg+3}], 0 offen sc1', tag='dbgchk')
            if CSS and s == CSL + 2:
                lb = f'{L}_{tag}_csc'
                if 'Z' not in xp:
                    S(f'v_cmp_ne_u32 vcc, 0x01010101, v{vT[5]}')
                    S(f's_cmp_eq_u64 vcc, 0\ns_cbranch_scc1 {lb}')
                    R = Stream(); poll(R, sDbg, vT[4], vT[5], sMc, '0x01010101', 64)
                    S.raw_text(Processor().run(R).text())
                    S.label(lb)
                S(f'v_lshlrev_b32 v{vT[4]}, 4, v{vLane}\ns_mul_i32 s{sT3}, s{sC}, 20480\ns_add_u32 s{sT3}, s{sT3}, {CSP_OFF}')
                for k in range(3):
                    S(f's_mul_i32 s{sT}, s{sW}, 3\ns_add_u32 s{sT}, s{sT}, {k}\ns_min_u32 s{sT}, s{sT}, 19\ns_lshl_b32 s{sT}, s{sT}, 10')
                    S(f's_add_u32 m0, s{sT}, {CSB}\ns_add_u32 s{sT}, s{sT}, s{sT3}')
                    S(f'buffer_load_dwordx4 v{vT[4]}, s[{sWS}:{sWS+3}], s{sT} offen sc1 lds', tag='csg')
            if TS and s == 9:
                S(f'v_lshlrev_b32 v{vLo}, 2, v{vLane}')
                S(f'buffer_load_dword v{vHi}, v{vLo}, s[{sDbg}:{sDbg+3}], 0 offen sc1', tag='dbgchk')
            if TS and s == 11:
                lb = f'{L}_{tag}_ts'
                S(f'v_cmp_ne_u32 vcc, 0x01010101, v{vHi}')
                S(f's_cmp_eq_u64 vcc, 0\ns_cbranch_scc1 {lb}')
                R = Stream(); poll(R, sDbg, vLo, vHi, sMc, '0x01010101', 64)
                S.raw_text(Processor().run(R).text())
                S.label(lb)
            if TS and s == 12:
                S(f's_min_u32 s{sT}, s{sW}, 5\ns_cmp_eq_u32 s{sW}, 6\ns_cselect_b32 s{sT}, 4, s{sT}')
                S(f's_lshr_b32 s{sT2}, s{sT}, 1\ns_and_b32 s{sT}, s{sT}, 1')
                S(f's_lshl_b32 s{sT3}, s{sT2}, 9\ns_lshl_b32 s{sMc}, s{sT}, 8\ns_add_u32 s{sT3}, s{sT3}, s{sMc}\ns_add_u32 m0, s{sT3}, {ST_SUM}')
                S(f's_lshl_b32 s{sT2}, s{sT2}, 13\ns_lshl_b32 s{sT3}, s{sTb}, 9\ns_add_u32 s{sT2}, s{sT2}, s{sT3}\ns_add_u32 s{sT2}, s{sT2}, s{sMc}\ns_add_u32 s{sT2}, s{sT2}, {STATS_OFF}')
                S(f'v_lshlrev_b32 v{vLo}, 2, v{vLane}')
                S(f'buffer_load_dword v{vLo}, s[{sWS}:{sWS+3}], s{sT2} offen sc1 lds', tag='ts')
            if PF and s == PFSTEP:
                S(f's_lshl_b32 s{sT}, s{sW}, 13')
                S(f'v_lshlrev_b32 v{vT[0]}, 7, v{vLane}\nv_add_u32 v{vT[0]}, s{sT}, v{vT[0]}')
                S(f's_mov_b32 s{sT}, {L}_end-{L}_pc-4')
                S(f'v_min_u32 v{vT[0]}, s{sT}, v{vT[0]}')
                for k in range(PF):
                    S(f'global_load_dword v{vEp+15}, v{vT[0]}, s[{sPc}:{sPc+1}]', tag='pf')
            groups = []
            if SCHED and NM == 5 and PRO == 2:
                table = {0: [('m', 3), ('big', 2)], 1: [('m', 4), ('m', 5)], 2: [('m', 6), ('big', 3)], 3: [('m', 7), ('m', 8)], 4: [('m', 9), ('big', 4)],
                         5: [('m', 10)], 6: [('m', 11), ('big', 5)], 7: [('m', 12)], 8: [('m', 13), ('big', 6)], 9: [('m', 14)], 10: [('m', 15), ('big', 7)]}
                for kind, idx in table.get(s, []): groups += (dma_big_groups(idx) if kind == 'big' else dma_m_groups(idx))
            else:
                if s == 0:
                    for kind, idx in late: groups += (dma_big_groups(idx) if kind == 'big' else dma_m_groups(idx))
                if s + NM < 16 and 'D' not in xp: groups += (dma_m_groups(s + NM) if 'q' not in xp else dma_m_groups(s + NM)[:1] if s % 2 == 0 else [])
                if s % 2 == 1 and (s - 1) // 2 + 3 < 8 and 'D' not in xp: groups += dma_big_groups((s - 1) // 2 + 3)
            if CSS and s == 0: groups += cs_groups()
            mm = mfmas(s, typeB)
            if 'q' in xp:
                mm = mm[:4] + mm[4:9]
            if 'q' not in xp and not CSS and s % 2 == duty and 'S' not in xp:
                cm = csmfmas(s, typeB, s < 2)
                mm = [x for f in range(5) for x in mm[4*f:4*f+4] + [cm[f]]]
            if CSS and s == 3:
                cm = []
                for f in range(5):
                    a_, b_ = vr(CT[f], 4), vr(vOnes, 4)
                    if typeB and f > 0: a_, b_ = b_, a_
                    cm.append(f'v_mfma_f32_16x16x32_bf16 {vr(vCs[f],4)}, {a_}, {b_}, 0')
                mm = [x for f in range(5) for x in mm[4*f:4*f+4] + [cm[f]]]
            rr = reads(s + 1) if s + 1 < 16 else []
            if 'q' in xp: rr = rr[:11]
            if CSS and s == 2:
                rr = list(rr)
                rr += [f'v_add_u32 v{vT[2]}, {CSB + 16384 - 16384}, v{vQa}',
                       f'ds_read_b64_tr_b16 {vr(CT[0],2)}, v{vT[2]} offset:0', f'ds_read_b64_tr_b16 {vr(CT[0]+2,2)}, v{vT[2]} offset:512']
                for i in range(4):
                    tv = vT[3 + (i & 1)]
                    rr += [f'v_add_u32 v{tv}, {CSB - MB}, v{vMa[i]}',
                           f'ds_read_b64_tr_b16 {vr(CT[1+i],2)}, v{tv} offset:0', f'ds_read_b64_tr_b16 {vr(CT[1+i]+2,2)}, v{tv} offset:1024']
            if CSS and s == 15:
                rr = [f'v_min_u32 v{vT[2]}, 319, v0', f'v_lshlrev_b32 v{vT[2]}, 2, v{vT[2]}', f'v_add_u32 v{vT[3]}, {CSB}, v{vT[2]}']
                rr += [f'ds_read_b32 v{232 + j}, v{vT[3]} offset:{j*1280}' for j in range(16)]
            if 'R' in xp: rr = []
            st = stats(s) if ('S' not in xp and not TS) else (ts_ops() if (TS and s == 1) else [])
            n = len(mm)
            dpos = {}
            if groups:
                first = DMA_FIRST; stride = max(1, (n - first) // len(groups))
                if STAG == 1:
                    half = n // 2; first = 1 if duty == 0 else half; stride = max(1, (half - 1) // len(groups))
                if STAG == 2:
                    stride = max(2, (n - 2) // len(groups)); first = 1 if duty == 0 else 1 + stride // 2
                for i, g in enumerate(groups): dpos[min(n - 1, first + i * stride)] = dpos.get(min(n - 1, first + i * stride), []) + [g]
            k = 0; q = 0
            for i, m in enumerate(mm):
                S(m)
                nr = max(1, (len(rr) + n - 1) // n) if len(rr) > n else 1
                for _ in range(nr):
                    if k < len(rr): S(rr[k]); k += 1
                nq = (len(st) * (i + 1) + n - 1) // n
                while q < nq: S(st[q]); q += 1
                for g in dpos.get(i, []): emit_group(g)
            if TS and s == 1: ts_store()
        if stamps: S(f's_memtime s[{sSt+4}:{sSt+5}]\ns_memrealtime s[{sSt+20}:{sSt+21}]')

    def greduce(r):
        S(f'v_mov_b32 v{t0}, v{r}')
        S(f'v_permlane32_swap_b32 v{r}, v{t0}')
        S(f'v_add_f32 v{r}, v{r}, v{t0}')
        S(f'v_mov_b32 v{t0}, v{r}')
        S(f'v_permlane16_swap_b32 v{r}, v{t0}')
        S(f'v_add_f32 v{r}, v{r}, v{t0}')
    def reduce_stats(typeB):
        if not TS:
            S(f'v_add_f32 v{vSum[0]}, v{vSum[0]}, v{vSum[1]}')
            S(f'v_add_f32 v{vSq[0]}, v{vSq[0]}, v{vSq[1]}')
            for r in [vSum[0], vSq[0]]: greduce(r)
            ab_from(vSum[0], vSq[0], vSum[1], vSq[1], vLo)
            S(f's_lshl_b32 s{sT}, s{sTh}, 6\ns_lshl_b32 s{sT2}, s{sFq}, 4\ns_add_u32 s{sT}, s{sT}, s{sT2}')
            S(f'v_add_u32 v{t0}, s{sT}, v{vN}')
            S(f'v_lshlrev_b32 v{t0}, 2, v{t0}')
            S(f'v_add_u32 v{t0}, {ST_SUM}, v{t0}')
            S(f'ds_write_b32 v{t0}, v{vSum[1]}')
            S(f'ds_write_b32 v{t0}, v{vSq[1]} offset:512')
            S(f'ds_write_b32 v{t0}, v{vLo} offset:1024')
        else:
            S.wait_vm('ts')
        if CSS:
            for st_ in (1, 2, 4, 8):
                for j in range(0, 16, 2*st_): S(f'v_add_f32 v{232+j}, v{232+j}, v{232+j+st_}')
            S(f'v_add_u32 v{vT[2]}, {ST_CS}, v{vT[2]}')
            S(f'ds_write_b32 v{vT[2]}, v232')
        else:
            S(f's_mul_i32 s{sT}, s{sFq}, 320\ns_mul_i32 s{sT2}, s{sDuty}, 1280\ns_add_u32 s{sT}, s{sT}, s{sT2}\ns_add_u32 s{sT}, s{sT}, {ST_CS}')
            S(f'v_lshlrev_b32 v{t1}, 4, v{vG}')
            S(f'v_add_u32 v{t1}, s{sT}, v{t1}')
            S(f'v_lshlrev_b32 v{t2}, 2, v{vN}')
            S(f'v_add_u32 v{t2}, s{sT}, v{t2}')
            S('s_nop 7')
            S(f's_mov_b32 s4, 0x00010001\ns_mov_b32 s5, 0x00010001\ns_mov_b64 exec, s[4:5]')
            for f in range(5):
                if not (typeB and f > 0): S(f'ds_write_b128 v{t1}, {vr(vCs[f],4)} offset:{f*64}')
            if typeB:
                S(f's_mov_b64 exec, 0xffff')
                for f in range(1, 5): S(f'ds_write_b32 v{t2}, v{vCs[f]} offset:{f*64}')
            S('s_mov_b64 exec, -1')
        S('s_waitcnt lgkmcnt(0)')
        S('s_barrier')

    SC = ' sc1' if fused else ''
    def publish(sflag, tag, lb):
        if tr: trace(S, 5)
        S.wait_vm(tag)
        S('s_barrier')
        if tr: trace(S, 6)
        S(f's_cmp_lg_u32 s{sW}, 0\ns_cbranch_scc1 {lb}')
        S(f'v_mov_b32 v{t4}, 0\nv_mov_b32 v{t5}, 1\ns_mov_b64 exec, 1')
        if setmod == 'atomic': S(f'buffer_atomic_add v{t5}, v{t4}, s[{sWS}:{sWS+3}], s{sflag} offen sc1', tag='nocount')
        else: S(f'buffer_store_dword v{t5}, v{t4}, s[{sWS}:{sWS+3}], s{sflag} offen sc1', tag='nocount')
        S('s_mov_b64 exec, -1')
        S.label(lb)
    def epilogue(typeB):
        v = VAlloc(Bs[1] + 4, 'v', A[0][0])
        vP = v.alloc(8, 4); vcsr = v.alloc(4, 4)
        va = [vEp + i for i in range(4)]; vb = [vEp + 4 + i for i in range(4)]
        tq = [vEp + 8 + i for i in range(4)]
        vOff = vEp + 12; vAq = vEp + 13; vBq = vEp + 14
        vsd = [v.alloc() for _ in range(4)]
        def pk(op, d, srcs):
            txt = []; lo = []; hi = []
            for x in srcs:
                if x[0] == 'p': txt.append(vr(x[1], 2)); lo.append(0); hi.append(1)
                elif x[0] == 'b': txt.append(f'v[{x[1] & ~1}:{(x[1] & ~1) + 1}]'); lo.append(x[1] & 1); hi.append(x[1] & 1)
                else: txt.append(f's[{x[1]}:{x[1]+1}]'); lo.append(x[2]); hi.append(x[2])
            S(f'{op} {vr(d,2)}, ' + ', '.join(txt) + f' op_sel:[{",".join(map(str, lo))}] op_sel_hi:[{",".join(map(str, hi))}]')
        S(f'v_lshlrev_b32 v{vOff}, 4, v{vLane}')
        S(f's_lshl_b32 s{sT}, s{sTh}, 6')
        S(f'v_add_u32 v{t0}, s{sT}, v{vN}')
        S(f'v_lshlrev_b32 v{t0}, 2, v{t0}')
        S(f'v_add_u32 v{t0}, {ST_SUM}, v{t0}')
        for tt in range(4):
            S(f'ds_read_b32 v{va[tt]}, v{t0} offset:{tt*64}')
            S(f'ds_read_b32 v{vb[tt]}, v{t0} offset:{512 + tt*64}')
            if not typeB: S(f'ds_read_b32 v{vsd[tt]}, v{t0} offset:{1024 + tt*64}')
        S(f's_mul_i32 s{sT}, s{sFq}, 320')
        S(f'v_lshlrev_b32 v{t1}, 4, v{vG}')
        S(f'v_add_u32 v{t1}, s{sT}, v{t1}')
        S(f'v_add_u32 v{t1}, {ST_CS}, v{t1}')
        def rd_cs_row(dst, f):
            tmp = vCs[f]
            S(f'ds_read_b128 {vr(dst,4)}, v{t1} offset:{f*64}')
            if CSS: return []
            S(f'ds_read_b128 {vr(tmp,4)}, v{t1} offset:{f*64 + 1280}')
            return [f'v_add_f32 v{dst+r}, v{dst+r}, v{tmp+r}' for r in range(4)]
        for x in rd_cs_row(vcsr, 0): S(x)
        S(f's_cmp_lt_u32 s{sC}, 8\ns_cselect_b32 s{sScale}, {fhex(QSCALE)}, 1.0')
        for tt in range(4):
            S(f'v_mul_f32 v{vAq}, s{sScale}, v{va[tt]}')
            if PK:
                for r in (0, 2): pk('v_pk_fma_f32', acc[0][tt]+r, [('b', vb[tt]), ('p', vcsr+r), ('p', acc[0][tt]+r)])
                for r in (0, 2): pk('v_pk_mul_f32', acc[0][tt]+r, [('p', acc[0][tt]+r), ('b', vAq)])
            else:
                for r in range(4):
                    S(f'v_fma_f32 v{acc[0][tt]+r}, v{vb[tt]}, v{vcsr+r}, v{acc[0][tt]+r}')
                for r in range(4):
                    S(f'v_mul_f32 v{acc[0][tt]+r}, v{acc[0][tt]+r}, v{vAq}')
            S(f'v_cvt_pk_bf16_f32 v{vP+2*tt}, v{acc[0][tt]}, v{acc[0][tt]+1}')
            S(f'v_cvt_pk_bf16_f32 v{vP+2*tt+1}, v{acc[0][tt]+2}, v{acc[0][tt]+3}')
        S(f's_and_b32 s{sT}, s{sC}, 7\ns_lshl_b32 s{sT}, s{sT}, 2\ns_add_u32 s{sT}, s{sT}, s{sFq}\ns_lshl_b32 s{sT}, s{sT}, 16')
        S(f's_cmp_lt_u32 s{sC}, 8\ns_cselect_b32 s{sT2}, 0, {K_OFF - Q_OFF}\ns_add_u32 s{sT}, s{sT}, s{sT2}')
        S(f's_lshl_b32 s{sT2}, s{sTb}, 2\ns_lshl_b32 s{sT3}, s{sTh}, 1\ns_add_u32 s{sT2}, s{sT2}, s{sT3}\ns_lshl_b32 s{sT2}, s{sT2}, 10')
        S(f's_add_u32 s{sT}, s{sT}, s{sT2}')
        for p in range(2):
            x, y = vP + 4*p, vP + 4*p + 2
            S(f'v_permlane16_swap_b32 v{x}, v{y}')
            S(f'v_permlane16_swap_b32 v{x+1}, v{y+1}')
            S(f'buffer_store_dwordx4 {vr(x,4)}, v{vOff}, s[{sWS}:{sWS+3}], s{sT} offen offset:{p*1024}{SC}', tag='qk')
        if stamps: S(f's_memtime s[{sSt+14}:{sSt+15}]')
        if tr: trace(S, 4)
        if not typeB:
            cg = [v.alloc(4, 4) for _ in range(2)]; cu = [v.alloc(4, 4) for _ in range(2)]
            adds = []
            for i in range(2):
                adds += rd_cs_row(cg[i], 1+i); adds += rd_cs_row(cu[i], 3+i)
            for x in adds: S(x)
            K1 = -2 * LOG2E * 0.7978845608028654; K2 = K1 * 0.044715
            sK1, sK2 = 46, 47
            S(f's_mov_b32 s{sK1}, {fhex(K1)}\ns_mov_b32 s{sK2}, {fhex(K2)}')
            vk1 = v.alloc(); S(f'v_mov_b32 v{vk1}, s{sK1}')
            tg = v.alloc(4, 4); tu = v.alloc(4, 4); tz = v.alloc(4, 4)
            def gelu(i, tt, H):
                G, U = acc[1+i][tt], acc[3+i][tt]
                if PK:
                    R2 = (0, 2)
                    for r in R2: pk('v_pk_fma_f32', G+r, [('b', vb[tt]), ('p', cg[i]+r), ('p', G+r)])
                    for r in R2: pk('v_pk_fma_f32', U+r, [('b', vb[tt]), ('p', cu[i]+r), ('p', U+r)])
                    for r in R2: pk('v_pk_mul_f32', G+r, [('p', G+r), ('b', va[tt])])
                    for r in R2: pk('v_pk_mul_f32', tz+r, [('p', G+r), ('p', G+r)])
                    for r in R2: pk('v_pk_fma_f32', tz+r, [('p', tz+r), ('s', sK1, 1), ('s', sK1, 0)])
                    for r in R2: pk('v_pk_mul_f32', tz+r, [('p', tz+r), ('p', G+r)])
                    for r in range(4): S(f'v_exp_f32 v{tz+r}, v{tz+r}')
                    for r in R2: pk('v_pk_mul_f32', U+r, [('p', U+r), ('p', G+r)])
                    for r in R2: pk('v_pk_fma_f32', tz+r, [('p', tz+r), ('b', vsd[tt]), ('b', vsd[tt])])
                    for r in range(4): S(f'v_rcp_f32 v{tz+r}, v{tz+r}')
                    S('s_nop 0')
                    for r in R2: pk('v_pk_mul_f32', U+r, [('p', U+r), ('p', tz+r)])
                    S(f'v_cvt_pk_bf16_f32 v{H}, v{U}, v{U+1}')
                    S(f'v_cvt_pk_bf16_f32 v{H+1}, v{U+2}, v{U+3}')
                    return
                for r in range(4): S(f'v_fma_f32 v{G+r}, v{vb[tt]}, v{cg[i]+r}, v{G+r}')
                for r in range(4): S(f'v_fma_f32 v{U+r}, v{vb[tt]}, v{cu[i]+r}, v{U+r}')
                for r in range(4): S(f'v_mul_f32 v{G+r}, v{G+r}, v{va[tt]}')
                for r in range(4): S(f'v_mul_f32 v{tz+r}, v{G+r}, v{G+r}')
                for r in range(4): S(f'v_fma_f32 v{tz+r}, v{tz+r}, s{sK2}, v{vk1}')
                for r in range(4): S(f'v_mul_f32 v{tz+r}, v{tz+r}, v{G+r}')
                for r in range(4): S(f'v_exp_f32 v{tz+r}, v{tz+r}')
                for r in range(4): S(f'v_mul_f32 v{U+r}, v{U+r}, v{G+r}')
                for r in range(4): S(f'v_fma_f32 v{tz+r}, v{tz+r}, v{vsd[tt]}, v{vsd[tt]}')
                for r in range(4): S(f'v_rcp_f32 v{tz+r}, v{tz+r}')
                S('s_nop 0')
                for r in range(4): S(f'v_mul_f32 v{U+r}, v{U+r}, v{tz+r}')
                S(f'v_cvt_pk_bf16_f32 v{H}, v{U}, v{U+1}')
                S(f'v_cvt_pk_bf16_f32 v{H+1}, v{U+2}, v{U+3}')
            if act32:
                S(f's_lshl_b32 s{sT}, s{sTb}, 2\ns_lshl_b32 s{sT2}, s{sTh}, 1\ns_add_u32 s{sT}, s{sT}, s{sT2}\ns_mul_i32 s{sT}, s{sT}, {144*1024}')
                S(f's_lshl_b32 s{sT2}, s{sC}, 3\ns_lshl_b32 s{sT3}, s{sFq}, 1\ns_add_u32 s{sT2}, s{sT2}, s{sT3}\ns_lshl_b32 s{sT2}, s{sT2}, 10\ns_add_u32 s{sT}, s{sT}, s{sT2}')
                S(f's_add_u32 s{sT}, s{sT}, {ACT_OFF}')
                vH = [v.alloc(4, 4) for _ in range(2)]
                ND = ndefer if (fused and defer) else 0
                assert ND in (0, 1)
                blocks = [(p, i) for p in range(2) for i in range(2)]
                if fused and HD: S(f's_mov_b32 s{sHaddr}, s{sT}')
                for n, (p, i) in enumerate(blocks):
                    last = ND and n == 3
                    H = HCARRY + 12 if last else vH[n & 1]
                    if fused and HD: H = HCARRY + 4*n
                    if 'q' not in xp: gelu(i, 2*p, H); gelu(i, 2*p + 1, H + 2)
                    S(f'v_permlane16_swap_b32 v{H}, v{H+2}\nv_permlane16_swap_b32 v{H+1}, v{H+3}')
                    if not (fused and HD):
                        if last: S(f's_add_u32 s{sHaddr}, s{sT}, {i*1024}')
                        else: S(f'buffer_store_dwordx4 {vr(H,4)}, v{vOff}, s[{sWS}:{sWS+3}], s{sT} offen offset:{i*1024}{SC}', tag='h')
                        if n == 1: S(f's_add_u32 s{sT}, s{sT}, {144*1024}')
                    if fused and n == PUB_AT: publish(sFQ, 'qk', f'{L}_pq')
                if fused and HD:
                    S(f's_cmp_ge_u32 s{sW}, 4\ns_cbranch_scc1 {L}_hpass')
                    S(f's_lshl_b32 s{sT2}, s{sW}, 13\ns_add_u32 s{sT2}, s{sT2}, 131072\nv_add_u32 v{t0}, s{sT2}, v{vOff}')
                    for n in range(4): S(f'ds_write_b128 v{t0}, {vr(HCARRY + 4*n, 4)} offset:{n*1024}')
                    S('s_waitcnt lgkmcnt(0)')
                    S.label(f'{L}_hpass')
            else:
                S(f's_lshl_b32 s{sT}, s{sTb}, 3\ns_lshl_b32 s{sT2}, s{sTh}, 2\ns_add_u32 s{sT}, s{sT}, s{sT2}\ns_mul_i32 s{sT}, s{sT}, {72*1024}')
                S(f's_lshl_b32 s{sT2}, s{sC}, 2\ns_add_u32 s{sT2}, s{sT2}, s{sFq}\ns_lshl_b32 s{sT2}, s{sT2}, 10\ns_add_u32 s{sT}, s{sT}, s{sT2}')
                S(f's_add_u32 s{sT}, s{sT}, {ACT_OFF}')
                vH = [v.alloc(4, 4) for _ in range(2)]
                ND = ndefer if (fused and defer) else 0
                for tt in range(4):
                    H = vH[tt % 2] if tt < 4 - ND else HCARRY + 4*tt
                    if ND and tt == 4 - ND: S(f's_mov_b32 s{sHaddr}, s{sT}')
                    for i in range(2): gelu(i, tt, H + 2*i)
                    if tt < 4 - ND:
                        S(f'buffer_store_dwordx4 {vr(H,4)}, v{vOff}, s[{sWS}:{sWS+3}], s{sT} offen{SC}', tag='h')
                        if tt < 3: S(f's_add_u32 s{sT}, s{sT}, {72*1024}')
                    if fused and tt == PUB_AT: publish(sFQ, 'qk', f'{L}_pq')
            if fused and not defer: publish(sFH, 'h', f'{L}_ph')
        else:
            ra = [v.alloc(4, 4) for _ in range(4)]; rb = [v.alloc(4, 4) for _ in range(4)]
            S(f's_lshl_b32 s{sT}, s{sTh}, 8')
            S(f'v_lshlrev_b32 v{t2}, 4, v{vG}')
            S(f'v_add_u32 v{t2}, s{sT}, v{t2}')
            S(f'v_add_u32 v{t2}, {ST_SUM}, v{t2}')
            for tt in range(4):
                S(f'ds_read_b128 {vr(ra[tt],4)}, v{t2} offset:{tt*64}')
                S(f'ds_read_b128 {vr(rb[tt],4)}, v{t2} offset:{512 + tt*64}')
            cv = [v.alloc() for _ in range(4)]
            S(f's_mul_i32 s{sT}, s{sFq}, 320')
            S(f'v_lshlrev_b32 v{t3}, 2, v{vN}')
            S(f'v_add_u32 v{t3}, s{sT}, v{t3}')
            S(f'v_add_u32 v{t3}, {ST_CS}, v{t3}')
            for i in range(4):
                S(f'ds_read_b32 v{cv[i]}, v{t3} offset:{(1+i)*64}')
                if not CSS: S(f'ds_read_b32 v{vCs[1+i]}, v{t3} offset:{(1+i)*64 + 1280}')
            if not CSS:
                for i in range(4): S(f'v_add_f32 v{cv[i]}, v{cv[i]}, v{vCs[1+i]}')
            S(f's_sub_u32 s{sT}, s{sC}, 14\ns_lshl_b32 s{sT}, s{sT}, 4\ns_lshl_b32 s{sT2}, s{sFq}, 2\ns_add_u32 s{sT}, s{sT}, s{sT2}\ns_lshl_b32 s{sT}, s{sT}, 16')
            S(f's_lshl_b32 s{sT2}, s{sTb}, 2\ns_lshl_b32 s{sT3}, s{sTh}, 1\ns_add_u32 s{sT2}, s{sT2}, s{sT3}\ns_lshl_b32 s{sT2}, s{sT2}, 10')
            S(f's_add_u32 s{sT}, s{sT}, s{sT2}\ns_add_u32 s{sT}, s{sT}, {V_OFF}')
            vH = [v.alloc(4, 4) for _ in range(2)]
            n = 0
            for i in range(4):
                for p in range(2):
                    H = vH[n & 1]; n += 1
                    for u in range(2):
                        tt = 2*p + u; D = acc[1+i][tt]
                        if PK:
                            for r in (0, 2): pk('v_pk_fma_f32', D+r, [('p', rb[tt]+r), ('b', cv[i]), ('p', D+r)])
                            for r in (0, 2): pk('v_pk_mul_f32', D+r, [('p', D+r), ('p', ra[tt]+r)])
                        else:
                            for r in range(4): S(f'v_fma_f32 v{D+r}, v{rb[tt]+r}, v{cv[i]}, v{D+r}')
                            for r in range(4): S(f'v_mul_f32 v{D+r}, v{D+r}, v{ra[tt]+r}')
                        S(f'v_cvt_pk_bf16_f32 v{H+2*u}, v{D}, v{D+1}')
                        S(f'v_cvt_pk_bf16_f32 v{H+2*u+1}, v{D+2}, v{D+3}')
                    S(f'v_permlane32_swap_b32 v{H}, v{H+2}')
                    S(f'v_permlane32_swap_b32 v{H+1}, v{H+3}')
                    S(f'buffer_store_dwordx4 {vr(H,4)}, v{vOff}, s[{sWS}:{sWS+3}], s{sT} offen offset:{p*1024}{SC}', tag='v')
                if i < 3: S(f's_add_u32 s{sT}, s{sT}, 65536')
            if fused: publish(sFQ, 'v', f'{L}_pv')

    S(f's_cmp_eq_u32 s{sIsB}, 1\ns_cbranch_scc1 {L}_typeB')
    if not CSS: S(f's_cmp_eq_u32 s{sDuty}, 1\ns_cbranch_scc1 {L}_A1')
    procs = Processor().run(S)
    import copy
    outs = []
    def tail(typeB):
        if fused and PROT == 2:
            lb = f'{L}_clrok' + ('B' if typeB else 'A')
            S('s_mov_b64 exec, 3')
            S(f'v_cmp_ne_u32 vcc, 0x01010101, v{vT[5]}')
            S('s_mov_b64 exec, -1')
            S(f's_cmp_eq_u64 vcc, 0\ns_cbranch_scc1 {lb}')
            R = Stream(); poll(R, sDbg, vT[4], vT[5], sMc, '0x01010101', 2)
            S.raw_text(Processor().run(R).text())
            S.label(lb)
        if steptrace:
            S('s_waitcnt lgkmcnt(0)\nv_writelane_b32 v254, s72, 30\nv_writelane_b32 v254, s74, 31\ns_memtime s[72:73]\ns_waitcnt lgkmcnt(0)\nv_writelane_b32 v254, s72, 32')
            S(f'v_lshlrev_b32 v253, 2, v{vLane}\ns_lshl_b32 s{sT}, s2, 3\ns_add_u32 s{sT}, s{sT}, s{sW}\ns_lshl_b32 s{sT}, s{sT}, 8\ns_add_u32 s{sT}, s{sT}, {STAMP_OFF}')
            S(f'buffer_store_dword v254, v253, s[{sWS}:{sWS+3}], s{sT} offen', tag='nocount')
        if dbg: dbg_stamp(S, 84, 2, 0, 0, 0)
        if tr: trace(S, 2)
        reduce_stats(typeB)
        if tr: trace(S, 3)
        if stamps: S(f's_memtime s[{sSt+12}:{sSt+13}]')
        epilogue(typeB)
        if stamps:
            S(f's_memtime s[{sSt+16}:{sSt+17}]')
            S('s_waitcnt vmcnt(0)')
            S(f's_memtime s[{sSt+6}:{sSt+7}]\ns_memrealtime s[{sSt+8}:{sSt+9}]\ns_waitcnt lgkmcnt(0)')
            S(f's_sub_u32 s{sSt+2}, s{sSt+2}, s{sSt}\ns_sub_u32 s{sSt+4}, s{sSt+4}, s{sSt}\ns_sub_u32 s{sSt+6}, s{sSt+6}, s{sSt}\ns_sub_u32 s{sSt+8}, s{sSt+8}, s{sSt+10}')
            P = A[0][0]
            S(f'v_mov_b32 v{P}, s{sSt+2}\nv_mov_b32 v{P+1}, s{sSt+4}\nv_mov_b32 v{P+2}, s{sSt+6}\nv_mov_b32 v{P+3}, s{sSt+8}')
            S(f's_lshl_b32 s{sT}, s2, 3\ns_add_u32 s{sT}, s{sT}, s{sW}\ns_lshl_b32 s{sT}, s{sT}, 4\ns_add_u32 s{sT}, s{sT}, {STAMP_OFF}')
            S(f'v_mov_b32 v{t0}, 0')
            S(f'buffer_store_dwordx4 {vr(P,4)}, v{t0}, s[{sWS}:{sWS+3}], s{sT} offen')
            for a in (12, 14, 16): S(f's_sub_u32 s{sSt+a}, s{sSt+a}, s{sSt}')
            P = A[0][1]
            S(f's_sub_u32 s{sSt+18}, s{sSt+18}, s{sSt+10}\ns_sub_u32 s{sSt+20}, s{sSt+20}, s{sSt+10}\ns_lshl_b32 s{sSt+20}, s{sSt+20}, 16\ns_or_b32 s{sSt+18}, s{sSt+18}, s{sSt+20}')
            S(f'v_mov_b32 v{P}, s{sSt+12}\nv_mov_b32 v{P+1}, s{sSt+14}\nv_mov_b32 v{P+2}, s{sSt+16}\nv_mov_b32 v{P+3}, s{sSt+18}')
            S(f's_add_u32 s{sT}, s{sT}, {1 << 20}')
            S(f'buffer_store_dwordx4 {vr(P,4)}, v{t0}, s[{sWS}:{sWS+3}], s{sT} offen')
        if dbg:
            if fused: dbg_stamp(S, 84, 3, 0, 0, 0); S('s_waitcnt lgkmcnt(0)')
            else: dbg_final(S, 84, acc[0][0], sT, 0, sWS)
        if tr: trace(S, 7)
        if fused: S(f's_mov_b32 s{sIsBk}, {1 if typeB else 0}\ns_branch {L}_p2')
        else: S('s_endpgm')
    for typeB in (False, True):
        tn = 'B' if typeB else 'A'
        S.ins = []
        if CSS:
            if typeB: S.label(f'{L}_typeB')
            mainloop(typeB, 0)
            S('s_nop 7')
            tail(typeB)
            p = copy.deepcopy(procs); n0 = len(p.out); p.run(S); outs.append('\n'.join(p.out[n0:])); last = p
            continue
        if typeB:
            S.label(f'{L}_typeB')
            S(f's_cmp_eq_u32 s{sDuty}, 1\ns_cbranch_scc1 {L}_B1')
        mainloop(typeB, 0)
        S(f's_branch {L}_{tn}tail')
        p0 = copy.deepcopy(procs); n0 = len(p0.out); p0.run(S); outs.append('\n'.join(p0.out[n0:]))
        S.ins = []
        S.label(f'{L}_{tn}1')
        mainloop(typeB, 1)
        S.label(f'{L}_{tn}tail')
        S('s_nop 7')
        tail(typeB)
        p = copy.deepcopy(procs); n0 = len(p.out); p.run(S); outs.append('\n'.join(p.out[n0:])); last = p
    if fused: return procs.text() + '\n' + '\n'.join(outs), last, v.hi
    text = procs.text() + '\n' + '\n'.join(outs) + f'\n{L}_end:\ns_endpgm\n'
    return kernel_text(name, text, v.hi), last, v.hi

if __name__ == '__main__':
    import sys
    t, p, hi = gen_gemm1()
    print(t)
    from collections import Counter
    print('vgprs', hi, 'nops', p.nops_inserted, Counter(w.split(' (')[0] for w, n, _ in p.nop_log), file=sys.stderr)
```

```python
from common import *
from diag import *

BIG = 0; BIGSZ = 24576; NBIG = 3
MB = BIG + NBIG * BIGSZ; MSZ = 16384
def lds_map(NM):
    STAT = MB + NM * MSZ
    return STAT, STAT, STAT + 512, STAT + 1024, STAT + 1536, STAT + 1536 + 2 * 320 * 4
STAT, ST_SUM, ST_SQ, ST_SD, ST_CS, LDS1 = lds_map(4)
QSCALE = 0.25 * LOG2E
HCARRY = 240

def gen_gemm1(name='gemm1_kernel', stamps=False, xp='', dbg=False, DMA_FIRST=2, fused=False, PUB_AT=2, setmod='atomic', defer=True, ndefer=1, ROT=False, PF=1, PFSTEP=0, act32=True, PRO=2, TS=False, CSS=False, CSL=11, LPF=0, NM=5, steptrace=False, SCHED=1, SIG=14, PROT=2, tr=False, PK=1, HD=True, STATIC=1, STAG=0, DMOD=' sc1', ILV=1):
    STAT, ST_SUM, ST_SQ, ST_SD, ST_CS, LDS1 = lds_map(NM)
    assert LDS1 <= 163840 and (NM == 4 or fused)
    assert not (PROT == 2 and (TS or CSS)) or 'Z' in xp
    TS = TS and fused
    CSS = CSS and fused
    CSB = LDS1; CT = [232 + 4*f for f in range(5)]
    assert (not CSS) or CSB + 20480 <= 163840
    S = Stream(); L = name
    v = VAlloc(256, 'v', 1)
    sX, sQK, sM0, sM1, sWS = 8, 12, 16, 20, 24
    sW, sTb, sC, sTh, sFq, sT, sT2, sRS = 28, 29, 30, 31, 32, 33, 34, 35
    sXo, sQo, sM0o, sM1o, sLx, sLq, sLm = 36, 37, 38, 39, 40, 41, 42
    sIsB, sScale, sT3, sStepM, sDuty, sMaskHi = 43, 44, 45, 46, 58, 59
    sSt = 60
    sDbg, sFQ, sFH, sHaddr, sIsBk = 96, 94, 95, 100, 101
    sKcB, sKrM, sXc, sMc = 80, 81, 82, 83
    sPc = 78
    sTok = 77
    sMr0, sMr1 = 75, 76
    sU, sU2, sU3 = 69, 70, 71
    vLane = v.alloc(); vN = v.alloc(); vG = v.alloc()
    vT = [v.alloc() for _ in range(6)]
    vDx = [v.alloc() for _ in range(2)]; vDq = v.alloc(); vDm = v.alloc()
    vXa = [v.alloc() for _ in range(2)]; vQa = v.alloc(); vMa = [v.alloc() for _ in range(4)]
    vMb = [v.alloc() for _ in range(4)] if NM > 4 else None
    vSum = [v.alloc() for _ in range(2)]; vSq = [v.alloc() for _ in range(2)]; vLo = v.alloc(); vHi = v.alloc()
    vXs = [v.alloc() for _ in range(2)]
    vOnes = v.alloc(4, 4)
    A = [[v.alloc(4, 4) for _ in range(5)] for _ in range(2)]
    B = [[v.alloc(4, 4) for _ in range(4)] for _ in range(2)]
    Bs = [v.alloc(4, 4) for _ in range(2)]
    acc = [[v.alloc(4, 4) for _ in range(4)] for _ in range(5)]
    vCs = [v.alloc(4, 4) for _ in range(5)]
    vEp = v.alloc(16, 4)

    S(f's_cmp_ge_u32 s2, 256'); S(f's_cbranch_scc1 {L}_end')
    if stamps: S(f's_memtime s[{sSt}:{sSt+1}]\ns_memrealtime s[{sSt+10}:{sSt+11}]')
    if dbg: dbg_stamp(S, 84, 0, 0, 0, 0)
    if tr: trace_init(S); trace(S, 0)
    if PF:
        S(f's_getpc_b64 s[{sPc}:{sPc+1}]')
        S.label(f'{L}_pc')
    S(f's_load_dwordx4 s[48:51], s[0:1], {KA_X}')
    S(f's_load_dwordx4 s[52:55], s[0:1], {KA_WG}')
    S(f's_load_dwordx2 s[56:57], s[0:1], {KA_WS}')
    if fused: S(f's_load_dwordx2 s[92:93], s[0:1], {KA_DBG}')
    S(f'v_and_b32 v{vLane}, 63, v0')
    S(f'v_lshrrev_b32 v{vT[0]}, 6, v0')
    S(f'v_and_b32 v{vN}, 15, v0')
    S(f'v_readfirstlane_b32 s{sW}, v{vT[0]}')
    S(f'v_bfe_u32 v{vG}, v0, 4, 2')
    S(f's_and_b32 s{sT}, s2, 1\ns_lshl_b32 s{sT}, s{sT}, 3')
    S(f's_lshr_b32 s{sT2}, s2, 3\ns_and_b32 s{sT2}, s{sT2}, 7\ns_add_u32 s{sTb}, s{sT}, s{sT2}')
    S(f's_lshr_b32 s{sT}, s2, 1\ns_and_b32 s{sT}, s{sT}, 3\ns_lshl_b32 s{sT}, s{sT}, 2')
    S(f's_lshr_b32 s{sT2}, s2, 6\ns_add_u32 s{sC}, s{sT}, s{sT2}')
    S(f's_and_b32 s{sTh}, s{sW}, 1\ns_lshr_b32 s{sFq}, s{sW}, 1')
    S(f's_cmp_ge_u32 s{sC}, 14\ns_cselect_b32 s{sIsB}, 1, 0')
    S(f's_lshr_b32 s{sDuty}, s{sFq}, 1\ns_xor_b32 s{sDuty}, s{sDuty}, s{sTh}')
    S(f's_cmp_eq_u32 s{sIsB}, 1')
    S(f's_mov_b32 s{sRS}, 3584\ns_cmov_b32 s{sRS}, 3072')
    S(f's_lshl_b32 s{sXo}, s{sTb}, 17')
    S(f's_lshl_b32 s{sQo}, s{sC}, 7')
    S(f's_lshl_b32 s{sM0o}, s{sC}, 8')
    S(f's_sub_u32 s{sT}, s{sC}, 14\ns_lshl_b32 s{sT}, s{sT}, 9\ns_add_u32 s{sT}, s{sT}, 2048')
    S(f's_cmp_eq_u32 s{sIsB}, 1')
    S(f's_cselect_b32 s{sM0o}, s{sT}, s{sM0o}')
    S(f's_cselect_b32 s{sT}, 256, 0')
    S(f's_add_u32 s{sM1o}, s{sM0o}, s{sT}')
    S(f's_lshl_b32 s{sStepM}, s{sRS}, 5')
    S(f's_sub_u32 s{sMr0}, s{sM0o}, s{sStepM}\ns_sub_u32 s{sMr1}, s{sM1o}, s{sStepM}')
    if ROT:
        S(f's_lshl_b32 s{sKcB}, s{sC}, 1\ns_add_u32 s{sKcB}, s{sKcB}, s{sTb}\ns_and_b32 s{sKcB}, s{sKcB}, 7\ns_lshl_b32 s{sKrM}, s{sKcB}, 1')
    else:
        S(f's_mov_b32 s{sKcB}, 0\ns_mov_b32 s{sKrM}, 0')
    t0, t1, t2, t3, t4, t5 = vT
    S(f'v_lshrrev_b32 v{t3}, 3, v{vLane}')
    S(f'v_and_b32 v{t4}, 7, v{vLane}')
    S(f's_lshl_b32 s{sT}, s{sW}, 4')
    S(f'v_add_u32 v{t0}, s{sT}, v{t3}\nv_lshlrev_b32 v{t0}, 10, v{t0}\nv_xor_b32 v{t1}, v{t4}, v{vG}')
    S(f'v_lshl_add_u32 v{vDx[0]}, v{t1}, 4, v{t0}')
    S(f'v_xor_b32 v{vDx[1]}, 64, v{vDx[0]}\nv_add_u32 v{vDx[1]}, 8192, v{vDx[1]}')
    S(f'v_bfe_u32 v{t2}, v{vLane}, 4, 1')
    S(f's_and_b32 s{sT}, s{sW}, 1\ns_lshl_b32 s{sT}, s{sT}, 1')
    S(f'v_or_b32 v{t2}, s{sT}, v{t2}\nv_lshlrev_b32 v{t2}, 1, v{t2}\nv_xor_b32 v{t1}, v{t4}, v{t2}')
    S(f's_lshl_b32 s{sT}, s{sW}, 3')
    S(f'v_add_u32 v{t0}, s{sT}, v{t3}\nv_mul_u32_u24 v{t0}, 3072, v{t0}\nv_lshl_add_u32 v{vDq}, v{t1}, 4, v{t0}')
    S(f's_lshr_b32 s{sT}, s{sW}, 1\ns_and_b32 s{sT}, s{sT}, 1\ns_lshl_b32 s{sT}, s{sT}, 2')
    S(f'v_or_b32 v{t2}, s{sT}, v{vG}\nv_lshlrev_b32 v{t2}, 1, v{t2}\nv_xor_b32 v{t1}, v{vN}, v{t2}')
    S(f's_lshl_b32 s{sT}, s{sW}, 2')
    S(f'v_add_u32 v{t0}, s{sT}, v{vG}\nv_mul_lo_u32 v{t0}, v{t0}, s{sRS}\nv_lshl_add_u32 v{vDm}, v{t1}, 4, v{t0}')
    S(f's_lshl_b32 s{sLx}, s{sW}, 11')
    S(f's_lshl_b32 s{sLq}, s{sW}, 10\ns_add_u32 s{sLq}, s{sLq}, 16384')
    S(f's_lshl_b32 s{sLm}, s{sW}, 10\ns_add_u32 s{sLm}, s{sLm}, {MB}')
    if dbg and 'k' in xp: dbg_stamp(S, 84, 1, 0, 0, 0)
    S('s_waitcnt lgkmcnt(0)')
    if dbg and 'K' in xp: dbg_stamp(S, 84, 1, 0, 0, 0); S('s_waitcnt lgkmcnt(0)')
    srd(S, sX, 48, 2048 * 512 * 2)
    srd(S, sQK, 50, 512 * 1536 * 2)
    def ab_from(vs, vq, va, vb, vsd):
        S(f'v_mul_f32 v{vs}, {fhex(1/512)}, v{vs}')
        S(f'v_mul_f32 v{vq}, {fhex(1/512)}, v{vq}')
        S(f'v_fma_f32 v{vq}, -v{vs}, v{vs}, v{vq}')
        S(f'v_max_f32 v{vq}, 0, v{vq}')
        S(f'v_add_f32 v{vq}, {fhex(1e-5)}, v{vq}')
        S(f'v_rsq_f32 v{va}, v{vq}')
        S(f'v_sqrt_f32 v{vsd}, v{vq}')
        S(f'v_sub_f32 v{vb}, 0, v{vs}')

    XS = Bs[0]
    def dma_big_groups(j):
        slot = (j % NBIG) * BIGSZ + BIG; g = []
        if not ROT:
            g.append([(f's_add_u32 m0, s{sLx}, {slot}', None), (f's_add_u32 s{sXc}, s{sXo}, {j*128}', None),
                      (f'buffer_load_dwordx4 v{vDx[0]}, s[{sX}:{sX+3}], s{sXc} offen{DMOD} lds', ('big', j))])
            g.append([(f's_add_u32 m0, s{sLx}, {slot + 1024}', None), (f's_add_u32 s{sT}, s{sQo}, {j*64*3072}', None),
                      (f'buffer_load_dwordx4 v{vDx[1]}, s[{sX}:{sX+3}], s{sXc} offen{DMOD} lds', ('big', j)),
                      (f's_add_u32 m0, s{sLq}, {slot}', None), (f's_nop 0', None),
                      (f'buffer_load_dwordx4 v{vDq}, s[{sQK}:{sQK+3}], s{sT} offen{DMOD} lds', ('big', j))])
            return g
        g.append([(f's_lshl_b32 s{sXc}, s{sKcB}, 7', None), (f's_add_u32 m0, s{sLx}, {slot}', None), (f's_add_u32 s{sXc}, s{sXc}, s{sXo}', None),
                  (f'buffer_load_dwordx4 v{vDx[0]}, s[{sX}:{sX+3}], s{sXc} offen{DMOD} lds', ('big', j))])
        g.append([(f's_add_u32 m0, s{sLx}, {slot + 1024}', None), (f's_nop 0', None),
                  (f'buffer_load_dwordx4 v{vDx[1]}, s[{sX}:{sX+3}], s{sXc} offen{DMOD} lds', ('big', j))])
        g.append([(f's_add_u32 m0, s{sLq}, {slot}', None), (f's_mul_i32 s{sT}, s{sKcB}, {64*3072}', None), (f's_add_u32 s{sT}, s{sT}, s{sQo}', None),
                  (f'buffer_load_dwordx4 v{vDq}, s[{sQK}:{sQK+3}], s{sT} offen{DMOD} lds', ('big', j)),
                  (f's_add_u32 s{sKcB}, s{sKcB}, 1', None), (f's_and_b32 s{sKcB}, s{sKcB}, 7', None)])
        return g
    def dma_m_groups(s):
        slot = (s % NM) * MSZ
        if not ROT and STATIC:
            return [[(f's_add_u32 m0, s{sLm}, {slot}', None), (f's_add_u32 s{sMr0}, s{sMr0}, s{sStepM}', None),
                     (f'buffer_load_dwordx4 v{vDm}, s[{sM0}:{sM0+3}], s{sMr0} offen{DMOD} lds', ('m', s))],
                    [(f's_add_u32 m0, s{sLm}, {slot + 8192}', None), (f's_add_u32 s{sMr1}, s{sMr1}, s{sStepM}', None),
                     (f'buffer_load_dwordx4 v{vDm}, s[{sM1}:{sM1+3}], s{sMr1} offen{DMOD} lds', ('m', s))]]
        return [[(f's_mul_i32 s{sMc}, s{sKrM}, s{sStepM}', None), (f's_add_u32 m0, s{sLm}, {slot}', None), (f's_add_u32 s{sT}, s{sMc}, s{sM0o}', None),
                 (f'buffer_load_dwordx4 v{vDm}, s[{sM0}:{sM0+3}], s{sT} offen{DMOD} lds', ('m', s))],
                [(f's_add_u32 m0, s{sLm}, {slot + 8192}', None), (f's_add_u32 s{sT}, s{sMc}, s{sM1o}', None),
                 (f'buffer_load_dwordx4 v{vDm}, s[{sM1}:{sM1+3}], s{sT} offen{DMOD} lds', ('m', s)),
                 (f's_add_u32 s{sKrM}, s{sKrM}, 1', None), (f's_and_b32 s{sKrM}, s{sKrM}, 15', None)]]
    def emit_group(g):
        for t, tag in g: S(t, tag=tag)
    def dma_big(j):
        for g in dma_big_groups(j): emit_group(g)
    def dma_m(s):
        for g in dma_m_groups(s): emit_group(g)
    dma_big(0)
    S(f's_cmp_eq_u32 s{sIsB}, 1')
    for d, p in ((sM0, 52), (sM1, 54)):
        S(f's_cselect_b32 s{d}, s50, s{p}')
        S(f's_cselect_b32 s{d+1}, s51, s{p+1}')
        S(f's_mov_b32 s{d+2}, {512*1792*2}\ns_cmov_b32 s{d+2}, {512*1536*2}')
        S(f's_mov_b32 s{d+3}, 0x20000')
    S(f's_and_b32 s{sM0+1}, s{sM0+1}, 0xffff\ns_and_b32 s{sM1+1}, s{sM1+1}, 0xffff')
    def emit_setup():
        S(f's_lshl_b32 s{sU}, s{sTh}, 6')
        S(f'v_add_u32 v{t0}, s{sU}, v{vN}')
        S(f'v_lshlrev_b32 v{t0}, 7, v{t0}')
        S(f'v_lshrrev_b32 v{t1}, 1, v{vN}')
        S(f'v_xor_b32 v{t1}, v{t1}, v{vG}')
        S(f'v_lshl_add_u32 v{vXa[0]}, v{t1}, 4, v{t0}')
        S(f'v_xor_b32 v{vXa[1]}, 64, v{vXa[0]}')
        S(f's_lshl_b32 s{sU}, s{sFq}, 11')
        S(f'v_add_u32 v{vXs[0]}, s{sU}, v{vXa[0]}')
        S(f'v_add_u32 v{vXs[1]}, s{sU}, v{vXa[1]}')
        vR, vCq = t4, t5
        S(f'v_lshrrev_b32 v{vR}, 2, v{vN}')
        S(f'v_and_b32 v{vCq}, 3, v{vN}')
        S(f'v_lshl_add_u32 v{t0}, v{vG}, 3, v{vR}')
        S(f'v_lshrrev_b32 v{t1}, 1, v{vR}')
        S(f'v_and_b32 v{t2}, 1, v{vG}')
        S(f'v_lshl_or_b32 v{t1}, v{t2}, 1, v{t1}')
        S(f'v_xor_b32 v{t1}, s{sFq}, v{t1}')
        S(f'v_lshlrev_b32 v{t1}, 1, v{t1}')
        S(f'v_lshrrev_b32 v{t2}, 1, v{vCq}')
        S(f'v_add_u32 v{t1}, v{t1}, v{t2}')
        S(f'v_lshlrev_b32 v{t1}, 4, v{t1}')
        S(f'v_and_b32 v{t2}, 1, v{vCq}')
        S(f'v_lshl_add_u32 v{t1}, v{t2}, 3, v{t1}')
        S(f'v_lshl_add_u32 v{vQa}, v{t0}, 7, v{t1}')
        S(f'v_add_u32 v{vQa}, 16384, v{vQa}')
        S(f'v_and_b32 v{t2}, 1, v{vG}')
        S(f'v_lshl_or_b32 v{t1}, v{t2}, 2, v{vR}')
        S(f'v_lshlrev_b32 v{t1}, 1, v{t1}')
        S(f'v_lshrrev_b32 v{t2}, 1, v{vCq}')
        S(f'v_xor_b32 v{t1}, v{t1}, v{t2}')
        S(f'v_lshlrev_b32 v{t1}, 4, v{t1}')
        S(f'v_and_b32 v{t2}, 1, v{vCq}')
        S(f'v_lshl_add_u32 v{t1}, v{t2}, 3, v{t1}')
        S(f'v_lshl_add_u32 v{t1}, v{t0}, 8, v{t1}')
        for i in range(4):
            S(f's_lshl_b32 s{sU}, s{sFq}, 1\ns_add_u32 s{sU}, s{sU}, {i & 1}\ns_lshl_b32 s{sU}, s{sU}, 5')
            S(f's_add_u32 s{sU}, s{sU}, {(i >> 1) * 8192}')
            S(f's_and_b32 s{sU2}, s{sFq}, 1\ns_lshl_b32 s{sU2}, s{sU2}, 2\ns_add_u32 s{sU2}, s{sU2}, {i}\ns_lshl_b32 s{sU2}, s{sU2}, 5')
            S(f's_lshr_b32 s{sU3}, s{sFq}, 1\ns_lshl_b32 s{sU3}, s{sU3}, 13\ns_add_u32 s{sU2}, s{sU2}, s{sU3}')
            S(f's_cmp_eq_u32 s{sIsB}, 1\ns_cselect_b32 s{sU}, s{sU2}, s{sU}')
            S(f'v_xor_b32 v{vMa[i]}, s{sU}, v{t1}')
            S(f'v_add_u32 v{vMa[i]}, {MB}, v{vMa[i]}')
            if NM > 4: S(f'v_add_u32 v{vMb[i]}, {2*MSZ}, v{vMa[i]}')
        if 'q' in xp:
            for f in range(2, 5):
                for tt in range(4):
                    for r in range(4): S(f'v_mov_b32 v{acc[f][tt]+r}, 0')
            for f in range(5):
                for r in range(4): S(f'v_mov_b32 v{vCs[f]+r}, 0')
        for r in vSum + vSq: S(f'v_mov_b32 v{r}, 0')
        if 'O' in xp:
            for i in range(4): S(f'v_mov_b32 v{vOnes+i}, 0x3f803f80')
        else:
            S(f'v_cmp_eq_u32 vcc, 0, v{vN}')
            S(f'v_mov_b32 v{t0}, 0x3f803f80')
            S(f'v_cndmask_b32 v{vOnes}, 0, v{t0}, vcc')
            for i in range(1, 4): S(f'v_mov_b32 v{vOnes+i}, v{vOnes}')
        S(f's_mov_b32 s{sMaskHi}, 0xffff0000')


    late = []
    if ILV:
        assert PRO == 2
        keep = S.ins; S.ins = []; emit_setup(); su = S.ins; S.ins = keep
        chunks = []; cur = []
        for ins in su:
            cur.append(ins)
            if len(cur) >= 9 and not ins.op.startswith(('v_cmp', 's_cmp', 's_cselect')) : chunks.append(cur); cur = []
        if cur: chunks.append(cur)
        groups0 = dma_m_groups(0) + dma_m_groups(1) + dma_big_groups(1) + dma_m_groups(2)
        for i, g in enumerate(groups0):
            emit_group(g)
            if i < len(chunks): S.ins += chunks[i]
        for ch in chunks[len(groups0):]: S.ins += ch
    else:
        dma_m(0); dma_m(1)
        if PRO >= 1: dma_big(1)
        else: late += [('big', 1)]
        if PRO >= 2: dma_m(2)
        else: late += [('m', 2)]
    if PRO >= 3: dma_m(3)
    else: late += [('m', 3)]
    if PRO >= 4: dma_big(2)
    else: late += [('big', 2)]
    for k in range(4, NM): late += [('m', k)]
    if dbg and 'j' in xp: dbg_stamp(S, 84, 1, 0, 0, 0)
    vDq2 = 252
    if LPF:
        dmy = 253
        S(f's_and_b32 s{sT}, s{sTb}, 7\ns_lshl_b32 s{sT}, s{sT}, 6\ns_lshl_b32 s{sT2}, s{sW}, 3\ns_add_u32 s{sT}, s{sT}, s{sT2}')
        S(f'v_add_u32 v{t0}, s{sT}, v{vLane}')
        S(f'v_mul_u32_u24 v{t1}, 3072, v{t0}\nv_mul_lo_u32 v{t2}, v{t0}, s{sRS}')
        S(f's_mov_b64 exec, 0xff')
        S(f'buffer_load_dword v{244}, v{t1}, s[{sQK}:{sQK+3}], s{sQo} offen', tag='lpf')
        for k, off in enumerate((0, 128)):
            S(f'buffer_load_dword v{245 + 2*k}, v{t2}, s[{sM0}:{sM0+3}], s{sM0o} offen offset:{off}', tag='lpf')
            S(f'buffer_load_dword v{246 + 2*k}, v{t2}, s[{sM1}:{sM1+3}], s{sM1o} offen offset:{off}', tag='lpf')
        S(f's_mov_b64 exec, -1')
        S(f's_and_b32 s{sT}, s{sC}, 3\ns_lshl_b32 s{sT}, s{sT}, 5\ns_lshl_b32 s{sT2}, s{sW}, 2\ns_add_u32 s{sT}, s{sT}, s{sT2}')
        S(f'v_lshrrev_b32 v{t0}, 3, v{vLane}\nv_add_u32 v{t0}, s{sT}, v{t0}\nv_lshlrev_b32 v{t0}, 10, v{t0}\nv_and_b32 v{t1}, 7, v{vLane}\nv_lshl_add_u32 v{t0}, v{t1}, 7, v{t0}')
        S(f's_mov_b32 exec_hi, 0')
        S(f'buffer_load_dword v{249}, v{t0}, s[{sX}:{sX+3}], s{sXo} offen', tag='lpf')
        S(f's_mov_b32 exec_hi, -1')
    if CSS:
        S(f'v_lshrrev_b32 v{t0}, 3, v{vLane}\ns_lshl_b32 s{sT}, s{sW}, 2\nv_add_u32 v{t0}, s{sT}, v{t0}\nv_mul_u32_u24 v{t0}, 3072, v{t0}')
        S(f's_lshr_b32 s{sT}, s{sW}, 1\ns_and_b32 s{sT}, s{sT}, 1\ns_lshl_b32 s{sT}, s{sT}, 1')
        S(f'v_bfe_u32 v{t1}, v{vLane}, 4, 1\nv_or_b32 v{t1}, s{sT}, v{t1}\nv_lshlrev_b32 v{t1}, 1, v{t1}\nv_and_b32 v{t2}, 7, v{vLane}\nv_xor_b32 v{t1}, v{t1}, v{t2}')
        S(f'v_lshl_add_u32 v{vDq2}, v{t1}, 4, v{t0}')
    def cs_groups():
        return [[(f's_mul_i32 s{sXc}, s{sTb}, s{sStepM}', None), (f's_lshl_b32 s{sT2}, s{sW}, 10', None), (f's_add_u32 m0, s{sT2}, {CSB}', None), (f's_add_u32 s{sT}, s{sXc}, s{sM0o}', None),
                 (f'buffer_load_dwordx4 v{vDm}, s[{sM0}:{sM0+3}], s{sT} offen lds', 'cs')],
                [(f's_mul_i32 s{sXc}, s{sTb}, s{sStepM}', None), (f's_lshl_b32 s{sT2}, s{sW}, 10', None), (f's_add_u32 m0, s{sT2}, {CSB + 8192}', None), (f's_add_u32 s{sT}, s{sXc}, s{sM1o}', None),
                 (f'buffer_load_dwordx4 v{vDm}, s[{sM1}:{sM1+3}], s{sT} offen lds', 'cs')],
                [(f's_lshl_b32 s{sT2}, s{sW}, 9', None), (f's_add_u32 m0, s{sT2}, {CSB + 16384}', None), (f's_mul_i32 s{sT}, s{sTb}, {32*3072}', None), (f's_add_u32 s{sT}, s{sT}, s{sQo}', None),
                 (f's_mov_b32 exec_hi, 0', None), (f'buffer_load_dwordx4 v{vDq2}, s[{sQK}:{sQK+3}], s{sT} offen lds', 'cs'), (f's_mov_b32 exec_hi, -1', None)]]
    if TS:
        S(f's_lshl_b32 s{sTok}, s{sTb}, 7\ns_lshl_b32 s{sT}, s{sC}, 3\ns_add_u32 s{sTok}, s{sTok}, s{sT}\ns_add_u32 s{sTok}, s{sTok}, s{sW}')
        S(f's_lshl_b32 s{sT}, s{sTok}, 10\nv_lshlrev_b32 v{t5}, 4, v{vLane}')
        S(f'buffer_load_dwordx4 {vr(XS,4)}, v{t5}, s[{sX}:{sX+3}], s{sT} offen', tag='tsx')
    srd_ws(S, sWS, 56)
    if fused:
        srd(S, sDbg, 92, 256)
        S(f's_lshl_b32 s{sT}, s{sC}, 11\ns_lshl_b32 s{sT2}, s{sTb}, 7\ns_add_u32 s{sFQ}, s{sT}, s{sT2}\ns_add_u32 s{sFQ}, s{sFQ}, {FQ_OFF}')
        S(f's_lshl_b32 s{sT}, s{sTb}, 13\ns_lshl_b32 s{sT2}, s{sC}, 9\ns_add_u32 s{sFH}, s{sT}, s{sT2}\ns_add_u32 s{sFH}, s{sFH}, {FH_OFF}')
        if PROT == 2:
            S(f's_cmp_ge_u32 s2, 8\ns_cbranch_scc1 {L}_noclr')
            X = acc[0][0]
            for i in range(4): S(f'v_mov_b32 v{X+i}, 0')
            S(f's_mul_i32 s{sT}, s2, 40960\ns_mul_i32 s{sT2}, s{sW}, 5120\ns_add_u32 s{sT}, s{sT}, s{sT2}\ns_add_u32 s{sT}, s{sT}, {FLAG_OFF}')
            S(f'v_lshlrev_b32 v{vT[1]}, 4, v{vLane}')
            for k in range(5):
                S(f'buffer_store_dwordx4 {vr(X,4)}, v{vT[1]}, s[{sWS}:{sWS+3}], s{sT} offen offset:{(k % 4)*1024} sc1', tag='nocount')
                if k == 3: S(f's_add_u32 s{sT}, s{sT}, 4096')
        else:
            S(f's_cmp_lg_u32 s{sW}, 7\ns_cbranch_scc1 {L}_noclr')
            S(f's_and_b32 s{sT}, s2, 7\ns_lshl_b32 s{sT}, s{sT}, 2\ns_lshr_b32 s{sT2}, s2, 6\ns_add_u32 s{sT}, s{sT}, s{sT2}\ns_lshl_b32 s{sT}, s{sT}, 7')
            S(f's_lshr_b32 s{sT2}, s2, 3\ns_and_b32 s{sT2}, s{sT2}, 7\ns_lshl_b32 s{sT2}, s{sT2}, 14\ns_add_u32 s{sT}, s{sT}, s{sT2}\ns_add_u32 s{sT}, s{sT}, {FO_OFF}')
            S(f'v_lshlrev_b32 v{vT[1]}, 12, v{vLane}')
            S(f'v_add_u32 v{vT[1]}, s{sT}, v{vT[1]}')
            S(f'v_mov_b32 v{vT[2]}, s{sFQ}\nv_cmp_eq_u32 vcc, 4, v{vLane}\nv_cndmask_b32 v{vT[1]}, v{vT[1]}, v{vT[2]}, vcc')
            S(f'v_mov_b32 v{vT[2]}, s{sFH}\nv_cmp_eq_u32 vcc, 5, v{vLane}\nv_cndmask_b32 v{vT[1]}, v{vT[1]}, v{vT[2]}, vcc')
            S(f'v_mov_b32 v{vT[2]}, 0')
            S(f's_mov_b64 exec, 63')
            S(f'buffer_store_dword v{vT[2]}, v{vT[1]}, s[{sWS}:{sWS+3}], 0 offen sc1', tag='nocount')
            S(f's_mov_b64 exec, -1')
        S.label(f'{L}_noclr')
    if not ILV: emit_setup()

    def reads(s):
        b = s & 1; sp = s & 1; j = s // 2
        bs = (j % NBIG) * BIGSZ + BIG; ms = (s % NM) * MSZ
        out = []
        for tt in range(4):
            out.append(f'ds_read_b128 {vr(B[b][tt],4)}, v{vXa[sp]} offset:{bs + tt*2048}')
        for rd in range(2):
            out.append(f'ds_read_b64_tr_b16 {vr(A[b][0]+2*rd,2)}, v{vQa} offset:{bs + (32*sp + 4*rd)*128}')
        if 'S' not in xp and not TS: out.append(f'ds_read_b128 {vr(Bs[b],4)}, v{vXs[sp]} offset:{bs}')
        for i in range(4):
            for rd in range(2):
                if ms >= 2*MSZ and NM > 4: out.append(f'ds_read_b64_tr_b16 {vr(A[b][1+i]+2*rd,2)}, v{vMb[i]} offset:{ms - 2*MSZ + rd*1024}')
                else: out.append(f'ds_read_b64_tr_b16 {vr(A[b][1+i]+2*rd,2)}, v{vMa[i]} offset:{ms + rd*1024}')
        return out
    def mfmas(s, typeB):
        b = s & 1; out = []
        for f in range(5):
            for tt in range(4):
                c = '0' if s == 0 else vr(acc[f][tt], 4)
                a_, b_ = vr(A[b][f], 4), vr(B[b][tt], 4)
                if typeB and f > 0: a_, b_ = b_, a_
                out.append(f'v_mfma_f32_16x16x32_bf16 {vr(acc[f][tt],4)}, {a_}, {b_}, {c}')
        return out
    def stats(s):
        b = s & 1; out = []
        for r in range(4):
            p = Bs[b] + r
            out.append(f'v_lshlrev_b32 v{vLo}, 16, v{p}')
            out.append(f'v_and_b32 v{vHi}, s{sMaskHi}, v{p}')
            out.append(f'v_add_f32 v{vSum[0]}, v{vSum[0]}, v{vLo}')
            out.append(f'v_add_f32 v{vSum[1]}, v{vSum[1]}, v{vHi}')
            out.append(f'v_fma_f32 v{vSq[0]}, v{vLo}, v{vLo}, v{vSq[0]}')
            out.append(f'v_fma_f32 v{vSq[1]}, v{vHi}, v{vHi}, v{vSq[1]}')
        return out
    def ts_ops():
        a_, b_, lo, hi = Bs[1], Bs[1] + 1, Bs[1] + 2, Bs[1] + 3
        ra_, rb_, rs_, ro_ = vSum[0], vSum[1], vSq[0], vSq[1]
        o = [f'v_mov_b32 v{a_}, 0', f'v_mov_b32 v{b_}, 0']
        for r in range(4):
            o += [f'v_lshlrev_b32 v{lo}, 16, v{XS+r}', f'v_and_b32 v{hi}, s{sMaskHi}, v{XS+r}',
                  f'v_add_f32 v{a_}, v{a_}, v{lo}', f'v_fma_f32 v{b_}, v{lo}, v{lo}, v{b_}',
                  f'v_add_f32 v{a_}, v{a_}, v{hi}', f'v_fma_f32 v{b_}, v{hi}, v{hi}, v{b_}']
        for sh in (1, 2, 4, 8):
            for r in (a_, b_): o.append(f'v_add_f32_dpp v{r}, v{r}, v{r} row_shr:{sh} row_mask:0xf bank_mask:0xf bound_ctrl:0')
        for r in (a_, b_): o.append(f'v_add_f32_dpp v{r}, v{r}, v{r} row_bcast:15 row_mask:0xa bank_mask:0xf')
        for r in (a_, b_): o.append(f'v_add_f32_dpp v{r}, v{r}, v{r} row_bcast:31 row_mask:0xc bank_mask:0xf')
        o += [f'v_mul_f32 v{a_}, {fhex(1/512)}, v{a_}', f'v_mul_f32 v{b_}, {fhex(1/512)}, v{b_}', f'v_fma_f32 v{b_}, -v{a_}, v{a_}, v{b_}',
              f'v_max_f32 v{b_}, 0, v{b_}', f'v_add_f32 v{b_}, {fhex(1e-5)}, v{b_}', f'v_rsq_f32 v{ra_}, v{b_}', f'v_sqrt_f32 v{rs_}, v{b_}', f'v_sub_f32 v{rb_}, 0, v{a_}']
        return o
    def ts_store():
        ra_, rb_, rs_, ro_ = vSum[0], vSum[1], vSq[0], vSq[1]
        S(f's_lshl_b32 s{sT}, s{sTok}, 2\nv_mov_b32 v{ro_}, s{sT}\ns_mov_b32 s{sT2}, {STATS_OFF}')
        S(f's_mov_b32 exec_lo, 0\ns_mov_b32 exec_hi, 0x80000000')
        for k, r in enumerate((ra_, rb_, rs_)):
            S(f'buffer_store_dword v{r}, v{ro_}, s[{sWS}:{sWS+3}], s{sT2} offen sc1', tag='tss')
            if k < 2: S(f's_add_u32 s{sT2}, s{sT2}, 8192')
        S('s_mov_b64 exec, -1')
    def csmfmas(s, typeB, first):
        b = s & 1; out = []
        for f in range(5):
            c = '0' if first else vr(vCs[f], 4)
            a_, b_ = vr(A[b][f], 4), vr(vOnes, 4)
            if typeB and f > 0: a_, b_ = b_, a_
            out.append(f'v_mfma_f32_16x16x32_bf16 {vr(vCs[f],4)}, {a_}, {b_}, {c}')
        return out

    def mainloop(typeB, duty):
        tag = ('B' if typeB else 'A') + str(duty)
        S.wait_vm(('big', 0)); S.wait_vm(('m', 0))
        S('s_waitcnt lgkmcnt(0)')
        S('s_barrier')
        if stamps: S(f's_memtime s[{sSt+2}:{sSt+3}]\ns_memrealtime s[{sSt+18}:{sSt+19}]')
        if dbg and 'K' not in xp and 'k' not in xp and 'j' not in xp: dbg_stamp(S, 84, 1, 0, 0, 0)
        if tr: trace(S, 1)
        for r in reads(0): S(r)
        for s in range(16):
            S('s_waitcnt lgkmcnt(0)')
            if s + 1 < 16:
                S.wait_vm(('m', s + 1)); S.wait_vm(('big', (s + 1) // 2))
            if CSS and s == 2: S.wait_vm('cs')
            if CSS and s == 15: S.wait_vm('csg')
            if steptrace:
                if s > 0: S(f'v_writelane_b32 v254, s72, {2*s-2}\nv_writelane_b32 v254, s74, {2*s-1}')
                S('s_memtime s[72:73]')
            S('s_barrier')
            if steptrace: S('s_memtime s[74:75]')
            if fused and PROT == 2 and s == 10:
                S(f'v_lshlrev_b32 v{vT[4]}, 2, v{vLane}\ns_mov_b64 exec, 3')
                S(f'buffer_load_dword v{vT[5]}, v{vT[4]}, s[{sDbg}:{sDbg+3}], 0 offen sc1', tag='clrchk')
                S('s_mov_b64 exec, -1')
            if fused and s == (4 if PROT == 2 else 7 if CSS else 5 if TS else SIG):
                lb = f'{L}_{tag}_sig'
                if PROT == 2: S(f's_cmp_ge_u32 s2, 8\ns_cbranch_scc1 {lb}')
                S(f's_cmp_lg_u32 s{sW}, 7\ns_cbranch_scc1 {lb}')
                S(f'v_mov_b32 v{vT[0]}, s2\nv_mov_b32 v{vT[1]}, 1\ns_mov_b64 exec, 1')
                S(f'buffer_store_byte v{vT[1]}, v{vT[0]}, s[{sDbg}:{sDbg+3}], 0 offen sc1', tag='nocount')
                S('s_mov_b64 exec, -1')
                S.label(lb)
            if CSS and s == 4:
                lb = f'{L}_{tag}_css'
                S(f's_cmp_lg_u32 s{sTh}, 0\ns_cbranch_scc1 {lb}')
                S(f's_lshl_b32 s{sT}, s{sC}, 4\ns_add_u32 s{sT}, s{sT}, s{sTb}\ns_mul_i32 s{sT}, s{sT}, 1280\ns_mul_i32 s{sT2}, s{sFq}, 320\ns_add_u32 s{sT}, s{sT}, s{sT2}\ns_add_u32 s{sT}, s{sT}, {CSP_OFF}')
                S(f'v_lshlrev_b32 v{vT[2]}, 4, v{vG}\nv_lshlrev_b32 v{vT[3]}, 2, v{vN}')
                S(f's_mov_b32 s4, 0x00010001\ns_mov_b32 s5, 0x00010001\ns_mov_b64 exec, s[4:5]')
                for f in range(5):
                    if not (typeB and f > 0): S(f'buffer_store_dwordx4 {vr(vCs[f],4)}, v{vT[2]}, s[{sWS}:{sWS+3}], s{sT} offen offset:{f*64} sc1', tag='nocount')
                if typeB:
                    S('s_mov_b64 exec, 0xffff')
                    for f in range(1, 5): S(f'buffer_store_dword v{vCs[f]}, v{vT[3]}, s[{sWS}:{sWS+3}], s{sT} offen offset:{f*64} sc1', tag='nocount')
                S('s_mov_b64 exec, -1')
                S.label(lb)
            if CSS and s == CSL and 'Z' not in xp:
                S(f'v_lshlrev_b32 v{vT[4]}, 2, v{vLane}')
                S(f'buffer_load_dword v{vT[5]}, v{vT[4]}, s[{sDbg}:{sDbg+3}], 0 offen sc1', tag='dbgchk')
            if CSS and s == CSL + 2:
                lb = f'{L}_{tag}_csc'
                if 'Z' not in xp:
                    S(f'v_cmp_ne_u32 vcc, 0x01010101, v{vT[5]}')
                    S(f's_cmp_eq_u64 vcc, 0\ns_cbranch_scc1 {lb}')
                    R = Stream(); poll(R, sDbg, vT[4], vT[5], sMc, '0x01010101', 64)
                    S.raw_text(Processor().run(R).text())
                    S.label(lb)
                S(f'v_lshlrev_b32 v{vT[4]}, 4, v{vLane}\ns_mul_i32 s{sT3}, s{sC}, 20480\ns_add_u32 s{sT3}, s{sT3}, {CSP_OFF}')
                for k in range(3):
                    S(f's_mul_i32 s{sT}, s{sW}, 3\ns_add_u32 s{sT}, s{sT}, {k}\ns_min_u32 s{sT}, s{sT}, 19\ns_lshl_b32 s{sT}, s{sT}, 10')
                    S(f's_add_u32 m0, s{sT}, {CSB}\ns_add_u32 s{sT}, s{sT}, s{sT3}')
                    S(f'buffer_load_dwordx4 v{vT[4]}, s[{sWS}:{sWS+3}], s{sT} offen sc1 lds', tag='csg')
            if TS and s == 9:
                S(f'v_lshlrev_b32 v{vLo}, 2, v{vLane}')
                S(f'buffer_load_dword v{vHi}, v{vLo}, s[{sDbg}:{sDbg+3}], 0 offen sc1', tag='dbgchk')
            if TS and s == 11:
                lb = f'{L}_{tag}_ts'
                S(f'v_cmp_ne_u32 vcc, 0x01010101, v{vHi}')
                S(f's_cmp_eq_u64 vcc, 0\ns_cbranch_scc1 {lb}')
                R = Stream(); poll(R, sDbg, vLo, vHi, sMc, '0x01010101', 64)
                S.raw_text(Processor().run(R).text())
                S.label(lb)
            if TS and s == 12:
                S(f's_min_u32 s{sT}, s{sW}, 5\ns_cmp_eq_u32 s{sW}, 6\ns_cselect_b32 s{sT}, 4, s{sT}')
                S(f's_lshr_b32 s{sT2}, s{sT}, 1\ns_and_b32 s{sT}, s{sT}, 1')
                S(f's_lshl_b32 s{sT3}, s{sT2}, 9\ns_lshl_b32 s{sMc}, s{sT}, 8\ns_add_u32 s{sT3}, s{sT3}, s{sMc}\ns_add_u32 m0, s{sT3}, {ST_SUM}')
                S(f's_lshl_b32 s{sT2}, s{sT2}, 13\ns_lshl_b32 s{sT3}, s{sTb}, 9\ns_add_u32 s{sT2}, s{sT2}, s{sT3}\ns_add_u32 s{sT2}, s{sT2}, s{sMc}\ns_add_u32 s{sT2}, s{sT2}, {STATS_OFF}')
                S(f'v_lshlrev_b32 v{vLo}, 2, v{vLane}')
                S(f'buffer_load_dword v{vLo}, s[{sWS}:{sWS+3}], s{sT2} offen sc1 lds', tag='ts')
            if PF and s == PFSTEP:
                S(f's_lshl_b32 s{sT}, s{sW}, 13')
                S(f'v_lshlrev_b32 v{vT[0]}, 7, v{vLane}\nv_add_u32 v{vT[0]}, s{sT}, v{vT[0]}')
                S(f's_mov_b32 s{sT}, {L}_end-{L}_pc-4')
                S(f'v_min_u32 v{vT[0]}, s{sT}, v{vT[0]}')
                for k in range(PF):
                    S(f'global_load_dword v{vEp+15}, v{vT[0]}, s[{sPc}:{sPc+1}]', tag='pf')
            groups = []
            if SCHED and NM == 5 and PRO == 2:
                table = {0: [('m', 3), ('big', 2)], 1: [('m', 4), ('m', 5)], 2: [('m', 6), ('big', 3)], 3: [('m', 7), ('m', 8)], 4: [('m', 9), ('big', 4)],
                         5: [('m', 10)], 6: [('m', 11), ('big', 5)], 7: [('m', 12)], 8: [('m', 13), ('big', 6)], 9: [('m', 14)], 10: [('m', 15), ('big', 7)]}
                for kind, idx in table.get(s, []): groups += (dma_big_groups(idx) if kind == 'big' else dma_m_groups(idx))
            else:
                if s == 0:
                    for kind, idx in late: groups += (dma_big_groups(idx) if kind == 'big' else dma_m_groups(idx))
                if s + NM < 16 and 'D' not in xp: groups += (dma_m_groups(s + NM) if 'q' not in xp else dma_m_groups(s + NM)[:1] if s % 2 == 0 else [])
                if s % 2 == 1 and (s - 1) // 2 + 3 < 8 and 'D' not in xp: groups += dma_big_groups((s - 1) // 2 + 3)
            if CSS and s == 0: groups += cs_groups()
            mm = mfmas(s, typeB)
            if 'q' in xp:
                mm = mm[:4] + mm[4:9]
            if 'q' not in xp and not CSS and s % 2 == duty and 'S' not in xp:
                cm = csmfmas(s, typeB, s < 2)
                mm = [x for f in range(5) for x in mm[4*f:4*f+4] + [cm[f]]]
            if CSS and s == 3:
                cm = []
                for f in range(5):
                    a_, b_ = vr(CT[f], 4), vr(vOnes, 4)
                    if typeB and f > 0: a_, b_ = b_, a_
                    cm.append(f'v_mfma_f32_16x16x32_bf16 {vr(vCs[f],4)}, {a_}, {b_}, 0')
                mm = [x for f in range(5) for x in mm[4*f:4*f+4] + [cm[f]]]
            rr = reads(s + 1) if s + 1 < 16 else []
            if 'q' in xp: rr = rr[:11]
            if CSS and s == 2:
                rr = list(rr)
                rr += [f'v_add_u32 v{vT[2]}, {CSB + 16384 - 16384}, v{vQa}',
                       f'ds_read_b64_tr_b16 {vr(CT[0],2)}, v{vT[2]} offset:0', f'ds_read_b64_tr_b16 {vr(CT[0]+2,2)}, v{vT[2]} offset:512']
                for i in range(4):
                    tv = vT[3 + (i & 1)]
                    rr += [f'v_add_u32 v{tv}, {CSB - MB}, v{vMa[i]}',
                           f'ds_read_b64_tr_b16 {vr(CT[1+i],2)}, v{tv} offset:0', f'ds_read_b64_tr_b16 {vr(CT[1+i]+2,2)}, v{tv} offset:1024']
            if CSS and s == 15:
                rr = [f'v_min_u32 v{vT[2]}, 319, v0', f'v_lshlrev_b32 v{vT[2]}, 2, v{vT[2]}', f'v_add_u32 v{vT[3]}, {CSB}, v{vT[2]}']
                rr += [f'ds_read_b32 v{232 + j}, v{vT[3]} offset:{j*1280}' for j in range(16)]
            if 'R' in xp: rr = []
            st = stats(s) if ('S' not in xp and not TS) else (ts_ops() if (TS and s == 1) else [])
            n = len(mm)
            dpos = {}
            if groups:
                first = DMA_FIRST; stride = max(1, (n - first) // len(groups))
                if STAG == 1:
                    half = n // 2; first = 1 if duty == 0 else half; stride = max(1, (half - 1) // len(groups))
                if STAG == 2:
                    stride = max(2, (n - 2) // len(groups)); first = 1 if duty == 0 else 1 + stride // 2
                for i, g in enumerate(groups): dpos[min(n - 1, first + i * stride)] = dpos.get(min(n - 1, first + i * stride), []) + [g]
            k = 0; q = 0
            for i, m in enumerate(mm):
                S(m)
                nr = max(1, (len(rr) + n - 1) // n) if len(rr) > n else 1
                for _ in range(nr):
                    if k < len(rr): S(rr[k]); k += 1
                nq = (len(st) * (i + 1) + n - 1) // n
                while q < nq: S(st[q]); q += 1
                for g in dpos.get(i, []): emit_group(g)
            if TS and s == 1: ts_store()
        if stamps: S(f's_memtime s[{sSt+4}:{sSt+5}]\ns_memrealtime s[{sSt+20}:{sSt+21}]')

    def greduce(r):
        S(f'v_mov_b32 v{t0}, v{r}')
        S(f'v_permlane32_swap_b32 v{r}, v{t0}')
        S(f'v_add_f32 v{r}, v{r}, v{t0}')
        S(f'v_mov_b32 v{t0}, v{r}')
        S(f'v_permlane16_swap_b32 v{r}, v{t0}')
        S(f'v_add_f32 v{r}, v{r}, v{t0}')
    def reduce_stats(typeB):
        if not TS:
            S(f'v_add_f32 v{vSum[0]}, v{vSum[0]}, v{vSum[1]}')
            S(f'v_add_f32 v{vSq[0]}, v{vSq[0]}, v{vSq[1]}')
            for r in [vSum[0], vSq[0]]: greduce(r)
            ab_from(vSum[0], vSq[0], vSum[1], vSq[1], vLo)
            S(f's_lshl_b32 s{sT}, s{sTh}, 6\ns_lshl_b32 s{sT2}, s{sFq}, 4\ns_add_u32 s{sT}, s{sT}, s{sT2}')
            S(f'v_add_u32 v{t0}, s{sT}, v{vN}')
            S(f'v_lshlrev_b32 v{t0}, 2, v{t0}')
            S(f'v_add_u32 v{t0}, {ST_SUM}, v{t0}')
            S(f'ds_write_b32 v{t0}, v{vSum[1]}')
            S(f'ds_write_b32 v{t0}, v{vSq[1]} offset:512')
            S(f'ds_write_b32 v{t0}, v{vLo} offset:1024')
        else:
            S.wait_vm('ts')
        if CSS:
            for st_ in (1, 2, 4, 8):
                for j in range(0, 16, 2*st_): S(f'v_add_f32 v{232+j}, v{232+j}, v{232+j+st_}')
            S(f'v_add_u32 v{vT[2]}, {ST_CS}, v{vT[2]}')
            S(f'ds_write_b32 v{vT[2]}, v232')
        else:
            S(f's_mul_i32 s{sT}, s{sFq}, 320\ns_mul_i32 s{sT2}, s{sDuty}, 1280\ns_add_u32 s{sT}, s{sT}, s{sT2}\ns_add_u32 s{sT}, s{sT}, {ST_CS}')
            S(f'v_lshlrev_b32 v{t1}, 4, v{vG}')
            S(f'v_add_u32 v{t1}, s{sT}, v{t1}')
            S(f'v_lshlrev_b32 v{t2}, 2, v{vN}')
            S(f'v_add_u32 v{t2}, s{sT}, v{t2}')
            S('s_nop 7')
            S(f's_mov_b32 s4, 0x00010001\ns_mov_b32 s5, 0x00010001\ns_mov_b64 exec, s[4:5]')
            for f in range(5):
                if not (typeB and f > 0): S(f'ds_write_b128 v{t1}, {vr(vCs[f],4)} offset:{f*64}')
            if typeB:
                S(f's_mov_b64 exec, 0xffff')
                for f in range(1, 5): S(f'ds_write_b32 v{t2}, v{vCs[f]} offset:{f*64}')
            S('s_mov_b64 exec, -1')
        S('s_waitcnt lgkmcnt(0)')
        S('s_barrier')

    SC = ' sc1' if fused else ''
    def publish(sflag, tag, lb):
        if tr: trace(S, 5)
        S.wait_vm(tag)
        S('s_barrier')
        if tr: trace(S, 6)
        S(f's_cmp_lg_u32 s{sW}, 0\ns_cbranch_scc1 {lb}')
        S(f'v_mov_b32 v{t4}, 0\nv_mov_b32 v{t5}, 1\ns_mov_b64 exec, 1')
        if setmod == 'atomic': S(f'buffer_atomic_add v{t5}, v{t4}, s[{sWS}:{sWS+3}], s{sflag} offen sc1', tag='nocount')
        else: S(f'buffer_store_dword v{t5}, v{t4}, s[{sWS}:{sWS+3}], s{sflag} offen sc1', tag='nocount')
        S('s_mov_b64 exec, -1')
        S.label(lb)
    def epilogue(typeB):
        v = VAlloc(Bs[1] + 4, 'v', A[0][0])
        vP = v.alloc(8, 4); vcsr = v.alloc(4, 4)
        va = [vEp + i for i in range(4)]; vb = [vEp + 4 + i for i in range(4)]
        tq = [vEp + 8 + i for i in range(4)]
        vOff = vEp + 12; vAq = vEp + 13; vBq = vEp + 14
        vsd = [v.alloc() for _ in range(4)]
        def pk(op, d, srcs):
            txt = []; lo = []; hi = []
            for x in srcs:
                if x[0] == 'p': txt.append(vr(x[1], 2)); lo.append(0); hi.append(1)
                elif x[0] == 'b': txt.append(f'v[{x[1] & ~1}:{(x[1] & ~1) + 1}]'); lo.append(x[1] & 1); hi.append(x[1] & 1)
                else: txt.append(f's[{x[1]}:{x[1]+1}]'); lo.append(x[2]); hi.append(x[2])
            S(f'{op} {vr(d,2)}, ' + ', '.join(txt) + f' op_sel:[{",".join(map(str, lo))}] op_sel_hi:[{",".join(map(str, hi))}]')
        S(f'v_lshlrev_b32 v{vOff}, 4, v{vLane}')
        S(f's_lshl_b32 s{sT}, s{sTh}, 6')
        S(f'v_add_u32 v{t0}, s{sT}, v{vN}')
        S(f'v_lshlrev_b32 v{t0}, 2, v{t0}')
        S(f'v_add_u32 v{t0}, {ST_SUM}, v{t0}')
        for tt in range(4):
            S(f'ds_read_b32 v{va[tt]}, v{t0} offset:{tt*64}')
            S(f'ds_read_b32 v{vb[tt]}, v{t0} offset:{512 + tt*64}')
            if not typeB: S(f'ds_read_b32 v{vsd[tt]}, v{t0} offset:{1024 + tt*64}')
        S(f's_mul_i32 s{sT}, s{sFq}, 320')
        S(f'v_lshlrev_b32 v{t1}, 4, v{vG}')
        S(f'v_add_u32 v{t1}, s{sT}, v{t1}')
        S(f'v_add_u32 v{t1}, {ST_CS}, v{t1}')
        def rd_cs_row(dst, f):
            tmp = vCs[f]
            S(f'ds_read_b128 {vr(dst,4)}, v{t1} offset:{f*64}')
            if CSS: return []
            S(f'ds_read_b128 {vr(tmp,4)}, v{t1} offset:{f*64 + 1280}')
            return [f'v_add_f32 v{dst+r}, v{dst+r}, v{tmp+r}' for r in range(4)]
        for x in rd_cs_row(vcsr, 0): S(x)
        S(f's_cmp_lt_u32 s{sC}, 8\ns_cselect_b32 s{sScale}, {fhex(QSCALE)}, 1.0')
        for tt in range(4):
            S(f'v_mul_f32 v{vAq}, s{sScale}, v{va[tt]}')
            if PK:
                for r in (0, 2): pk('v_pk_fma_f32', acc[0][tt]+r, [('b', vb[tt]), ('p', vcsr+r), ('p', acc[0][tt]+r)])
                for r in (0, 2): pk('v_pk_mul_f32', acc[0][tt]+r, [('p', acc[0][tt]+r), ('b', vAq)])
            else:
                for r in range(4):
                    S(f'v_fma_f32 v{acc[0][tt]+r}, v{vb[tt]}, v{vcsr+r}, v{acc[0][tt]+r}')
                for r in range(4):
                    S(f'v_mul_f32 v{acc[0][tt]+r}, v{acc[0][tt]+r}, v{vAq}')
            S(f'v_cvt_pk_bf16_f32 v{vP+2*tt}, v{acc[0][tt]}, v{acc[0][tt]+1}')
            S(f'v_cvt_pk_bf16_f32 v{vP+2*tt+1}, v{acc[0][tt]+2}, v{acc[0][tt]+3}')
        S(f's_and_b32 s{sT}, s{sC}, 7\ns_lshl_b32 s{sT}, s{sT}, 2\ns_add_u32 s{sT}, s{sT}, s{sFq}\ns_lshl_b32 s{sT}, s{sT}, 16')
        S(f's_cmp_lt_u32 s{sC}, 8\ns_cselect_b32 s{sT2}, 0, {K_OFF - Q_OFF}\ns_add_u32 s{sT}, s{sT}, s{sT2}')
        S(f's_lshl_b32 s{sT2}, s{sTb}, 2\ns_lshl_b32 s{sT3}, s{sTh}, 1\ns_add_u32 s{sT2}, s{sT2}, s{sT3}\ns_lshl_b32 s{sT2}, s{sT2}, 10')
        S(f's_add_u32 s{sT}, s{sT}, s{sT2}')
        for p in range(2):
            x, y = vP + 4*p, vP + 4*p + 2
            S(f'v_permlane16_swap_b32 v{x}, v{y}')
            S(f'v_permlane16_swap_b32 v{x+1}, v{y+1}')
            S(f'buffer_store_dwordx4 {vr(x,4)}, v{vOff}, s[{sWS}:{sWS+3}], s{sT} offen offset:{p*1024}{SC}', tag='qk')
        if stamps: S(f's_memtime s[{sSt+14}:{sSt+15}]')
        if tr: trace(S, 4)
        if not typeB:
            cg = [v.alloc(4, 4) for _ in range(2)]; cu = [v.alloc(4, 4) for _ in range(2)]
            adds = []
            for i in range(2):
                adds += rd_cs_row(cg[i], 1+i); adds += rd_cs_row(cu[i], 3+i)
            for x in adds: S(x)
            K1 = -2 * LOG2E * 0.7978845608028654; K2 = K1 * 0.044715
            sK1, sK2 = 46, 47
            S(f's_mov_b32 s{sK1}, {fhex(K1)}\ns_mov_b32 s{sK2}, {fhex(K2)}')
            vk1 = v.alloc(); S(f'v_mov_b32 v{vk1}, s{sK1}')
            tg = v.alloc(4, 4); tu = v.alloc(4, 4); tz = v.alloc(4, 4)
            def gelu(i, tt, H):
                G, U = acc[1+i][tt], acc[3+i][tt]
                if PK:
                    R2 = (0, 2)
                    for r in R2: pk('v_pk_fma_f32', G+r, [('b', vb[tt]), ('p', cg[i]+r), ('p', G+r)])
                    for r in R2: pk('v_pk_fma_f32', U+r, [('b', vb[tt]), ('p', cu[i]+r), ('p', U+r)])
                    for r in R2: pk('v_pk_mul_f32', G+r, [('p', G+r), ('b', va[tt])])
                    for r in R2: pk('v_pk_mul_f32', tz+r, [('p', G+r), ('p', G+r)])
                    for r in R2: pk('v_pk_fma_f32', tz+r, [('p', tz+r), ('s', sK1, 1), ('s', sK1, 0)])
                    for r in R2: pk('v_pk_mul_f32', tz+r, [('p', tz+r), ('p', G+r)])
                    for r in range(4): S(f'v_exp_f32 v{tz+r}, v{tz+r}')
                    for r in R2: pk('v_pk_mul_f32', U+r, [('p', U+r), ('p', G+r)])
                    for r in R2: pk('v_pk_fma_f32', tz+r, [('p', tz+r), ('b', vsd[tt]), ('b', vsd[tt])])
                    for r in range(4): S(f'v_rcp_f32 v{tz+r}, v{tz+r}')
                    S('s_nop 0')
                    for r in R2: pk('v_pk_mul_f32', U+r, [('p', U+r), ('p', tz+r)])
                    S(f'v_cvt_pk_bf16_f32 v{H}, v{U}, v{U+1}')
                    S(f'v_cvt_pk_bf16_f32 v{H+1}, v{U+2}, v{U+3}')
                    return
                for r in range(4): S(f'v_fma_f32 v{G+r}, v{vb[tt]}, v{cg[i]+r}, v{G+r}')
                for r in range(4): S(f'v_fma_f32 v{U+r}, v{vb[tt]}, v{cu[i]+r}, v{U+r}')
                for r in range(4): S(f'v_mul_f32 v{G+r}, v{G+r}, v{va[tt]}')
                for r in range(4): S(f'v_mul_f32 v{tz+r}, v{G+r}, v{G+r}')
                for r in range(4): S(f'v_fma_f32 v{tz+r}, v{tz+r}, s{sK2}, v{vk1}')
                for r in range(4): S(f'v_mul_f32 v{tz+r}, v{tz+r}, v{G+r}')
                for r in range(4): S(f'v_exp_f32 v{tz+r}, v{tz+r}')
                for r in range(4): S(f'v_mul_f32 v{U+r}, v{U+r}, v{G+r}')
                for r in range(4): S(f'v_fma_f32 v{tz+r}, v{tz+r}, v{vsd[tt]}, v{vsd[tt]}')
                for r in range(4): S(f'v_rcp_f32 v{tz+r}, v{tz+r}')
                S('s_nop 0')
                for r in range(4): S(f'v_mul_f32 v{U+r}, v{U+r}, v{tz+r}')
                S(f'v_cvt_pk_bf16_f32 v{H}, v{U}, v{U+1}')
                S(f'v_cvt_pk_bf16_f32 v{H+1}, v{U+2}, v{U+3}')
            if act32:
                S(f's_lshl_b32 s{sT}, s{sTb}, 2\ns_lshl_b32 s{sT2}, s{sTh}, 1\ns_add_u32 s{sT}, s{sT}, s{sT2}\ns_mul_i32 s{sT}, s{sT}, {144*1024}')
                S(f's_lshl_b32 s{sT2}, s{sC}, 3\ns_lshl_b32 s{sT3}, s{sFq}, 1\ns_add_u32 s{sT2}, s{sT2}, s{sT3}\ns_lshl_b32 s{sT2}, s{sT2}, 10\ns_add_u32 s{sT}, s{sT}, s{sT2}')
                S(f's_add_u32 s{sT}, s{sT}, {ACT_OFF}')
                vH = [v.alloc(4, 4) for _ in range(2)]
                ND = ndefer if (fused and defer) else 0
                assert ND in (0, 1)
                blocks = [(p, i) for p in range(2) for i in range(2)]
                if fused and HD: S(f's_mov_b32 s{sHaddr}, s{sT}')
                for n, (p, i) in enumerate(blocks):
                    last = ND and n == 3
                    H = HCARRY + 12 if last else vH[n & 1]
                    if fused and HD: H = HCARRY + 4*n
                    if 'q' not in xp: gelu(i, 2*p, H); gelu(i, 2*p + 1, H + 2)
                    S(f'v_permlane16_swap_b32 v{H}, v{H+2}\nv_permlane16_swap_b32 v{H+1}, v{H+3}')
                    if not (fused and HD):
                        if last: S(f's_add_u32 s{sHaddr}, s{sT}, {i*1024}')
                        else: S(f'buffer_store_dwordx4 {vr(H,4)}, v{vOff}, s[{sWS}:{sWS+3}], s{sT} offen offset:{i*1024}{SC}', tag='h')
                        if n == 1: S(f's_add_u32 s{sT}, s{sT}, {144*1024}')
                    if fused and n == PUB_AT: publish(sFQ, 'qk', f'{L}_pq')
                if fused and HD:
                    S(f's_cmp_ge_u32 s{sW}, 4\ns_cbranch_scc1 {L}_hpass')
                    S(f's_lshl_b32 s{sT2}, s{sW}, 13\ns_add_u32 s{sT2}, s{sT2}, 131072\nv_add_u32 v{t0}, s{sT2}, v{vOff}')
                    for n in range(4): S(f'ds_write_b128 v{t0}, {vr(HCARRY + 4*n, 4)} offset:{n*1024}')
                    S('s_waitcnt lgkmcnt(0)')
                    S.label(f'{L}_hpass')
            else:
                S(f's_lshl_b32 s{sT}, s{sTb}, 3\ns_lshl_b32 s{sT2}, s{sTh}, 2\ns_add_u32 s{sT}, s{sT}, s{sT2}\ns_mul_i32 s{sT}, s{sT}, {72*1024}')
                S(f's_lshl_b32 s{sT2}, s{sC}, 2\ns_add_u32 s{sT2}, s{sT2}, s{sFq}\ns_lshl_b32 s{sT2}, s{sT2}, 10\ns_add_u32 s{sT}, s{sT}, s{sT2}')
                S(f's_add_u32 s{sT}, s{sT}, {ACT_OFF}')
                vH = [v.alloc(4, 4) for _ in range(2)]
                ND = ndefer if (fused and defer) else 0
                for tt in range(4):
                    H = vH[tt % 2] if tt < 4 - ND else HCARRY + 4*tt
                    if ND and tt == 4 - ND: S(f's_mov_b32 s{sHaddr}, s{sT}')
                    for i in range(2): gelu(i, tt, H + 2*i)
                    if tt < 4 - ND:
                        S(f'buffer_store_dwordx4 {vr(H,4)}, v{vOff}, s[{sWS}:{sWS+3}], s{sT} offen{SC}', tag='h')
                        if tt < 3: S(f's_add_u32 s{sT}, s{sT}, {72*1024}')
                    if fused and tt == PUB_AT: publish(sFQ, 'qk', f'{L}_pq')
            if fused and not defer: publish(sFH, 'h', f'{L}_ph')
        else:
            ra = [v.alloc(4, 4) for _ in range(4)]; rb = [v.alloc(4, 4) for _ in range(4)]
            S(f's_lshl_b32 s{sT}, s{sTh}, 8')
            S(f'v_lshlrev_b32 v{t2}, 4, v{vG}')
            S(f'v_add_u32 v{t2}, s{sT}, v{t2}')
            S(f'v_add_u32 v{t2}, {ST_SUM}, v{t2}')
            for tt in range(4):
                S(f'ds_read_b128 {vr(ra[tt],4)}, v{t2} offset:{tt*64}')
                S(f'ds_read_b128 {vr(rb[tt],4)}, v{t2} offset:{512 + tt*64}')
            cv = [v.alloc() for _ in range(4)]
            S(f's_mul_i32 s{sT}, s{sFq}, 320')
            S(f'v_lshlrev_b32 v{t3}, 2, v{vN}')
            S(f'v_add_u32 v{t3}, s{sT}, v{t3}')
            S(f'v_add_u32 v{t3}, {ST_CS}, v{t3}')
            for i in range(4):
                S(f'ds_read_b32 v{cv[i]}, v{t3} offset:{(1+i)*64}')
                if not CSS: S(f'ds_read_b32 v{vCs[1+i]}, v{t3} offset:{(1+i)*64 + 1280}')
            if not CSS:
                for i in range(4): S(f'v_add_f32 v{cv[i]}, v{cv[i]}, v{vCs[1+i]}')
            S(f's_sub_u32 s{sT}, s{sC}, 14\ns_lshl_b32 s{sT}, s{sT}, 4\ns_lshl_b32 s{sT2}, s{sFq}, 2\ns_add_u32 s{sT}, s{sT}, s{sT2}\ns_lshl_b32 s{sT}, s{sT}, 16')
            S(f's_lshl_b32 s{sT2}, s{sTb}, 2\ns_lshl_b32 s{sT3}, s{sTh}, 1\ns_add_u32 s{sT2}, s{sT2}, s{sT3}\ns_lshl_b32 s{sT2}, s{sT2}, 10')
            S(f's_add_u32 s{sT}, s{sT}, s{sT2}\ns_add_u32 s{sT}, s{sT}, {V_OFF}')
            vH = [v.alloc(4, 4) for _ in range(2)]
            n = 0
            for i in range(4):
                for p in range(2):
                    H = vH[n & 1]; n += 1
                    for u in range(2):
                        tt = 2*p + u; D = acc[1+i][tt]
                        if PK:
                            for r in (0, 2): pk('v_pk_fma_f32', D+r, [('p', rb[tt]+r), ('b', cv[i]), ('p', D+r)])
                            for r in (0, 2): pk('v_pk_mul_f32', D+r, [('p', D+r), ('p', ra[tt]+r)])
                        else:
                            for r in range(4): S(f'v_fma_f32 v{D+r}, v{rb[tt]+r}, v{cv[i]}, v{D+r}')
                            for r in range(4): S(f'v_mul_f32 v{D+r}, v{D+r}, v{ra[tt]+r}')
                        S(f'v_cvt_pk_bf16_f32 v{H+2*u}, v{D}, v{D+1}')
                        S(f'v_cvt_pk_bf16_f32 v{H+2*u+1}, v{D+2}, v{D+3}')
                    S(f'v_permlane32_swap_b32 v{H}, v{H+2}')
                    S(f'v_permlane32_swap_b32 v{H+1}, v{H+3}')
                    S(f'buffer_store_dwordx4 {vr(H,4)}, v{vOff}, s[{sWS}:{sWS+3}], s{sT} offen offset:{p*1024}{SC}', tag='v')
                if i < 3: S(f's_add_u32 s{sT}, s{sT}, 65536')
            if fused: publish(sFQ, 'v', f'{L}_pv')

    S(f's_cmp_eq_u32 s{sIsB}, 1\ns_cbranch_scc1 {L}_typeB')
    if not CSS: S(f's_cmp_eq_u32 s{sDuty}, 1\ns_cbranch_scc1 {L}_A1')
    procs = Processor().run(S)
    import copy
    outs = []
    def tail(typeB):
        if fused and PROT == 2:
            lb = f'{L}_clrok' + ('B' if typeB else 'A')
            S('s_mov_b64 exec, 3')
            S(f'v_cmp_ne_u32 vcc, 0x01010101, v{vT[5]}')
            S('s_mov_b64 exec, -1')
            S(f's_cmp_eq_u64 vcc, 0\ns_cbranch_scc1 {lb}')
            R = Stream(); poll(R, sDbg, vT[4], vT[5], sMc, '0x01010101', 2)
            S.raw_text(Processor().run(R).text())
            S.label(lb)
        if steptrace:
            S('s_waitcnt lgkmcnt(0)\nv_writelane_b32 v254, s72, 30\nv_writelane_b32 v254, s74, 31\ns_memtime s[72:73]\ns_waitcnt lgkmcnt(0)\nv_writelane_b32 v254, s72, 32')
            S(f'v_lshlrev_b32 v253, 2, v{vLane}\ns_lshl_b32 s{sT}, s2, 3\ns_add_u32 s{sT}, s{sT}, s{sW}\ns_lshl_b32 s{sT}, s{sT}, 8\ns_add_u32 s{sT}, s{sT}, {STAMP_OFF}')
            S(f'buffer_store_dword v254, v253, s[{sWS}:{sWS+3}], s{sT} offen', tag='nocount')
        if dbg: dbg_stamp(S, 84, 2, 0, 0, 0)
        if tr: trace(S, 2)
        reduce_stats(typeB)
        if tr: trace(S, 3)
        if stamps: S(f's_memtime s[{sSt+12}:{sSt+13}]')
        epilogue(typeB)
        if stamps:
            S(f's_memtime s[{sSt+16}:{sSt+17}]')
            S('s_waitcnt vmcnt(0)')
            S(f's_memtime s[{sSt+6}:{sSt+7}]\ns_memrealtime s[{sSt+8}:{sSt+9}]\ns_waitcnt lgkmcnt(0)')
            S(f's_sub_u32 s{sSt+2}, s{sSt+2}, s{sSt}\ns_sub_u32 s{sSt+4}, s{sSt+4}, s{sSt}\ns_sub_u32 s{sSt+6}, s{sSt+6}, s{sSt}\ns_sub_u32 s{sSt+8}, s{sSt+8}, s{sSt+10}')
            P = A[0][0]
            S(f'v_mov_b32 v{P}, s{sSt+2}\nv_mov_b32 v{P+1}, s{sSt+4}\nv_mov_b32 v{P+2}, s{sSt+6}\nv_mov_b32 v{P+3}, s{sSt+8}')
            S(f's_lshl_b32 s{sT}, s2, 3\ns_add_u32 s{sT}, s{sT}, s{sW}\ns_lshl_b32 s{sT}, s{sT}, 4\ns_add_u32 s{sT}, s{sT}, {STAMP_OFF}')
            S(f'v_mov_b32 v{t0}, 0')
            S(f'buffer_store_dwordx4 {vr(P,4)}, v{t0}, s[{sWS}:{sWS+3}], s{sT} offen')
            for a in (12, 14, 16): S(f's_sub_u32 s{sSt+a}, s{sSt+a}, s{sSt}')
            P = A[0][1]
            S(f's_sub_u32 s{sSt+18}, s{sSt+18}, s{sSt+10}\ns_sub_u32 s{sSt+20}, s{sSt+20}, s{sSt+10}\ns_lshl_b32 s{sSt+20}, s{sSt+20}, 16\ns_or_b32 s{sSt+18}, s{sSt+18}, s{sSt+20}')
            S(f'v_mov_b32 v{P}, s{sSt+12}\nv_mov_b32 v{P+1}, s{sSt+14}\nv_mov_b32 v{P+2}, s{sSt+16}\nv_mov_b32 v{P+3}, s{sSt+18}')
            S(f's_add_u32 s{sT}, s{sT}, {1 << 20}')
            S(f'buffer_store_dwordx4 {vr(P,4)}, v{t0}, s[{sWS}:{sWS+3}], s{sT} offen')
        if dbg:
            if fused: dbg_stamp(S, 84, 3, 0, 0, 0); S('s_waitcnt lgkmcnt(0)')
            else: dbg_final(S, 84, acc[0][0], sT, 0, sWS)
        if tr: trace(S, 7)
        if fused: S(f's_mov_b32 s{sIsBk}, {1 if typeB else 0}\ns_branch {L}_p2')
        else: S('s_endpgm')
    for typeB in (False, True):
        tn = 'B' if typeB else 'A'
        S.ins = []
        if CSS:
            if typeB: S.label(f'{L}_typeB')
            mainloop(typeB, 0)
            S('s_nop 7')
            tail(typeB)
            p = copy.deepcopy(procs); n0 = len(p.out); p.run(S); outs.append('\n'.join(p.out[n0:])); last = p
            continue
        if typeB:
            S.label(f'{L}_typeB')
            S(f's_cmp_eq_u32 s{sDuty}, 1\ns_cbranch_scc1 {L}_B1')
        mainloop(typeB, 0)
        S(f's_branch {L}_{tn}tail')
        p0 = copy.deepcopy(procs); n0 = len(p0.out); p0.run(S); outs.append('\n'.join(p0.out[n0:]))
        S.ins = []
        S.label(f'{L}_{tn}1')
        mainloop(typeB, 1)
        S.label(f'{L}_{tn}tail')
        S('s_nop 7')
        tail(typeB)
        p = copy.deepcopy(procs); n0 = len(p.out); p.run(S); outs.append('\n'.join(p.out[n0:])); last = p
    if fused: return procs.text() + '\n' + '\n'.join(outs), last, v.hi
    text = procs.text() + '\n' + '\n'.join(outs) + f'\n{L}_end:\ns_endpgm\n'
    return kernel_text(name, text, v.hi), last, v.hi

if __name__ == '__main__':
    import sys
    t, p, hi = gen_gemm1()
    print(t)
    from collections import Counter
    print('vgprs', hi, 'nops', p.nops_inserted, Counter(w.split(' (')[0] for w, n, _ in p.nop_log), file=sys.stderr)
```
